```python
import torch

def _softmax(x, axis=-1):
    return torch.softmax(x, dim=axis)
def _gelu(x):
    return torch.nn.functional.gelu(x, approximate="tanh")
def _silu(x):
    return torch.nn.functional.silu(x)
def _sigmoid(x):
    return torch.sigmoid(x)
def _layernorm(x, axis=-1, eps=1e-5):
    m = x.mean(dim=axis, keepdim=True)
    v = x.var(dim=axis, keepdim=True, unbiased=False)
    return (x - m) / torch.sqrt(v + eps)
def _scatter_add(tgt, idx, src, axis=0):
    return tgt.clone().index_add_(axis, idx, src)
def _segment_sum(src, seg, n):
    out = torch.zeros((n,) + src.shape[1:], dtype=src.dtype)
    return out.index_add_(0, seg, src)
def _pad(x, pw):
    flat = tuple(v for pair in reversed(pw) for v in pair)
    return torch.nn.functional.pad(x, flat)

kernel_name = 'sequential_preLN__linear_attn_block__geglu_ffn__prompt'

def setup_inputs():

    _w = (lambda a: (lambda t: t.to(torch.bfloat16) if t.is_floating_point() else t)(torch.as_tensor(a)))
    def _A_setup():
        B, S, D = 1, 2048, 512
        return {
            "x": _w((lambda *s: torch.randn(*s, dtype=torch.bfloat16) * 0.05)(B, S, D)),
            "wqkv": _w((lambda *s: torch.randn(*s, dtype=torch.bfloat16) * 0.05)(D, 3 * D)),
            "wo": _w((lambda *s: torch.randn(*s, dtype=torch.bfloat16) * 0.05)(D, D)),
        }
    _A_in = _A_setup()

    def _B_setup():
        B, S, D, F = 1, 2048, 512, 1792
        return {
            "x": _w((lambda *s: torch.randn(*s, dtype=torch.bfloat16) * 0.05)(B, S, D)),
            "w_gate": _w((lambda *s: torch.randn(*s, dtype=torch.bfloat16) * 0.05)(D, F)),
            "w_up": _w((lambda *s: torch.randn(*s, dtype=torch.bfloat16) * 0.05)(D, F)),
            "w_down": _w((lambda *s: torch.randn(*s, dtype=torch.bfloat16) * 0.05)(F, D)),
        }
    _B_in = _B_setup()

    return {
        "A_x": _A_in["x"],
        "A_wqkv": _A_in["wqkv"],
        "A_wo": _A_in["wo"],
        "B_x": _B_in["x"],
        "B_w_gate": _B_in["w_gate"],
        "B_w_up": _B_in["w_up"],
        "B_w_down": _B_in["w_down"],
    }

def reference(A_x, A_wqkv, A_wo, B_x, B_w_gate, B_w_up, B_w_down):
    def _A_ref(x, wqkv, wo):
        B, S, D = x.shape
        H = 32; Dh = D // H
        qkv = (lambda x, *d: x.permute(*d))((x @ wqkv).reshape(B, S, 3, H, Dh), 2, 0, 3, 1, 4)
        q, k, v = qkv[0], qkv[1], qkv[2]
        phi = lambda t: torch.where(t > 0, t + 1, torch.exp(t)) + 1e-6
        pq, pk = phi(q), phi(k)
        kv = torch.einsum("bhsd,bhse->bhde", pk, v)
        z = torch.einsum("bhsd->bhd", pk)
        num = torch.einsum("bhqd,bhde->bhqe", pq, kv)
        den = torch.einsum("bhqd,bhd->bhq", pq, z)[..., None] + 1e-6
        o = num / den
        return (lambda x, *d: x.permute(*d))(o, 0, 2, 1, 3).reshape(B, S, D) @ wo

    def _B_ref(x, w_gate, w_up, w_down):
        return (_gelu(x @ w_gate) * (x @ w_up)) @ w_down

    x = A_x
    h = x + _A_ref(_layernorm(x, axis=-1), A_wqkv, A_wo)
    h2 = h + _B_ref(_layernorm(h, axis=-1), B_w_gate, B_w_up, B_w_down)
    return h2
```

```python
import re

TRANS = ("v_exp_f32", "v_log_f32", "v_rcp_f32", "v_rsq_f32", "v_sqrt_f32", "v_sin_f32", "v_cos_f32")

def _regs(tok):
    tok = tok.strip()
    tok = tok.lstrip('-')
    m = re.fullmatch(r'abs\((.*)\)', tok)
    if m: tok = m.group(1)
    m = re.fullmatch(r'\|(.*)\|', tok)
    if m: tok = m.group(1)
    m = re.fullmatch(r'([vas])(\d+)', tok)
    if m: return {m.group(1) + m.group(2)}
    m = re.fullmatch(r'([vas])\[(\d+):(\d+)\]', tok)
    if m: return {m.group(1) + str(i) for i in range(int(m.group(2)), int(m.group(3)) + 1)}
    if tok in ('vcc', 'exec', 'm0', 'scc'): return {tok}
    if tok in ('vcc_lo', 'vcc_hi'): return {'vcc'}
    if tok in ('exec_lo', 'exec_hi'): return {'exec'}
    return set()

class Ins:
    __slots__ = ('text', 'op', 'kind', 'dst', 'src', 'srcc', 'passes', 'states', 'wide_store')
    def __init__(self, text):
        self.text = text
        t = text.split(';')[0].strip()
        parts = t.split(None, 1)
        op = parts[0]
        self.op = op
        rest = parts[1] if len(parts) > 1 else ''
        ops = [o.strip() for o in re.split(r',(?![^\[]*\])', rest)] if rest else []
        toks = []
        for o in ops:
            f = o.split()
            toks.append(f[0] if f else '')
        self.dst = set(); self.src = set(); self.srcc = set(); self.passes = 0
        self.states = 1; self.wide_store = False
        R = [_regs(x) for x in toks]
        if op == 's_nop':
            self.kind = 'nop'; self.states = int(toks[0], 0) + 1; return
        if op.startswith('v_mfma'):
            self.kind = 'mfma'
            self.dst = R[0]; self.src = R[1] | R[2]; self.srcc = R[3]
            self.passes = 8 if '32x32x16' in op else 4
            return
        if op.startswith('v_'):
            self.kind = 'trans' if op.split('_e')[0] in TRANS or op in TRANS else 'valu'
            if op.startswith('v_cmp'):
                self.dst = R[0]; self.src = set().union(*R[1:])
                if op.startswith('v_cmpx'): self.dst = self.dst | {'exec'}
            elif op.startswith('v_permlane') and 'swap' in op:
                self.dst = R[0] | R[1]; self.src = R[0] | R[1]
            elif op.startswith(('v_add_co', 'v_sub_co', 'v_addc_co', 'v_subb_co')):
                self.dst = R[0] | R[1]; self.src = set().union(*R[2:])
            else:
                self.dst = R[0]; self.src = set().union(*R[1:]) if len(R) > 1 else set()
                if op.startswith(('v_fmac', 'v_dot2c', 'v_pk_fmac')): self.src |= R[0]
                if op.startswith('v_cndmask') and len(R) == 3: self.src |= {'vcc'}
            return
        if op.startswith(('buffer_', 'global_', 'flat_')):
            self.kind = 'vmem'
            lds = ' lds' in (' ' + rest) or 'load_lds' in op
            if op in ('buffer_wbl2', 'buffer_inv'): return
            if 'store' in op or ('atomic' in op):
                self.src = set().union(*R)
                if 'atomic' in op and ' sc0' in rest:
                    self.dst = R[0]
                if 'x4' in op or 'x3' in op:
                    self.wide_store = True
                    self.srcc = R[0] if op.startswith('buffer_') else R[1]
            elif lds:
                self.src = set().union(*R) | {'m0'}
                self.kind = 'vmemlds'
            else:
                self.dst = R[0]; self.src = set().union(*R[1:])
            return
        if op.startswith('ds_'):
            self.kind = 'ds'
            if 'read' in op or 'permute' in op or 'swizzle' in op:
                self.dst = R[0]; self.src = set().union(*R[1:])
            else:
                self.src = set().union(*R)
            return
        if op.startswith('s_'):
            self.kind = 'salu'
            if op.startswith(('s_cmp', 's_cbranch', 's_branch', 's_waitcnt', 's_barrier', 's_endpgm', 's_sleep', 's_setprio')):
                self.src = set().union(*R) if R else set()
            else:
                self.dst = R[0] if R else set(); self.src = set().union(*R[1:]) if len(R) > 1 else set()
                if 'saveexec' in op: self.dst = self.dst | {'exec'}
            return
        self.kind = 'other'

def need(p, c):
    n = 0
    isv = lambda s: {r for r in s if r[0] in 'va' and r not in ('vcc',)}
    iss = lambda s: {r for r in s if (r[0] == 's' and r != 'scc') or r == 'vcc'}
    pv = p.kind in ('valu', 'trans')
    cv = c.kind in ('valu', 'trans')
    if pv:
        if c.kind == 'mfma' and (p.dst & (c.src | c.srcc)): n = max(n, 2)
        if c.kind == 'mfma' and 'exec' in p.dst: n = max(n, 4)
        if cv and iss(p.dst) & c.src: n = max(n, 2)
        if cv and c.op.startswith(('v_readlane', 'v_writelane')) and iss(p.dst) & c.src: n = max(n, 4)
        if c.kind in ('vmem', 'vmemlds') and iss(p.dst) & c.src: n = max(n, 5)
        if cv and c.op.startswith(('v_readfirstlane', 'v_readlane')) and isv(p.dst) & c.src: n = max(n, 1)
        if cv and (c.op.startswith('v_permlane') or 'dpp' in c.text) and isv(p.dst) & c.src: n = max(n, 2)
        if cv and 'exec' in p.dst and ('dpp' in c.text): n = max(n, 5)
        if cv and 'exec' in p.dst and c.op.startswith(('v_readfirstlane', 'v_readlane', 'v_permlane')): n = max(n, 4)
        if p.kind == 'trans' and c.kind == 'valu' and p.dst & c.src: n = max(n, 1)
        if p.kind == 'trans' and c.kind in ('vmem','ds','mfma') and p.dst & (c.src|c.srcc): n = max(n, 2)
        if p.op.startswith('v_dot'):
            if cv and (p.dst & (c.src | c.dst)):
                same = c.op == p.op
                if not (same and c.dst == p.dst): n = max(n, 3)
            if c.kind in ('vmem','ds','mfma') and p.dst & (c.src|c.srcc): n = max(n, 3)
        if ('sdwa' in p.text or 'op_sel' in p.text) and cv and p.dst & (c.src | c.dst): n = max(n, 1)
        if c.kind == 'salu' and iss(p.dst) & c.src: n = max(n, 1)
    if p.kind == 'mfma':
        big = {8: 12, 4: 8}[p.passes]
        ov = {8: 10, 4: 6}[p.passes]
        war = {8: 7, 4: 3}[p.passes]
        if c.kind == 'mfma':
            if p.dst & c.src: n = max(n, big)
            if p.dst & c.srcc and not (p.dst == c.srcc and p.passes == c.passes): n = max(n, ov)
            if p.dst & c.dst and not (p.dst == c.srcc and p.passes == c.passes): n = max(n, ov)
        elif cv:
            if p.dst & (c.src | c.dst): n = max(n, big)
            if p.srcc & c.dst: n = max(n, war)
        elif c.kind in ('vmem', 'ds', 'vmemlds'):
            if p.dst & (c.src | c.dst): n = max(n, big)
    if p.kind == 'salu':
        if 'm0' in p.dst and c.kind == 'vmemlds': n = max(n, 1)
        if 'exec' in p.dst and cv and 'dpp' in c.text: n = max(n, 0)
    if p.kind == 'vmem' and p.wide_store:
        if (cv or c.kind in ('ds','vmem','mfma')) and p.srcc & c.dst: n = max(n, 2)
    return n

class Asm:
    def __init__(self):
        self.lines = []
        self.hist = []
        self.nops = 0
    def raw(self, s):
        self.lines.append(s)
    def label(self, name):
        self.lines.append(name + ':')
    def comment(self, s):
        self.lines.append('    ; ' + s)
    def __call__(self, text):
        for t in text.strip().split('\n'):
            t = t.strip()
            if not t or t.startswith(';'):
                continue
            ins = Ins(t)
            dist = 0; pad = 0
            for p in reversed(self.hist):
                r = need(p, ins)
                if r > dist: pad = max(pad, r - dist)
                dist += p.states
                if dist >= 20: break
            while pad > 0:
                k = min(pad, 16)
                nop = Ins(f's_nop {k-1}')
                self.lines.append(f'    s_nop {k-1}')
                self.hist.append(nop); self.nops += 1
                pad -= k
            self.lines.append('    ' + t)
            self.hist.append(ins)
            if len(self.hist) > 40: self.hist = self.hist[-30:]
    def flush_hazards(self):
        self('s_nop 15'); self('s_nop 3')
    def text(self):
        return '\n'.join(self.lines) + '\n'

def vr(base, n=1, f='v'):
    return f'{f}{base}' if n == 1 else f'{f}[{base}:{base+n-1}]'
def ar(base, n=1): return vr(base, n, 'a')
def sr(base, n=1): return vr(base, n, 's')
```

```python
import sys
from asmlib import *

NAME = 'sequential_preLN__linear_attn_block__geglu_ffn__prompt'
WS_PQ = 0x000000; WS_H = 0x200000; WS_ACT = 0x400000; WS_STATS = 0xB00000; WS_KV = 0xB40000
WS_FLAG = 0xB50000; WS_TS = 0xBA0000; WS_SIZE = 0xC00000
LOG2E = 1.4426950408889634
import struct
def fbits(x): return '0x%08x' % struct.unpack('<I', struct.pack('<f', x))[0]

S_WG = 2; S_WAVE = 3
S_PTR = 16
SRD_X = 36; SRD_WQKV = 40; SRD_WO = 44; SRD_WGU = 48; SRD_WD = 52; SRD_OUT = 56; SRD_WS = 60; SRD_DBG = 64
S_XCD = 68; S_J = 69
S_T0 = 70
S_TS = 90

class VM:
    def __init__(self, a): self.a = a; self.q = []
    def issue(self, text, tag):
        self.a(text); self.q.append(tag)
        assert len(self.q) <= 63, "vmcnt overflow"
    def wait(self, *tags, extra=''):
        last = -1
        for i, t in enumerate(self.q):
            if t in tags: last = i
        if last < 0:
            if extra: self.a(f's_waitcnt {extra}')
            return
        n = len(self.q) - 1 - last
        self.a(f's_waitcnt vmcnt({n}) {extra}'.strip())
        self.q = self.q[last+1:]
    def wait_all(self, extra=''):
        self.a(f's_waitcnt vmcnt(0) {extra}'.strip()); self.q = []

def srd(a, d, ptr, size):
    a(f's_mov_b32 s{d}, s{ptr}')
    a(f's_mov_b32 s{d+1}, s{ptr+1}')
    a(f's_mov_b32 s{d+2}, {size}')
    a(f's_mov_b32 s{d+3}, 0x20000')

def stamp(a, cfg, i):
    if cfg.get('stamps'):
        a(f's_memrealtime s[{S_TS+2*i}:{S_TS+2*i+1}]')

def write_stamps(a, cfg, n, slot):
    if not cfg.get('stamps'): return
    a('s_waitcnt lgkmcnt(0)')
    a(f's_lshl_b32 s70, s{S_WG}, 2')
    a(f's_add_u32 s70, s70, s{S_WAVE}')
    a(f's_lshl_b32 s70, s70, 5')
    a(f's_add_u32 s70, s70, {WS_TS + slot*256*4*32}')
    a('v_mov_b32 v1, 0')
    for i in range(n):
        a(f'v_mov_b32 v2, s{S_TS+2*i}')
        a(f'buffer_store_dword v2, v1, s[{SRD_WS}:{SRD_WS+3}], s70 offen offset:{4*i}')

def prologue(a, cfg, endlabel):
    a(f's_cmp_ge_u32 s{S_WG}, 256')
    a(f's_cbranch_scc1 {endlabel}')
    a(f's_load_dwordx16 s[16:31], s[0:1], 0')
    a(f's_load_dwordx4 s[32:35], s[0:1], 64')
    stamp(a, cfg, 0)
    a('v_lshrrev_b32 v1, 6, v0')
    a(f'v_readfirstlane_b32 s{S_WAVE}, v1')
    a('v_and_b32 v0, 63, v0')
    a(f's_and_b32 s{S_XCD}, s{S_WG}, 7')
    a(f's_lshr_b32 s{S_J}, s{S_WG}, 3')
    a('s_waitcnt lgkmcnt(0)')
    srd(a, SRD_X, 16, 2048*512*2)
    srd(a, SRD_WQKV, 18, 512*1536*2)
    srd(a, SRD_WO, 20, 512*512*2)
    a(f's_cmp_ge_u32 s{S_WAVE}, 2')
    a(f's_cselect_b32 s{SRD_WGU}, s26, s24')
    a(f's_cselect_b32 s{SRD_WGU+1}, s27, s25')
    a(f's_mov_b32 s{SRD_WGU+2}, {512*1792*2}')
    a(f's_mov_b32 s{SRD_WGU+3}, 0x20000')
    srd(a, SRD_WD, 28, 1792*512*2)
    srd(a, SRD_OUT, 30, 2048*512*2)
    srd(a, SRD_DBG, 32, 256)
    srd(a, SRD_WS, 34, WS_SIZE)

def SR(b): return f's[{b}:{b+3}]'

def phaseA(a, cfg, vm):
    W = S_WAVE
    XR = 98304
    s_rb, s_hp, s_x, s_w, s_m0x, s_m0w = 70, 71, 72, 73, 74, 75
    a(f's_and_b32 s{s_rb}, s{S_J}, 1')
    a(f's_lshl_b32 s76, s{S_XCD}, 1')
    a(f's_add_u32 s{s_rb}, s{s_rb}, s76')
    a(f's_lshr_b32 s{s_hp}, s{S_J}, 1')
    a(f's_lshl_b32 s{s_x}, s{s_rb}, 17')
    a(f's_lshl_b32 s76, s{W}, 15')
    a(f's_add_u32 s{s_x}, s{s_x}, s76')
    a(f's_mul_i32 s{s_w}, s{W}, {16*3072}')
    a(f's_lshl_b32 s76, s{s_hp}, 6')
    a(f's_add_u32 s{s_w}, s{s_w}, s76')
    a(f's_lshl_b32 s{s_m0x}, s{W}, 14')
    a(f's_add_u32 s{s_m0x}, s{s_m0x}, {XR}')
    a(f's_mul_i32 s{s_m0w}, s{W}, 3072')
    vXd = 4
    vWd = 8
    vXr = 12
    vWn = 16
    vWp = 20
    vSum, vSq, vCs = 24, 25, 26
    vOne = 29
    vT = 30
    vAcc = 40
    vX = 88
    vW = 120
    a(f'v_lshrrev_b32 v{vT}, 3, v0')
    a(f'v_and_b32 v{vT+1}, 7, v0')
    a(f'v_lshrrev_b32 v{vT+2}, 1, v{vT}')
    a(f'v_xor_b32 v{vT+1}, v{vT+1}, v{vT+2}')
    a(f'v_lshlrev_b32 v{vT+1}, 4, v{vT+1}')
    a(f'v_lshl_add_u32 v{vXd}, v{vT}, 10, v{vT+1}')
    a(f'v_xor_b32 v{vXd+1}, 64, v{vXd}')
    a(f'v_add_u32 v{vXd+1}, {8192-1024}, v{vXd+1}')
    a(f'v_add_u32 v{vXd+2}, {2*(8192-1024)}, v{vXd}')
    a(f'v_add_u32 v{vXd+3}, {2*(8192-1024)}, v{vXd+1}')
    for q in range(3):
        a(f'v_add_u32 v{vT}, {64*q}, v0')
        a(f'v_mul_u32_u24 v{vT+1}, 171, v{vT}')
        a(f'v_lshrrev_b32 v{vT+1}, 11, v{vT+1}')
        a(f'v_mul_u32_u24 v{vT+2}, 12, v{vT+1}')
        a(f'v_sub_u32 v{vT+2}, v{vT}, v{vT+2}')
        a(f'v_mul_u32_u24 v{vT+1}, 3072, v{vT+1}')
        a(f'v_lshrrev_b32 v{vT+3}, 2, v{vT+2}')
        a(f'v_lshl_add_u32 v{vT+1}, v{vT+3}, 10, v{vT+1}')
        a(f'v_and_b32 v{vT+2}, 3, v{vT+2}')
        a(f'v_lshl_add_u32 v{vWd+q}, v{vT+2}, 4, v{vT+1}')
        if q: a(f'v_subrev_u32 v{vWd+q}, {1024*q}, v{vWd+q}')
    def dma_x(c):
        a(f's_add_u32 m0, s{s_m0x}, {(c&3)*4096}')
        a(f's_add_u32 s76, s{s_x}, {c*128}')
        for i in range(4):
            vm.issue(f'buffer_load_dwordx4 v{vXd+i}, {SR(SRD_X)}, s76 offen offset:{i*1024} lds', f'x{c}')
    def dma_w(c):
        a(f's_add_u32 m0, s{s_m0w}, {c*12288}')
        a(f's_add_u32 s77, s{s_w}, {c*64*3072}')
        for q in range(3):
            vm.issue(f'buffer_load_dwordx4 v{vWd+q}, {SR(SRD_WQKV)}, s77 offen offset:{q*1024} lds', f'w{c}')
    a(f's_cmp_lg_u32 s{s_rb}, 0')
    a(f's_cbranch_scc1 LA_nozero')
    a(f'v_mov_b32 v{vT}, 0')
    a(f'v_mov_b32 v{vT+1}, 0')
    a(f'v_mov_b32 v{vT+2}, 0')
    a(f'v_mov_b32 v{vT+3}, 0')
    a(f's_mul_i32 s76, s{s_hp}, 2176')
    a(f's_add_u32 s76, s76, {WS_KV}')
    a(f's_lshl_b32 s77, s{W}, 10')
    a(f'v_lshl_add_u32 v{vT+4}, v0, 4, s77')
    a(f'v_cmp_gt_u32 vcc, 2176, v{vT+4}')
    a('s_and_saveexec_b64 s[78:79], vcc')
    a('s_cbranch_execz LA_z1')
    a(f'buffer_store_dwordx4 v[{vT}:{vT+3}], v{vT+4}, {SR(SRD_WS)}, s76 offen sc1')
    a.label('LA_z1')
    a('s_mov_b64 exec, s[78:79]')
    if cfg.get('zero_flags'): cfg['zero_flags'](a, vT)
    a('s_waitcnt vmcnt(0)')
    a('s_barrier')
    a(f's_cmp_lg_u32 s{W}, 0')
    a(f's_cbranch_scc1 LA_nozero')
    a(f'v_mov_b32 v{vT}, 1')
    a(f's_lshl_b32 s76, s{s_hp}, 2')
    a(f'v_mov_b32 v{vT+1}, s76')
    a('s_mov_b64 exec, 1')
    a(f'buffer_store_dword v{vT}, v{vT+1}, {SR(SRD_DBG)}, 0 offen sc1')
    a('s_waitcnt vmcnt(0)')
    a('s_mov_b64 exec, -1')
    a.label('LA_nozero')
    for c in range(4):
        dma_x(c); dma_w(c)
    for c in range(4, 8): dma_w(c)
    a(f'v_and_b32 v{vT}, 31, v0')
    a(f'v_lshrrev_b32 v{vT+1}, 5, v0')
    a(f'v_lshrrev_b32 v{vT+2}, 1, v{vT}')
    a(f'v_and_b32 v{vT+2}, 7, v{vT+2}')
    a(f'v_xor_b32 v{vT+2}, v{vT+2}, v{vT+1}')
    a(f'v_lshlrev_b32 v{vT+2}, 4, v{vT+2}')
    a(f'v_lshl_add_u32 v{vT+2}, v{vT}, 7, v{vT+2}')
    a(f'v_add_u32 v{vT+2}, s{s_m0x}, v{vT+2}')
    for s in range(4):
        a(f's_xor_b32 s76, s{W}, {s}')
        a(f's_lshl_b32 s76, s76, 5')
        a(f'v_xor_b32 v{vXr+s}, s76, v{vT+2}')
    a(f'v_bfe_u32 v{vT+2}, v0, 2, 2')
    a(f'v_lshl_add_u32 v{vT+2}, v{vT+1}, 3, v{vT+2}')
    a(f'v_mul_u32_u24 v{vT+2}, 192, v{vT+2}')
    a(f'v_bfe_u32 v{vT+3}, v0, 4, 1')
    a(f'v_lshl_add_u32 v{vT+2}, v{vT+3}, 5, v{vT+2}')
    a(f'v_and_b32 v{vT+3}, 3, v0')
    a(f'v_lshl_add_u32 v{vT+4}, v{vT+3}, 3, v{vT+2}')
    a(f'v_and_b32 v{vT+5}, 1, v0')
    a(f'v_lshl_add_u32 v{vT+5}, v{vT+5}, 4, v{vT+2}')
    a(f'v_bfe_u32 v{vT+3}, v0, 1, 1')
    a(f'v_lshl_add_u32 v{vT+5}, v{vT+3}, 3, v{vT+5}')
    for s in range(4):
        a(f's_xor_b32 s76, s{W}, {s}')
        a(f's_mul_i32 s76, s76, 3072')
        a(f'v_add_u32 v{vWn+s}, s76, v{vT+4}')
        a(f'v_add_u32 v{vWp+s}, s76, v{vT+5}')
    for r in (vSum, vSq, vCs, vCs+1, vCs+2): a(f'v_mov_b32 v{r}, 0')
    a(f'v_mov_b32 v{vOne}, 0x3f803f80')
    def rdW(c, s):
        base = vW + (c&1)*48 + s*12
        off = (c&3)*12288
        for tile in range(3):
            ad = (vWp if tile == 0 else vWn) + s
            for h2 in range(2):
                a(f'ds_read_b64_tr_b16 {vr(base+tile*4+h2*2,2)}, v{ad} offset:{off + h2*768 + tile*64}')
    def dots(c):
        xb = vX + (c&1)*16; wb = vW + (c&1)*48
        for i in range(16):
            a(f'v_dot2c_f32_bf16 v{vSum}, v{xb+i}, v{vOne}')
            a(f'v_dot2c_f32_bf16 v{vSq}, v{xb+i}, v{xb+i}')
        for i in range(4):
            for tile in range(3):
                a(f'v_dot2c_f32_bf16 v{vCs+tile}, v{wb+tile*4+i}, v{vOne}')
    def mm(c, s):
        xb = vr(vX + (c&1)*16 + s*4, 4); wb = vW + (c&1)*48 + s*12
        first = (c == 0 and s == 0)
        C = lambda t: '0' if first else vr(vAcc+16*t, 16)
        a(f'v_mfma_f32_32x32x16_bf16 {vr(vAcc+16,16)}, {xb}, {vr(wb+4,4)}, {C(1)}')
        a(f'v_mfma_f32_32x32x16_bf16 {vr(vAcc+32,16)}, {xb}, {vr(wb+8,4)}, {C(2)}')
        a(f'v_mfma_f32_32x32x16_bf16 {vr(vAcc,16)}, {vr(wb,4)}, {xb}, {C(0)}')
    for c in range(8):
        if c == 4:
            for s in range(4):
                a(f'v_add_u32 v{vWn+s}, 49152, v{vWn+s}')
                a(f'v_add_u32 v{vWp+s}, 49152, v{vWp+s}')
        vm.wait(f'x{c}', f'w{c}')
        a('s_barrier')
        if c == 0: stamp(a, cfg, 1)
        for s in range(4):
            a(f'ds_read_b128 {vr(vX+(c&1)*16+s*4,4)}, v{vXr+s} offset:{(c&3)*4096}')
        rdW(c, 0)
        if c: dots(c-1)
        a('s_waitcnt lgkmcnt(0)')
        if c + 4 < 8: dma_x(c+4)
        rdW(c, 1); rdW(c, 2)
        mm(c, 0)
        a('s_waitcnt lgkmcnt(6)')
        rdW(c, 3)
        mm(c, 1)
        a('s_waitcnt lgkmcnt(6)')
        mm(c, 2)
        a('s_waitcnt lgkmcnt(0)')
        mm(c, 3)
    dots(7)
    stamp(a, cfg, 2)
    vDbg = 216
    a(f'v_and_b32 v{vT}, 15, v0')
    a(f'v_lshlrev_b32 v{vT+9}, 2, v{vT}')
    vm.issue(f'buffer_load_dword v{vDbg}, v{vT+9}, {SR(SRD_DBG)}, 0 offen sc1', 'dbg')
    for r in (vSum, vSq, vCs, vCs+1, vCs+2):
        a(f'v_mov_b32 v{vT}, v{r}')
        a(f'v_permlane32_swap_b32 v{r}, v{vT}')
        a(f'v_add_f32 v{r}, v{r}, v{vT}')
    vMean, vRstd = vSum, vSq
    a(f'v_mul_f32 v{vMean}, {fbits(1/512)}, v{vSum}')
    a(f'v_mul_f32 v{vSq}, {fbits(1/512)}, v{vSq}')
    a(f'v_fma_f32 v{vSq}, -v{vMean}, v{vMean}, v{vSq}')
    a(f'v_max_f32 v{vSq}, 0, v{vSq}')
    a(f'v_add_f32 v{vSq}, {fbits(1e-5)}, v{vSq}')
    a(f'v_rsq_f32 v{vRstd}, v{vSq}')
    a(f'v_and_b32 v{vT}, 31, v0')
    a(f'v_lshl_add_u32 v{vT+1}, v{vT}, 2, s{s_m0x}')
    a(f'ds_write_b32 v{vT+1}, v{vMean}')
    a(f'ds_write_b32 v{vT+1}, v{vRstd} offset:128')
    for tile in range(3):
        a(f'ds_write_b32 v{vT+1}, v{vCs+tile} offset:{256+128*tile}')
    a('s_waitcnt lgkmcnt(0)')
    a('s_barrier')
    vP = 88
    a(f'v_lshlrev_b32 v{vT+2}, 2, v{vT}')
    a(f'v_add_u32 v{vT+2}, {XR}, v{vT+2}')
    for tile in (1, 2, 0):
        for w in range(4):
            a(f'ds_read_b32 v{vP+tile*4+w}, v{vT+2} offset:{w*16384+256+128*tile}')
    vM, vR = 104, 120
    a(f'v_lshrrev_b32 v{vT+3}, 5, v0')
    a(f'v_lshl_add_u32 v{vT+3}, v{vT+3}, 4, s{s_m0x}')
    a('s_waitcnt lgkmcnt(4)')
    for aa in range(4):
        a(f'ds_read_b128 {vr(vM+4*aa,4)}, v{vT+3} offset:{aa*32}')
        a(f'ds_read_b128 {vr(vR+4*aa,4)}, v{vT+3} offset:{128+aa*32}')
    for tile in (1, 2):
        b = vP + tile*4
        a(f'v_add_f32 v{b}, v{b}, v{b+1}')
        a(f'v_add_f32 v{b+2}, v{b+2}, v{b+3}')
        a(f'v_add_f32 v{vCs+tile}, v{b}, v{b+2}')
    a('s_waitcnt lgkmcnt(8)')
    b = vP
    a(f'v_add_f32 v{b}, v{b}, v{b+1}')
    a(f'v_add_f32 v{b+2}, v{b+2}, v{b+3}')
    a(f'v_add_f32 v{vCs}, v{b}, v{b+2}')
    a(f'ds_write_b32 v{vT+1}, v{vCs} offset:768')
    a('s_waitcnt lgkmcnt(1)')
    vK, vV, vQ = vAcc+16, vAcc+32, vAcc
    vE = 136
    s_l2e, s_eps = 76, 77
    a(f's_mov_b32 s{s_l2e}, {fbits(LOG2E)}')
    a(f's_mov_b32 s{s_eps}, {fbits(1e-6)}')
    for r in range(16):
        a(f'v_fma_f32 v{vK+r}, -v{vM+r}, v{vCs+1}, v{vK+r}')
        a(f'v_fma_f32 v{vV+r}, -v{vM+r}, v{vCs+2}, v{vV+r}')
    for r in range(16):
        a(f'v_mul_f32 v{vK+r}, v{vK+r}, v{vR+r}')
        a(f'v_mul_f32 v{vV+r}, v{vV+r}, v{vR+r}')
    for r in range(16):
        a(f'v_mul_f32 v{vE+r}, s{s_l2e}, v{vK+r}')
    for r in range(16):
        a(f'v_exp_f32_e64 v{vE+r}, v{vE+r} clamp')
        a(f'v_max_f32 v{vK+r}, 0, v{vK+r}')
    vPK, vPV = 152, 160
    for i in range(8):
        a(f'v_cvt_pk_bf16_f32 v{vPV+i}, v{vV+2*i}, v{vV+2*i+1}')
    for r in range(16):
        a(f'v_add_f32 v{vE+r}, s{s_eps}, v{vE+r}')
    for r in range(16):
        a(f'v_add_f32 v{vK+r}, v{vK+r}, v{vE+r}')
    for i in range(8):
        a(f'v_cvt_pk_bf16_f32 v{vPK+i}, v{vK+2*i}, v{vK+2*i+1}')
    vOnes = 168
    for i in range(4): a(f'v_mov_b32 v{vOnes+i}, v{vOne}')
    vD2, vD3 = 176, 192
    a(f'v_mfma_f32_32x32x16_bf16 {vr(vD2,16)}, {vr(vPK,4)}, {vr(vPV,4)}, 0')
    a(f'v_mfma_f32_32x32x16_bf16 {vr(vD3,16)}, {vr(vPK,4)}, {vr(vOnes,4)}, 0')
    a(f'v_mfma_f32_32x32x16_bf16 {vr(vD2,16)}, {vr(vPK+4,4)}, {vr(vPV+4,4)}, {vr(vD2,16)}')
    a(f'v_mfma_f32_32x32x16_bf16 {vr(vD3,16)}, {vr(vPK+4,4)}, {vr(vOnes,4)}, {vr(vD3,16)}')
    vCq = 104
    for aa in range(4):
        a(f'ds_read_b128 {vr(vCq+4*aa,4)}, v{vT+3} offset:{768+aa*32}')
    a(f'v_and_b32 v{vT+4}, 3, v0')
    a(f'v_bfe_u32 v{vT+5}, v0, 2, 1')
    a(f'v_lshl_add_u32 v{vT+4}, v{vT+5}, 3, v{vT+4}')
    a(f'v_bfe_u32 v{vT+5}, v0, 3, 1')
    a(f'v_lshl_add_u32 v{vT+4}, v{vT+5}, 2, v{vT+4}')
    a(f'v_bfe_u32 v{vT+5}, v0, 4, 1')
    a(f'v_mul_u32_u24 v{vT+6}, 1088, v{vT+5}')
    a(f'v_lshrrev_b32 v{vT+7}, 5, v0')
    a(f'v_mul_u32_u24 v{vT+7}, 544, v{vT+7}')
    a(f'v_add3_u32 v{vT+6}, v{vT+6}, v{vT+7}, s{s_m0x}')
    a(f'v_lshl_add_u32 v{vT+4}, v{vT+4}, 4, v{vT+6}')
    a(f'v_cmp_eq_u32 vcc, 1, v{vT+5}')
    for j in range(8):
        a(f'v_cndmask_b32 v{vD2+j}, v{vD2+j}, v{vD2+8+j}, vcc')
    for j in range(8):
        a(f'v_cndmask_b32 v{vD3+j}, v{vD3+j}, v{vD3+8+j}, vcc')
    a(f'ds_write_b128 v{vT+4}, {vr(vD2,4)} offset:1024')
    a(f'ds_write_b128 v{vT+4}, {vr(vD2+4,4)} offset:{1024+272}')
    a('s_mov_b64 exec, 0x0001000100010001') if False else None
    a('s_mov_b32 exec_lo, 0x00010001')
    a('s_mov_b32 exec_hi, 0x00010001')
    a(f'ds_write_b128 v{vT+6}, {vr(vD3,4)} offset:{1024+256}')
    a(f'ds_write_b128 v{vT+6}, {vr(vD3+4,4)} offset:{1024+272+256}')
    a('s_mov_b64 exec, -1')
    a('s_waitcnt lgkmcnt(0)')
    a('s_barrier')
    a(f's_lshl_b32 s78, s{W}, 8')
    a(f'v_lshl_add_u32 v{vT+4}, v0, 2, s78')
    a(f'v_add_u32 v{vT+5}, {XR+1024}, v{vT+4}')
    for i in range(3):
        for w in range(4):
            a(f'ds_read_b32 v{vD2+i*4+w}, v{vT+5} offset:{w*16384+i*1024}')
    a.label('LA_chk')
    vm.wait('dbg')
    a(f'v_cmp_ne_u32 vcc, 1, v{vDbg}')
    a('s_cbranch_vccz LA_ok')
    a(f'buffer_load_dword v{vDbg}, v{vT+9}, {SR(SRD_DBG)}, 0 offen sc1')
    a('s_waitcnt vmcnt(0)')
    a('s_branch LA_chk')
    a.label('LA_ok')
    a('s_waitcnt lgkmcnt(0)')
    for i in range(3):
        b = vD2+i*4
        a(f'v_add_f32 v{b}, v{b}, v{b+1}')
        a(f'v_add_f32 v{b+2}, v{b+2}, v{b+3}')
        a(f'v_add_f32 v{b}, v{b}, v{b+2}')
    a(f's_mul_i32 s78, s{s_hp}, 2176')
    a(f's_add_u32 s78, s78, {WS_KV}')
    vm.issue(f'buffer_atomic_add_f32 v{vD2}, v{vT+4}, {SR(SRD_WS)}, s78 offen', 'st')
    vm.issue(f'buffer_atomic_add_f32 v{vD2+4}, v{vT+4}, {SR(SRD_WS)}, s78 offen offset:1024', 'st')
    a(f'v_cmp_gt_u32 vcc, {2176-2048}, v{vT+4}')
    a('s_and_saveexec_b64 s[80:81], vcc')
    a('s_cbranch_execz LA_noat')
    a(f'buffer_atomic_add_f32 v{vD2+8}, v{vT+4}, {SR(SRD_WS)}, s78 offen offset:2048')
    a.label('LA_noat')
    a('s_mov_b64 exec, s[80:81]')
    a(f'v_mul_f32 v{vT+6}, s{s_l2e}, v{vRstd}')
    for r in range(16):
        a(f'v_fma_f32 v{vQ+r}, -v{vMean}, v{vCq+r}, v{vQ+r}')
    for r in range(16):
        a(f'v_mul_f32 v{vE+r}, v{vT+6}, v{vQ+r}')
        a(f'v_mul_f32 v{vQ+r}, v{vRstd}, v{vQ+r}')
    for r in range(16):
        a(f'v_exp_f32_e64 v{vE+r}, v{vE+r} clamp')
        a(f'v_max_f32 v{vQ+r}, 0, v{vQ+r}')
    for r in range(16):
        a(f'v_add_f32 v{vE+r}, s{s_eps}, v{vE+r}')
    for r in range(16):
        a(f'v_add_f32 v{vQ+r}, v{vQ+r}, v{vE+r}')
    for i in range(8):
        a(f'v_cvt_pk_bf16_f32 v{vPK+i}, v{vQ+2*i}, v{vQ+2*i+1}')
    a(f's_lshl_b32 s78, s{s_rb}, 2')
    a(f's_add_u32 s78, s78, s{W}')
    a(f's_lshl_b32 s78, s78, 15')
    a(f's_lshl_b32 s79, s{s_hp}, 11')
    a(f's_add_u32 s78, s78, s79')
    if WS_PQ: a(f's_add_u32 s78, s78, {WS_PQ}')
    a(f'v_lshlrev_b32 v{vT}, 4, v0')
    vm.issue(f'buffer_store_dwordx4 {vr(vPK,4)}, v{vT}, {SR(SRD_WS)}, s78 offen sc1', 'st')
    vm.issue(f'buffer_store_dwordx4 {vr(vPK+4,4)}, v{vT}, {SR(SRD_WS)}, s78 offen offset:1024 sc1', 'st')
    stamp(a, cfg, 3)
    vm.wait_all()
    stamp(a, cfg, 4)

def rolesB(a):
    a(f's_and_b32 s70, s{S_J}, 7')
    a(f's_lshl_b32 s72, s{S_XCD}, 3')
    a(f's_add_u32 s70, s70, s72')
    a(f's_lshr_b32 s71, s{S_J}, 3')

def prefB(a, cfg, vm):
    W = S_WAVE
    rolesB(a)
    vT = 30
    a(f'v_lshrrev_b32 v{vT}, 4, v0')
    a(f'v_and_b32 v{vT+1}, 15, v0')
    a(f'v_lshlrev_b32 v{vT+2}, 2, v{vT}')
    a(f'v_xor_b32 v{vT+1}, v{vT+1}, v{vT+2}')
    a(f'v_lshlrev_b32 v{vT+1}, 4, v{vT+1}')
    a(f'v_lshl_add_u32 v4, v{vT}, 10, v{vT+1}')
    for i in range(1, 4): a(f'v_add_u32 v{4+i}, {i*(4096-1024)}, v4')
    a(f's_lshl_b32 s72, s{W}, 17')
    a(f's_lshl_b32 s73, s71, 8')
    a(f's_add_u32 s72, s72, s73')
    a(f's_lshl_b32 s73, s{W}, 15')
    for g in range(8):
        a(f's_add_u32 m0, s73, {g*4096}')
        a(f's_add_u32 s74, s72, {g*16384}')
        for i in range(4):
            vm.issue(f'buffer_load_dwordx4 v{4+i}, {SR(SRD_WO)}, s74 offen offset:{i*1024} lds', 'wo')
    a(f'v_and_b32 v{vT}, 31, v0')
    a(f'v_lshrrev_b32 v{vT+1}, 5, v0')
    a(f'v_lshlrev_b32 v{vT+1}, 4, v{vT+1}')
    a(f'v_lshl_add_u32 v{vT}, v{vT}, 10, v{vT+1}')
    a(f's_lshl_b32 s72, s70, 15')
    a(f's_lshl_b32 s73, s71, 8')
    a(f's_add_u32 s72, s72, s73')
    a(f's_lshl_b32 s73, s{W}, 6')
    a(f's_add_u32 s72, s72, s73')
    vm.issue(f'buffer_load_dwordx4 v[8:11], v{vT}, {SR(SRD_X)}, s72 offen', 'xres')
    vm.issue(f'buffer_load_dwordx4 v[12:15], v{vT}, {SR(SRD_X)}, s72 offen offset:32', 'xres')
    a(f'v_bfe_u32 v{vT}, v0, 2, 2')
    a(f'v_lshrrev_b32 v{vT+1}, 5, v0')
    a(f'v_lshl_add_u32 v{vT+1}, v{vT+1}, 3, v{vT}')
    a(f'v_lshlrev_b32 v{vT+1}, 8, v{vT+1}')
    a(f'v_xor_b32 v{vT}, s{W}, v{vT}')
    a(f'v_lshl_add_u32 v{vT+1}, v{vT}, 6, v{vT+1}')
    a(f'v_bfe_u32 v{vT}, v0, 4, 1')
    a(f'v_lshl_add_u32 v{vT+1}, v{vT}, 5, v{vT+1}')
    a(f'v_and_b32 v{vT}, 1, v0')
    a(f'v_lshl_add_u32 v{vT+1}, v{vT}, 4, v{vT+1}')
    a(f'v_bfe_u32 v{vT}, v0, 1, 1')
    a(f'v_lshl_add_u32 v{vT+1}, v{vT}, 3, v{vT+1}')
    a(f'v_add_u32 v{vT+2}, 65536, v{vT+1}')
    vm.wait('wo')
    a('s_barrier')
    for ks in range(32):
        for h2 in range(2):
            ad = vT+1 if ks < 16 else vT+2
            a(f'ds_read_b64_tr_b16 {ar(ks*4+h2*2,2)}, v{ad} offset:{(ks&15)*4096+h2*1024}')
    a('s_waitcnt lgkmcnt(0)')
    a('s_barrier')

def phaseB(a, cfg, vm):
    W = S_WAVE
    OX = 131072
    vT = 30
    vKV = 40
    vPQ = 104
    vD = 136
    rolesB(a)
    a(f'v_and_b32 v{vT}, 31, v0')
    a(f'v_min_u32 v{vT}, 16, v{vT}')
    a(f'v_lshrrev_b32 v{vT+1}, 5, v0')
    a(f'v_mul_u32_u24 v{vT+1}, 272, v{vT+1}')
    a(f'v_lshl_add_u32 v{vT}, v{vT}, 4, v{vT+1}')
    a(f'v_lshlrev_b32 v{vT+1}, 4, v0')
    a(f's_mul_i32 s72, s{W}, {8*1088}')
    a(f's_add_u32 s72, s72, {WS_KV}')
    a(f's_add_u32 s73, s72, {3*1088}')
    a(f's_add_u32 s76, s72, {6*1088}')
    a(f's_lshl_b32 s74, s70, 15')
    a(f's_lshl_b32 s75, s{W}, 13')
    a(f's_add_u32 s74, s74, s75')
    if WS_PQ: a(f's_add_u32 s74, s74, {WS_PQ}')
    a(f's_add_u32 s75, s74, 4096')
    if cfg.get('syncB'): cfg['syncB'](a, vm)
    stamp(a, cfg, 1)
    for h in range(8):
        so = (72, 73, 76)[h//3]
        for q in range(2):
            vm.issue(f'buffer_load_dwordx4 {vr(vKV+h*8+q*4,4)}, v{vT}, {SR(SRD_WS)}, s{so} offen offset:{(h%3)*1088+q*544} sc1', f'kv{h}')
        vm.issue(f'buffer_load_dwordx4 {vr(vPQ+h*4,4)}, v{vT+1}, {SR(SRD_WS)}, s{74 if h<4 else 75} offen offset:{(h&3)*1024} sc1', f'kv{h}')
    a(f's_mov_b32 s77, {fbits(1e-6)}')
    a(f's_lshl_b32 s78, s{W}, 13')
    a(f's_add_u32 s78, s78, {OX}')
    a(f'v_add_u32 v{vT+2}, s78, v{vT+1}')
    a(f'v_add_u32 v{vT+3}, {OX}, v{vT+1}')
    def Dreg(h): return vD + (h % 4)*16
    def front(h):
        vm.wait(f'kv{h}')
        b = vKV + h*8
        for i in range(4):
            a(f'v_cvt_pk_bf16_f32 v{b+i}, v{b+2*i}, v{b+2*i+1}')
        a(f'v_mfma_f32_32x32x16_bf16 {vr(Dreg(h),16)}, {vr(b,4)}, {vr(vPQ+h*4,4)}, 0')
    def back(h):
        d = Dreg(h)
        a(f'v_add_f32 v{d+8}, s77, v{d+8}')
        a(f'v_rcp_f32 v{d+8}, v{d+8}')
        for j in range(8):
            a(f'v_mul_f32 v{d+j}, v{d+j}, v{d+8}')
        for i in range(4):
            a(f'v_cvt_pk_bf16_f32 v{d+12+i}, v{d+2*i}, v{d+2*i+1}')
        a(f'ds_write_b128 v{vT+2}, {vr(d+12,4)} offset:{h*1024}')
    front(0); front(1); front(2)
    for h in range(8):
        if h + 3 < 8: front(h+3)
        back(h)
    a('s_waitcnt lgkmcnt(0)')
    a('s_barrier')
    vO = 40
    vAcc = 200
    for ks in range(8):
        a(f'ds_read_b128 {vr(vO+ks*4,4)}, v{vT+3} offset:{ks*1024}')
    for ks in range(32):
        a(f's_waitcnt lgkmcnt({min(7, 31-ks)})')
        a(f'v_mfma_f32_32x32x16_bf16 {vr(vAcc,16)}, {ar(ks*4,4)}, {vr(vO+(ks&7)*4,4)}, {"0" if ks==0 else vr(vAcc,16)}')
        if ks + 8 < 32:
            a(f'ds_read_b128 {vr(vO+(ks&7)*4,4)}, v{vT+3} offset:{(ks+8)*1024}')
    stamp(a, cfg, 2)
    vm.wait('xres')
    vU = 72
    for i in range(8):
        a(f'v_lshlrev_b32 v{vU+2*i}, 16, v{8+i}')
        a(f'v_and_b32 v{vU+2*i+1}, 0xffff0000, v{8+i}')
    a(f's_lshl_b32 s72, s71, 2')
    a(f's_add_u32 s72, s72, s{W}')
    a(f's_lshl_b32 s73, s70, 15')
    a(f's_lshl_b32 s74, s72, 11')
    a(f's_add_u32 s73, s73, s74')
    a(f's_add_u32 s73, s73, {WS_H}')
    a(f's_lshl_b32 s74, s70, 12')
    a(f's_lshl_b32 s75, s72, 8')
    a(f's_add_u32 s74, s74, s75')
    a(f's_add_u32 s74, s74, {WS_STATS}')
    a(f'v_mov_b32 v{vT+4}, 0')
    a(f'v_mov_b32 v{vT+5}, 0')
    a(f'v_mov_b32 v{vT+6}, 0x3f803f80')
    a(f'v_lshlrev_b32 v{vT+7}, 3, v0')
    for r in range(16):
        a(f'v_add_f32 v{vAcc+r}, v{vAcc+r}, v{vU+r}')
    vH = 88
    for i in range(8):
        a(f'v_cvt_pk_bf16_f32 v{vH+i}, v{vAcc+2*i}, v{vAcc+2*i+1}')
    vm.issue(f'buffer_store_dwordx4 {vr(vH,4)}, v{vT+1}, {SR(SRD_WS)}, s73 offen sc1', 'st')
    vm.issue(f'buffer_store_dwordx4 {vr(vH+4,4)}, v{vT+1}, {SR(SRD_WS)}, s73 offen offset:1024 sc1', 'st')
    for i in range(8):
        a(f'v_dot2c_f32_bf16 v{vT+4}, v{vH+i}, v{vT+6}')
        a(f'v_dot2c_f32_bf16 v{vT+5}, v{vH+i}, v{vH+i}')
    for r in (vT+4, vT+5):
        a(f'v_mov_b32 v{vT+8}, v{r}')
        a(f'v_permlane32_swap_b32 v{r}, v{vT+8}')
        a(f'v_add_f32 v{r}, v{r}, v{vT+8}')
    a('s_mov_b32 exec_hi, 0')
    vm.issue(f'buffer_store_dwordx2 {vr(vT+4,2)}, v{vT+7}, {SR(SRD_WS)}, s74 offen sc1', 'st')
    a('s_mov_b32 exec_hi, -1')
    stamp(a, cfg, 3)
    vm.wait_all()
    stamp(a, cfg, 4)

def rolesC(a):
    a(f's_and_b32 s70, s{S_J}, 1')
    a(f's_lshl_b32 s72, s{S_XCD}, 1')
    a(f's_add_u32 s70, s70, s72')
    a(f's_lshr_b32 s71, s{S_J}, 1')

vC_d1 = 4
vC_d2 = 8
def setupC_dma(a):
    W = S_WAVE; vT = 30
    rolesC(a)
    a(f'v_lshrrev_b32 v{vT}, 3, v0')
    a(f'v_and_b32 v{vT+1}, 7, v0')
    a(f'v_and_b32 v{vT+2}, 2, v{vT}')
    a(f'v_xor_b32 v{vT+1}, v{vT+1}, v{vT+2}')
    a(f's_and_b32 s72, s{W}, 2')
    a(f's_lshl_b32 s72, s72, 1')
    a(f'v_xor_b32 v{vT+1}, s72, v{vT+1}')
    a(f'v_mul_u32_u24 v{vT}, 3584, v{vT}')
    a(f'v_lshl_add_u32 v{vC_d1}, v{vT+1}, 4, v{vT}')
    for i in range(1, 4): a(f'v_add_u32 v{vC_d1+i}, {i*(8*3584-1024)}, v{vC_d1}')
    for q in range(3):
        a(f'v_add_u32 v{vT}, {64*q}, v0')
        a(f'v_mul_u32_u24 v{vT+1}, 171, v{vT}')
        a(f'v_lshrrev_b32 v{vT+1}, 10, v{vT+1}')
        a(f'v_mul_u32_u24 v{vT+2}, 6, v{vT+1}')
        a(f'v_sub_u32 v{vT+2}, v{vT}, v{vT+2}')
        a(f'v_mul_u32_u24 v{vT+1}, 3584, v{vT+1}')
        a(f'v_lshl_add_u32 v{vC_d2+q}, v{vT+2}, 4, v{vT+1}')
        if q: a(f'v_subrev_u32 v{vC_d2+q}, {1024*q}, v{vC_d2+q}')
    a(f's_and_b32 s72, s{W}, 1')
    a(f's_mul_i32 s82, s72, {64*3584}')
    a(f's_lshl_b32 s73, s71, 7')
    a(f's_add_u32 s84, s82, 2048')
    a(f's_add_u32 s82, s82, s73')
    a(f's_lshl_b32 s83, s72, 13')
    a(f's_lshr_b32 s73, s{W}, 1')
    a(f's_lshl_b32 s74, s73, 16')
    a(f's_add_u32 s83, s83, s74')
    a(f's_mul_i32 s74, s71, 96')
    a(f's_add_u32 s84, s84, s74')
    a(f's_mul_i32 s72, s72, 6144')
    a(f's_mul_i32 s85, s73, 12416')
    a(f's_add_u32 s85, s85, s72')
    a(f's_add_u32 s85, s85, 131072')
    a(f's_mul_i32 s86, s73, 65664')
    a(f's_add_u32 s86, s86, s72')

def dmaC1(a, vm, q):
    for g in range(2):
        a(f's_add_u32 m0, s83, {q*16384+g*4096}')
        a(f's_add_u32 s72, s82, {(q*128+g*32)*3584}')
        for i in range(4):
            vm.issue(f'buffer_load_dwordx4 v{vC_d1+i}, {SR(SRD_WGU)}, s72 offen offset:{i*1024} lds', f'w1_{q}')
def dmaC2(a, vm, m):
    for g in range(2):
        if m == 0: a(f's_add_u32 m0, s85, {g*3072}')
        else: a(f's_add_u32 m0, s86, {(m-1)*16384+g*3072}')
        a(f's_add_u32 s72, s84, {(m*128+g*32)*3584}')
        for q in range(3):
            vm.issue(f'buffer_load_dwordx4 v{vC_d2+q}, {SR(SRD_WGU)}, s72 offen offset:{q*1024} lds', f'w2_{m}')

def phaseC(a, cfg, vm, prefetched):
    W = S_WAVE; vT = 30
    vA = 12
    vB = 16
    vL16 = 18
    vRs, vNm = 19, 20
    vSt = 40
    vG = 40
    vH = 64
    vAcc2 = 192
    vO = 240
    aAcc1 = 0; aW = 64
    if not prefetched: setupC_dma(a)
    rolesC(a)
    a(f'v_bfe_u32 v{vT}, v0, 2, 2')
    a(f'v_lshrrev_b32 v{vT+1}, 5, v0')
    a(f'v_lshl_add_u32 v{vT+1}, v{vT+1}, 3, v{vT}')
    a(f'v_bfe_u32 v{vT+2}, v0, 4, 1')
    a(f'v_and_b32 v{vT+3}, 1, v0')
    a(f'v_lshlrev_b32 v{vT+3}, 4, v{vT+3}')
    a(f'v_bfe_u32 v{vT+4}, v0, 1, 1')
    a(f'v_lshl_add_u32 v{vT+3}, v{vT+4}, 3, v{vT+3}')
    a(f'v_lshl_add_u32 v{vT+4}, v{vT+1}, 7, v{vT+3}')
    a(f'v_lshl_add_u32 v{vT+4}, v{vT+2}, 16, v{vT+4}')
    a(f'v_lshrrev_b32 v{vT+5}, 1, v{vT}')
    a(f'v_lshl_add_u32 v{vT+5}, v{vT+2}, 1, v{vT+5}')
    for j in range(4):
        a(f'v_xor_b32 v{vT+6}, {j}, v{vT+5}')
        a(f'v_lshl_add_u32 v{vA+j}, v{vT+6}, 5, v{vT+4}')
    a(f'v_mul_u32_u24 v{vT+4}, 96, v{vT+1}')
    a(f'v_add_u32 v{vT+4}, v{vT+4}, v{vT+3}')
    a(f'v_mul_u32_u24 v{vT+5}, 12416, v{vT+2}')
    a(f'v_add_u32 v{vT+5}, 131072, v{vT+5}')
    a(f'v_add_u32 v{vB}, v{vT+4}, v{vT+5}')
    a(f'v_mul_u32_u24 v{vT+5}, 65664, v{vT+2}')
    a(f'v_add_u32 v{vB+1}, v{vT+4}, v{vT+5}')
    a(f'v_lshlrev_b32 v{vL16}, 4, v0')
    a(f'v_and_b32 v{vT}, 31, v0')
    a(f'v_lshlrev_b32 v{vT}, 3, v{vT}')
    a(f'v_lshrrev_b32 v{vT+1}, 5, v0')
    a(f'v_lshl_add_u32 v{vT}, v{vT+1}, 11, v{vT}')
    a(f's_lshl_b32 s73, s70, 2')
    a(f's_add_u32 s73, s73, s{W}')
    a(f's_lshl_b32 s74, s73, 12')
    a(f's_add_u32 s74, s74, {WS_STATS}')
    a(f's_lshl_b32 s75, s73, 15')
    a(f's_add_u32 s75, s75, {WS_H}')
    a(f's_mul_i32 s76, s73, {112*1024}')
    a(f's_add_u32 s76, s76, {WS_ACT}')
    a(f's_mul_i32 s77, s71, 3072')
    a(f's_add_u32 s77, s77, s76')
    a(f's_add_u32 s77, s77, 65536')
    a(f's_lshl_b32 s78, s71, 12')
    a(f's_add_u32 s76, s76, s78')
    if cfg.get('syncC'): cfg['syncC'](a, vm)
    stamp(a, cfg, 1)
    def ldh(k0, k1):
        for ks in range(k0, k1):
            if ks % 4 == 0: a(f's_add_u32 s78, s75, {ks*1024}')
            vm.issue(f'buffer_load_dwordx4 {vr(vH+ks*4,4)}, v{vL16}, {SR(SRD_WS)}, s78 offen offset:{(ks&3)*1024} sc1', f'h{ks}')
    for i in range(8):
        vm.issue(f'buffer_load_dwordx2 {vr(vSt+2*i,2)}, v{vT}, {SR(SRD_WS)}, s74 offen offset:{i*256} sc1', 'stats')
    if not prefetched:
        dmaC1(a, vm, 0); ldh(0, 8); dmaC1(a, vm, 1); ldh(8, 16); dmaC1(a, vm, 2); ldh(16, 23)
    else:
        ldh(0, 32)
    vm.wait('stats')
    if not prefetched:
        ldh(23, 24);
    for st in (4, 2, 1):
        for i in range(st):
            a(f'v_add_f32 v{vSt+2*i}, v{vSt+2*i}, v{vSt+2*(i+st)}')
            a(f'v_add_f32 v{vSt+2*i+1}, v{vSt+2*i+1}, v{vSt+2*(i+st)+1}')
    for r in (vSt, vSt+1):
        a(f'v_mov_b32 v{vT+1}, v{r}')
        a(f'v_permlane32_swap_b32 v{r}, v{vT+1}')
        a(f'v_add_f32 v{r}, v{r}, v{vT+1}')
    a(f'v_mul_f32 v{vSt}, {fbits(1/512)}, v{vSt}')
    a(f'v_mul_f32 v{vSt+1}, {fbits(1/512)}, v{vSt+1}')
    a(f'v_fma_f32 v{vSt+1}, -v{vSt}, v{vSt}, v{vSt+1}')
    a(f'v_max_f32 v{vSt+1}, 0, v{vSt+1}')
    a(f'v_add_f32 v{vSt+1}, {fbits(1e-5)}, v{vSt+1}')
    a(f'v_rsq_f32 v{vRs}, v{vSt+1}')
    a(f'v_mul_f32 v{vNm}, v{vSt}, v{vRs}')
    a(f'v_sub_f32 v{vNm}, 0, v{vNm}')
    def norm(ks):
        vm.wait(f'h{ks}')
        t = vG + (ks&1)*8
        for i in range(4):
            a(f'v_lshlrev_b32 v{t+2*i}, 16, v{vH+ks*4+i}')
            a(f'v_and_b32 v{t+2*i+1}, 0xffff0000, v{vH+ks*4+i}')
        for i in range(8):
            a(f'v_fma_f32 v{t+i}, v{t+i}, v{vRs}, v{vNm}')
        for i in range(4):
            a(f'v_cvt_pk_bf16_f32 v{vH+ks*4+i}, v{t+2*i}, v{t+2*i+1}')
    def norm_list(ks):
        sub = Asm();
        L = []
        t = vG + (ks&1)*8
        for i in range(4):
            L.append(f'v_lshlrev_b32 v{t+2*i}, 16, v{vH+ks*4+i}')
            L.append(f'v_and_b32 v{t+2*i+1}, 0xffff0000, v{vH+ks*4+i}')
        for i in range(8):
            L.append(f'v_fma_f32 v{t+i}, v{t+i}, v{vRs}, v{vNm}')
        for i in range(4):
            L.append(f'v_cvt_pk_bf16_f32 v{vH+ks*4+i}, v{t+2*i}, v{t+2*i+1}')
        return L
    def rd1(ks):
        return [f'ds_read_b64_tr_b16 {ar(aW+(ks&1)*16+j*4+h2*2,2)}, v{vA+j} offset:{ks*2048+h2*512}' for j in range(4) for h2 in range(2)]
    def rd2(ks):
        m = ks >> 3
        return [f'ds_read_b64_tr_b16 {ar(aW+(ks&1)*16+j*4+h2*2,2)}, v{vB+(1 if m else 0)} offset:{max(m-1,0)*16384+(ks&7)*1536+h2*384+j*32}' for j in range(3) for h2 in range(2)]
    vm.wait('w1_0')
    a('s_barrier')
    for t in rd1(0): a(t)
    norm(0)
    for ks in range(32):
        nxt = ks + 1
        fill = []
        if nxt < 32:
            if nxt % 8 == 0:
                pass
        a('s_waitcnt lgkmcnt(0)')
        if nxt < 32 and nxt % 8 == 0:
            q = nxt // 8
            vm.wait(f'w1_{q}')
            a('s_barrier')
            if not prefetched and q == 1:
                dmaC1(a, vm, 3); ldh(24, 32); dmaC2(a, vm, 0)
            dmaC2(a, vm, q)
        if nxt == 32:
            vm.wait('w2_0')
            a('s_barrier')
        reads = rd1(nxt) if nxt < 32 else rd2(0)
        if nxt < 32:
            vm.wait(f'h{nxt}')
            nl = norm_list(nxt)
        else: nl = []
        for j in range(4):
            a(f'v_mfma_f32_32x32x16_bf16 {ar(aAcc1+16*j,16)}, {ar(aW+(ks&1)*16+j*4,4)}, {vr(vH+ks*4,4)}, {"0" if ks==0 else ar(aAcc1+16*j,16)}')
            for t in reads[2*j:2*j+2]: a(t)
            for t in nl[5*j:5*j+5]: a(t)
    stamp(a, cfg, 2)
    c0 = -2*0.7978845608028654*LOG2E
    c1 = c0*0.044715
    a(f's_mov_b32 s79, {fbits(c1)}')
    a(f'v_mov_b32 v21, {fbits(c0)}')
    def gelu_list(accreg, is_a, soff, off, tag):
        L = []
        g = vG; u = vG+8; t = vG+16
        if is_a:
            for i in range(8):
                L.append(f'v_accvgpr_read_b32 v{g+i}, a{accreg+i}')
                L.append(f'v_accvgpr_read_b32 v{u+i}, a{accreg+8+i}')
        else:
            g = accreg; u = accreg+8
        for i in range(8): L.append(f'v_mul_f32 v{t+i}, v{g+i}, v{g+i}')
        for i in range(8): L.append(f'v_fma_f32 v{t+i}, v{t+i}, s79, v21')
        for i in range(8): L.append(f'v_mul_f32 v{t+i}, v{t+i}, v{g+i}')
        for i in range(8):
            L.append(f'v_exp_f32 v{t+i}, v{t+i}')
            L.append(f'v_mul_f32 v{g+i}, v{g+i}, v{u+i}')
        for i in range(8): L.append(f'v_add_f32 v{t+i}, 1.0, v{t+i}')
        for i in range(8): L.append(f'v_rcp_f32 v{t+i}, v{t+i}')
        for i in range(8): L.append(f'v_mul_f32 v{g+i}, v{g+i}, v{t+i}')
        o = vO + (off//1024 & 1)*4
        for i in range(4): L.append(f'v_cvt_pk_bf16_f32 v{o+i}, v{g+2*i}, v{g+2*i+1}')
        L.append(('vm', f'buffer_store_dwordx4 {vr(o,4)}, v{vL16}, {SR(SRD_WS)}, s{soff} offen offset:{off} sc1', tag))
        return L
    E = []
    for j in range(4): E += gelu_list(aAcc1+16*j, True, 76, j*1024, 'act1')
    def emit(t):
        if isinstance(t, tuple): vm.issue(t[1], t[2])
        else: a(t)
    per = -(-len(E) // (28*3))
    ei = 0
    for ks in range(32):
        nxt = ks + 1
        a('s_waitcnt lgkmcnt(0)')
        if nxt < 32 and nxt % 8 == 0:
            vm.wait(f'w2_{nxt//8}')
            a('s_barrier')
        reads = rd2(nxt) if nxt < 32 else []
        for j in range(3):
            a(f'v_mfma_f32_32x32x16_bf16 {vr(vAcc2+16*j,16)}, {ar(aW+(ks&1)*16+j*4,4)}, {vr(vH+ks*4,4)}, {"0" if ks==0 else vr(vAcc2+16*j,16)}')
            for t in reads[2*j:2*j+2]: a(t)
            if ks >= 1:
                for t in E[ei:ei+per]: emit(t)
                ei += per
        if ei >= len(E) and cfg.get('flagC1') and not cfg.get('_c1done'):
            cfg['_c1done'] = True
    assert ei >= len(E)
    stamp(a, cfg, 3)
    if cfg.get('afterC_mfma'): cfg['afterC_mfma'](a, vm)
    for j in range(3):
        for t in gelu_list(vAcc2+16*j, False, 77, j*1024, 'act2'): emit(t)
    stamp(a, cfg, 4)
    vm.wait_all()
    stamp(a, cfg, 5)

def rolesD(a):
    a(f's_and_b32 s70, s{S_J}, 3')
    a(f's_lshl_b32 s72, s{S_XCD}, 2')
    a(f's_add_u32 s70, s70, s72')
    a(f's_lshr_b32 s71, s{S_J}, 2')

def ksD(i):
    return (0, i) if i < 16 else (1, i-16)

vD_d = 4
def setupD_dma(a):
    W = S_WAVE; vT = 30
    rolesD(a)
    a(f'v_lshrrev_b32 v{vT}, 3, v0')
    a(f'v_and_b32 v{vT+1}, 7, v0')
    a(f'v_and_b32 v{vT+2}, 2, v{vT}')
    a(f'v_lshlrev_b32 v{vT+2}, 1, v{vT+2}')
    a(f'v_xor_b32 v{vT+1}, v{vT+1}, v{vT+2}')
    a(f'v_lshlrev_b32 v{vT+1}, 4, v{vT+1}')
    a(f'v_lshl_add_u32 v{vD_d}, v{vT}, 10, v{vT+1}')
    for i in range(1, 4): a(f'v_add_u32 v{vD_d+i}, {i*(8192-1024)}, v{vD_d}')
    a(f's_lshl_b32 s72, s71, 7')
    a(f's_lshl_b32 s87, s{W}, 18')
    a(f's_add_u32 s87, s87, s72')
    a(f's_mul_i32 s88, s{W}, {192*1024}')
    a(f's_add_u32 s88, s88, s72')
    a(f's_add_u32 s88, s88, {1024*1024}')
    a(f's_mul_i32 s89, s{W}, 40960')
def dmaD(a, vm, pair):
    i = 2*pair
    p, r = ksD(i)
    a(f's_add_u32 m0, s89, {(i % 20)*2048}')
    a(f's_add_u32 s72, s{87+p}, {r*16*1024}')
    for k in range(4):
        vm.issue(f'buffer_load_dwordx4 v{vD_d+k}, {SR(SRD_WD)}, s72 offen offset:{k*1024} lds', f'wd{pair}')

def phaseD(a, cfg, vm, prefetched):
    W = S_WAVE; vT = 30
    vA = 12
    vL16 = 18
    vWf = 40
    vAcc = 64
    vHr = 56
    vR = 128
    if not prefetched: setupD_dma(a)
    rolesD(a)
    a(f'v_bfe_u32 v{vT}, v0, 2, 2')
    a(f'v_lshrrev_b32 v{vT+1}, 5, v0')
    a(f'v_lshl_add_u32 v{vT+1}, v{vT+1}, 3, v{vT}')
    a(f'v_lshlrev_b32 v{vT+1}, 7, v{vT+1}')
    a(f'v_bfe_u32 v{vT+2}, v0, 4, 1')
    a(f'v_lshl_add_u32 v{vT+1}, v{vT+2}, 5, v{vT+1}')
    a(f'v_and_b32 v{vT+2}, 1, v0')
    a(f'v_lshl_add_u32 v{vT+1}, v{vT+2}, 4, v{vT+1}')
    a(f'v_bfe_u32 v{vT+2}, v0, 1, 1')
    a(f'v_lshl_add_u32 v{vT+1}, v{vT+2}, 3, v{vT+1}')
    a(f'v_add_u32 v{vT+1}, s89, v{vT+1}')
    a(f'v_lshrrev_b32 v{vT}, 1, v{vT}')
    a(f's_and_b32 s72, s{W}, 1')
    a(f'v_xor_b32 v{vT}, s72, v{vT}')
    a(f'v_lshl_add_u32 v{vA}, v{vT}, 6, v{vT+1}')
    a(f'v_xor_b32 v{vA+1}, 64, v{vA}')
    a(f'v_lshlrev_b32 v{vL16}, 4, v0')
    a(f's_lshr_b32 s72, s{W}, 1')
    a(f's_lshl_b32 s73, s70, 1')
    a(f's_add_u32 s73, s73, s72')
    a(f's_xor_b32 s74, s73, 1')
    for (tt, d) in ((73, 75), (74, 77)):
        a(f's_mul_i32 s{d}, s{tt}, {112*1024}')
        a(f's_add_u32 s{d}, s{d}, {WS_ACT}')
        a(f's_mul_i32 s79, s{W}, {12*1024}')
        a(f's_add_u32 s{d+1}, s{d}, s79')
        a(f's_add_u32 s{d+1}, s{d+1}, 65536')
        a(f's_lshl_b32 s79, s{W}, 14')
        a(f's_add_u32 s{d}, s{d}, s79')
    a(f's_lshl_b32 s79, s73, 15')
    a(f's_lshl_b32 s80, s71, 12')
    a(f's_add_u32 s79, s79, s80')
    a(f's_and_b32 s80, s{W}, 1')
    a(f's_lshl_b32 s80, s80, 11')
    a(f's_add_u32 s79, s79, s80')
    a(f's_add_u32 s79, s79, {WS_H}')
    vm.issue(f'buffer_load_dwordx4 {vr(vHr,4)}, v{vL16}, {SR(SRD_WS)}, s79 offen sc1', 'hres')
    vm.issue(f'buffer_load_dwordx4 {vr(vHr+4,4)}, v{vL16}, {SR(SRD_WS)}, s79 offen offset:1024 sc1', 'hres')
    if cfg.get('syncD1'): cfg['syncD1'](a, vm)
    stamp(a, cfg, 1)
    def ldact(i):
        p, r = ksD(i)
        for m in range(2):
            if r % 4 == 0: a(f's_add_u32 s{80+m}, s{75+2*m+p}, {r*1024}')
            vm.issue(f'buffer_load_dwordx4 {ar((i*2+m)*4,4)}, v{vL16}, {SR(SRD_WS)}, s{80+m} offen offset:{(r&3)*1024} sc1', f'act{i}')
    def rdW(i):
        return [f'ds_read_b64_tr_b16 {vr(vWf+(i&1)*8+u*4+h2*2,2)}, v{vA+u} offset:{(i%20)*2048+h2*512}' for u in range(2) for h2 in range(2)]
    nact = 0; nw = 10 if prefetched else 0
    def top_up(limit, cur):
        nonlocal nact, nw
        while True:
            want_w = nw < 14 and (2*nw + 1 - 20 < cur)
            want_a = nact < (16 if cfg.get('syncD2') and not cfg.get('_d2') else 28)
            if want_w and (not want_a or 2*nw <= nact):
                if len(vm.q) + 4 > limit: break
                dmaD(a, vm, nw); nw += 1
            elif want_a:
                if len(vm.q) + 2 > limit: break
                ldact(nact); nact += 1
            else: break
    top_up(60, 0)
    vm.wait('wd0')
    for t in rdW(0): a(t)
    for i in range(28):
        if cfg.get('syncD2') and i == cfg.get('syncD2_at', 4):
            cfg['syncD2'](a, vm); cfg['_d2'] = True
        a('s_waitcnt lgkmcnt(0)')
        top_up(60, i)
        if i + 1 < 28:
            vm.wait(f'wd{(i+1)//2}', f'act{i}')
            reads = rdW(i+1)
        else:
            vm.wait(f'act{i}'); reads = []
        k = 0
        for m in range(2):
            for u in range(2):
                tau = m*2 + u
                a(f'v_mfma_f32_32x32x16_bf16 {vr(vAcc+16*tau,16)}, {vr(vWf+(i&1)*8+u*4,4)}, {ar((i*2+m)*4,4)}, {"0" if i==0 else vr(vAcc+16*tau,16)}')
                if reads: a(reads[k])
                k += 1
    stamp(a, cfg, 2)
    a(f'v_add_u32 v{vT}, s89, v{vL16}')
    for tau in range(1, 4):
        for i in range(4):
            a(f'ds_write_b128 v{vT}, {vr(vAcc+16*tau+4*i,4)} offset:{tau*4096+i*1024}')
    for tau in range(1, 4):
        a(f's_xor_b32 s72, s{W}, {tau}')
        a(f's_mul_i32 s72, s72, 40960')
        a(f'v_add_u32 v{vT+tau}, s72, v{vL16}')
    a(f'v_and_b32 v{vT+4}, 31, v0')
    a(f'v_lshrrev_b32 v{vT+5}, 5, v0')
    a(f'v_lshlrev_b32 v{vT+5}, 4, v{vT+5}')
    a(f'v_lshl_add_u32 v{vT+4}, v{vT+4}, 10, v{vT+5}')
    a(f's_lshl_b32 s72, s73, 15')
    a(f's_lshl_b32 s74, s71, 7')
    a(f's_add_u32 s72, s72, s74')
    a(f's_and_b32 s74, s{W}, 1')
    a(f's_lshl_b32 s74, s74, 6')
    a(f's_add_u32 s72, s72, s74')
    vm.wait('hres')
    vU = 176
    for i in range(8):
        a(f'v_lshlrev_b32 v{vU+2*i}, 16, v{vHr+i}')
        a(f'v_and_b32 v{vU+2*i+1}, 0xffff0000, v{vHr+i}')
    for r in range(16):
        a(f'v_add_f32 v{vAcc+r}, v{vAcc+r}, v{vU+r}')
    a('s_waitcnt lgkmcnt(0)')
    a('s_barrier')
    for tau in range(1, 4):
        for i in range(4):
            a(f'ds_read_b128 {vr(vR+16*(tau-1)+4*i,4)}, v{vT+tau} offset:{tau*4096+i*1024}')
    for tau in range(1, 4):
        a(f's_waitcnt lgkmcnt({(3-tau)*4})')
        for r in range(16):
            a(f'v_add_f32 v{vAcc+r}, v{vAcc+r}, v{vR+16*(tau-1)+r}')
    for i in range(8):
        a(f'v_cvt_pk_bf16_f32 v{vHr+i}, v{vAcc+2*i}, v{vAcc+2*i+1}')
    vm.issue(f'buffer_store_dwordx4 {vr(vHr,4)}, v{vT+4}, {SR(SRD_OUT)}, s72 offen', 'st')
    vm.issue(f'buffer_store_dwordx4 {vr(vHr+4,4)}, v{vT+4}, {SR(SRD_OUT)}, s72 offen offset:32', 'st')
    stamp(a, cfg, 3)

KD = """.section .rodata,"a"
.p2align 6
.amdhsa_kernel {k}
  .amdhsa_next_free_vgpr 512
  .amdhsa_next_free_sgpr 102
  .amdhsa_accum_offset 256
  .amdhsa_group_segment_fixed_size 0
  .amdhsa_kernarg_size 80
  .amdhsa_user_sgpr_count 2
  .amdhsa_user_sgpr_kernarg_segment_ptr 1
  .amdhsa_system_sgpr_workgroup_id_x 1
.end_amdhsa_kernel
"""
def header(launches):
    return ''.join(f'; @launch kernel={k} grid=(256,1,1) block=(256,1,1) lds=163840\n' for k in launches) + '.amdgcn_target "amdgcn-amd-amdhsa--gfx950"\n.text\n'

def kernel_open(a, k):
    a.raw(f'.globl {k}\n.p2align 8\n.type {k},@function\n{k}:')
    a.hist = []

def build_multi(stamps=False):
    a = Asm()
    ks = ['pa_kernel', 'pb_kernel', 'pc_kernel', 'pd_kernel']
    cfg = {'stamps': stamps}
    for i, k in enumerate(ks):
        kernel_open(a, k)
        vm = VM(a)
        prologue(a, cfg, f'Lend{i}')
        if i == 0: phaseA(a, cfg, vm); n = 5
        if i == 1: prefB(a, cfg, vm); phaseB(a, cfg, vm); n = 5
        if i == 2: phaseC(a, cfg, vm, False); n = 6
        if i == 3:
            phaseD(a, cfg, vm, False); n = 5
            if stamps: vm.wait_all(); stamp(a, cfg, 4)
        write_stamps(a, cfg, n, i)
        a.label(f'Lend{i}')
        a('s_endpgm')
    return header(ks) + a.text() + ''.join(KD.format(k=k) for k in ks)

if __name__ == '__main__':
    mode = sys.argv[1]; out = sys.argv[2]
    st = len(sys.argv) > 3 and sys.argv[3] == 'stamps'
    if mode == 'multi': s = build_multi(st)
    open(out, 'w').write(s)
```

```python
import sys, struct
from asmlib import *

NAME = 'sequential_preLN__linear_attn_block__geglu_ffn__prompt'
WS_PQ = 0x000000; WS_H = 0x200000; WS_ACT = 0x400000; WS_STATS = 0xB00000; WS_KV = 0xB40000
WS_FLAG = 0xB50000; WS_TS = 0xC00000; WS_SIZE = 0xD00000
FA = WS_FLAG; FB = WS_FLAG + 256*128; FC = WS_FLAG + 512*128
LOG2E = 1.4426950408889634
def fbits(x): return '0x%08x' % struct.unpack('<I', struct.pack('<f', x))[0]

S_WG = 2; W = 3
SRD_X = 36; SRD_WQKV = 40; SRD_WO = 44; SRD_WGU = 48; SRD_WD = 52; SRD_OUT = 56; SRD_WS = 60; SRD_DBG = 64
S_XC = 68; S_J = 69
def SR(b): return f's[{b}:{b+3}]'

class Cnt:
    def __init__(self, a, name, cap): self.a = a; self.q = []; self.name = name; self.cap = cap
    def issue(self, text, tag='x'):
        self.a(text); self.q.append(tag)
        if self.name == 'vmcnt': assert len(self.q) <= self.cap, "vmcnt overflow"
    def wait(self, *tags):
        last = -1
        for i, t in enumerate(self.q):
            if t in tags: last = i
        if last < 0: return
        n = len(self.q) - 1 - last
        n = min(n, self.cap)
        self.a(f's_waitcnt {self.name}({n})')
        self.q = self.q[len(self.q)-n:] if n else []
    def wait_all(self):
        self.a(f's_waitcnt {self.name}(0)'); self.q = []

TSREG = list(range(90, 100, 2)) + list(range(4, 36, 2))

class G:
    def __init__(self, cfg):
        self.a = Asm(); self.cfg = cfg
        self.vm = Cnt(self.a, 'vmcnt', 63); self.lg = Cnt(self.a, 'lgkmcnt', 15)
        self.ns = 0; self.names = []
    def stamp(self, name):
        st = self.cfg.get('stamps')
        if not st: return
        sel = self.cfg.get('sel')
        if sel and not any(name.startswith(p) for p in sel): return
        r = TSREG[self.ns]; self.ns += 1; self.names.append(name)
        self.a(f'{"s_memtime" if st == "cyc" else "s_memrealtime"} s[{r}:{r+1}]')
    def emit(self, t):
        if isinstance(t, str): self.a(t)
        elif callable(t): t()
        elif t[0] == 'vm': self.vm.issue(t[1], t[2])
        elif t[0] == 'lg': self.lg.issue(t[1], t[2])
        elif t[0] == 'wvm': self.vm.wait(*t[1:])
        elif t[0] == 'wlg': self.lg.wait(*t[1:])
        else: raise ValueError(t)

def cost(t):
    if isinstance(t, str):
        op = t.split()[0]
        if op.split('_e')[0] in TRANS or op in TRANS: return 8
        return 4
    if callable(t): return 4
    if t[0] == 'vm': return 8
    return 4

def weave(g, mf, streams, budget):
    n = len(mf)
    slots = [[] for _ in range(n)]
    load = [sum(cost(x) for x in mf[i][2]) + sum(cost(x) for x in (mf[i+1][0] if i+1 < n else [])) for i in range(n)]
    for (s, e, items) in streams:
        tot = sum(cost(x) for x in items)
        lvl = budget
        while sum(max(0, lvl - load[i]) for i in range(s, e)) < tot: lvl += 1
        free = [max(0, lvl - load[i]) for i in range(s, e)]
        scale = tot / max(1, sum(free))
        acc = 0.0; used = 0; k = 0
        for i in range(s, e):
            acc += free[i-s] * scale
            while k < len(items) and (used + cost(items[k]) / 2 <= acc or i == e-1):
                slots[i].append(items[k]); used += cost(items[k]); load[i] += cost(items[k]); k += 1
    for i in range(n):
        for x in mf[i][0]: g.emit(x)
        g.a(mf[i][1])
        for x in mf[i][2]: g.emit(x)
        for x in slots[i]: g.emit(x)

def srd(a, d, ptr, size):
    a(f's_mov_b32 s{d}, s{ptr}')
    a(f's_mov_b32 s{d+1}, s{ptr+1}')
    a(f's_mov_b32 s{d+2}, {size}')
    a(f's_mov_b32 s{d+3}, 0x20000')

def set_flag(g, vtmp, soff, val):
    a = g.a
    a(f'v_mov_b32 v{vtmp}, {val}')
    g.vm.issue(f'buffer_store_dword v{vtmp}, off, {SR(SRD_WS)}, s{soff} sc1', 'flag')

def guard(g):
    if g.cfg.get('safe'):
        g.a('s_sub_u32 s100, s100, 1')
        g.a('s_cbranch_scc1 Lend')

def poll(g, label, vaddr, vdst, n, soff, need):
    a = g.a
    a.label(label)
    sfx = {1: '', 4: 'x4'}[n]
    a(f'buffer_load_dword{sfx} {vr(vdst, n)}, v{vaddr}, {SR(SRD_WS)}, s{soff} offen sc1')
    g.vm.wait_all()
    if n == 4:
        a(f'v_min_u32 v{vdst}, v{vdst}, v{vdst+1}')
        a(f'v_min3_u32 v{vdst}, v{vdst}, v{vdst+2}, v{vdst+3}')
    a(f'v_cmp_gt_u32 vcc, {need}, v{vdst}')
    guard(g)
    a(f's_cbranch_vccnz {label}')

def wo_blk(w, n): return 4096*(4*n + w) if n < 5 else 98304 + 16384*w + 4096*(n-5)

def build(cfg):
    g = G(cfg); a = g.a; vm = g.vm; lg = g.lg
    k = NAME + '_kernel'
    a.raw(f'.globl {k}\n.p2align 8\n.type {k},@function\n{k}:')
    a(f's_cmp_ge_u32 s{S_WG}, 256')
    a('s_cbranch_scc1 Lend')
    a('s_load_dwordx16 s[16:31], s[0:1], 0')
    a('s_load_dwordx4 s[32:35], s[0:1], 64')
    g.stamp('A.start')
    if cfg.get('safe'): a('s_mov_b32 s100, 200000')
    a('v_lshrrev_b32 v1, 6, v0')
    a(f'v_readfirstlane_b32 s{W}, v1')
    a('v_and_b32 v0, 63, v0')
    a(f's_and_b32 s{S_XC}, s{S_WG}, 7')
    a(f's_lshr_b32 s{S_J}, s{S_WG}, 3')
    XR = 98304
    s_rb, s_hp, s_x, s_w, s_m0x, s_m0w, s_rot = 70, 71, 72, 73, 74, 75, 82
    a(f's_lshr_b32 s76, s{S_XC}, 1')
    a(f's_and_b32 s{s_rb}, s{S_J}, 3')
    a(f's_lshl2_add_u32 s{s_rb}, s76, s{s_rb}')
    a(f's_and_b32 s76, s{S_XC}, 1')
    a(f's_lshr_b32 s{s_hp}, s{S_J}, 2')
    a(f's_lshl3_add_u32 s{s_hp}, s76, s{s_hp}')
    a(f's_lshr_b32 s76, s{S_J}, 3')
    a(f's_add_u32 s{s_rot}, s{S_J}, s76')
    a(f's_add_u32 s{s_rot}, s{s_rot}, s{S_XC}')
    a(f's_lshl_b32 s{s_x}, s{s_rb}, 17')
    a(f's_lshl_b32 s76, s{W}, 15')
    a(f's_add_u32 s{s_x}, s{s_x}, s76')
    a(f's_mul_i32 s{s_w}, s{W}, {16*3072}')
    a(f's_lshl_b32 s76, s{s_hp}, 6')
    a(f's_add_u32 s{s_w}, s{s_w}, s76')
    a(f's_lshl_b32 s{s_m0x}, s{W}, 14')
    a(f's_add_u32 s{s_m0x}, s{s_m0x}, {XR}')
    a(f's_mul_i32 s{s_m0w}, s{W}, 3072')
    vXd = 4; vWd = 8; vXr = 12; vWn = 16; vWp = 20
    vSum, vSq, vCs = 24, 25, 26
    vOne = 29; vT = 30; vAcc = 40; vX = 88; vW = 120
    vWo = 220
    vDbg = 216; vDbgA = 217
    a(f'v_lshrrev_b32 v{vT}, 3, v0')
    a(f'v_and_b32 v{vT+1}, 7, v0')
    a(f'v_lshrrev_b32 v{vT+2}, 1, v{vT}')
    a(f'v_xor_b32 v{vT+1}, v{vT+1}, v{vT+2}')
    a(f'v_lshlrev_b32 v{vT+1}, 4, v{vT+1}')
    a(f'v_lshl_add_u32 v{vXd}, v{vT}, 10, v{vT+1}')
    a(f'v_xor_b32 v{vXd+1}, 64, v{vXd}')
    a(f'v_add_u32 v{vXd+1}, {8192-1024}, v{vXd+1}')
    a(f'v_add_u32 v{vXd+2}, {2*(8192-1024)}, v{vXd}')
    a(f'v_add_u32 v{vXd+3}, {2*(8192-1024)}, v{vXd+1}')
    for q in range(3):
        a(f'v_add_u32 v{vT}, {64*q}, v0')
        a(f'v_mul_u32_u24 v{vT+1}, 171, v{vT}')
        a(f'v_lshrrev_b32 v{vT+1}, 11, v{vT+1}')
        a(f'v_mul_u32_u24 v{vT+2}, 12, v{vT+1}')
        a(f'v_sub_u32 v{vT+2}, v{vT}, v{vT+2}')
        a(f'v_mul_u32_u24 v{vT+1}, 3072, v{vT+1}')
        a(f'v_lshrrev_b32 v{vT+3}, 2, v{vT+2}')
        a(f'v_lshl_add_u32 v{vT+1}, v{vT+3}, 10, v{vT+1}')
        a(f'v_and_b32 v{vT+2}, 3, v{vT+2}')
        a(f'v_lshl_add_u32 v{vWd+q}, v{vT+2}, 4, v{vT+1}')
        if q: a(f'v_subrev_u32 v{vWd+q}, {1024*q}, v{vWd+q}')
    a('s_waitcnt lgkmcnt(0)')
    srd(a, SRD_X, 16, 2048*512*2)
    srd(a, SRD_WQKV, 18, 512*1536*2)
    srd(a, SRD_WS, 34, WS_SIZE)
    srd(a, SRD_DBG, 32, 256)
    def dma_xw(c):
        a(f's_add_u32 s78, s{s_rot}, {c}')
        a(f's_and_b32 s78, s78, 7')
        a(f's_lshl_b32 s76, s78, 7')
        a(f's_add_u32 s76, s76, s{s_x}')
        a(f's_add_u32 m0, s{s_m0x}, {(c&3)*4096}')
        a(f's_mul_i32 s77, s78, {64*3072}')
        for i in range(4):
            vm.issue(f'buffer_load_dwordx4 v{vXd+i}, {SR(SRD_X)}, s76 offen offset:{i*1024} lds', f'c{c}')
        a(f's_add_u32 m0, s{s_m0w}, {c*12288}')
        a(f's_add_u32 s77, s77, s{s_w}')
        for q in range(3):
            vm.issue(f'buffer_load_dwordx4 v{vWd+q}, {SR(SRD_WQKV)}, s77 offen offset:{q*1024} lds', f'c{c}')
    a(f's_or_b32 s83, s{s_rb}, s{W}')
    a(f's_cmp_lg_u32 s83, 0')
    a('s_cbranch_scc1 LA_nozero')
    for i in range(4): a(f'v_mov_b32 v{vT+i}, 0')
    a(f's_mul_i32 s76, s{s_hp}, 2176')
    a(f's_add_u32 s76, s76, {WS_KV}')
    a(f'v_lshlrev_b32 v{vT+4}, 4, v0')
    a(f'v_min_u32 v{vT+5}, {128-16}, v{vT+4}')
    a(f'buffer_store_dwordx4 v[{vT}:{vT+3}], v{vT+4}, {SR(SRD_WS)}, s76 offen sc1')
    a(f'buffer_store_dwordx4 v[{vT}:{vT+3}], v{vT+4}, {SR(SRD_WS)}, s76 offen offset:1024 sc1')
    a(f'buffer_store_dwordx4 v[{vT}:{vT+3}], v{vT+5}, {SR(SRD_WS)}, s76 offen offset:2048 sc1')
    a(f's_mul_i32 s76, s{s_hp}, {48*128}')
    a(f's_add_u32 s76, s76, {WS_FLAG}')
    a(f'v_min_u32 v{vT+5}, 47, v0')
    a(f'v_lshlrev_b32 v{vT+5}, 7, v{vT+5}')
    a(f'buffer_store_dwordx4 v[{vT}:{vT+3}], v{vT+5}, {SR(SRD_WS)}, s76 offen sc1')
    a.label('LA_nozero')
    dma_xw(0); dma_xw(1)
    a(f's_cmp_lg_u32 s83, 0')
    a('s_cbranch_scc1 LA_nosig')
    a(f'v_mov_b32 v{vT+6}, 1')
    a(f's_lshl_b32 s76, s{s_hp}, 2')
    a('s_waitcnt vmcnt(14)')
    a(f'buffer_store_dword v{vT+6}, off, {SR(SRD_DBG)}, s76 sc1')
    a.label('LA_nosig')
    dma_xw(2); dma_xw(3)
    g.stamp('A.issued')
    srd(a, SRD_WO, 20, 512*512*2)
    a(f's_cmp_ge_u32 s{W}, 2')
    a(f's_cselect_b32 s{SRD_WGU}, s26, s24')
    a(f's_cselect_b32 s{SRD_WGU+1}, s27, s25')
    a(f's_cmp_ge_u32 s{S_J}, 28')
    a(f's_cselect_b32 s{SRD_WGU+2}, 0, {512*1792*2}')
    a(f's_mov_b32 s{SRD_WGU+3}, 0x20000')
    srd(a, SRD_WD, 28, 1792*512*2)
    srd(a, SRD_OUT, 30, 2048*512*2)
    a(f'v_and_b32 v{vT}, 31, v0')
    a(f'v_lshrrev_b32 v{vT+1}, 5, v0')
    a(f'v_lshrrev_b32 v{vT+2}, 1, v{vT}')
    a(f'v_and_b32 v{vT+2}, 7, v{vT+2}')
    a(f'v_xor_b32 v{vT+2}, v{vT+2}, v{vT+1}')
    a(f'v_lshlrev_b32 v{vT+2}, 4, v{vT+2}')
    a(f'v_lshl_add_u32 v{vT+2}, v{vT}, 7, v{vT+2}')
    a(f'v_add_u32 v{vT+2}, s{s_m0x}, v{vT+2}')
    for s in range(4):
        a(f's_xor_b32 s76, s{W}, {s}')
        a(f's_lshl_b32 s76, s76, 5')
        a(f'v_xor_b32 v{vXr+s}, s76, v{vT+2}')
    a(f'v_bfe_u32 v{vT+2}, v0, 2, 2')
    a(f'v_lshl_add_u32 v{vT+2}, v{vT+1}, 3, v{vT+2}')
    a(f'v_mul_u32_u24 v{vT+2}, 192, v{vT+2}')
    a(f'v_bfe_u32 v{vT+3}, v0, 4, 1')
    a(f'v_lshl_add_u32 v{vT+2}, v{vT+3}, 5, v{vT+2}')
    a(f'v_and_b32 v{vT+3}, 3, v0')
    a(f'v_lshl_add_u32 v{vT+4}, v{vT+3}, 3, v{vT+2}')
    a(f'v_and_b32 v{vT+5}, 1, v0')
    a(f'v_lshl_add_u32 v{vT+5}, v{vT+5}, 4, v{vT+2}')
    a(f'v_bfe_u32 v{vT+3}, v0, 1, 1')
    a(f'v_lshl_add_u32 v{vT+5}, v{vT+3}, 3, v{vT+5}')
    for s in range(4):
        a(f's_xor_b32 s76, s{W}, {s}')
        a(f's_mul_i32 s76, s76, 3072')
        a(f'v_add_u32 v{vWn+s}, s76, v{vT+4}')
        a(f'v_add_u32 v{vWp+s}, s76, v{vT+5}')
    for r in (vSum, vSq, vCs, vCs+1, vCs+2): a(f'v_mov_b32 v{r}, 0')
    a(f'v_mov_b32 v{vOne}, 0x3f803f80')
    a(f'v_lshrrev_b32 v{vT}, 4, v0')
    a(f'v_and_b32 v{vT+1}, 15, v0')
    a(f'v_lshlrev_b32 v{vT+2}, 1, v{vT}')
    a(f'v_xor_b32 v{vT+1}, v{vT+1}, v{vT+2}')
    a(f'v_lshlrev_b32 v{vT+1}, 4, v{vT+1}')
    a(f'v_lshl_add_u32 v{vWo}, v{vT}, 10, v{vT+1}')
    a(f'v_add_u32 v{vWo+1}, {4096-1024}, v{vWo}')
    a(f'v_xor_b32 v{vWo+2}, 128, v{vWo}')
    a(f'v_add_u32 v{vWo+2}, {2*(4096-1024)}, v{vWo+2}')
    a(f'v_add_u32 v{vWo+3}, {4096-1024}, v{vWo+2}')
    a(f'v_and_b32 v{vDbgA}, 15, v0')
    a(f'v_lshlrev_b32 v{vDbgA}, 2, v{vDbgA}')
    a(f's_lshr_b32 s84, s{S_J}, 3')
    a(f's_lshl_b32 s84, s84, 8')
    a(f's_lshl_b32 s76, s{W}, 17')
    a(f's_add_u32 s84, s84, s76')
    a(f's_lshl_b32 s85, s{W}, 12')
    def dma_wo(n):
        if n < 5: a(f's_add_u32 m0, s85, {16384*n}')
        else: a(f's_add_u32 m0, s{s_m0x}, {4096*(n-5)}')
        a(f's_add_u32 s76, s84, {n*16384}')
        for i in range(4):
            vm.issue(f'buffer_load_dwordx4 v{vWo+i}, {SR(SRD_WO)}, s76 offen offset:{i*1024} lds', 'wo')
    def rdW(c, s):
        base = vW + (c&1)*48 + s*12
        off = (c&3)*12288
        for tile in range(3):
            ad = (vWp if tile == 0 else vWn) + s
            for h2 in range(2):
                a(f'ds_read_b64_tr_b16 {vr(base+tile*4+h2*2,2)}, v{ad} offset:{off + h2*768 + tile*64}')
    def dots(c):
        xb = vX + (c&1)*16; wb = vW + (c&1)*48
        for i in range(16):
            a(f'v_dot2c_f32_bf16 v{vSum}, v{xb+i}, v{vOne}')
            a(f'v_dot2c_f32_bf16 v{vSq}, v{xb+i}, v{xb+i}')
        for i in range(4):
            for tile in range(3):
                a(f'v_dot2c_f32_bf16 v{vCs+tile}, v{wb+tile*4+i}, v{vOne}')
    def mm(c, s):
        xb = vr(vX + (c&1)*16 + s*4, 4); wb = vW + (c&1)*48 + s*12
        first = (c == 0 and s == 0)
        C = lambda t: '0' if first else vr(vAcc+16*t, 16)
        a(f'v_mfma_f32_32x32x16_bf16 {vr(vAcc+16,16)}, {xb}, {vr(wb+4,4)}, {C(1)}')
        a(f'v_mfma_f32_32x32x16_bf16 {vr(vAcc+32,16)}, {xb}, {vr(wb+8,4)}, {C(2)}')
        a(f'v_mfma_f32_32x32x16_bf16 {vr(vAcc,16)}, {vr(wb,4)}, {xb}, {C(0)}')
    for c in range(8):
        if c == 4:
            for s in range(4):
                a(f'v_add_u32 v{vWn+s}, 49152, v{vWn+s}')
                a(f'v_add_u32 v{vWp+s}, 49152, v{vWp+s}')
        vm.wait(f'c{c}')
        a('s_barrier')
        if c in (0, 4, 7): g.stamp(f'A.c{c}')
        for s in range(4):
            a(f'ds_read_b128 {vr(vX+(c&1)*16+s*4,4)}, v{vXr+s} offset:{(c&3)*4096}')
        rdW(c, 0)
        if c: dots(c-1)
        a('s_waitcnt lgkmcnt(0)')
        rdW(c, 1); rdW(c, 2)
        mm(c, 0)
        if c + 4 < 8: dma_xw(c+4)
        if c == 4:
            vm.issue(f'buffer_load_dword v{vDbg}, v{vDbgA}, {SR(SRD_DBG)}, 0 offen sc1', 'dbg')
            dma_wo(0)
        if c in (5, 6): dma_wo(c+1)
        if c == 7: dma_wo(4)
        a('s_waitcnt lgkmcnt(6)')
        rdW(c, 3)
        mm(c, 1)
        if c == 4: dma_wo(1)
        if c == 6: dma_wo(3)
        a('s_waitcnt lgkmcnt(6)')
        mm(c, 2)
        if c == 4: dma_wo(2)
        a('s_waitcnt lgkmcnt(0)')
        mm(c, 3)
        if c == 4: dma_wo(5)
    dots(7)
    g.stamp('A.loop')
    SC = 12288
    for r in (vSum, vSq, vCs, vCs+1, vCs+2):
        a(f'v_mov_b32 v{vT}, v{r}')
        a(f'v_permlane32_swap_b32 v{r}, v{vT}')
        a(f'v_add_f32 v{r}, v{r}, v{vT}')
    vMean, vRstd = vSum, vSq
    a(f'v_and_b32 v{vT}, 31, v0')
    a(f'v_lshl_add_u32 v{vT+1}, v{vT}, 2, s{s_m0x}')
    for tile in range(3):
        a(f'ds_write_b32 v{vT+1}, v{vCs+tile} offset:{SC+256+128*tile}')
    a(f'v_mul_f32 v{vMean}, {fbits(1/512)}, v{vSum}')
    a(f'v_mul_f32 v{vSq}, {fbits(1/512)}, v{vSq}')
    a(f'v_fma_f32 v{vSq}, -v{vMean}, v{vMean}, v{vSq}')
    a(f'v_max_f32 v{vSq}, 0, v{vSq}')
    a(f'v_add_f32 v{vSq}, {fbits(1e-5)}, v{vSq}')
    a(f'v_rsq_f32 v{vRstd}, v{vSq}')
    a(f'ds_write_b32 v{vT+1}, v{vMean} offset:{SC}')
    a(f'ds_write_b32 v{vT+1}, v{vRstd} offset:{SC+128}')
    a(f'v_lshlrev_b32 v{vT+2}, 2, v{vT}')
    a(f'v_add_u32 v{vT+2}, {XR+SC}, v{vT+2}')
    a(f'v_lshrrev_b32 v{vT+3}, 5, v0')
    a(f'v_lshl_add_u32 v{vT+3}, v{vT+3}, 4, s{s_m0x}')
    a('s_waitcnt lgkmcnt(0)')
    a('s_barrier')
    vP = 88
    for tile in (1, 2, 0):
        for w in range(4):
            a(f'ds_read_b32 v{vP+tile*4+w}, v{vT+2} offset:{w*16384+256+128*tile}')
    vM, vR = 104, 120
    a('s_waitcnt lgkmcnt(4)')
    for aa in range(4):
        a(f'ds_read_b128 {vr(vM+4*aa,4)}, v{vT+3} offset:{SC+aa*32}')
        a(f'ds_read_b128 {vr(vR+4*aa,4)}, v{vT+3} offset:{SC+128+aa*32}')
    for tile in (1, 2):
        b = vP + tile*4
        a(f'v_add_f32 v{b}, v{b}, v{b+1}')
        a(f'v_add_f32 v{b+2}, v{b+2}, v{b+3}')
        a(f'v_add_f32 v{vCs+tile}, v{b}, v{b+2}')
    a('s_waitcnt lgkmcnt(8)')
    b = vP
    a(f'v_add_f32 v{b}, v{b}, v{b+1}')
    a(f'v_add_f32 v{b+2}, v{b+2}, v{b+3}')
    a(f'v_add_f32 v{vCs}, v{b}, v{b+2}')
    a(f'ds_write_b32 v{vT+1}, v{vCs} offset:{SC+768}')
    vK, vV, vQ = vAcc+16, vAcc+32, vAcc
    vE = 136
    s_l2e, s_eps = 76, 77
    a(f's_mov_b32 s{s_l2e}, {fbits(LOG2E)}')
    a(f's_mov_b32 s{s_eps}, {fbits(1e-6)}')
    a('s_waitcnt lgkmcnt(1)')
    for r in range(16):
        a(f'v_fma_f32 v{vK+r}, -v{vM+r}, v{vCs+1}, v{vK+r}')
    for r in range(16):
        a(f'v_fma_f32 v{vK+r}, v{vK+r}, v{vR+r}, s{s_eps}')
    for r in range(16):
        a(f'v_mul_f32 v{vE+r}, s{s_l2e}, v{vK+r}')
    for r in range(16):
        a(f'v_exp_f32_e64 v{vE+r}, v{vE+r} clamp')
        a(f'v_max_f32 v{vK+r}, s{s_eps}, v{vK+r}')
    for r in range(16):
        a(f'v_fma_f32 v{vV+r}, -v{vM+r}, v{vCs+2}, v{vV+r}')
        a(f'v_add_f32 v{vK+r}, v{vK+r}, v{vE+r}')
    vPK, vPV = 152, 160
    vOnes = 168
    for i in range(4): a(f'v_mov_b32 v{vOnes+i}, v{vOne}')
    for i in range(8):
        a(f'v_cvt_pk_bf16_f32 v{vPK+i}, v{vK+2*i}, v{vK+2*i+1}')
    vD2, vD3 = 176, 192
    a(f'v_mul_f32 v{vV}, v{vV}, v{vR}')
    a(f'v_mul_f32 v{vV+1}, v{vV+1}, v{vR+1}')
    a(f'v_mfma_f32_32x32x16_bf16 {vr(vD3,16)}, {vr(vPK,4)}, {vr(vOnes,4)}, 0')
    for r in range(2, 8): a(f'v_mul_f32 v{vV+r}, v{vV+r}, v{vR+r}')
    a(f'v_mfma_f32_32x32x16_bf16 {vr(vD3,16)}, {vr(vPK+4,4)}, {vr(vOnes,4)}, {vr(vD3,16)}')
    for i in range(4):
        a(f'v_cvt_pk_bf16_f32 v{vPV+i}, v{vV+2*i}, v{vV+2*i+1}')
    for r in range(8, 10): a(f'v_mul_f32 v{vV+r}, v{vV+r}, v{vR+r}')
    a(f'v_mfma_f32_32x32x16_bf16 {vr(vD2,16)}, {vr(vPK,4)}, {vr(vPV,4)}, 0')
    for r in range(10, 16): a(f'v_mul_f32 v{vV+r}, v{vV+r}, v{vR+r}')
    for i in range(4, 8):
        a(f'v_cvt_pk_bf16_f32 v{vPV+i}, v{vV+2*i}, v{vV+2*i+1}')
    vCq = 104
    for aa in range(2):
        a(f'ds_read_b128 {vr(vCq+4*aa,4)}, v{vT+3} offset:{SC+768+aa*32}')
    a(f'v_mfma_f32_32x32x16_bf16 {vr(vD2,16)}, {vr(vPK+4,4)}, {vr(vPV+4,4)}, {vr(vD2,16)}')
    for aa in range(2, 4):
        a(f'ds_read_b128 {vr(vCq+4*aa,4)}, v{vT+3} offset:{SC+768+aa*32}')
    a(f'v_and_b32 v{vT+4}, 3, v0')
    a(f'v_bfe_u32 v{vT+5}, v0, 2, 1')
    a(f'v_lshl_add_u32 v{vT+4}, v{vT+5}, 3, v{vT+4}')
    a(f'v_bfe_u32 v{vT+5}, v0, 3, 1')
    a(f'v_lshl_add_u32 v{vT+4}, v{vT+5}, 2, v{vT+4}')
    a(f'v_bfe_u32 v{vT+5}, v0, 4, 1')
    a(f'v_mul_u32_u24 v{vT+6}, 1088, v{vT+5}')
    a(f'v_lshrrev_b32 v{vT+7}, 5, v0')
    a(f'v_mul_u32_u24 v{vT+7}, 544, v{vT+7}')
    a(f'v_add3_u32 v{vT+6}, v{vT+6}, v{vT+7}, s{s_m0x}')
    a(f'v_lshl_add_u32 v{vT+4}, v{vT+4}, 4, v{vT+6}')
    a(f'v_cmp_eq_u32 vcc, 1, v{vT+5}')
    a(f's_lshl_b32 s78, s{W}, 8')
    a(f'v_lshl_add_u32 v{vT+8}, v0, 2, s78')
    for j in range(8):
        a(f'v_cndmask_b32 v{vD3+j}, v{vD3+j}, v{vD3+8+j}, vcc')
    for j in range(8):
        a(f'v_cndmask_b32 v{vD2+j}, v{vD2+j}, v{vD2+8+j}, vcc')
    a(f'ds_write_b128 v{vT+4}, {vr(vD2,4)} offset:{SC+1024}')
    a(f'ds_write_b128 v{vT+4}, {vr(vD2+4,4)} offset:{SC+1024+272}')
    a('s_mov_b32 exec_lo, 0x00010001')
    a('s_mov_b32 exec_hi, 0x00010001')
    a(f'ds_write_b128 v{vT+6}, {vr(vD3,4)} offset:{SC+1024+256}')
    a(f'ds_write_b128 v{vT+6}, {vr(vD3+4,4)} offset:{SC+1024+272+256}')
    a('s_mov_b64 exec, -1')
    a(f'v_add_u32 v{vT+5}, {XR+SC+1024}, v{vT+8}')
    a(f'v_min_u32 v{vT+7}, {XR+SC+1024+124}, v{vT+5}')
    a('s_waitcnt lgkmcnt(0)')
    a('s_barrier')
    for i in range(3):
        for w in range(4):
            a(f'ds_read_b32 v{vD2+i*4+w}, v{vT+5 if i < 2 else vT+7} offset:{w*16384+i*1024}')
    for r in range(16):
        a(f'v_fma_f32 v{vQ+r}, -v{vMean}, v{vCq+r}, v{vQ+r}')
    a.label('LA_chk')
    vm.wait('dbg')
    a(f'v_cmp_ne_u32 vcc, 1, v{vDbg}')
    a('s_cbranch_vccz LA_ok')
    a(f'buffer_load_dword v{vDbg}, v{vDbgA}, {SR(SRD_DBG)}, 0 offen sc1')
    a('s_waitcnt vmcnt(0)')
    guard(g)
    a('s_branch LA_chk')
    a.label('LA_ok')
    a(f's_mul_i32 s78, s{s_hp}, 2176')
    a(f's_add_u32 s78, s78, {WS_KV}')
    a('s_waitcnt lgkmcnt(0)')
    for i in range(3):
        b = vD2+i*4
        a(f'v_add_f32 v{b}, v{b}, v{b+1}')
        a(f'v_add_f32 v{b+2}, v{b+2}, v{b+3}')
    for i in range(3):
        b = vD2+i*4
        a(f'v_add_f32 v{b}, v{b}, v{b+2}')
    vm.issue(f'buffer_atomic_add_f32 v{vD2}, v{vT+8}, {SR(SRD_WS)}, s78 offen', 'st')
    vm.issue(f'buffer_atomic_add_f32 v{vD2+4}, v{vT+8}, {SR(SRD_WS)}, s78 offen offset:1024', 'st')
    a(f's_cmp_lg_u32 s{W}, 0')
    a('s_cbranch_scc1 LA_noat')
    a('s_mov_b32 exec_hi, 0')
    a(f'buffer_atomic_add_f32 v{vD2+8}, v{vT+8}, {SR(SRD_WS)}, s78 offen offset:2048')
    a('s_mov_b32 exec_hi, -1')
    a.label('LA_noat')
    g.stamp('A.atom')
    for r in range(16):
        a(f'v_fma_f32 v{vQ+r}, v{vQ+r}, v{vRstd}, s{s_eps}')
    for r in range(16):
        a(f'v_mul_f32 v{vE+r}, s{s_l2e}, v{vQ+r}')
    for r in range(16):
        a(f'v_exp_f32_e64 v{vE+r}, v{vE+r} clamp')
        a(f'v_max_f32 v{vQ+r}, s{s_eps}, v{vQ+r}')
    for r in range(16):
        a(f'v_add_f32 v{vQ+r}, v{vQ+r}, v{vE+r}')
    a(f's_lshl2_add_u32 s78, s{s_rb}, s{W}')
    a(f's_lshl_b32 s78, s78, 15')
    a(f's_lshl_b32 s79, s{s_hp}, 11')
    a(f's_add_u32 s78, s78, s79')
    vL16 = 1
    a(f'v_lshlrev_b32 v{vL16}, 4, v0')
    for i in range(8):
        a(f'v_cvt_pk_bf16_f32 v{vPK+i}, v{vQ+2*i}, v{vQ+2*i+1}')
    vm.issue(f'buffer_store_dwordx4 {vr(vPK,4)}, v{vL16}, {SR(SRD_WS)}, s78 offen sc1', 'st')
    vm.issue(f'buffer_store_dwordx4 {vr(vPK+4,4)}, v{vL16}, {SR(SRD_WS)}, s78 offen offset:1024 sc1', 'st')
    g.stamp('A.pq')
    a(f's_lshl4_add_u32 s79, s{s_hp}, s{s_rb}')
    a(f's_lshl_b32 s79, s79, 7')
    a(f's_lshl2_add_u32 s79, s{W}, s79')
    a(f's_add_u32 s79, s79, {FA}')
    vA0 = 4
    a(f'v_bfe_u32 v{vT}, v0, 2, 3')
    a(f'v_bfe_u32 v{vT+1}, v0, 2, 2')
    a(f'v_bfe_u32 v{vT+2}, v0, 4, 1')
    a(f'v_lshl_add_u32 v{vT+1}, v{vT+2}, 3, v{vT+1}')
    a(f'v_lshlrev_b32 v{vT+1}, 8, v{vT+1}')
    a(f'v_and_b32 v{vT+2}, 3, v0')
    a(f'v_lshl_add_u32 v{vT+1}, v{vT+2}, 3, v{vT+1}')
    a(f's_lshl_b32 s76, s{W}, 1')
    a(f'v_xor_b32 v{vT}, s76, v{vT}')
    a(f'v_lshl_add_u32 v{vT+1}, v{vT}, 5, v{vT+1}')
    a(f'v_lshrrev_b32 v{vT+2}, 5, v0')
    a(f'v_lshl_add_u32 v{vA0}, v{vT+2}, 14, v{vT+1}')
    a(f'v_lshl_add_u32 v{vA0+1}, v{vT+2}, 12, v{vT+1}')
    a(f'v_add_u32 v{vA0+1}, {98304+4096}, v{vA0+1}')
    for wp in range(4):
        a(f'v_mul_u32_u24 v{vT+3}, {32768+12288*wp}, v{vT+2}')
        a(f'v_add3_u32 v{vA0+2+wp}, v{vT+3}, v{vT+1}, s76') if False else None
        a(f'v_add_u32 v{vA0+2+wp}, v{vT+3}, v{vT+1}')
        a(f'v_add_u32 v{vA0+2+wp}, {65536+4096*wp}, v{vA0+2+wp}')
    for i in range(6): a(f'v_xor_b32 v{vA0+6+i}, 32, v{vA0+i}')
    vm.wait('wo')
    a('s_barrier')
    g.stamp('E.wo')
    def aWO(t, ks): return 128 + (t*16 + ks)*4
    for ks in range(16):
        wp, pr = ks >> 2, ks & 3
        for t in range(2):
            if pr < 2: ad, off = vA0, 4096*(8*pr + wp)
            elif pr == 2: ad, off = vA0+2+wp, 0
            else: ad, off = vA0+1, 16384*wp
            for h2 in range(2):
                a(f'ds_read_b64_tr_b16 {ar(aWO(t,ks)+2*h2,2)}, v{ad+6*t} offset:{off+h2*1024}')
        if ks == 7:
            vm.wait('st')
            set_flag(g, vT+9, 79, 1)
            g.stamp('E.flag')
    a(f's_and_b32 s70, s{S_J}, 7')
    a(f's_lshl3_add_u32 s70, s{S_XC}, s70')
    a(f's_lshr_b32 s71, s{S_J}, 3')
    a(f's_lshr_b32 s76, s{S_XC}, 1')
    a(f's_and_b32 s86, s{S_J}, 3')
    a(f's_lshl2_add_u32 s86, s76, s86')
    a(f's_and_b32 s76, s{S_XC}, 1')
    a(f's_mul_i32 s76, s76, 7')
    a(f's_lshr_b32 s87, s{S_J}, 2')
    a(f's_add_u32 s87, s87, s76')
    vXres = 20
    a(f'v_and_b32 v{vT}, 15, v0')
    a(f'v_lshrrev_b32 v{vT+1}, 4, v0')
    a(f'v_lshlrev_b32 v{vT+2}, 3, v{vT+1}')
    a(f'v_lshl_add_u32 v{vT+2}, v{vT}, 10, v{vT+2}')
    a(f's_lshl_b32 s72, s70, 15')
    a(f's_lshl_b32 s73, s71, 8')
    a(f's_add_u32 s72, s72, s73')
    a(f's_lshl_b32 s73, s{W}, 6')
    a(f's_add_u32 s72, s72, s73')
    a(f's_add_u32 s73, s72, 16384')
    for m in range(2):
        for t in range(2):
            vm.issue(f'buffer_load_dwordx2 {vr(vXres+m*4+t*2,2)}, v{vT+2}, {SR(SRD_X)}, s{72+m} offen offset:{32*t}', 'xres')
    vGd = 16
    a(f'v_lshlrev_b32 v{vT+2}, 1, v{vT+1}')
    a(f'v_xor_b32 v{vT+2}, v{vT}, v{vT+2}')
    a(f'v_lshlrev_b32 v{vT+2}, 4, v{vT+2}')
    a(f'v_mul_u32_u24 v{vT+3}, 3584, v{vT+1}')
    a(f'v_add_u32 v{vGd}, v{vT+3}, v{vT+2}')
    a(f'v_xor_b32 v{vT+2}, 128, v{vT+2}')
    a(f'v_add_u32 v{vGd+1}, v{vT+3}, v{vT+2}')
    a(f'v_add_u32 v{vGd+1}, {4*3584-1024}, v{vGd+1}')
    a(f'v_add_u32 v{vGd+2}, {2*(4*3584-1024)}, v{vGd}')
    a(f'v_add_u32 v{vGd+3}, {2*(4*3584-1024)}, v{vGd+1}')
    a(f's_and_b32 s76, s{W}, 1')
    a(f's_mul_i32 s88, s76, {128*3584}')
    a(f's_lshl_b32 s76, s87, 8')
    a(f's_add_u32 s88, s88, s76')
    a(f's_lshl_b32 s89, s{W}, 15')
    def dma_gu(half, blk):
        L = [f's_add_u32 m0, s89, {blk*4096}', f's_add_u32 s83, s88, {(half*256+blk*16)*3584}']
        for i in range(4):
            L.append(('vm', f'buffer_load_dwordx4 v{vGd+i}, {SR(SRD_WGU)}, s83 offen offset:{i*1024} lds', f'gu{half}'))
        return L
    vG0 = 4
    a('s_waitcnt lgkmcnt(0)')
    a('s_barrier')
    for blk in range(8):
        for x in dma_gu(0, blk): g.emit(x)
    g.stamp('E.gu0')
    a(f'v_bfe_u32 v{vT}, v0, 2, 3')
    a(f's_lshl_b32 s76, s{W}, 1')
    a(f'v_xor_b32 v{vT}, s76, v{vT}')
    a(f'v_lshrrev_b32 v{vT+1}, 2, v0')
    a(f'v_lshlrev_b32 v{vT+1}, 8, v{vT+1}')
    a(f'v_and_b32 v{vT+2}, 3, v0')
    a(f'v_lshl_add_u32 v{vT+1}, v{vT+2}, 3, v{vT+1}')
    a(f'v_lshl_add_u32 v{vG0}, v{vT}, 5, v{vT+1}')
    a(f'v_add_u32 v{vG0+1}, 65536, v{vG0}')
    a(f'v_xor_b32 v{vG0+2}, 32, v{vG0}')
    a(f'v_xor_b32 v{vG0+3}, 32, v{vG0+1}')
    def aGU(rt, ks): return (ks >> 3)*128 + (rt*8 + (ks & 7))*4
    def rd_gu(half):
        for k8 in range(8):
            for rt in range(4):
                for h2 in range(2):
                    a(f'ds_read_b64_tr_b16 {ar(aGU(rt, half*8+k8)+2*h2,2)}, v{vG0+rt} offset:{k8*8192+h2*4096}')
    OX = 131072
    vKV = 40; vPQ = 104; vD = 136
    a(f'v_and_b32 v{vT}, 31, v0')
    a(f'v_min_u32 v{vT}, 16, v{vT}')
    a(f'v_lshrrev_b32 v{vT+1}, 5, v0')
    a(f'v_mul_u32_u24 v{vT+1}, 272, v{vT+1}')
    a(f'v_lshl_add_u32 v{vT}, v{vT}, 4, v{vT+1}')
    a(f's_mul_i32 s72, s{W}, {8*1088}')
    a(f's_add_u32 s72, s72, {WS_KV}')
    a(f's_add_u32 s73, s72, {3*1088}')
    a(f's_add_u32 s76, s72, {6*1088}')
    a(f's_lshl_b32 s74, s70, 15')
    a(f's_lshl_b32 s78, s{W}, 13')
    a(f's_add_u32 s74, s74, s78')
    a(f's_add_u32 s75, s74, 4096')
    a(f's_add_u32 s79, s78, {FA}')
    a(f's_add_u32 s78, s78, {OX}')
    a(f'v_lshlrev_b32 v{vT+1}, 7, v0')
    a(f's_mov_b32 s77, {fbits(1e-6)}')
    a(f'v_add_u32 v{vT+2}, s78, v{vL16}')
    a(f'v_and_b32 v{vT+3}, 15, v0')
    a(f'v_lshrrev_b32 v{vT+4}, 4, v0')
    a(f'v_lshlrev_b32 v{vT+4}, 9, v{vT+4}')
    a(f'v_lshl_add_u32 v{vT+3}, v{vT+3}, 4, v{vT+4}')
    a(f'v_add_u32 v{vT+3}, {OX}, v{vT+3}')
    poll(g, 'LB_poll', vT+1, vD, 4, 79, '1')
    g.stamp('B.sync')
    for h in range(8):
        so = (72, 73, 76)[h//3]
        for q in range(2):
            vm.issue(f'buffer_load_dwordx4 {vr(vKV+h*8+q*4,4)}, v{vT}, {SR(SRD_WS)}, s{so} offen offset:{(h%3)*1088+q*544} sc1', f'kv{h}')
        vm.issue(f'buffer_load_dwordx4 {vr(vPQ+h*4,4)}, v{vL16}, {SR(SRD_WS)}, s{74 if h<4 else 75} offen offset:{(h&3)*1024} sc1', f'kv{h}')
    a('s_barrier')
    rd_gu(0)
    a('s_waitcnt lgkmcnt(0)')
    a('s_barrier')
    g.stamp('B.rd')
    def Dreg(h): return vD + (h % 4)*16
    def front(h):
        vm.wait(f'kv{h}')
        b = vKV + h*8
        for i in range(4):
            a(f'v_cvt_pk_bf16_f32 v{b+i}, v{b+2*i}, v{b+2*i+1}')
        a(f'v_mfma_f32_32x32x16_bf16 {vr(Dreg(h),16)}, {vr(b,4)}, {vr(vPQ+h*4,4)}, 0')
    def back(h):
        d = Dreg(h)
        a(f'v_add_f32 v{d+8}, s77, v{d+8}')
        a(f'v_rcp_f32 v{d+8}, v{d+8}')
        bg = dma_gu(1, h)
        g.emit(bg[0]); g.emit(bg[1])
        for j in range(8):
            a(f'v_mul_f32 v{d+j}, v{d+j}, v{d+8}')
            if j % 4 == 1: g.emit(bg[2 + j//4])
        for i in range(4):
            a(f'v_cvt_pk_bf16_f32 v{d+12+i}, v{d+2*i}, v{d+2*i+1}')
            if i == 1: g.emit(bg[4])
        a(f'ds_write_b128 v{vT+2}, {vr(d+12,4)} offset:{h*1024}')
        g.emit(bg[5])
    front(0); front(1); front(2)
    for h in range(8):
        if h + 3 < 8: front(h+3)
        back(h)
    a('s_waitcnt lgkmcnt(0)')
    a('s_barrier')
    g.stamp('B.o')
    vO = 40
    vBa = 176
    vU = 192
    vH = 208
    a(f's_lshl2_add_u32 s72, s71, s{W}')
    a(f's_lshl_b32 s73, s70, 15')
    a(f's_lshl_b32 s74, s72, 10')
    a(f's_add_u32 s73, s73, s74')
    a(f's_add_u32 s73, s73, {WS_H}')
    a(f's_add_u32 s75, s73, 16384')
    a(f's_lshl4_add_u32 s74, s70, s72')
    a(f's_lshl_b32 s74, s74, 8')
    a(f's_add_u32 s74, s74, {WS_STATS}')
    a(f's_lshl2_add_u32 s79, s70, s71')
    a(f's_lshl_b32 s79, s79, 7')
    a(f's_lshl2_add_u32 s79, s{W}, s79')
    a(f's_add_u32 s79, s79, {FB}')
    def rdo(i): return ('lg', f'ds_read_b128 {vr(vO+i*4,4)}, v{vT+3} offset:{(i&15)*2048+(i>>4)*256}', f'o{i}')
    for i in range(12): g.emit(rdo(i))
    vS = vT+4
    def epiB(m):
        L = []
        for r in range(8): L.append(f'v_add_f32 v{vBa+8*m+r}, v{vBa+8*m+r}, v{vU+8*m+r}')
        for i in range(4): L.append(f'v_cvt_pk_bf16_f32 v{vH+4*m+i}, v{vBa+8*m+2*i}, v{vBa+8*m+2*i+1}')
        L.append(('vm', f'buffer_store_dwordx4 {vr(vH+4*m,4)}, v{vL16}, {SR(SRD_WS)}, s{73+2*m} offen sc1', 'st'))
        return L
    mf = []
    for q in range(64):
        m, t, ks = q >> 5, (q >> 4) & 1, q & 15
        acc = vr(vBa + (2*m+t)*4, 4)
        pre = [('wlg', f'o{m*16+min(ks+1,15)}')] if (t == 0 and ks % 2 == 0) else []
        post = [rdo(12+q)] if 12+q < 32 else []
        mf.append((pre, f'v_mfma_f32_16x16x32_bf16 {acc}, {ar(aWO(t,ks),4)}, {vr(vO+(m*16+ks)*4,4)}, {"0" if ks==0 else acc}', post))
    unp = [('wvm', 'xres')]
    for i in range(8):
        unp.append(f'v_lshlrev_b32 v{vU+2*i}, 16, v{vXres+i}')
        unp.append(f'v_and_b32 v{vU+2*i+1}, 0xffff0000, v{vXres+i}')
    for i in range(4): unp.append(f'v_mov_b32 v{vS+i}, 0')
    unp.append(f'v_lshlrev_b32 v{vT+8}, 2, v0')
    weave(g, mf, [(16, 34, unp), (38, 48, epiB(0))], 8)
    for i in range(4):
        a(f'v_dot2c_f32_bf16 v{vS}, v{vH+i}, v{vOne}')
        a(f'v_dot2c_f32_bf16 v{vS+1}, v{vH+i}, v{vH+i}')
    for x in epiB(1): g.emit(x)
    for i in range(4):
        a(f'v_dot2c_f32_bf16 v{vS+2}, v{vH+4+i}, v{vOne}')
        a(f'v_dot2c_f32_bf16 v{vS+3}, v{vH+4+i}, v{vH+4+i}')
    a(f'v_permlane32_swap_b32 v{vS}, v{vS+2}')
    a(f'v_permlane32_swap_b32 v{vS+1}, v{vS+3}')
    a(f'v_add_f32 v{vS}, v{vS}, v{vS+2}')
    a(f'v_add_f32 v{vS+1}, v{vS+1}, v{vS+3}')
    a(f'v_permlane16_swap_b32 v{vS}, v{vS+1}')
    a(f'v_add_f32 v{vS}, v{vS}, v{vS+1}')
    vm.issue(f'buffer_store_dword v{vS}, v{vT+8}, {SR(SRD_WS)}, s74 offen sc1', 'st')
    g.stamp('B.st')
    vm.wait('gu1')
    a('s_barrier')
    g.stamp('P.gu1')
    rd_gu(1)
    vm.wait('st')
    set_flag(g, vT+9, 79, 1)
    g.stamp('P.flag')
    a(f's_and_b32 s70, s{S_J}, 1')
    a(f's_lshl1_add_u32 s70, s{S_XC}, s70')
    a(f's_lshr_b32 s71, s{S_J}, 2')
    a(f's_bfe_u32 s72, s{S_J}, 0x10001')
    vDd = 16
    a(f'v_lshrrev_b32 v{vT}, 3, v0')
    a(f'v_and_b32 v{vT+1}, 7, v0')
    a(f'v_and_b32 v{vT+2}, 6, v{vT}')
    a(f'v_xor_b32 v{vT+1}, v{vT+1}, v{vT+2}')
    a(f'v_lshlrev_b32 v{vT+1}, 4, v{vT+1}')
    a(f'v_lshl_add_u32 v{vDd}, v{vT}, 10, v{vT+1}')
    for i in range(1, 4): a(f'v_add_u32 v{vDd+i}, {i*(8192-1024)}, v{vDd}')
    a(f's_mul_i32 s88, s{W}, {448*1024}')
    a(f's_lshl_b32 s76, s71, 7')
    a(f's_add_u32 s88, s88, s76')
    def slot(sg): return 131072 if sg == 0 else 16384*(sg-1)
    def dma_wd(p, sg):
        L = [f's_add_u32 m0, s85, {slot(sg)}', f's_add_u32 s83, s88, {p*32768}']
        for i in range(4):
            L.append(('vm', f'buffer_load_dwordx4 v{vDd+i}, {SR(SRD_WD)}, s83 offen offset:{i*1024} lds', f'wd{p}'))
        return L
    vDr = 4
    a('s_waitcnt lgkmcnt(0)')
    a('s_barrier')
    a(f'v_lshrrev_b32 v{vT}, 2, v0')
    a(f'v_bfe_u32 v{vT+1}, v0, 3, 2')
    a(f'v_xor_b32 v{vT+1}, s{W}, v{vT+1}')
    a(f'v_lshlrev_b32 v{vT}, 7, v{vT}')
    a(f'v_lshl_add_u32 v{vT}, v{vT+1}, 5, v{vT}')
    a(f'v_and_b32 v{vT+1}, 3, v0')
    a(f'v_lshl_add_u32 v{vT}, v{vT+1}, 3, v{vT}')
    a(f'v_add_u32 v{vT}, s85, v{vT}')
    for tau in range(4):
        a(f'v_xor_b32 v{vDr+3*tau}, {32*tau}, v{vT}')
        a(f'v_add_u32 v{vDr+3*tau+1}, 65536, v{vDr+3*tau}')
        a(f'v_add_u32 v{vDr+3*tau+2}, 131072, v{vDr+3*tau}')
    def wdreg(p, tau):
        if p < 6: return 'v', 160 + p*16 + tau*4
        if p < 9: return 'v', 112 + (p-6)*16 + tau*4
        return 'a', 168 + (p-9)*16 + tau*4
    def rd_wd(p, sg):
        L = []
        ad = slot(sg)
        for tau in range(4):
            f, r = wdreg(p, tau)
            for h2 in range(2):
                L.append(('lg', f'ds_read_b64_tr_b16 {vr(r+2*h2,2,f)}, v{vDr+3*tau+(ad>>16)} offset:{(ad&65535)+h2*2048}', f'rw{p}'))
        return L
    FINAL = {6: 4, 7: 2, 8: 5, 9: 0, 10: 6, 11: 3, 12: 7, 13: 1}
    a(f's_cmp_ge_u32 s{S_J}, 28')
    a('s_cbranch_scc1 LC_idle')
    vHf = 40
    vCa = 104
    vCsum = 120
    vK4 = 136
    vGt = 144
    vOut = 156
    vHa = 20
    vKa = 22
    vSt = 160
    CONST = 147456
    for i in range(4): a(f'v_mov_b32 v{vGt+i}, v{vOne}')
    a(f'v_mov_b32 v{vHa}, v{vL16}')
    a(f'v_add_u32 v{vHa+1}, 65536, v{vL16}')
    a(f'v_and_b32 v{vT}, 15, v0')
    a(f'v_lshlrev_b32 v{vKa}, 4, v{vT}')
    a(f'v_add_u32 v{vKa}, {CONST}, v{vKa}')
    a(f'v_lshlrev_b32 v{vT}, 7, v{vT}')
    for q in range(64):
        rt, ks = q >> 4, q & 15
        acc = vr(vCsum+rt*4, 4)
        a(f'v_mfma_f32_16x16x32_bf16 {acc}, {ar(aGU(rt,ks),4)}, {vr(vGt,4)}, {"0" if ks==0 else acc}')
    a(f's_lshl_b32 s79, s86, 11')
    a(f's_add_u32 s79, s79, {FB}')
    a(f's_lshl_b32 s73, s86, 17')
    a(f's_add_u32 s73, s73, s85')
    a(f's_add_u32 s73, s73, {WS_H}')
    a(f's_lshl_b32 s74, s86, 14')
    a(f's_add_u32 s74, s74, s85')
    a(f's_add_u32 s74, s74, {WS_STATS}')
    a(f's_mul_i32 s75, s86, {8*56}')
    a(f's_lshl2_add_u32 s76, s87, s{W}')
    a(f's_add_u32 s75, s75, s76')
    a(f's_lshl_b32 s75, s75, 10')
    a(f's_add_u32 s75, s75, {WS_ACT}')
    a(f's_lshl4_add_u32 s77, s86, s87')
    a(f's_lshl_b32 s77, s77, 7')
    a(f's_lshl2_add_u32 s77, s{W}, s77')
    a(f's_add_u32 s77, s77, {FC}')
    g.stamp('P.cs')
    poll(g, 'LC_poll', vT, vGt, 4, 79, '1')
    g.stamp('C.sync')
    def dma_h(s):
        L = [f's_add_u32 m0, s85, {16384*s}', f's_add_u32 s83, s73, {16384*s}']
        for i in range(4):
            L.append(('vm', f'buffer_load_dwordx4 v{vL16}, {SR(SRD_WS)}, s83 offen offset:{i*1024} sc1 lds', f'h{s}'))
        return L
    for x in dma_h(0): g.emit(x)
    for p in range(16):
        vm.issue(f'buffer_load_dword v{vSt+p}, v{vT+8}, {SR(SRD_WS)}, s74 offen offset:{p*256} sc1', 'stats')
    for s in range(1, 4):
        for x in dma_h(s): g.emit(x)
    def rdh(s, ks): return ('lg', f'ds_read_b128 {vr(vHf+ks*4,4)}, v{vHa+(s>>2)} offset:{(s&3)*16384+ks*1024}', f'f{ks}')
    vm.wait('h0')
    a('s_barrier')
    g.stamp('C.h0')
    for ks in range(16): g.emit(rdh(0, ks))
    c0 = -2*0.7978845608028654*LOG2E
    c1 = c0*0.044715
    def consts():
        L = [('wvm', 'stats')]
        for st in (8, 4, 2, 1):
            for i in range(st): L.append(f'v_add_f32 v{vSt+i}, v{vSt+i}, v{vSt+i+st}')
        x, y = vSt, vSt+1
        o = vSt+4
        L += [f'v_mov_b32 v{y}, v{x}', f'v_lshrrev_b32 v{vSt+8}, 5, v0', f'v_lshlrev_b32 v{vSt+8}, 8, v{vSt+8}',
              f'v_permlane16_swap_b32 v{x}, v{y}',
              f'v_mul_f32 v{o}, {fbits(-1/512)}, v{x}',
              f'v_mul_f32 v{y}, {fbits(1/512)}, v{y}',
              f'v_fma_f32 v{y}, -v{o}, v{o}, v{y}',
              f'v_max_f32 v{y}, 0, v{y}',
              f'v_add_f32 v{o+3}, {fbits(1e-5)}, v{y}',
              f'v_rsq_f32 v{x}, v{o+3}',
              f's_lshl_b32 s84, s{W}, 9',
              f'v_add3_u32 v{vSt+8}, v{vSt+8}, v{vKa}, s84',
              f'v_mul_f32 v{y}, v{x}, v{x}',
              f'v_mul_f32 v{o+1}, {fbits(c0)}, v{x}',
              f'v_mul_f32 v{y}, {fbits(0.044715)}, v{y}',
              f'v_mul_f32 v{o+2}, v{o+1}, v{y}',
              ('lg', f'ds_write_b128 v{vSt+8}, {vr(o,4)}', 'cw')]
        return L
    def gelu(pair, s):
        K = vK4 + 4*(s & 1)
        nm, k0, k1, vv = K, K+1, K+2, K+3
        ag = vCa + pair*8; au = ag + 4; cg = vCsum + pair*8; cu = cg + 4
        t, u, e = vGt, vGt+4, vGt+8
        L = []
        if pair == 0: L.append(('wlg', f'k{s}'))
        R = range(4)
        L += [f'v_fma_f32 v{t+i}, v{nm}, v{cg+i}, v{ag+i}' for i in R]
        L += [f'v_fma_f32 v{u+i}, v{nm}, v{cu+i}, v{au+i}' for i in R]
        L += [f'v_mul_f32 v{e+i}, v{t+i}, v{t+i}' for i in R]
        L += [f'v_fma_f32 v{e+i}, v{e+i}, v{k1}, v{k0}' for i in R]
        L += [f'v_mul_f32 v{e+i}, v{e+i}, v{t+i}' for i in R]
        L += [f'v_exp_f32 v{e+i}, v{e+i}' for i in R]
        L += [f'v_mul_f32 v{t+i}, v{t+i}, v{u+i}' for i in R]
        L += [f'v_fma_f32 v{e+i}, v{e+i}, v{vv}, v{vv}' for i in R]
        L += [f'v_rcp_f32 v{e+i}, v{e+i}' for i in R]
        L += [f'v_mul_f32 v{t+i}, v{t+i}, v{e+i}' for i in R]
        L += [f'v_cvt_pk_bf16_f32 v{vOut+2*pair+i}, v{t+2*i}, v{t+2*i+1}' for i in range(2)]
        if pair == 1:
            L.append(f's_add_u32 s76, s75, {s*56*1024}')
            L.append(('vm', f'buffer_store_dwordx4 {vr(vOut,4)}, v{vL16}, {SR(SRD_WS)}, s76 offen sc1', f'act{s}'))
        return L
    def flagC(n): return [f'v_mov_b32 v{vT+9}, {n}', ('vm', f'buffer_store_dword v{vT+9}, off, {SR(SRD_WS)}, s77 sc1', 'flag')]
    RECY = {1: (0, 0, 3), 2: (1, 1, 5), 3: (2, 2, 7), 4: (3, 0, 9), 5: (4, 3, 11), 6: (5, 1, 13)}
    FRESH = {0: (1, 1), 1: (2, 2), 2: (4, 3), 3: (6, 4), 4: (8, 5), 5: (10, 6), 6: (12, 7)}
    for s in range(8):
        bq = 26 if s == 0 else 8
        mf = []
        for q in range(64):
            rt, ks = q >> 4, q & 15
            acc = vr(vCa+rt*4, 4)
            pre = []
            if q < 16 and q % 4 == 0: pre.append(('wlg', f'f{q+3}'))
            if q == bq:
                pre.append(('wlg', 'f15', 'cw'))
                if s < 7: pre.append(('wvm', f'h{s+1}'))
                pre.append('s_barrier')
                pre.append(('lg', f'ds_read_b128 {vr(vK4+4*(s&1),4)}, v{vKa} offset:{s*256}', f'k{s}'))
            post = [rdh(s+1, ks)] if (rt == 3 and s < 7) else []
            mf.append((pre, f'v_mfma_f32_16x16x32_bf16 {acc}, {ar(aGU(rt,ks),4)}, {vr(vHf+ks*4,4)}, {"0" if ks==0 else acc}', post))
        st = []
        if s == 0:
            hl = []
            for s2 in range(4, 8): hl += dma_h(s2)
            hl += dma_wd(0, 0)
            st.append((0, 14, hl))
            st.append((8, 25, consts()))
        else:
            st.append((3, 31, gelu(1, s-1)))
        st.append((35, 63, gelu(0, s)))
        bg = []
        if s in (5, 7): bg += [('wvm', f'act{s-2}')] + flagC(s-1)
        if s in FRESH: bg += dma_wd(*FRESH[s])
        if s in RECY:
            p, sg, pn = RECY[s]
            bg += [('wvm', f'wd{p}')] + rd_wd(p, sg) + [('wlg', f'rw{p}')] + dma_wd(pn, sg)
        if bg: st.append((bq+1, 47, bg))
        weave(g, mf, st, 8)
        if s in (0, 3): g.stamp(f'C.it{s}')
    g.stamp('C.end')
    vm.wait('act6')
    for x in flagC(7): g.emit(x)
    for x in gelu(1, 7): g.emit(x)
    g.stamp('C.tail')
    a('s_branch LD_start')
    a.label('LC_idle')
    sv = (vm.q, lg.q); vm.q = []; lg.q = []
    for p in range(6):
        for x in dma_wd(p, p): g.emit(x)
    vm.wait_all()
    for p in range(6):
        for x in rd_wd(p, p): g.emit(x)
    lg.wait_all()
    for p in range(6, 14):
        for x in dma_wd(p, FINAL[p]): g.emit(x)
    vm.wait_all()
    vm.q, lg.q = sv
    a.label('LD_start')
    a.hist = []
    a('s_nop 1')
    vDa = 40
    vRd = 72
    vHr = 84
    vPl = 92
    vRa = 93
    vOa = 96
    vWa = 97
    vU4 = 100
    a(f'v_min_u32 v{vT}, 13, v0')
    a(f's_mul_i32 s76, s{W}, 14')
    a(f'v_add_u32 v{vT}, s76, v{vT}')
    a(f'v_and_b32 v{vT+1}, 3, v{vT}')
    a(f'v_lshrrev_b32 v{vT}, 2, v{vT}')
    a(f'v_lshlrev_b32 v{vT}, 7, v{vT}')
    a(f'v_lshl_add_u32 v{vT}, v{vT+1}, 2, v{vT}')
    a(f's_lshl_b32 s79, s70, 11')
    a(f's_add_u32 s79, s79, {FC}')
    a(f's_add_u32 s80, s72, 5')
    a(f's_add_u32 s81, s72, 7')
    a(f's_lshl3_add_u32 s73, s70, s72')
    a(f's_mul_i32 s75, s73, 56')
    a(f's_add_u32 s75, s75, s76')
    a(f's_lshl_b32 s75, s75, 10')
    a(f's_add_u32 s75, s75, {WS_ACT}')
    a(f's_lshl_b32 s74, s73, 14')
    a(f's_lshr_b32 s76, s{W}, 1')
    a(f's_lshl1_add_u32 s76, s71, s76')
    a(f's_lshl_b32 s76, s76, 10')
    a(f's_add_u32 s74, s74, s76')
    a(f's_and_b32 s76, s{W}, 1')
    a(f's_lshl3_add_u32 s74, s76, s74')
    a(f's_add_u32 s74, s74, {WS_H}')
    a(f's_lshl_b32 s78, s73, 14')
    a(f's_lshl_b32 s76, s71, 7')
    a(f's_add_u32 s78, s78, s76')
    a(f's_lshl_b32 s76, s{W}, 5')
    a(f's_add_u32 s78, s78, s76')
    poll(g, 'LD_poll', vT, vPl, 1, 79, 's80')
    a(f's_cmp_ge_u32 s{S_J}, 28')
    a('s_cbranch_scc1 LD_nf')
    a(f'v_mov_b32 v{vT+9}, 8')
    a(f'buffer_store_dword v{vT+9}, off, {SR(SRD_WS)}, s77 sc1')
    a.label('LD_nf')
    g.stamp('D.sync')
    def aACT(m, i): return ((m % 3)*14 + i)*4
    def ld_act(m):
        L = []
        for i in range(14):
            if i % 4 == 0: L.append(f's_add_u32 s83, s75, {(2*m*56+i)*1024}')
            L.append(('vm', f'buffer_load_dwordx4 {ar(aACT(m,i),4)}, v{vL16}, {SR(SRD_WS)}, s83 offen offset:{(i&3)*1024} sc1', f'a{m}_{i}'))
        return L
    for x in ld_act(0): g.emit(x)
    for p in range(6, 14):
        for x in rd_wd(p, FINAL[p]): g.emit(x)
    for x in ld_act(1): g.emit(x)
    for m in range(4):
        a(f's_add_u32 s83, s74, {m*32768}')
        vm.issue(f'buffer_load_dwordx2 {vr(vHr+2*m,2)}, v{vL16}, {SR(SRD_WS)}, s83 offen sc1', 'hres')
    a(f'v_and_b32 v{vOa}, 15, v0')
    a(f'v_lshrrev_b32 v{vT+1}, 4, v0')
    a(f'v_lshlrev_b32 v{vT+1}, 3, v{vT+1}')
    a(f'v_lshl_add_u32 v{vOa}, v{vOa}, 10, v{vT+1}')
    a(f'v_add_u32 v{vWa}, s85, v{vL16}')
    for tau in range(1, 4):
        a(f'v_xor_b32 v{vRa+tau-1}, {4096*tau}, v{vWa}')
    lg.wait_all()
    g.stamp('D.rd')
    def red1(m):
        b = vDa + 16*(m & 1)
        return [('lg', f'ds_write_b128 v{vWa}, {vr(b+4*tau,4)} offset:{16384*m+1024*tau}', 'dw') for tau in range(1, 4)]
    def red2(m):
        b = vDa + 16*(m & 1)
        L = [('wlg', 'dw'), 's_barrier']
        L += [('lg', f'ds_read_b128 {vr(vRd+4*(tau-1),4)}, v{vRa+tau-1} offset:{16384*m+1024*tau}', 'dr') for tau in range(1, 4)]
        L += [('wvm', 'hres')]
        for i in range(2):
            L += [f'v_lshlrev_b32 v{vU4+2*i}, 16, v{vHr+2*m+i}', f'v_and_b32 v{vU4+2*i+1}, 0xffff0000, v{vHr+2*m+i}']
        L += [f'v_add_f32 v{vU4+i}, v{vU4+i}, v{b+i}' for i in range(4)]
        L += [f's_add_u32 s84, s78, {m*32768}']
        return L
    def red3(m):
        L = [('wlg', 'dr')]
        L += [f'v_add_f32 v{vRd+i}, v{vRd+i}, v{vRd+4+i}' for i in range(4)]
        L += [f'v_add_f32 v{vU4+i}, v{vU4+i}, v{vRd+8+i}' for i in range(4)]
        L += [f'v_add_f32 v{vU4+i}, v{vU4+i}, v{vRd+i}' for i in range(4)]
        L += [f'v_cvt_pk_bf16_f32 v{vHr+2*m+i}, v{vU4+2*i}, v{vU4+2*i+1}' for i in range(2)]
        L += [('vm', f'buffer_store_dwordx2 {vr(vHr+2*m,2)}, v{vOa}, {SR(SRD_OUT)}, s84 offen', 'out')]
        return L
    for m in range(4):
        if m == 2:
            a.label('LD_chk')
            vm.wait('pl2')
            a(f'v_cmp_gt_u32 vcc, s81, v{vPl}')
            a('s_cbranch_vccz LD_ok')
            a(f'buffer_load_dword v{vPl}, v{vT}, {SR(SRD_WS)}, s79 offen sc1')
            a('s_waitcnt vmcnt(0)')
            guard(g)
            a('s_branch LD_chk')
            a.label('LD_ok')
        mf = []
        for q in range(56):
            tau, i = (1, 2, 3, 0)[q // 14], q % 14
            acc = vr(vDa + 16*(m & 1) + 4*tau, 4)
            f, r = wdreg(i, tau)
            pre = [('wvm', f'a{m}_{min(i+1,13)}')] if (q < 14 and i % 2 == 0) else []
            mf.append((pre, f'v_mfma_f32_16x16x32_bf16 {acc}, {vr(r,4,f)}, {ar(aACT(m,i),4)}, {"0" if i==0 else acc}', []))
        st = []
        if m == 0:
            st.append((14, 50, ld_act(2) + [('vm', f'buffer_load_dword v{vPl}, v{vT}, {SR(SRD_WS)}, s79 offen sc1', 'pl2')]))
        if m == 2: st.append((0, 20, ld_act(3)))
        if m:
            st.append((2, 14, red2(m-1))); st.append((20, 34, red3(m-1)))
        st.append((48, 55, red1(m)))
        weave(g, mf, st, 8)
        g.stamp(f'D.m{m}')
    for x in red2(3) + red3(3): g.emit(x)
    g.stamp('D.end')
    if cfg.get('stamps'):
        a('s_waitcnt lgkmcnt(0)')
        a(f's_lshl2_add_u32 s70, s{S_WG}, s{W}')
        a(f's_lshl_b32 s70, s70, 7')
        a(f's_add_u32 s70, s70, {WS_TS}')
        for i in range(g.ns):
            a(f'v_mov_b32 v2, s{TSREG[i]}')
            a(f'buffer_store_dword v2, off, {SR(SRD_WS)}, s70 offset:{4*i}')
    a.label('Lend')
    a('s_endpgm')
    hdr = '; @launch grid=(256,1,1) block=(256,1,1) lds=163840\n'
    if cfg.get('stamps'): hdr += '; stamps: ' + ','.join(g.names) + '\n'
    hdr += '.amdgcn_target "amdgcn-amd-amdhsa--gfx950"\n.text\n'
    KD = f""".section .rodata,"a"
.p2align 6
.amdhsa_kernel {k}
  .amdhsa_next_free_vgpr 512
  .amdhsa_next_free_sgpr 102
  .amdhsa_accum_offset 256
  .amdhsa_group_segment_fixed_size 0
  .amdhsa_kernarg_size 80
  .amdhsa_user_sgpr_count 2
  .amdhsa_user_sgpr_kernarg_segment_ptr 1
  .amdhsa_system_sgpr_workgroup_id_x 1
.end_amdhsa_kernel
"""
    print('nops', a.nops, 'stamps', g.ns, file=sys.stderr)
    return hdr + a.text() + KD

if __name__ == '__main__':
    out = sys.argv[1]
    cfg = {}
    for o in sys.argv[2:]:
        k_, _, v = o.partition('=')
        cfg[k_] = v.split(',') if k_ == 'sel' else (v or True)
    open(out, 'w').write(build(cfg))
```

```python
import sys, struct
from asmlib import *

NAME = 'sequential_preLN__linear_attn_block__geglu_ffn__prompt'
WS_PQ = 0x000000; WS_H = 0x200000; WS_ACT = 0x400000; WS_STATS = 0xB00000; WS_KV = 0xB40000
WS_FLAG = 0xB50000; WS_TS = 0xC00000; WS_SIZE = 0xD00000
FA = WS_FLAG; FB = WS_FLAG + 256*128; FC = WS_FLAG + 512*128
LOG2E = 1.4426950408889634
def fbits(x): return '0x%08x' % struct.unpack('<I', struct.pack('<f', x))[0]

S_WG = 2; W = 3
SRD_X = 36; SRD_WQKV = 40; SRD_WO = 44; SRD_WGU = 48; SRD_WD = 52; SRD_OUT = 56; SRD_WS = 60; SRD_DBG = 64
S_XC = 68; S_J = 69
def SR(b): return f's[{b}:{b+3}]'

class Cnt:
    def __init__(self, a, name, cap): self.a = a; self.q = []; self.name = name; self.cap = cap
    def issue(self, text, tag='x'):
        self.a(text); self.q.append(tag)
        if self.name == 'vmcnt': assert len(self.q) <= self.cap, "vmcnt overflow"
    def wait(self, *tags):
        last = -1
        for i, t in enumerate(self.q):
            if t in tags: last = i
        if last < 0: return
        n = len(self.q) - 1 - last
        n = min(n, self.cap)
        self.a(f's_waitcnt {self.name}({n})')
        self.q = self.q[len(self.q)-n:] if n else []
    def wait_all(self):
        self.a(f's_waitcnt {self.name}(0)'); self.q = []

TSREG = list(range(90, 100, 2)) + list(range(4, 36, 2))

class G:
    def __init__(self, cfg):
        self.a = Asm(); self.cfg = cfg
        self.vm = Cnt(self.a, 'vmcnt', 63); self.lg = Cnt(self.a, 'lgkmcnt', 15)
        self.ns = 0; self.names = []
    def stamp(self, name):
        st = self.cfg.get('stamps')
        if not st: return
        sel = self.cfg.get('sel')
        if sel and not any(name.startswith(p) for p in sel): return
        r = TSREG[self.ns]; self.ns += 1; self.names.append(name)
        self.a(f'{"s_memtime" if st == "cyc" else "s_memrealtime"} s[{r}:{r+1}]')
    def emit(self, t):
        if isinstance(t, str): self.a(t)
        elif callable(t): t()
        elif t[0] == 'vm': self.vm.issue(t[1], t[2])
        elif t[0] == 'lg': self.lg.issue(t[1], t[2])
        elif t[0] == 'wvm': self.vm.wait(*t[1:])
        elif t[0] == 'wlg': self.lg.wait(*t[1:])
        else: raise ValueError(t)

def cost(t):
    if isinstance(t, str):
        op = t.split()[0]
        if op.split('_e')[0] in TRANS or op in TRANS: return 8
        return 4
    if callable(t): return 4
    if t[0] == 'vm': return 8
    return 4

def weave(g, mf, streams, budget):
    n = len(mf)
    slots = [[] for _ in range(n)]
    load = [sum(cost(x) for x in mf[i][2]) + sum(cost(x) for x in (mf[i+1][0] if i+1 < n else [])) for i in range(n)]
    for (s, e, items) in streams:
        tot = sum(cost(x) for x in items)
        lvl = budget
        while sum(max(0, lvl - load[i]) for i in range(s, e)) < tot: lvl += 1
        free = [max(0, lvl - load[i]) for i in range(s, e)]
        scale = tot / max(1, sum(free))
        acc = 0.0; used = 0; k = 0
        for i in range(s, e):
            acc += free[i-s] * scale
            while k < len(items) and (used + cost(items[k]) / 2 <= acc or i == e-1):
                slots[i].append(items[k]); used += cost(items[k]); load[i] += cost(items[k]); k += 1
    for i in range(n):
        for x in mf[i][0]: g.emit(x)
        g.a(mf[i][1])
        for x in mf[i][2]: g.emit(x)
        for x in slots[i]: g.emit(x)

def srd(a, d, ptr, size):
    a(f's_mov_b32 s{d}, s{ptr}')
    a(f's_mov_b32 s{d+1}, s{ptr+1}')
    a(f's_mov_b32 s{d+2}, {size}')
    a(f's_mov_b32 s{d+3}, 0x20000')

def set_flag(g, vtmp, soff, val):
    a = g.a
    a(f'v_mov_b32 v{vtmp}, {val}')
    g.vm.issue(f'buffer_store_dword v{vtmp}, off, {SR(SRD_WS)}, s{soff} sc1', 'flag')

def guard(g):
    if g.cfg.get('safe'):
        g.a('s_sub_u32 s100, s100, 1')
        g.a('s_cbranch_scc1 Lend')

def poll(g, label, vaddr, vdst, n, soff, need):
    a = g.a
    a.label(label)
    sfx = {1: '', 4: 'x4'}[n]
    a(f'buffer_load_dword{sfx} {vr(vdst, n)}, v{vaddr}, {SR(SRD_WS)}, s{soff} offen sc1')
    g.vm.wait_all()
    if n == 4:
        a(f'v_min_u32 v{vdst}, v{vdst}, v{vdst+1}')
        a(f'v_min3_u32 v{vdst}, v{vdst}, v{vdst+2}, v{vdst+3}')
    a(f'v_cmp_gt_u32 vcc, {need}, v{vdst}')
    guard(g)
    a(f's_cbranch_vccnz {label}')

def wo_blk(w, n): return 4096*(4*n + w) if n < 5 else 98304 + 16384*w + 4096*(n-5)

def build(cfg):
    g = G(cfg); a = g.a; vm = g.vm; lg = g.lg
    k = NAME + '_kernel'
    a.raw(f'.globl {k}\n.p2align 8\n.type {k},@function\n{k}:')
    a(f's_cmp_ge_u32 s{S_WG}, 256')
    a('s_cbranch_scc1 Lend')
    a('s_load_dwordx16 s[16:31], s[0:1], 0')
    a('s_load_dwordx4 s[32:35], s[0:1], 64')
    g.stamp('A.start')
    if cfg.get('safe'): a('s_mov_b32 s100, 200000')
    a('v_lshrrev_b32 v1, 6, v0')
    a(f'v_readfirstlane_b32 s{W}, v1')
    a('v_and_b32 v0, 63, v0')
    a(f's_and_b32 s{S_XC}, s{S_WG}, 7')
    a(f's_lshr_b32 s{S_J}, s{S_WG}, 3')
    XR = 98304
    s_rb, s_hp, s_x, s_w, s_m0x, s_m0w, s_rot = 70, 71, 72, 73, 74, 75, 82
    a(f's_lshr_b32 s76, s{S_XC}, 1')
    a(f's_and_b32 s{s_rb}, s{S_J}, 3')
    a(f's_lshl2_add_u32 s{s_rb}, s76, s{s_rb}')
    a(f's_and_b32 s76, s{S_XC}, 1')
    a(f's_lshr_b32 s{s_hp}, s{S_J}, 2')
    a(f's_lshl3_add_u32 s{s_hp}, s76, s{s_hp}')
    a(f's_lshr_b32 s76, s{S_J}, 3')
    a(f's_add_u32 s{s_rot}, s{S_J}, s76')
    a(f's_add_u32 s{s_rot}, s{s_rot}, s{S_XC}')
    a(f's_lshl_b32 s{s_x}, s{s_rb}, 17')
    a(f's_lshl_b32 s76, s{W}, 15')
    a(f's_add_u32 s{s_x}, s{s_x}, s76')
    a(f's_mul_i32 s{s_w}, s{W}, {16*3072}')
    a(f's_lshl_b32 s76, s{s_hp}, 6')
    a(f's_add_u32 s{s_w}, s{s_w}, s76')
    a(f's_lshl_b32 s{s_m0x}, s{W}, 14')
    a(f's_add_u32 s{s_m0x}, s{s_m0x}, {XR}')
    a(f's_mul_i32 s{s_m0w}, s{W}, 3072')
    vXd = 4; vWd = 8; vXr = 12; vWn = 16; vWp = 20
    vSum, vSq, vCs = 24, 25, 26
    vOne = 29; vT = 30; vAcc = 40; vX = 88; vW = 120
    vWo = 220
    vDbg = 216; vDbgA = 217
    a(f'v_lshrrev_b32 v{vT}, 3, v0')
    a(f'v_and_b32 v{vT+1}, 7, v0')
    a(f'v_lshrrev_b32 v{vT+2}, 1, v{vT}')
    a(f'v_xor_b32 v{vT+1}, v{vT+1}, v{vT+2}')
    a(f'v_lshlrev_b32 v{vT+1}, 4, v{vT+1}')
    a(f'v_lshl_add_u32 v{vXd}, v{vT}, 10, v{vT+1}')
    a(f'v_xor_b32 v{vXd+1}, 64, v{vXd}')
    a(f'v_add_u32 v{vXd+1}, {8192-1024}, v{vXd+1}')
    a(f'v_add_u32 v{vXd+2}, {2*(8192-1024)}, v{vXd}')
    a(f'v_add_u32 v{vXd+3}, {2*(8192-1024)}, v{vXd+1}')
    for q in range(3):
        a(f'v_add_u32 v{vT}, {64*q}, v0')
        a(f'v_mul_u32_u24 v{vT+1}, 171, v{vT}')
        a(f'v_lshrrev_b32 v{vT+1}, 11, v{vT+1}')
        a(f'v_mul_u32_u24 v{vT+2}, 12, v{vT+1}')
        a(f'v_sub_u32 v{vT+2}, v{vT}, v{vT+2}')
        a(f'v_mul_u32_u24 v{vT+1}, 3072, v{vT+1}')
        a(f'v_lshrrev_b32 v{vT+3}, 2, v{vT+2}')
        a(f'v_lshl_add_u32 v{vT+1}, v{vT+3}, 10, v{vT+1}')
        a(f'v_and_b32 v{vT+2}, 3, v{vT+2}')
        a(f'v_lshl_add_u32 v{vWd+q}, v{vT+2}, 4, v{vT+1}')
        if q: a(f'v_subrev_u32 v{vWd+q}, {1024*q}, v{vWd+q}')
    a('s_waitcnt lgkmcnt(0)')
    srd(a, SRD_X, 16, 2048*512*2)
    srd(a, SRD_WQKV, 18, 512*1536*2)
    srd(a, SRD_WS, 34, WS_SIZE)
    srd(a, SRD_DBG, 32, 256)
    def dma_xw(c):
        a(f's_add_u32 s78, s{s_rot}, {c}')
        a(f's_and_b32 s78, s78, 7')
        a(f's_lshl_b32 s76, s78, 7')
        a(f's_add_u32 s76, s76, s{s_x}')
        a(f's_add_u32 m0, s{s_m0x}, {(c&3)*4096}')
        a(f's_mul_i32 s77, s78, {64*3072}')
        for i in range(4):
            vm.issue(f'buffer_load_dwordx4 v{vXd+i}, {SR(SRD_X)}, s76 offen offset:{i*1024} lds', f'c{c}')
        a(f's_add_u32 m0, s{s_m0w}, {c*12288}')
        a(f's_add_u32 s77, s77, s{s_w}')
        for q in range(3):
            vm.issue(f'buffer_load_dwordx4 v{vWd+q}, {SR(SRD_WQKV)}, s77 offen offset:{q*1024} lds', f'c{c}')
    a(f's_or_b32 s83, s{s_rb}, s{W}')
    a(f's_cmp_lg_u32 s83, 0')
    a('s_cbranch_scc1 LA_nozero')
    for i in range(4): a(f'v_mov_b32 v{vT+i}, 0')
    a(f's_mul_i32 s76, s{s_hp}, 2176')
    a(f's_add_u32 s76, s76, {WS_KV}')
    a(f'v_lshlrev_b32 v{vT+4}, 4, v0')
    a(f'v_min_u32 v{vT+5}, {128-16}, v{vT+4}')
    a(f'buffer_store_dwordx4 v[{vT}:{vT+3}], v{vT+4}, {SR(SRD_WS)}, s76 offen sc1')
    a(f'buffer_store_dwordx4 v[{vT}:{vT+3}], v{vT+4}, {SR(SRD_WS)}, s76 offen offset:1024 sc1')
    a(f'buffer_store_dwordx4 v[{vT}:{vT+3}], v{vT+5}, {SR(SRD_WS)}, s76 offen offset:2048 sc1')
    a(f's_mul_i32 s76, s{s_hp}, {48*128}')
    a(f's_add_u32 s76, s76, {WS_FLAG}')
    a(f'v_min_u32 v{vT+5}, 47, v0')
    a(f'v_lshlrev_b32 v{vT+5}, 7, v{vT+5}')
    a(f'buffer_store_dwordx4 v[{vT}:{vT+3}], v{vT+5}, {SR(SRD_WS)}, s76 offen sc1')
    a.label('LA_nozero')
    dma_xw(0); dma_xw(1)
    a(f's_cmp_lg_u32 s83, 0')
    a('s_cbranch_scc1 LA_nosig')
    a(f'v_mov_b32 v{vT+6}, 1')
    a(f's_lshl_b32 s76, s{s_hp}, 2')
    a('s_waitcnt vmcnt(14)')
    DO = ' offset:64' if cfg.get('dbgst') else ''
    a(f'buffer_store_dword v{vT+6}, off, {SR(SRD_DBG)}, s76{DO} sc1')
    a.label('LA_nosig')
    dma_xw(2); dma_xw(3)
    g.stamp('A.issued')
    srd(a, SRD_WO, 20, 512*512*2)
    a(f's_cmp_ge_u32 s{W}, 2')
    a(f's_cselect_b32 s{SRD_WGU}, s26, s24')
    a(f's_cselect_b32 s{SRD_WGU+1}, s27, s25')
    a(f's_cmp_ge_u32 s{S_J}, 28')
    a(f's_cselect_b32 s{SRD_WGU+2}, 0, {512*1792*2}')
    a(f's_mov_b32 s{SRD_WGU+3}, 0x20000')
    srd(a, SRD_WD, 28, 1792*512*2)
    srd(a, SRD_OUT, 30, 2048*512*2)
    a(f'v_and_b32 v{vT}, 31, v0')
    a(f'v_lshrrev_b32 v{vT+1}, 5, v0')
    a(f'v_lshrrev_b32 v{vT+2}, 1, v{vT}')
    a(f'v_and_b32 v{vT+2}, 7, v{vT+2}')
    a(f'v_xor_b32 v{vT+2}, v{vT+2}, v{vT+1}')
    a(f'v_lshlrev_b32 v{vT+2}, 4, v{vT+2}')
    a(f'v_lshl_add_u32 v{vT+2}, v{vT}, 7, v{vT+2}')
    a(f'v_add_u32 v{vT+2}, s{s_m0x}, v{vT+2}')
    for s in range(4):
        a(f's_xor_b32 s76, s{W}, {s}')
        a(f's_lshl_b32 s76, s76, 5')
        a(f'v_xor_b32 v{vXr+s}, s76, v{vT+2}')
    a(f'v_bfe_u32 v{vT+2}, v0, 2, 2')
    a(f'v_lshl_add_u32 v{vT+2}, v{vT+1}, 3, v{vT+2}')
    a(f'v_mul_u32_u24 v{vT+2}, 192, v{vT+2}')
    a(f'v_bfe_u32 v{vT+3}, v0, 4, 1')
    a(f'v_lshl_add_u32 v{vT+2}, v{vT+3}, 5, v{vT+2}')
    a(f'v_and_b32 v{vT+3}, 3, v0')
    a(f'v_lshl_add_u32 v{vT+4}, v{vT+3}, 3, v{vT+2}')
    a(f'v_and_b32 v{vT+5}, 1, v0')
    a(f'v_lshl_add_u32 v{vT+5}, v{vT+5}, 4, v{vT+2}')
    a(f'v_bfe_u32 v{vT+3}, v0, 1, 1')
    a(f'v_lshl_add_u32 v{vT+5}, v{vT+3}, 3, v{vT+5}')
    for s in range(4):
        a(f's_xor_b32 s76, s{W}, {s}')
        a(f's_mul_i32 s76, s76, 3072')
        a(f'v_add_u32 v{vWn+s}, s76, v{vT+4}')
        a(f'v_add_u32 v{vWp+s}, s76, v{vT+5}')
    for r in (vSum, vSq, vCs, vCs+1, vCs+2): a(f'v_mov_b32 v{r}, 0')
    a(f'v_mov_b32 v{vOne}, 0x3f803f80')
    a(f'v_lshrrev_b32 v{vT}, 4, v0')
    a(f'v_and_b32 v{vT+1}, 15, v0')
    a(f'v_lshlrev_b32 v{vT+2}, 1, v{vT}')
    a(f'v_xor_b32 v{vT+1}, v{vT+1}, v{vT+2}')
    a(f'v_lshlrev_b32 v{vT+1}, 4, v{vT+1}')
    a(f'v_lshl_add_u32 v{vWo}, v{vT}, 10, v{vT+1}')
    a(f'v_add_u32 v{vWo+1}, {4096-1024}, v{vWo}')
    a(f'v_xor_b32 v{vWo+2}, 128, v{vWo}')
    a(f'v_add_u32 v{vWo+2}, {2*(4096-1024)}, v{vWo+2}')
    a(f'v_add_u32 v{vWo+3}, {4096-1024}, v{vWo+2}')
    a(f'v_and_b32 v{vDbgA}, 15, v0')
    a(f'v_lshlrev_b32 v{vDbgA}, 2, v{vDbgA}')
    a(f's_lshr_b32 s84, s{S_J}, 3')
    a(f's_lshl_b32 s84, s84, 8')
    a(f's_lshl_b32 s76, s{W}, 17')
    a(f's_add_u32 s84, s84, s76')
    a(f's_lshl_b32 s85, s{W}, 12')
    def dma_wo(n):
        if n < 5: a(f's_add_u32 m0, s85, {16384*n}')
        else: a(f's_add_u32 m0, s{s_m0x}, {4096*(n-5)}')
        a(f's_add_u32 s76, s84, {n*16384}')
        for i in range(4):
            vm.issue(f'buffer_load_dwordx4 v{vWo+i}, {SR(SRD_WO)}, s76 offen offset:{i*1024} lds', 'wo')
    def rdW(c, s):
        base = vW + (c&1)*48 + s*12
        off = (c&3)*12288
        for tile in range(3):
            ad = (vWp if tile == 0 else vWn) + s
            for h2 in range(2):
                a(f'ds_read_b64_tr_b16 {vr(base+tile*4+h2*2,2)}, v{ad} offset:{off + h2*768 + tile*64}')
    def dots(c):
        xb = vX + (c&1)*16; wb = vW + (c&1)*48
        for i in range(16):
            a(f'v_dot2c_f32_bf16 v{vSum}, v{xb+i}, v{vOne}')
            a(f'v_dot2c_f32_bf16 v{vSq}, v{xb+i}, v{xb+i}')
        for i in range(4):
            for tile in range(3):
                a(f'v_dot2c_f32_bf16 v{vCs+tile}, v{wb+tile*4+i}, v{vOne}')
    def mm(c, s):
        xb = vr(vX + (c&1)*16 + s*4, 4); wb = vW + (c&1)*48 + s*12
        first = (c == 0 and s == 0)
        C = lambda t: '0' if first else vr(vAcc+16*t, 16)
        a(f'v_mfma_f32_32x32x16_bf16 {vr(vAcc+16,16)}, {xb}, {vr(wb+4,4)}, {C(1)}')
        a(f'v_mfma_f32_32x32x16_bf16 {vr(vAcc+32,16)}, {xb}, {vr(wb+8,4)}, {C(2)}')
        a(f'v_mfma_f32_32x32x16_bf16 {vr(vAcc,16)}, {vr(wb,4)}, {xb}, {C(0)}')
    for c in range(8):
        if c == 4:
            for s in range(4):
                a(f'v_add_u32 v{vWn+s}, 49152, v{vWn+s}')
                a(f'v_add_u32 v{vWp+s}, 49152, v{vWp+s}')
        vm.wait(f'c{c}')
        a('s_barrier')
        if c in (0, 4, 7): g.stamp(f'A.c{c}')
        for s in range(4):
            a(f'ds_read_b128 {vr(vX+(c&1)*16+s*4,4)}, v{vXr+s} offset:{(c&3)*4096}')
        rdW(c, 0)
        if c: dots(c-1)
        a('s_waitcnt lgkmcnt(0)')
        rdW(c, 1); rdW(c, 2)
        mm(c, 0)
        if c + 4 < 8: dma_xw(c+4)
        if c == 4:
            vm.issue(f'buffer_load_dword v{vDbg}, v{vDbgA}, {SR(SRD_DBG)}, 0 offen{DO} sc1', 'dbg')
            dma_wo(0)
        if c in (5, 6): dma_wo(c+1)
        if c == 7: dma_wo(4)
        a('s_waitcnt lgkmcnt(6)')
        rdW(c, 3)
        mm(c, 1)
        if c == 4: dma_wo(1)
        if c == 6: dma_wo(3)
        a('s_waitcnt lgkmcnt(6)')
        mm(c, 2)
        if c == 4: dma_wo(2)
        a('s_waitcnt lgkmcnt(0)')
        mm(c, 3)
        if c == 4: dma_wo(5)
    dots(7)
    g.stamp('A.loop')
    SC = 12288
    for r in (vSum, vSq, vCs, vCs+1, vCs+2):
        a(f'v_mov_b32 v{vT}, v{r}')
        a(f'v_permlane32_swap_b32 v{r}, v{vT}')
        a(f'v_add_f32 v{r}, v{r}, v{vT}')
    vMean, vRstd = vSum, vSq
    a(f'v_and_b32 v{vT}, 31, v0')
    a(f'v_lshl_add_u32 v{vT+1}, v{vT}, 2, s{s_m0x}')
    for tile in range(3):
        a(f'ds_write_b32 v{vT+1}, v{vCs+tile} offset:{SC+256+128*tile}')
    a(f'v_mul_f32 v{vMean}, {fbits(1/512)}, v{vSum}')
    a(f'v_mul_f32 v{vSq}, {fbits(1/512)}, v{vSq}')
    a(f'v_fma_f32 v{vSq}, -v{vMean}, v{vMean}, v{vSq}')
    a(f'v_max_f32 v{vSq}, 0, v{vSq}')
    a(f'v_add_f32 v{vSq}, {fbits(1e-5)}, v{vSq}')
    a(f'v_rsq_f32 v{vRstd}, v{vSq}')
    a(f'ds_write_b32 v{vT+1}, v{vMean} offset:{SC}')
    a(f'ds_write_b32 v{vT+1}, v{vRstd} offset:{SC+128}')
    a(f'v_lshlrev_b32 v{vT+2}, 2, v{vT}')
    a(f'v_add_u32 v{vT+2}, {XR+SC}, v{vT+2}')
    a(f'v_lshrrev_b32 v{vT+3}, 5, v0')
    a(f'v_lshl_add_u32 v{vT+3}, v{vT+3}, 4, s{s_m0x}')
    a('s_waitcnt lgkmcnt(0)')
    a('s_barrier')
    vP = 88
    for tile in (1, 2, 0):
        for w in range(4):
            a(f'ds_read_b32 v{vP+tile*4+w}, v{vT+2} offset:{w*16384+256+128*tile}')
    vM, vR = 104, 120
    a('s_waitcnt lgkmcnt(4)')
    for aa in range(4):
        a(f'ds_read_b128 {vr(vM+4*aa,4)}, v{vT+3} offset:{SC+aa*32}')
        a(f'ds_read_b128 {vr(vR+4*aa,4)}, v{vT+3} offset:{SC+128+aa*32}')
    for tile in (1, 2):
        b = vP + tile*4
        a(f'v_add_f32 v{b}, v{b}, v{b+1}')
        a(f'v_add_f32 v{b+2}, v{b+2}, v{b+3}')
        a(f'v_add_f32 v{vCs+tile}, v{b}, v{b+2}')
    a('s_waitcnt lgkmcnt(8)')
    b = vP
    a(f'v_add_f32 v{b}, v{b}, v{b+1}')
    a(f'v_add_f32 v{b+2}, v{b+2}, v{b+3}')
    a(f'v_add_f32 v{vCs}, v{b}, v{b+2}')
    a(f'ds_write_b32 v{vT+1}, v{vCs} offset:{SC+768}')
    vK, vV, vQ = vAcc+16, vAcc+32, vAcc
    vE = 136
    s_l2e, s_eps = 76, 77
    a(f's_mov_b32 s{s_l2e}, {fbits(LOG2E)}')
    a(f's_mov_b32 s{s_eps}, {fbits(1e-6)}')
    a('s_waitcnt lgkmcnt(1)')
    for r in range(16):
        a(f'v_fma_f32 v{vK+r}, -v{vM+r}, v{vCs+1}, v{vK+r}')
    for r in range(16):
        a(f'v_fma_f32 v{vK+r}, v{vK+r}, v{vR+r}, s{s_eps}')
    for r in range(16):
        a(f'v_mul_f32 v{vE+r}, s{s_l2e}, v{vK+r}')
    for r in range(16):
        a(f'v_exp_f32_e64 v{vE+r}, v{vE+r} clamp')
        a(f'v_max_f32 v{vK+r}, s{s_eps}, v{vK+r}')
    for r in range(16):
        a(f'v_fma_f32 v{vV+r}, -v{vM+r}, v{vCs+2}, v{vV+r}')
        a(f'v_add_f32 v{vK+r}, v{vK+r}, v{vE+r}')
    vPK, vPV = 152, 160
    vOnes = 168
    for i in range(4): a(f'v_mov_b32 v{vOnes+i}, v{vOne}')
    for i in range(8):
        a(f'v_cvt_pk_bf16_f32 v{vPK+i}, v{vK+2*i}, v{vK+2*i+1}')
    vD2, vD3 = 176, 192
    a(f'v_mul_f32 v{vV}, v{vV}, v{vR}')
    a(f'v_mul_f32 v{vV+1}, v{vV+1}, v{vR+1}')
    a(f'v_mfma_f32_32x32x16_bf16 {vr(vD3,16)}, {vr(vPK,4)}, {vr(vOnes,4)}, 0')
    for r in range(2, 8): a(f'v_mul_f32 v{vV+r}, v{vV+r}, v{vR+r}')
    a(f'v_mfma_f32_32x32x16_bf16 {vr(vD3,16)}, {vr(vPK+4,4)}, {vr(vOnes,4)}, {vr(vD3,16)}')
    for i in range(4):
        a(f'v_cvt_pk_bf16_f32 v{vPV+i}, v{vV+2*i}, v{vV+2*i+1}')
    for r in range(8, 10): a(f'v_mul_f32 v{vV+r}, v{vV+r}, v{vR+r}')
    a(f'v_mfma_f32_32x32x16_bf16 {vr(vD2,16)}, {vr(vPK,4)}, {vr(vPV,4)}, 0')
    for r in range(10, 16): a(f'v_mul_f32 v{vV+r}, v{vV+r}, v{vR+r}')
    for i in range(4, 8):
        a(f'v_cvt_pk_bf16_f32 v{vPV+i}, v{vV+2*i}, v{vV+2*i+1}')
    vCq = 104
    for aa in range(2):
        a(f'ds_read_b128 {vr(vCq+4*aa,4)}, v{vT+3} offset:{SC+768+aa*32}')
    a(f'v_mfma_f32_32x32x16_bf16 {vr(vD2,16)}, {vr(vPK+4,4)}, {vr(vPV+4,4)}, {vr(vD2,16)}')
    for aa in range(2, 4):
        a(f'ds_read_b128 {vr(vCq+4*aa,4)}, v{vT+3} offset:{SC+768+aa*32}')
    a(f'v_and_b32 v{vT+4}, 3, v0')
    a(f'v_bfe_u32 v{vT+5}, v0, 2, 1')
    a(f'v_lshl_add_u32 v{vT+4}, v{vT+5}, 3, v{vT+4}')
    a(f'v_bfe_u32 v{vT+5}, v0, 3, 1')
    a(f'v_lshl_add_u32 v{vT+4}, v{vT+5}, 2, v{vT+4}')
    a(f'v_bfe_u32 v{vT+5}, v0, 4, 1')
    a(f'v_mul_u32_u24 v{vT+6}, 1088, v{vT+5}')
    a(f'v_lshrrev_b32 v{vT+7}, 5, v0')
    a(f'v_mul_u32_u24 v{vT+7}, 544, v{vT+7}')
    a(f'v_add3_u32 v{vT+6}, v{vT+6}, v{vT+7}, s{s_m0x}')
    a(f'v_lshl_add_u32 v{vT+4}, v{vT+4}, 4, v{vT+6}')
    a(f'v_cmp_eq_u32 vcc, 1, v{vT+5}')
    a(f's_lshl_b32 s78, s{W}, 8')
    a(f'v_lshl_add_u32 v{vT+8}, v0, 2, s78')
    for j in range(8):
        a(f'v_cndmask_b32 v{vD3+j}, v{vD3+j}, v{vD3+8+j}, vcc')
    for j in range(8):
        a(f'v_cndmask_b32 v{vD2+j}, v{vD2+j}, v{vD2+8+j}, vcc')
    a(f'ds_write_b128 v{vT+4}, {vr(vD2,4)} offset:{SC+1024}')
    a(f'ds_write_b128 v{vT+4}, {vr(vD2+4,4)} offset:{SC+1024+272}')
    a('s_mov_b32 exec_lo, 0x00010001')
    a('s_mov_b32 exec_hi, 0x00010001')
    a(f'ds_write_b128 v{vT+6}, {vr(vD3,4)} offset:{SC+1024+256}')
    a(f'ds_write_b128 v{vT+6}, {vr(vD3+4,4)} offset:{SC+1024+272+256}')
    a('s_mov_b64 exec, -1')
    a(f'v_add_u32 v{vT+5}, {XR+SC+1024}, v{vT+8}')
    a(f'v_min_u32 v{vT+7}, {XR+SC+1024+124}, v{vT+5}')
    a('s_waitcnt lgkmcnt(0)')
    a('s_barrier')
    for i in range(3):
        for w in range(4):
            a(f'ds_read_b32 v{vD2+i*4+w}, v{vT+5 if i < 2 else vT+7} offset:{w*16384+i*1024}')
    for r in range(16):
        a(f'v_fma_f32 v{vQ+r}, -v{vMean}, v{vCq+r}, v{vQ+r}')
    a.label('LA_chk')
    vm.wait('dbg')
    a(f'v_cmp_ne_u32 vcc, 1, v{vDbg}')
    a('s_cbranch_vccz LA_ok')
    a(f'buffer_load_dword v{vDbg}, v{vDbgA}, {SR(SRD_DBG)}, 0 offen{DO} sc1')
    a('s_waitcnt vmcnt(0)')
    guard(g)
    a('s_branch LA_chk')
    a.label('LA_ok')
    a(f's_mul_i32 s78, s{s_hp}, 2176')
    a(f's_add_u32 s78, s78, {WS_KV}')
    a('s_waitcnt lgkmcnt(0)')
    for i in range(3):
        b = vD2+i*4
        a(f'v_add_f32 v{b}, v{b}, v{b+1}')
        a(f'v_add_f32 v{b+2}, v{b+2}, v{b+3}')
    for i in range(3):
        b = vD2+i*4
        a(f'v_add_f32 v{b}, v{b}, v{b+2}')
    vm.issue(f'buffer_atomic_add_f32 v{vD2}, v{vT+8}, {SR(SRD_WS)}, s78 offen', 'st')
    vm.issue(f'buffer_atomic_add_f32 v{vD2+4}, v{vT+8}, {SR(SRD_WS)}, s78 offen offset:1024', 'st')
    a(f's_cmp_lg_u32 s{W}, 0')
    a('s_cbranch_scc1 LA_noat')
    a('s_mov_b32 exec_hi, 0')
    a(f'buffer_atomic_add_f32 v{vD2+8}, v{vT+8}, {SR(SRD_WS)}, s78 offen offset:2048')
    a('s_mov_b32 exec_hi, -1')
    a.label('LA_noat')
    g.stamp('A.atom')
    for r in range(16):
        a(f'v_fma_f32 v{vQ+r}, v{vQ+r}, v{vRstd}, s{s_eps}')
    for r in range(16):
        a(f'v_mul_f32 v{vE+r}, s{s_l2e}, v{vQ+r}')
    for r in range(16):
        a(f'v_exp_f32_e64 v{vE+r}, v{vE+r} clamp')
        a(f'v_max_f32 v{vQ+r}, s{s_eps}, v{vQ+r}')
    for r in range(16):
        a(f'v_add_f32 v{vQ+r}, v{vQ+r}, v{vE+r}')
    a(f's_lshl2_add_u32 s78, s{s_rb}, s{W}')
    a(f's_lshl_b32 s78, s78, 15')
    a(f's_lshl_b32 s79, s{s_hp}, 11')
    a(f's_add_u32 s78, s78, s79')
    vL16 = 1
    a(f'v_lshlrev_b32 v{vL16}, 4, v0')
    for i in range(8):
        a(f'v_cvt_pk_bf16_f32 v{vPK+i}, v{vQ+2*i}, v{vQ+2*i+1}')
    vm.issue(f'buffer_store_dwordx4 {vr(vPK,4)}, v{vL16}, {SR(SRD_WS)}, s78 offen sc1', 'st')
    vm.issue(f'buffer_store_dwordx4 {vr(vPK+4,4)}, v{vL16}, {SR(SRD_WS)}, s78 offen offset:1024 sc1', 'st')
    g.stamp('A.pq')
    a(f's_lshl4_add_u32 s79, s{s_hp}, s{s_rb}')
    a(f's_lshl_b32 s79, s79, 7')
    a(f's_lshl2_add_u32 s79, s{W}, s79')
    a(f's_add_u32 s79, s79, {FA}')
    vA0 = 4
    a(f'v_bfe_u32 v{vT}, v0, 2, 3')
    a(f'v_bfe_u32 v{vT+1}, v0, 2, 2')
    a(f'v_bfe_u32 v{vT+2}, v0, 4, 1')
    a(f'v_lshl_add_u32 v{vT+1}, v{vT+2}, 3, v{vT+1}')
    a(f'v_lshlrev_b32 v{vT+1}, 8, v{vT+1}')
    a(f'v_and_b32 v{vT+2}, 3, v0')
    a(f'v_lshl_add_u32 v{vT+1}, v{vT+2}, 3, v{vT+1}')
    a(f's_lshl_b32 s76, s{W}, 1')
    a(f'v_xor_b32 v{vT}, s76, v{vT}')
    a(f'v_lshl_add_u32 v{vT+1}, v{vT}, 5, v{vT+1}')
    a(f'v_lshrrev_b32 v{vT+2}, 5, v0')
    a(f'v_lshl_add_u32 v{vA0}, v{vT+2}, 14, v{vT+1}')
    a(f'v_lshl_add_u32 v{vA0+1}, v{vT+2}, 12, v{vT+1}')
    a(f'v_add_u32 v{vA0+1}, {98304+4096}, v{vA0+1}')
    for wp in range(4):
        a(f'v_mul_u32_u24 v{vT+3}, {32768+12288*wp}, v{vT+2}')
        a(f'v_add3_u32 v{vA0+2+wp}, v{vT+3}, v{vT+1}, s76') if False else None
        a(f'v_add_u32 v{vA0+2+wp}, v{vT+3}, v{vT+1}')
        a(f'v_add_u32 v{vA0+2+wp}, {65536+4096*wp}, v{vA0+2+wp}')
    for i in range(6): a(f'v_xor_b32 v{vA0+6+i}, 32, v{vA0+i}')
    vm.wait('wo')
    a('s_barrier')
    g.stamp('E.wo')
    def aWO(t, ks): return 128 + (t*16 + ks)*4
    for ks in range(16):
        wp, pr = ks >> 2, ks & 3
        for t in range(2):
            if pr < 2: ad, off = vA0, 4096*(8*pr + wp)
            elif pr == 2: ad, off = vA0+2+wp, 0
            else: ad, off = vA0+1, 16384*wp
            for h2 in range(2):
                a(f'ds_read_b64_tr_b16 {ar(aWO(t,ks)+2*h2,2)}, v{ad+6*t} offset:{off+h2*1024}')
        if ks == 7:
            vm.wait('st')
            set_flag(g, vT+9, 79, 1)
            g.stamp('E.flag')
    a(f's_and_b32 s70, s{S_J}, 7')
    a(f's_lshl3_add_u32 s70, s{S_XC}, s70')
    a(f's_lshr_b32 s71, s{S_J}, 3')
    a(f's_lshr_b32 s76, s{S_XC}, 1')
    a(f's_and_b32 s86, s{S_J}, 3')
    a(f's_lshl2_add_u32 s86, s76, s86')
    a(f's_and_b32 s76, s{S_XC}, 1')
    a(f's_mul_i32 s76, s76, 7')
    a(f's_lshr_b32 s87, s{S_J}, 2')
    a(f's_add_u32 s87, s87, s76')
    vXres = 20
    a(f'v_and_b32 v{vT}, 15, v0')
    a(f'v_lshrrev_b32 v{vT+1}, 4, v0')
    a(f'v_lshlrev_b32 v{vT+2}, 3, v{vT+1}')
    a(f'v_lshl_add_u32 v{vT+2}, v{vT}, 10, v{vT+2}')
    a(f's_lshl_b32 s72, s70, 15')
    a(f's_lshl_b32 s73, s71, 8')
    a(f's_add_u32 s72, s72, s73')
    a(f's_lshl_b32 s73, s{W}, 6')
    a(f's_add_u32 s72, s72, s73')
    a(f's_add_u32 s73, s72, 16384')
    for m in range(2):
        for t in range(2):
            vm.issue(f'buffer_load_dwordx2 {vr(vXres+m*4+t*2,2)}, v{vT+2}, {SR(SRD_X)}, s{72+m} offen offset:{32*t}', 'xres')
    vGd = 16
    a(f'v_lshlrev_b32 v{vT+2}, 1, v{vT+1}')
    a(f'v_xor_b32 v{vT+2}, v{vT}, v{vT+2}')
    a(f'v_lshlrev_b32 v{vT+2}, 4, v{vT+2}')
    a(f'v_mul_u32_u24 v{vT+3}, 3584, v{vT+1}')
    a(f'v_add_u32 v{vGd}, v{vT+3}, v{vT+2}')
    a(f'v_xor_b32 v{vT+2}, 128, v{vT+2}')
    a(f'v_add_u32 v{vGd+1}, v{vT+3}, v{vT+2}')
    a(f'v_add_u32 v{vGd+1}, {4*3584-1024}, v{vGd+1}')
    a(f'v_add_u32 v{vGd+2}, {2*(4*3584-1024)}, v{vGd}')
    a(f'v_add_u32 v{vGd+3}, {2*(4*3584-1024)}, v{vGd+1}')
    a(f's_and_b32 s76, s{W}, 1')
    a(f's_mul_i32 s88, s76, {128*3584}')
    a(f's_lshl_b32 s76, s87, 8')
    a(f's_add_u32 s88, s88, s76')
    a(f's_lshl_b32 s89, s{W}, 15')
    def dma_gu(half, blk):
        L = [f's_add_u32 m0, s89, {blk*4096}', f's_add_u32 s83, s88, {(half*256+blk*16)*3584}']
        for i in range(4):
            L.append(('vm', f'buffer_load_dwordx4 v{vGd+i}, {SR(SRD_WGU)}, s83 offen offset:{i*1024} lds', f'gu{half}'))
        return L
    vG0 = 4
    a('s_waitcnt lgkmcnt(0)')
    a('s_barrier')
    for blk in range(8):
        for x in dma_gu(0, blk): g.emit(x)
    g.stamp('E.gu0')
    a(f'v_bfe_u32 v{vT}, v0, 2, 3')
    a(f's_lshl_b32 s76, s{W}, 1')
    a(f'v_xor_b32 v{vT}, s76, v{vT}')
    a(f'v_lshrrev_b32 v{vT+1}, 2, v0')
    a(f'v_lshlrev_b32 v{vT+1}, 8, v{vT+1}')
    a(f'v_and_b32 v{vT+2}, 3, v0')
    a(f'v_lshl_add_u32 v{vT+1}, v{vT+2}, 3, v{vT+1}')
    a(f'v_lshl_add_u32 v{vG0}, v{vT}, 5, v{vT+1}')
    a(f'v_add_u32 v{vG0+1}, 65536, v{vG0}')
    a(f'v_xor_b32 v{vG0+2}, 32, v{vG0}')
    a(f'v_xor_b32 v{vG0+3}, 32, v{vG0+1}')
    def aGU(rt, ks): return (ks >> 3)*128 + (rt*8 + (ks & 7))*4
    def rd_gu(half):
        for k8 in range(8):
            for rt in range(4):
                for h2 in range(2):
                    a(f'ds_read_b64_tr_b16 {ar(aGU(rt, half*8+k8)+2*h2,2)}, v{vG0+rt} offset:{k8*8192+h2*4096}')
    OX = 131072
    vKV = 40; vPQ = 104; vD = 136
    a(f'v_and_b32 v{vT}, 31, v0')
    a(f'v_min_u32 v{vT}, 16, v{vT}')
    a(f'v_lshrrev_b32 v{vT+1}, 5, v0')
    a(f'v_mul_u32_u24 v{vT+1}, 272, v{vT+1}')
    a(f'v_lshl_add_u32 v{vT}, v{vT}, 4, v{vT+1}')
    a(f's_mul_i32 s72, s{W}, {8*1088}')
    a(f's_add_u32 s72, s72, {WS_KV}')
    a(f's_add_u32 s73, s72, {3*1088}')
    a(f's_add_u32 s76, s72, {6*1088}')
    a(f's_lshl_b32 s74, s70, 15')
    a(f's_lshl_b32 s78, s{W}, 13')
    a(f's_add_u32 s74, s74, s78')
    a(f's_add_u32 s75, s74, 4096')
    a(f's_add_u32 s79, s78, {FA}')
    a(f's_add_u32 s78, s78, {OX}')
    a(f'v_lshlrev_b32 v{vT+1}, 7, v0')
    a(f's_mov_b32 s77, {fbits(1e-6)}')
    a(f'v_add_u32 v{vT+2}, s78, v{vL16}')
    a(f'v_and_b32 v{vT+3}, 15, v0')
    a(f'v_lshrrev_b32 v{vT+4}, 4, v0')
    a(f'v_lshlrev_b32 v{vT+4}, 9, v{vT+4}')
    a(f'v_lshl_add_u32 v{vT+3}, v{vT+3}, 4, v{vT+4}')
    a(f'v_add_u32 v{vT+3}, {OX}, v{vT+3}')
    poll(g, 'LB_poll', vT+1, vD, 4, 79, '1')
    g.stamp('B.sync')
    for h in range(8):
        so = (72, 73, 76)[h//3]
        for q in range(2):
            vm.issue(f'buffer_load_dwordx4 {vr(vKV+h*8+q*4,4)}, v{vT}, {SR(SRD_WS)}, s{so} offen offset:{(h%3)*1088+q*544} sc1', f'kv{h}')
        vm.issue(f'buffer_load_dwordx4 {vr(vPQ+h*4,4)}, v{vL16}, {SR(SRD_WS)}, s{74 if h<4 else 75} offen offset:{(h&3)*1024} sc1', f'kv{h}')
    a('s_barrier')
    rd_gu(0)
    a('s_waitcnt lgkmcnt(0)')
    a('s_barrier')
    g.stamp('B.rd')
    def Dreg(h): return vD + (h % 4)*16
    def front(h):
        vm.wait(f'kv{h}')
        b = vKV + h*8
        for i in range(4):
            a(f'v_cvt_pk_bf16_f32 v{b+i}, v{b+2*i}, v{b+2*i+1}')
        a(f'v_mfma_f32_32x32x16_bf16 {vr(Dreg(h),16)}, {vr(b,4)}, {vr(vPQ+h*4,4)}, 0')
    def back(h):
        d = Dreg(h)
        a(f'v_add_f32 v{d+8}, s77, v{d+8}')
        a(f'v_rcp_f32 v{d+8}, v{d+8}')
        bg = dma_gu(1, h)
        g.emit(bg[0]); g.emit(bg[1])
        for j in range(8):
            a(f'v_mul_f32 v{d+j}, v{d+j}, v{d+8}')
            if j % 4 == 1: g.emit(bg[2 + j//4])
        for i in range(4):
            a(f'v_cvt_pk_bf16_f32 v{d+12+i}, v{d+2*i}, v{d+2*i+1}')
            if i == 1: g.emit(bg[4])
        a(f'ds_write_b128 v{vT+2}, {vr(d+12,4)} offset:{h*1024}')
        g.emit(bg[5])
    front(0); front(1); front(2)
    for h in range(8):
        if h + 3 < 8: front(h+3)
        back(h)
    a('s_waitcnt lgkmcnt(0)')
    a('s_barrier')
    g.stamp('B.o')
    vO = 40
    vBa = 176
    vU = 192
    vH = 208
    a(f's_lshl2_add_u32 s72, s71, s{W}')
    a(f's_lshl_b32 s73, s70, 15')
    a(f's_lshl_b32 s74, s72, 10')
    a(f's_add_u32 s73, s73, s74')
    a(f's_add_u32 s73, s73, {WS_H}')
    a(f's_add_u32 s75, s73, 16384')
    a(f's_lshl4_add_u32 s74, s70, s72')
    a(f's_lshl_b32 s74, s74, 8')
    a(f's_add_u32 s74, s74, {WS_STATS}')
    a(f's_lshl2_add_u32 s79, s70, s71')
    a(f's_lshl_b32 s79, s79, 7')
    a(f's_lshl2_add_u32 s79, s{W}, s79')
    a(f's_add_u32 s79, s79, {FB}')
    def rdo(i): return ('lg', f'ds_read_b128 {vr(vO+i*4,4)}, v{vT+3} offset:{(i&15)*2048+(i>>4)*256}', f'o{i}')
    for i in range(12): g.emit(rdo(i))
    vS = vT+4
    def epiB(m):
        L = []
        for r in range(8): L.append(f'v_add_f32 v{vBa+8*m+r}, v{vBa+8*m+r}, v{vU+8*m+r}')
        for i in range(4): L.append(f'v_cvt_pk_bf16_f32 v{vH+4*m+i}, v{vBa+8*m+2*i}, v{vBa+8*m+2*i+1}')
        L.append(('vm', f'buffer_store_dwordx4 {vr(vH+4*m,4)}, v{vL16}, {SR(SRD_WS)}, s{73+2*m} offen sc1', 'st'))
        return L
    mf = []
    for q in range(64):
        m, t, ks = q >> 5, (q >> 4) & 1, q & 15
        acc = vr(vBa + (2*m+t)*4, 4)
        pre = [('wlg', f'o{m*16+min(ks+1,15)}')] if (t == 0 and ks % 2 == 0) else []
        post = [rdo(12+q)] if 12+q < 32 else []
        mf.append((pre, f'v_mfma_f32_16x16x32_bf16 {acc}, {ar(aWO(t,ks),4)}, {vr(vO+(m*16+ks)*4,4)}, {"0" if ks==0 else acc}', post))
    unp = [('wvm', 'xres')]
    for i in range(8):
        unp.append(f'v_lshlrev_b32 v{vU+2*i}, 16, v{vXres+i}')
        unp.append(f'v_and_b32 v{vU+2*i+1}, 0xffff0000, v{vXres+i}')
    for i in range(4): unp.append(f'v_mov_b32 v{vS+i}, 0')
    unp.append(f'v_lshlrev_b32 v{vT+8}, 2, v0')
    weave(g, mf, [(16, 34, unp), (38, 48, epiB(0))], 8)
    for i in range(4):
        a(f'v_dot2c_f32_bf16 v{vS}, v{vH+i}, v{vOne}')
        a(f'v_dot2c_f32_bf16 v{vS+1}, v{vH+i}, v{vH+i}')
    for x in epiB(1): g.emit(x)
    for i in range(4):
        a(f'v_dot2c_f32_bf16 v{vS+2}, v{vH+4+i}, v{vOne}')
        a(f'v_dot2c_f32_bf16 v{vS+3}, v{vH+4+i}, v{vH+4+i}')
    a(f'v_permlane32_swap_b32 v{vS}, v{vS+2}')
    a(f'v_permlane32_swap_b32 v{vS+1}, v{vS+3}')
    a(f'v_add_f32 v{vS}, v{vS}, v{vS+2}')
    a(f'v_add_f32 v{vS+1}, v{vS+1}, v{vS+3}')
    a(f'v_permlane16_swap_b32 v{vS}, v{vS+1}')
    a(f'v_add_f32 v{vS}, v{vS}, v{vS+1}')
    vm.issue(f'buffer_store_dword v{vS}, v{vT+8}, {SR(SRD_WS)}, s74 offen sc1', 'st')
    g.stamp('B.st')
    vm.wait('gu1')
    a('s_barrier')
    g.stamp('P.gu1')
    rd_gu(1)
    vm.wait('st')
    set_flag(g, vT+9, 79, 1)
    g.stamp('P.flag')
    a(f's_and_b32 s70, s{S_J}, 1')
    a(f's_lshl1_add_u32 s70, s{S_XC}, s70')
    a(f's_lshr_b32 s71, s{S_J}, 2')
    a(f's_bfe_u32 s72, s{S_J}, 0x10001')
    vDd = 16
    a(f'v_lshrrev_b32 v{vT}, 3, v0')
    a(f'v_and_b32 v{vT+1}, 7, v0')
    a(f'v_and_b32 v{vT+2}, 6, v{vT}')
    a(f'v_xor_b32 v{vT+1}, v{vT+1}, v{vT+2}')
    a(f'v_lshlrev_b32 v{vT+1}, 4, v{vT+1}')
    a(f'v_lshl_add_u32 v{vDd}, v{vT}, 10, v{vT+1}')
    for i in range(1, 4): a(f'v_add_u32 v{vDd+i}, {i*(8192-1024)}, v{vDd}')
    a(f's_mul_i32 s88, s{W}, {448*1024}')
    a(f's_lshl_b32 s76, s71, 7')
    a(f's_add_u32 s88, s88, s76')
    def slot(sg): return 131072 if sg == 0 else 16384*(sg-1)
    def dma_wd(p, sg):
        L = [f's_add_u32 m0, s85, {slot(sg)}', f's_add_u32 s83, s88, {p*32768}']
        for i in range(4):
            L.append(('vm', f'buffer_load_dwordx4 v{vDd+i}, {SR(SRD_WD)}, s83 offen offset:{i*1024} lds', f'wd{p}'))
        return L
    vDr = 4
    a('s_waitcnt lgkmcnt(0)')
    a('s_barrier')
    a(f'v_lshrrev_b32 v{vT}, 2, v0')
    a(f'v_bfe_u32 v{vT+1}, v0, 3, 2')
    a(f'v_xor_b32 v{vT+1}, s{W}, v{vT+1}')
    a(f'v_lshlrev_b32 v{vT}, 7, v{vT}')
    a(f'v_lshl_add_u32 v{vT}, v{vT+1}, 5, v{vT}')
    a(f'v_and_b32 v{vT+1}, 3, v0')
    a(f'v_lshl_add_u32 v{vT}, v{vT+1}, 3, v{vT}')
    a(f'v_add_u32 v{vT}, s85, v{vT}')
    for tau in range(4):
        a(f'v_xor_b32 v{vDr+3*tau}, {32*tau}, v{vT}')
        a(f'v_add_u32 v{vDr+3*tau+1}, 65536, v{vDr+3*tau}')
        a(f'v_add_u32 v{vDr+3*tau+2}, 131072, v{vDr+3*tau}')
    def wdreg(p, tau):
        if p < 6: return 'v', 160 + p*16 + tau*4
        if p < 9: return 'v', 112 + (p-6)*16 + tau*4
        return 'a', 168 + (p-9)*16 + tau*4
    def rd_wd(p, sg):
        L = []
        ad = slot(sg)
        for tau in range(4):
            f, r = wdreg(p, tau)
            for h2 in range(2):
                L.append(('lg', f'ds_read_b64_tr_b16 {vr(r+2*h2,2,f)}, v{vDr+3*tau+(ad>>16)} offset:{(ad&65535)+h2*2048}', f'rw{p}'))
        return L
    FINAL = {6: 4, 7: 2, 8: 5, 9: 0, 10: 6, 11: 3, 12: 7, 13: 1}
    a(f's_cmp_ge_u32 s{S_J}, 28')
    a('s_cbranch_scc1 LC_idle')
    vHf = 40
    vCa = 104
    vCsum = 120
    vK4 = 136
    vGt = 144
    vOut = 156
    vHa = 20
    vKa = 22
    vSt = 160
    CONST = 147456
    for i in range(4): a(f'v_mov_b32 v{vGt+i}, v{vOne}')
    a(f'v_mov_b32 v{vHa}, v{vL16}')
    a(f'v_add_u32 v{vHa+1}, 65536, v{vL16}')
    a(f'v_and_b32 v{vT}, 15, v0')
    a(f'v_lshlrev_b32 v{vKa}, 4, v{vT}')
    a(f'v_add_u32 v{vKa}, {CONST}, v{vKa}')
    a(f'v_lshlrev_b32 v{vT}, 7, v{vT}')
    for q in range(64):
        rt, ks = q >> 4, q & 15
        acc = vr(vCsum+rt*4, 4)
        a(f'v_mfma_f32_16x16x32_bf16 {acc}, {ar(aGU(rt,ks),4)}, {vr(vGt,4)}, {"0" if ks==0 else acc}')
    a(f's_lshl_b32 s79, s86, 11')
    a(f's_add_u32 s79, s79, {FB}')
    a(f's_lshl_b32 s73, s86, 17')
    a(f's_add_u32 s73, s73, s85')
    a(f's_add_u32 s73, s73, {WS_H}')
    a(f's_lshl_b32 s74, s86, 14')
    a(f's_add_u32 s74, s74, s85')
    a(f's_add_u32 s74, s74, {WS_STATS}')
    a(f's_mul_i32 s75, s86, {8*56}')
    a(f's_lshl2_add_u32 s76, s87, s{W}')
    a(f's_add_u32 s75, s75, s76')
    a(f's_lshl_b32 s75, s75, 10')
    a(f's_add_u32 s75, s75, {WS_ACT}')
    a(f's_lshl4_add_u32 s77, s86, s87')
    a(f's_lshl_b32 s77, s77, 7')
    a(f's_lshl2_add_u32 s77, s{W}, s77')
    a(f's_add_u32 s77, s77, {FC}')
    g.stamp('P.cs')
    poll(g, 'LC_poll', vT, vGt, 4, 79, '1')
    g.stamp('C.sync')
    def dma_h(s):
        L = [f's_add_u32 m0, s85, {16384*s}', f's_add_u32 s83, s73, {16384*s}']
        for i in range(4):
            L.append(('vm', f'buffer_load_dwordx4 v{vL16}, {SR(SRD_WS)}, s83 offen offset:{i*1024} sc1 lds', f'h{s}'))
        return L
    for x in dma_h(0): g.emit(x)
    for p in range(16):
        vm.issue(f'buffer_load_dword v{vSt+p}, v{vT+8}, {SR(SRD_WS)}, s74 offen offset:{p*256} sc1', 'stats')
    for s in range(1, 4):
        for x in dma_h(s): g.emit(x)
    def rdh(s, ks): return ('lg', f'ds_read_b128 {vr(vHf+ks*4,4)}, v{vHa+(s>>2)} offset:{(s&3)*16384+ks*1024}', f'f{ks}')
    vm.wait('h0')
    a('s_barrier')
    g.stamp('C.h0')
    for ks in range(16): g.emit(rdh(0, ks))
    c0 = -2*0.7978845608028654*LOG2E
    c1 = c0*0.044715
    def consts():
        L = [('wvm', 'stats')]
        for st in (8, 4, 2, 1):
            for i in range(st): L.append(f'v_add_f32 v{vSt+i}, v{vSt+i}, v{vSt+i+st}')
        x, y = vSt, vSt+1
        o = vSt+4
        L += [f'v_mov_b32 v{y}, v{x}', f'v_lshrrev_b32 v{vSt+8}, 5, v0', f'v_lshlrev_b32 v{vSt+8}, 8, v{vSt+8}',
              f'v_permlane16_swap_b32 v{x}, v{y}',
              f'v_mul_f32 v{o}, {fbits(-1/512)}, v{x}',
              f'v_mul_f32 v{y}, {fbits(1/512)}, v{y}',
              f'v_fma_f32 v{y}, -v{o}, v{o}, v{y}',
              f'v_max_f32 v{y}, 0, v{y}',
              f'v_add_f32 v{o+3}, {fbits(1e-5)}, v{y}',
              f'v_rsq_f32 v{x}, v{o+3}',
              f's_lshl_b32 s84, s{W}, 9',
              f'v_add3_u32 v{vSt+8}, v{vSt+8}, v{vKa}, s84',
              f'v_mul_f32 v{y}, v{x}, v{x}',
              f'v_mul_f32 v{o+1}, {fbits(c0)}, v{x}',
              f'v_mul_f32 v{y}, {fbits(0.044715)}, v{y}',
              f'v_mul_f32 v{o+2}, v{o+1}, v{y}',
              ('lg', f'ds_write_b128 v{vSt+8}, {vr(o,4)}', 'cw')]
        return L
    def gelu(pair, s):
        K = vK4 + 4*(s & 1)
        nm, k0, k1, vv = K, K+1, K+2, K+3
        ag = vCa + pair*8; au = ag + 4; cg = vCsum + pair*8; cu = cg + 4
        t, u, e = vGt, vGt+4, vGt+8
        L = []
        if pair == 0: L.append(('wlg', f'k{s}'))
        R = range(4)
        L += [f'v_fma_f32 v{t+i}, v{nm}, v{cg+i}, v{ag+i}' for i in R]
        L += [f'v_fma_f32 v{u+i}, v{nm}, v{cu+i}, v{au+i}' for i in R]
        L += [f'v_mul_f32 v{e+i}, v{t+i}, v{t+i}' for i in R]
        L += [f'v_fma_f32 v{e+i}, v{e+i}, v{k1}, v{k0}' for i in R]
        L += [f'v_mul_f32 v{e+i}, v{e+i}, v{t+i}' for i in R]
        L += [f'v_exp_f32 v{e+i}, v{e+i}' for i in R]
        L += [f'v_mul_f32 v{t+i}, v{t+i}, v{u+i}' for i in R]
        L += [f'v_fma_f32 v{e+i}, v{e+i}, v{vv}, v{vv}' for i in R]
        L += [f'v_rcp_f32 v{e+i}, v{e+i}' for i in R]
        L += [f'v_mul_f32 v{t+i}, v{t+i}, v{e+i}' for i in R]
        L += [f'v_cvt_pk_bf16_f32 v{vOut+2*pair+i}, v{t+2*i}, v{t+2*i+1}' for i in range(2)]
        if pair == 1:
            L.append(f's_add_u32 s76, s75, {s*56*1024}')
            L.append(('vm', f'buffer_store_dwordx4 {vr(vOut,4)}, v{vL16}, {SR(SRD_WS)}, s76 offen sc1', f'act{s}'))
        return L
    def flagC(n): return [f'v_mov_b32 v{vT+9}, {n}', ('vm', f'buffer_store_dword v{vT+9}, off, {SR(SRD_WS)}, s77 sc1', 'flag')]
    RECY = {1: (0, 0, 3), 2: (1, 1, 5), 3: (2, 2, 7), 4: (3, 0, 9), 5: (4, 3, 11), 6: (5, 1, 13)}
    FRESH = {0: (1, 1), 1: (2, 2), 2: (4, 3), 3: (6, 4), 4: (8, 5), 5: (10, 6), 6: (12, 7)}
    for s in range(8):
        bq = 26 if s == 0 else 8
        mf = []
        for q in range(64):
            rt, ks = q >> 4, q & 15
            acc = vr(vCa+rt*4, 4)
            pre = []
            if q < 16 and q % 4 == 0: pre.append(('wlg', f'f{q+3}'))
            if q == bq:
                pre.append(('wlg', 'f15', 'cw'))
                if s < 7: pre.append(('wvm', f'h{s+1}'))
                pre.append('s_barrier')
                pre.append(('lg', f'ds_read_b128 {vr(vK4+4*(s&1),4)}, v{vKa} offset:{s*256}', f'k{s}'))
            post = [rdh(s+1, ks)] if (rt == 3 and s < 7) else []
            mf.append((pre, f'v_mfma_f32_16x16x32_bf16 {acc}, {ar(aGU(rt,ks),4)}, {vr(vHf+ks*4,4)}, {"0" if ks==0 else acc}', post))
        st = []
        if s == 0:
            hl = []
            for s2 in range(4, 8): hl += dma_h(s2)
            hl += dma_wd(0, 0)
            st.append((0, 14, hl))
            st.append((8, 25, consts()))
        else:
            st.append((3, 31, gelu(1, s-1)))
        st.append((35, 63, gelu(0, s)))
        bg = []
        if s in (5, 7): bg += [('wvm', f'act{s-2}')] + flagC(s-1)
        if s in FRESH: bg += dma_wd(*FRESH[s])
        if s in RECY:
            p, sg, pn = RECY[s]
            bg += [('wvm', f'wd{p}')] + rd_wd(p, sg) + [('wlg', f'rw{p}')] + dma_wd(pn, sg)
        if bg: st.append((bq+1, 47, bg))
        weave(g, mf, st, 8)
        if s in (0, 3): g.stamp(f'C.it{s}')
    g.stamp('C.end')
    vm.wait('act6')
    for x in flagC(7): g.emit(x)
    for x in gelu(1, 7): g.emit(x)
    g.stamp('C.tail')
    a('s_branch LD_start')
    a.label('LC_idle')
    sv = (vm.q, lg.q); vm.q = []; lg.q = []
    for p in range(6):
        for x in dma_wd(p, p): g.emit(x)
    vm.wait_all()
    for p in range(6):
        for x in rd_wd(p, p): g.emit(x)
    lg.wait_all()
    for p in range(6, 14):
        for x in dma_wd(p, FINAL[p]): g.emit(x)
    vm.wait_all()
    vm.q, lg.q = sv
    a.label('LD_start')
    a.hist = []
    a('s_nop 1')
    vDa = 40
    vRd = 72
    vHr = 84
    vPl = 92
    vRa = 93
    vOa = 96
    vWa = 97
    vU4 = 100
    a(f'v_min_u32 v{vT}, 13, v0')
    a(f's_mul_i32 s76, s{W}, 14')
    a(f'v_add_u32 v{vT}, s76, v{vT}')
    a(f'v_and_b32 v{vT+1}, 3, v{vT}')
    a(f'v_lshrrev_b32 v{vT}, 2, v{vT}')
    a(f'v_lshlrev_b32 v{vT}, 7, v{vT}')
    a(f'v_lshl_add_u32 v{vT}, v{vT+1}, 2, v{vT}')
    a(f's_lshl_b32 s79, s70, 11')
    a(f's_add_u32 s79, s79, {FC}')
    a(f's_add_u32 s80, s72, 5')
    a(f's_add_u32 s81, s72, 7')
    a(f's_lshl3_add_u32 s73, s70, s72')
    a(f's_mul_i32 s75, s73, 56')
    a(f's_add_u32 s75, s75, s76')
    a(f's_lshl_b32 s75, s75, 10')
    a(f's_add_u32 s75, s75, {WS_ACT}')
    a(f's_lshl_b32 s74, s73, 14')
    a(f's_lshr_b32 s76, s{W}, 1')
    a(f's_lshl1_add_u32 s76, s71, s76')
    a(f's_lshl_b32 s76, s76, 10')
    a(f's_add_u32 s74, s74, s76')
    a(f's_and_b32 s76, s{W}, 1')
    a(f's_lshl3_add_u32 s74, s76, s74')
    a(f's_add_u32 s74, s74, {WS_H}')
    a(f's_lshl_b32 s78, s73, 14')
    a(f's_lshl_b32 s76, s71, 7')
    a(f's_add_u32 s78, s78, s76')
    a(f's_lshl_b32 s76, s{W}, 5')
    a(f's_add_u32 s78, s78, s76')
    poll(g, 'LD_poll', vT, vPl, 1, 79, 's80')
    a(f's_cmp_ge_u32 s{S_J}, 28')
    a('s_cbranch_scc1 LD_nf')
    a(f'v_mov_b32 v{vT+9}, 8')
    a(f'buffer_store_dword v{vT+9}, off, {SR(SRD_WS)}, s77 sc1')
    a.label('LD_nf')
    g.stamp('D.sync')
    def aACT(m, i): return ((m % 3)*14 + i)*4
    def ld_act(m):
        L = []
        for i in range(14):
            if i % 4 == 0: L.append(f's_add_u32 s83, s75, {(2*m*56+i)*1024}')
            L.append(('vm', f'buffer_load_dwordx4 {ar(aACT(m,i),4)}, v{vL16}, {SR(SRD_WS)}, s83 offen offset:{(i&3)*1024} sc1', f'a{m}_{i}'))
        return L
    for x in ld_act(0): g.emit(x)
    for p in range(6, 14):
        for x in rd_wd(p, FINAL[p]): g.emit(x)
    for x in ld_act(1): g.emit(x)
    for m in range(4):
        a(f's_add_u32 s83, s74, {m*32768}')
        vm.issue(f'buffer_load_dwordx2 {vr(vHr+2*m,2)}, v{vL16}, {SR(SRD_WS)}, s83 offen sc1', 'hres')
    a(f'v_and_b32 v{vOa}, 15, v0')
    a(f'v_lshrrev_b32 v{vT+1}, 4, v0')
    a(f'v_lshlrev_b32 v{vT+1}, 3, v{vT+1}')
    a(f'v_lshl_add_u32 v{vOa}, v{vOa}, 10, v{vT+1}')
    a(f'v_add_u32 v{vWa}, s85, v{vL16}')
    for tau in range(1, 4):
        a(f'v_xor_b32 v{vRa+tau-1}, {4096*tau}, v{vWa}')
    lg.wait_all()
    g.stamp('D.rd')
    def red1(m):
        b = vDa + 16*(m & 1)
        return [('lg', f'ds_write_b128 v{vWa}, {vr(b+4*tau,4)} offset:{16384*m+1024*tau}', 'dw') for tau in range(1, 4)]
    def red2(m):
        b = vDa + 16*(m & 1)
        L = [('wlg', 'dw'), 's_barrier']
        L += [('lg', f'ds_read_b128 {vr(vRd+4*(tau-1),4)}, v{vRa+tau-1} offset:{16384*m+1024*tau}', 'dr') for tau in range(1, 4)]
        L += [('wvm', 'hres')]
        for i in range(2):
            L += [f'v_lshlrev_b32 v{vU4+2*i}, 16, v{vHr+2*m+i}', f'v_and_b32 v{vU4+2*i+1}, 0xffff0000, v{vHr+2*m+i}']
        L += [f'v_add_f32 v{vU4+i}, v{vU4+i}, v{b+i}' for i in range(4)]
        L += [f's_add_u32 s84, s78, {m*32768}']
        return L
    def red3(m):
        L = [('wlg', 'dr')]
        L += [f'v_add_f32 v{vRd+i}, v{vRd+i}, v{vRd+4+i}' for i in range(4)]
        L += [f'v_add_f32 v{vU4+i}, v{vU4+i}, v{vRd+8+i}' for i in range(4)]
        L += [f'v_add_f32 v{vU4+i}, v{vU4+i}, v{vRd+i}' for i in range(4)]
        L += [f'v_cvt_pk_bf16_f32 v{vHr+2*m+i}, v{vU4+2*i}, v{vU4+2*i+1}' for i in range(2)]
        L += [('vm', f'buffer_store_dwordx2 {vr(vHr+2*m,2)}, v{vOa}, {SR(SRD_OUT)}, s84 offen', 'out')]
        return L
    for m in range(4):
        if m == 2:
            a.label('LD_chk')
            vm.wait('pl2')
            a(f'v_cmp_gt_u32 vcc, s81, v{vPl}')
            a('s_cbranch_vccz LD_ok')
            a(f'buffer_load_dword v{vPl}, v{vT}, {SR(SRD_WS)}, s79 offen sc1')
            a('s_waitcnt vmcnt(0)')
            guard(g)
            a('s_branch LD_chk')
            a.label('LD_ok')
        mf = []
        for q in range(56):
            tau, i = (1, 2, 3, 0)[q // 14], q % 14
            acc = vr(vDa + 16*(m & 1) + 4*tau, 4)
            f, r = wdreg(i, tau)
            pre = [('wvm', f'a{m}_{min(i+1,13)}')] if (q < 14 and i % 2 == 0) else []
            mf.append((pre, f'v_mfma_f32_16x16x32_bf16 {acc}, {vr(r,4,f)}, {ar(aACT(m,i),4)}, {"0" if i==0 else acc}', []))
        st = []
        if m == 0:
            st.append((14, 50, ld_act(2) + [('vm', f'buffer_load_dword v{vPl}, v{vT}, {SR(SRD_WS)}, s79 offen sc1', 'pl2')]))
        if m == 2: st.append((0, 20, ld_act(3)))
        if m:
            st.append((2, 14, red2(m-1))); st.append((20, 34, red3(m-1)))
        st.append((48, 55, red1(m)))
        weave(g, mf, st, 8)
        g.stamp(f'D.m{m}')
    for x in red2(3) + red3(3): g.emit(x)
    g.stamp('D.end')
    if cfg.get('dbgst'):
        a('s_waitcnt lgkmcnt(0)')
        a(f's_lshl2_add_u32 s70, s{S_WG}, s{W}')
        a(f's_cmp_lg_u32 s70, {int(cfg["dbgst"])*4}')
        a('s_cbranch_scc1 Lend')
        for i in range(1, min(g.ns, 17)):
            a(f's_sub_u32 s70, s{TSREG[i]}, s{TSREG[0]}')
            a(f'v_mov_b32 v2, s70')
            a(f'buffer_store_dword v2, off, {SR(SRD_DBG)}, 0 offset:{4*(i-1)}')
    elif cfg.get('stamps'):
        a('s_waitcnt lgkmcnt(0)')
        a(f's_lshl2_add_u32 s70, s{S_WG}, s{W}')
        a(f's_lshl_b32 s70, s70, 7')
        a(f's_add_u32 s70, s70, {WS_TS}')
        for i in range(g.ns):
            a(f'v_mov_b32 v2, s{TSREG[i]}')
            a(f'buffer_store_dword v2, off, {SR(SRD_WS)}, s70 offset:{4*i}')
    a.label('Lend')
    a('s_endpgm')
    hdr = '; @launch grid=(256,1,1) block=(256,1,1) lds=163840\n'
    if cfg.get('stamps') and not cfg.get('dbgst'): hdr += '; stamps: ' + ','.join(g.names) + '\n'
    hdr += '.amdgcn_target "amdgcn-amd-amdhsa--gfx950"\n.text\n'
    KD = f""".section .rodata,"a"
.p2align 6
.amdhsa_kernel {k}
  .amdhsa_next_free_vgpr 512
  .amdhsa_next_free_sgpr 102
  .amdhsa_accum_offset 256
  .amdhsa_group_segment_fixed_size 0
  .amdhsa_kernarg_size 80
  .amdhsa_user_sgpr_count 2
  .amdhsa_user_sgpr_kernarg_segment_ptr 1
  .amdhsa_system_sgpr_workgroup_id_x 1
.end_amdhsa_kernel
"""
    print('nops', a.nops, 'stamps', g.ns, file=sys.stderr)
    return hdr + a.text() + KD

if __name__ == '__main__':
    out = sys.argv[1]
    cfg = {}
    for o in sys.argv[2:]:
        k_, _, v = o.partition('=')
        cfg[k_] = v.split(',') if k_ == 'sel' else (v or True)
    open(out, 'w').write(build(cfg))
```

```python
import sys, struct
from asmlib import *

NAME = 'sequential_preLN__linear_attn_block__geglu_ffn__prompt'
WS_PQ = 0x000000; WS_H = 0x200000; WS_ACT = 0x400000; WS_STATS = 0xB00000; WS_KV = 0xB40000
WS_FLAG = 0xB50000; WS_TS = 0xC00000; WS_SIZE = 0xD00000
FA = WS_FLAG; FB = WS_FLAG + 256*128; FC = WS_FLAG + 512*128
LOG2E = 1.4426950408889634; LN2 = 0.6931471805599453
def fbits(x): return '0x%08x' % struct.unpack('<I', struct.pack('<f', x))[0]

S_WG = 2; W = 3
SRD_X = 36; SRD_WQKV = 40; SRD_WO = 44; SRD_WGU = 48; SRD_WD = 52; SRD_OUT = 56; SRD_WS = 60; SRD_DBG = 64
SRD_ACT = 40
S_XC = 68; S_J = 69
def SR(b): return f's[{b}:{b+3}]'
def v2(b): return f'v[{b}:{b+1}]'

class Cnt:
    def __init__(self, a, name, cap): self.a = a; self.q = []; self.name = name; self.cap = cap; self.seen = set()
    def issue(self, text, tag='x'):
        self.a(text); self.q.append(tag); self.seen.add(tag)
        if self.name == 'vmcnt': assert len(self.q) <= self.cap, "vmcnt overflow"
    def wait(self, *tags):
        for t in tags: assert t in self.seen, ('wait on unissued', t)
        last = -1
        for i, t in enumerate(self.q):
            if t in tags: last = i
        if last < 0: return
        n = len(self.q) - 1 - last
        n = min(n, self.cap)
        self.a(f's_waitcnt {self.name}({n})')
        self.q = self.q[len(self.q)-n:] if n else []
    def wait_all(self):
        self.a(f's_waitcnt {self.name}(0)'); self.q = []

TSREG = list(range(90, 100, 2)) + list(range(8, 16, 2)) + [30,32,34,16,18,20,22,24,26,28,4,6]

class G:
    def __init__(self, cfg):
        self.a = Asm(); self.cfg = cfg
        self.vm = Cnt(self.a, 'vmcnt', 63); self.lg = Cnt(self.a, 'lgkmcnt', 15)
        self.ns = 0; self.names = []
    def want(self, name):
        if not self.cfg.get('stamps'): return False
        sel = self.cfg.get('sel')
        return not (sel and not any(name.startswith(p) for p in sel))
    def stamp(self, name):
        if not self.want(name): return
        r = TSREG[self.ns]; self.ns += 1; self.names.append(name)
        self.a(f'{"s_memtime" if self.cfg["stamps"] == "cyc" else "s_memrealtime"} s[{r}:{r+1}]')
    def st(self, name):
        return [lambda: self.stamp(name)] if self.want(name) else []
    def emit(self, t):
        if isinstance(t, str): self.a(t)
        elif callable(t): t()
        elif t[0] == 'vm': self.vm.issue(t[1], t[2])
        elif t[0] == 'lg': self.lg.issue(t[1], t[2])
        elif t[0] == 'wvm': self.vm.wait(*t[1:])
        elif t[0] == 'wlg': self.lg.wait(*t[1:])
        else: raise ValueError(t)
    def emits(self, L):
        for x in L: self.emit(x)

def cls(t):
    if callable(t): return 0
    if isinstance(t, tuple): return 1 if t[0] in ('vm', 'lg') else 0
    op = t.split()[0]
    if op.startswith('s_'): return 0
    if op.startswith(('ds_', 'buffer_', 'global_')): return 1
    return 2
def cost(t):
    c = cls(t)
    if c == 0: return 4
    tx = t if isinstance(t, str) else t[1]
    op = tx.split()[0]
    if c == 1: return 20 if op == 'ds_write_b128' else 4
    return 8 if (op.split('_e')[0] in TRANS or op in TRANS) else 4

def weave(g, mf, streams, cap, name=''):
    n = len(mf)
    def fcost(items):
        c = sum(cost(x) for x in items)
        return c - 4 if any(cls(x) == 0 for x in items) else c
    fixed = [fcost(m[1]) for m in mf]
    segs = [[[s[0], s[1], list(s[2]), s[3] if len(s) > 3 else 0] for s in st if s[2]] for st in streams]
    lastmem = [-99]*len(segs)
    tot = 0
    for i in range(n):
        gap = [[], [], []]; tail = []
        for x in mf[i][1]: gap[cls(x)].append(x)
        used = fixed[i]
        lc = [-1]*len(segs)
        blocked = set()
        while True:
            best = None
            for k, st in enumerate(segs):
                if not st or k in blocked or st[0][0] > i: continue
                if best is None or st[0][1] < segs[best][0][1]: best = k
            if best is None: break
            sg = segs[best][0]; it = sg[2][0]; c = cls(it)
            must = i >= sg[1]-1
            kk = 0 if (c == 0 and not gap[0]) else cost(it)
            if not must:
                if c < lc[best] or (c == 1 and sg[3] and i - lastmem[best] < sg[3]): blocked.add(best); continue
                if used + kk > cap:
                    dem = sum(sum(cost(x) for x in s[2] if cls(x)) for st in segs for s in st if s[1] <= sg[1])
                    room = sum(max(0, cap - fixed[j]) for j in range(i+1, min(n, sg[1])))
                    if not (used < cap and dem > room): blocked.add(best); continue
            if c < lc[best] or tail and must and lc[best] == 9:
                tail.append(it); lc[best] = 9
            else:
                gap[c].append(it); lc[best] = c
            used += kk
            if c == 1: lastmem[best] = i
            sg[2].pop(0)
            if not sg[2]: segs[best].pop(0)
        g.a(mf[i][0])
        for x in gap[0] + gap[1] + gap[2] + tail: g.emit(x)
        tot += max(cap, used) + 8
    assert not any(segs), ('unplaced', name)
    print(f'weave {name}: {n} mfma est {tot} cyc', file=sys.stderr)

def srd(a, d, ptr, size):
    a(f's_mov_b32 s{d}, s{ptr}')
    a(f's_mov_b32 s{d+1}, s{ptr+1}')
    a(f's_mov_b32 s{d+2}, {size}')
    a(f's_mov_b32 s{d+3}, 0x20000')

def guard(g):
    if g.cfg.get('safe'):
        g.a('s_sub_u32 s100, s100, 1')
        g.a('s_cbranch_scc1 Lend')

def poll(g, label, vaddr, vdst, n, soff, need):
    a = g.a
    a.label(label)
    sfx = {1: '', 4: 'x4'}[n]
    a(f'buffer_load_dword{sfx} {vr(vdst, n)}, v{vaddr}, {SR(SRD_WS)}, s{soff} offen sc1')
    g.vm.wait_all()
    if n == 4:
        a(f'v_min_u32 v{vdst}, v{vdst}, v{vdst+1}')
        a(f'v_min3_u32 v{vdst}, v{vdst}, v{vdst+2}, v{vdst+3}')
    a(f'v_cmp_gt_u32 vcc, {need}, v{vdst}')
    guard(g)
    a(f's_cbranch_vccnz {label}')

def build(cfg):
    g = G(cfg); a = g.a; vm = g.vm; lg = g.lg
    k = NAME + '_kernel'
    OOL = []
    a.raw(f'.globl {k}\n.p2align 8\n.type {k},@function\n{k}:')
    a(f's_cmp_ge_u32 s{S_WG}, 256')
    a('s_cbranch_scc1 Lend')
    a('s_load_dwordx16 s[16:31], s[0:1], 0')
    a('s_load_dwordx4 s[32:35], s[0:1], 64')
    g.stamp('A.start')
    if cfg.get('safe'): a('s_mov_b32 s100, 200000')
    a('v_lshrrev_b32 v1, 6, v0')
    a(f's_lshr_b32 s{S_J}, s{S_WG}, 3')
    a(f'v_readfirstlane_b32 s{W}, v1')
    a('v_and_b32 v0, 63, v0')
    a(f's_and_b32 s{S_XC}, s{S_WG}, 7')
    vTa, vTd = 218, 219
    a(f'v_lshlrev_b32 v{vTa}, 7, v0')
    if cfg.get('cpf'):
        a(f's_cmp_ge_u32 s{S_J}, 2')
        a('s_cbranch_scc1 LX_cpf_ret')
        a('s_getpc_b64 s[4:5]')
        a.label('LX_pc')
        a(f's_lshl2_add_u32 s76, s{S_J}, s{W}')
        a(f's_lshl_b32 s76, s76, 13')
        a(f'v_add_u32 v{vTd}, s76, v{vTa}')
        a(f'v_min_u32 v{vTd}, Lend-LX_pc, v{vTd}')
        a(f'global_load_dword v{vTd}, v{vTd}, s[4:5]')
        a.label('LX_cpf_ret')
    XR = 98304
    s_rb, s_hp, s_x, s_w, s_m0x, s_m0w, s_rot = 70, 71, 72, 73, 74, 75, 82
    a(f's_lshr_b32 s76, s{S_XC}, 1')
    a(f's_and_b32 s{s_rb}, s{S_J}, 3')
    a(f's_lshl2_add_u32 s{s_rb}, s76, s{s_rb}')
    a(f's_and_b32 s76, s{S_XC}, 1')
    a(f's_lshr_b32 s{s_hp}, s{S_J}, 2')
    a(f's_lshl3_add_u32 s{s_hp}, s76, s{s_hp}')
    a(f's_lshr_b32 s76, s{S_J}, 3')
    a(f's_add_u32 s{s_rot}, s{S_J}, s76')
    a(f's_add_u32 s{s_rot}, s{s_rot}, s{S_XC}')
    a(f's_lshl2_add_u32 s{s_x}, s{s_rb}, s{W}')
    a(f's_lshl_b32 s{s_x}, s{s_x}, 15')
    a(f's_mul_i32 s{s_w}, s{W}, {16*3072}')
    a(f's_lshl_b32 s76, s{s_hp}, 6')
    a(f's_add_u32 s{s_w}, s{s_w}, s76')
    a(f's_lshl_b32 s{s_m0x}, s{W}, 14')
    a(f's_add_u32 s{s_m0x}, s{s_m0x}, {XR}')
    a(f's_mul_i32 s{s_m0w}, s{W}, 3072')
    vXd = 4; vWd = 8; vXr = 12; vWn = 16; vWp = 20
    vSum, vSq, vCs = 24, 25, 26
    vOne = 29; vT = 30; vAcc = 40; vX = 88; vW = 120
    vWo = 220
    vDbg = 216; vDbgA = 217
    a(f'v_lshrrev_b32 v{vT}, 3, v0')
    a(f'v_and_b32 v{vT+1}, 7, v0')
    a(f'v_lshrrev_b32 v{vT+2}, 1, v{vT}')
    a(f'v_xor_b32 v{vT+1}, v{vT+1}, v{vT+2}')
    a(f'v_lshlrev_b32 v{vT+1}, 4, v{vT+1}')
    a(f'v_lshl_add_u32 v{vXd}, v{vT}, 10, v{vT+1}')
    a(f'v_xor_b32 v{vXd+1}, 64, v{vXd}')
    a(f'v_add_u32 v{vXd+1}, {8192-1024}, v{vXd+1}')
    a(f'v_add_u32 v{vXd+2}, {2*(8192-1024)}, v{vXd}')
    a(f'v_add_u32 v{vXd+3}, {2*(8192-1024)}, v{vXd+1}')
    for q in range(3):
        a(f'v_add_u32 v{vT}, {64*q}, v0')
        a(f'v_mul_u32_u24 v{vT+1}, 171, v{vT}')
        a(f'v_lshrrev_b32 v{vT+1}, 11, v{vT+1}')
        a(f'v_mul_u32_u24 v{vT+2}, 12, v{vT+1}')
        a(f'v_sub_u32 v{vT+2}, v{vT}, v{vT+2}')
        a(f'v_mul_u32_u24 v{vT+1}, 3072, v{vT+1}')
        a(f'v_lshrrev_b32 v{vT+3}, 2, v{vT+2}')
        a(f'v_lshl_add_u32 v{vT+1}, v{vT+3}, 10, v{vT+1}')
        a(f'v_and_b32 v{vT+2}, 3, v{vT+2}')
        a(f'v_lshl_add_u32 v{vWd+q}, v{vT+2}, 4, v{vT+1}')
        if q: a(f'v_subrev_u32 v{vWd+q}, {1024*q}, v{vWd+q}')
    a(f's_lshr_b32 s83, s{S_WG}, 4')
    a(f's_or_b32 s83, s83, s{W}')
    a(f's_mov_b32 s{SRD_X+2}, {2048*512*2}')
    a(f's_mov_b32 s{SRD_X+3}, 0x20000')
    a(f's_mov_b32 s{SRD_WQKV+2}, {512*1536*2}')
    a(f's_mov_b32 s{SRD_WQKV+3}, 0x20000')
    a(f's_mov_b32 s{SRD_WS+2}, {WS_SIZE}')
    a(f's_mov_b32 s{SRD_WS+3}, 0x20000')
    a('s_waitcnt lgkmcnt(0)')
    g.stamp('S.karg')
    a(f's_mov_b64 s[{SRD_X}:{SRD_X+1}], s[16:17]')
    a(f's_mov_b64 s[{SRD_WQKV}:{SRD_WQKV+1}], s[18:19]')
    a(f's_mov_b64 s[{SRD_WS}:{SRD_WS+1}], s[34:35]')
    def dma_xw(c):
        L = [f's_add_u32 s78, s{s_rot}, {c}', f's_and_b32 s78, s78, 7', f's_lshl_b32 s76, s78, 7', f's_add_u32 s76, s76, s{s_x}',
             f's_add_u32 m0, s{s_m0x}, {(c&3)*4096}', f's_mul_i32 s77, s78, {64*3072}']
        for i in range(4):
            L.append(('vm', f'buffer_load_dwordx4 v{vXd+i}, {SR(SRD_X)}, s76 offen offset:{i*1024} lds', f'c{c}'))
        L += [f's_add_u32 m0, s{s_m0w}, {c*12288}', f's_add_u32 s77, s77, s{s_w}']
        for q in range(3):
            L.append(('vm', f'buffer_load_dwordx4 v{vWd+q}, {SR(SRD_WQKV)}, s77 offen offset:{q*1024} lds', f'c{c}'))
        return L
    def touch():
        L = [f's_cmp_eq_u32 s{W}, 1', 's_cselect_b64 s[4:5], s[26:27], s[24:25]',
             f's_cmp_eq_u32 s{W}, 2', 's_cselect_b64 s[4:5], s[28:29], s[4:5]',
             f's_cselect_b32 s6, {0 if cfg.get("tdi") else 512*1792*2}, {512*1792*2}',
             f's_cmp_eq_u32 s{W}, 3', 's_cselect_b64 s[4:5], s[20:21], s[4:5]',
             f's_cselect_b32 s6, {512*512*2}, s6', 's_mov_b32 s7, 0x20000',
             f'v_lshl_add_u32 v{vTa}, s{S_WG}, 13, v{vTa}',
             ('vm', f'buffer_load_dword v{vTd}, v{vTa}, s[4:7], 0 offen', 'touch')]
        return L
    TP = cfg.get('touch', 'none')
    a(f's_cmp_eq_u32 s83, 0')
    a('s_cbranch_scc0 LX_zero_ret')
    def ool_zero():
        for i in range(4): a(f'v_mov_b32 v{vT+i}, 0')
        a(f's_mul_i32 s76, s{S_WG}, 2176')
        a(f's_add_u32 s76, s76, {WS_KV}')
        a(f'v_lshlrev_b32 v{vT+4}, 4, v0')
        a(f'v_min_u32 v{vT+5}, {128-16}, v{vT+4}')
        a(f'buffer_store_dwordx4 v[{vT}:{vT+3}], v{vT+4}, {SR(SRD_WS)}, s76 offen sc1')
        a(f'buffer_store_dwordx4 v[{vT}:{vT+3}], v{vT+4}, {SR(SRD_WS)}, s76 offen offset:1024 sc1')
        a(f'buffer_store_dwordx4 v[{vT}:{vT+3}], v{vT+5}, {SR(SRD_WS)}, s76 offen offset:2048 sc1')
        a(f's_mul_i32 s76, s{S_WG}, {48*128}')
        a(f's_add_u32 s76, s76, {WS_FLAG}')
        a(f'v_min_u32 v{vT+6}, 47, v0')
        a(f'v_lshlrev_b32 v{vT+6}, 7, v{vT+6}')
        a(f'buffer_store_dwordx4 v[{vT}:{vT+3}], v{vT+6}, {SR(SRD_WS)}, s76 offen sc1')
    ool_zero()
    a.label('LX_zero_ret')
    if TP == 'pre': g.emits(touch())
    g.emits(dma_xw(0)); g.stamp('S.d0')
    if TP == 'd0': g.emits(touch())
    g.emits(dma_xw(1)); g.stamp('S.d1')
    if TP == 'd1': g.emits(touch())
    srd(a, SRD_DBG, 32, 256)
    srd(a, SRD_WO, 20, 512*512*2)
    a(f's_cmp_ge_u32 s{W}, 2')
    a(f's_cselect_b64 s[{SRD_WGU}:{SRD_WGU+1}], s[26:27], s[24:25]')
    a(f's_cmp_ge_u32 s{S_J}, 28')
    a(f's_cselect_b32 s{SRD_WGU+2}, 0, {512*1792*2}')
    a(f's_mov_b32 s{SRD_WGU+3}, 0x20000')
    srd(a, SRD_WD, 28, 1792*512*2)
    srd(a, SRD_OUT, 30, 2048*512*2)
    a(f'v_and_b32 v{vT}, 31, v0')
    a(f'v_lshrrev_b32 v{vT+1}, 5, v0')
    a(f'v_lshrrev_b32 v{vT+2}, 1, v{vT}')
    a(f'v_and_b32 v{vT+2}, 7, v{vT+2}')
    a(f'v_xor_b32 v{vT+2}, v{vT+2}, v{vT+1}')
    a(f'v_lshlrev_b32 v{vT+2}, 4, v{vT+2}')
    a(f'v_lshl_add_u32 v{vT+2}, v{vT}, 7, v{vT+2}')
    a(f'v_add_u32 v{vT+2}, s{s_m0x}, v{vT+2}')
    for s in range(4):
        a(f's_xor_b32 s76, s{W}, {s}')
        a(f's_lshl_b32 s76, s76, 5')
        a(f'v_xor_b32 v{vXr+s}, s76, v{vT+2}')
    a(f'v_bfe_u32 v{vT+2}, v0, 2, 2')
    a(f'v_lshl_add_u32 v{vT+2}, v{vT+1}, 3, v{vT+2}')
    a(f'v_mul_u32_u24 v{vT+2}, 192, v{vT+2}')
    a(f'v_bfe_u32 v{vT+3}, v0, 4, 1')
    a(f'v_lshl_add_u32 v{vT+2}, v{vT+3}, 5, v{vT+2}')
    a(f'v_and_b32 v{vT+3}, 3, v0')
    a(f'v_lshl_add_u32 v{vT+4}, v{vT+3}, 3, v{vT+2}')
    a(f'v_and_b32 v{vT+5}, 1, v0')
    a(f'v_lshl_add_u32 v{vT+5}, v{vT+5}, 4, v{vT+2}')
    a(f'v_bfe_u32 v{vT+3}, v0, 1, 1')
    a(f'v_lshl_add_u32 v{vT+5}, v{vT+3}, 3, v{vT+5}')
    for s in range(4):
        a(f's_xor_b32 s76, s{W}, {s}')
        a(f's_mul_i32 s76, s76, 3072')
        a(f'v_add_u32 v{vWn+s}, s76, v{vT+4}')
        a(f'v_add_u32 v{vWp+s}, s76, v{vT+5}')
    for r in (vSum, vSq, vCs, vCs+1, vCs+2): a(f'v_mov_b32 v{r}, 0')
    a(f'v_mov_b32 v{vOne}, 0x3f803f80')
    a(f'v_lshrrev_b32 v{vT}, 4, v0')
    a(f'v_and_b32 v{vT+1}, 15, v0')
    a(f'v_lshlrev_b32 v{vT+2}, 1, v{vT}')
    a(f'v_xor_b32 v{vT+1}, v{vT+1}, v{vT+2}')
    a(f'v_lshlrev_b32 v{vT+1}, 4, v{vT+1}')
    a(f'v_lshl_add_u32 v{vWo}, v{vT}, 10, v{vT+1}')
    a(f'v_add_u32 v{vWo+1}, {4096-1024}, v{vWo}')
    a(f'v_xor_b32 v{vWo+2}, 128, v{vWo}')
    a(f'v_add_u32 v{vWo+2}, {2*(4096-1024)}, v{vWo+2}')
    a(f'v_add_u32 v{vWo+3}, {4096-1024}, v{vWo+2}')
    a(f'v_and_b32 v{vDbgA}, 15, v0')
    a(f'v_lshlrev_b32 v{vDbgA}, 2, v{vDbgA}')
    a(f's_lshr_b32 s84, s{S_J}, 3')
    a(f's_lshl_b32 s84, s84, 8')
    a(f's_lshl_b32 s76, s{W}, 17')
    a(f's_add_u32 s84, s84, s76')
    a(f's_lshl_b32 s85, s{W}, 12')
    SC = 12288; CSA = 65536
    vE1, vE2, vE3, vE4, vE5, vE6, vE7, vE8, vE9 = range(224, 233)
    vL16 = 1
    a(f'v_and_b32 v{vT}, 31, v0')
    a(f'v_lshl_add_u32 v{vE1}, v{vT}, 2, s{s_m0x}')
    a(f'v_add_u32 v{vE1}, {SC}, v{vE1}')
    a(f'v_lshlrev_b32 v{vE2}, 2, v{vT}')
    a(f'v_add_u32 v{vE2}, {CSA}, v{vE2}')
    a(f'v_lshrrev_b32 v{vT+1}, 5, v0')
    a(f'v_lshl_add_u32 v{vE3}, v{vT+1}, 4, s{s_m0x}')
    a(f'v_lshlrev_b32 v{vE4}, 4, v{vT+1}')
    a(f'v_add_u32 v{vE4}, {CSA}, v{vE4}')
    a(f'v_mul_u32_u24 v{vT+1}, 272, v{vT+1}')
    a(f'v_bfe_u32 v{vT+2}, v0, 4, 1')
    a(f'v_mul_u32_u24 v{vT+2}, 544, v{vT+2}')
    a(f'v_add3_u32 v{vE6}, v{vT+1}, v{vT+2}, s{s_m0x}')
    a(f'v_and_b32 v{vT+1}, 3, v0')
    a(f'v_bfe_u32 v{vT+2}, v0, 2, 1')
    a(f'v_lshl_add_u32 v{vT+1}, v{vT+2}, 3, v{vT+1}')
    a(f'v_bfe_u32 v{vT+2}, v0, 3, 1')
    a(f'v_lshl_add_u32 v{vT+1}, v{vT+2}, 2, v{vT+1}')
    a(f'v_lshl_add_u32 v{vE5}, v{vT+1}, 4, v{vE6}')
    a(f's_lshl_b32 s78, s{W}, 8')
    a(f'v_lshl_add_u32 v{vE7}, v0, 2, s78')
    a(f'v_add_u32 v{vE8}, {XR+SC+1024}, v{vE7}')
    a(f'v_min_u32 v{vE9}, {XR+SC+1024+124}, v{vE8}')
    a(f'v_lshlrev_b32 v{vL16}, 4, v0')
    vOnes = 236
    for i in range(4): a(f'v_mov_b32 v{vOnes+i}, v{vOne}')
    vZero = 233
    a(f'v_mov_b32 v{vZero}, 0')
    g.emits(dma_xw(2))
    if TP == 'd2': g.emits(touch())
    g.stamp('A.issued')
    def dma_wo(n):
        L = [f's_add_u32 m0, s85, {16384*n}' if n < 5 else f's_add_u32 m0, s{s_m0x}, {4096*(n-5)}', f's_add_u32 s76, s84, {n*16384}']
        for i in range(4):
            L.append(('vm', f'buffer_load_dwordx4 v{vWo+i}, {SR(SRD_WO)}, s76 offen offset:{i*1024} lds', 'wo'))
        return L
    def rdX(c):
        return [('lg', f'ds_read_b128 {vr(vX+(c&1)*16+s*4,4)}, v{vXr+s} offset:{(c&3)*4096}', 'x') for s in range(4)]
    def rdW(c, s):
        base = vW + (c&1)*48 + s*12
        off = (c&3)*12288
        L = []
        for tile in (1, 2, 0):
            ad = (vWp if tile == 0 else vWn) + s
            for h2 in range(2):
                L.append(('lg', f'ds_read_b64_tr_b16 {vr(base+tile*4+h2*2,2)}, v{ad} offset:{off + h2*768 + tile*64}', f'w{s}'))
        return L
    def dots(c):
        xb = vX + (c&1)*16; wb = vW + (c&1)*48
        for i in range(4):
            for tile in range(3):
                a(f'v_dot2c_f32_bf16 v{vCs+tile}, v{wb+tile*4+i}, v{vOne}')
        for i in range(16):
            a(f'v_dot2c_f32_bf16 v{vSum}, v{xb+i}, v{vOne}')
            a(f'v_dot2c_f32_bf16 v{vSq}, v{xb+i}, v{xb+i}')
    def mm(c, s, t):
        xb = vr(vX + (c&1)*16 + s*4, 4); wb = vr(vW + (c&1)*48 + s*12 + 4*t, 4)
        C = '0' if (c == 0 and s == 0) else vr(vAcc+16*t, 16)
        if t: return f'v_mfma_f32_32x32x16_bf16 {vr(vAcc+16*t,16)}, {xb}, {wb}, {C}'
        return f'v_mfma_f32_32x32x16_bf16 {vr(vAcc,16)}, {wb}, {xb}, {C}'
    DO = ' offset:64' if cfg.get('dbgst') else ''
    vK, vV, vQ = vAcc+16, vAcc+32, vAcc
    vM, vR, vCq, vEx = 120, 136, 152, 168
    vPK, vPV, vD2 = 184, 192, 200
    vMean, vRstd = vSum, vSq
    sE, sL = 80, 86
    WOS = {5: (0, 1), 6: (2, 5), 7: (3, 6)}
    for c in range(8):
        vm.wait(f'c{c}')
        a('s_barrier')
        g.stamp(f'A.c{c}')
        g.emits(rdX(c) + rdW(c, 0) + rdW(c, 1))
        if c == 0:
            a(f's_cmp_eq_u32 s83, 0')
            a('s_cbranch_scc0 LX_sig_ret')
            a(f'v_mov_b32 v{vT}, 1')
            a(f's_lshl_b32 s76, s{S_WG}, 2')
            a(f'buffer_store_dword v{vT}, off, {SR(SRD_DBG)}, s76{DO} sc1')
            a.label('LX_sig_ret')
            a(f's_mov_b32 s{sE}, {fbits(1e-6*LOG2E)}')
            a(f's_mov_b32 s{sL}, {fbits(LN2)}')
        if c: dots(c-1)
        dm = []
        if c + 3 < 8: dm += dma_xw(c+3)
        if TP == f's{c}': dm += touch()
        for n in WOS.get(c, ()): dm += dma_wo(n)
        if c == 6:
            dm.append(('vm', f'buffer_load_dword v{vDbg}, v{vDbgA}, {SR(SRD_DBG)}, 0 offen{DO} sc1', 'dbg'))
        if c < 7:
            lg.wait('x', 'w0')
            mf = []
            for s in range(4):
                for t in (1, 2, 0):
                    fx = [('wlg', f'w{s+1}')] if (t == 0 and s < 3) else []
                    mf.append((mm(c, s, t), fx))
            rd = rdW(c, 2) + rdW(c, 3)
            misc = []
            if c == 3:
                for s in range(4): misc += [f'v_add_u32 v{vWn+s}, 49152, v{vWn+s}', f'v_add_u32 v{vWp+s}, 49152, v{vWp+s}']
            if c == 6:
                misc += [('lg', f'ds_write_b32 v{vE2}, v{vZero} offset:{128*t}', 'cz') for t in range(3)]
            weave(g, mf, [[(0, 2, rd), (4, 12, misc)], [(2, 12, dm, 1)]], 24, f'A{c}')
            if c == 6: lg.wait('cz')
        else:
            lg.wait('x', 'w0')
            g.emits(rdW(c, 2) + rdW(c, 3))
            dots(7)
            lg.wait_all()
            mf = [(mm(7, s, t), []) for s in range(4) for t in (1, 2)] + [(mm(7, s, 0), []) for s in range(4)]
            S = [('lg', f'ds_add_f32 v{vE2}, v{vCs+t} offset:{128*t}', 'cs') for t in range(3)]
            S += [f'v_mov_b32 v{vT}, v{vSum}', f'v_mov_b32 v{vT+1}, v{vSq}',
                  f'v_permlane32_swap_b32 v{vSum}, v{vT}', f'v_permlane32_swap_b32 v{vSq}, v{vT+1}',
                  f'v_add_f32 v{vSum}, v{vSum}, v{vT}', f'v_add_f32 v{vSq}, v{vSq}, v{vT+1}',
                  f'v_mul_f32 v{vMean}, {fbits(1/512)}, v{vSum}', f'v_mul_f32 v{vSq}, {fbits(1/512)}, v{vSq}',
                  f'v_fma_f32 v{vSq}, -v{vMean}, v{vMean}, v{vSq}', f'v_max_f32 v{vSq}, 0, v{vSq}',
                  f'v_add_f32 v{vSq}, {fbits(1e-5)}, v{vSq}', f'v_mul_f32 v{vSq}, {fbits(LN2*LN2)}, v{vSq}',
                  f'v_rsq_f32 v{vRstd}, v{vSq}',
                  ('lg', f'ds_write2_b32 v{vE1}, v{vMean}, v{vRstd} offset1:32', 'cs'),
                  ('wlg', 'cs'), 's_barrier']
            S += [('lg', f'ds_read_b32 v{vCs+t}, v{vE2} offset:{128*t}', 'r1') for t in (1, 2)]
            S += [('lg', f'ds_read_b128 {vr(vM+4*i,4)}, v{vE3} offset:{SC+i*32}', 'r1') for i in range(4)]
            S += [('lg', f'ds_read_b128 {vr(vR+4*i,4)}, v{vE3} offset:{SC+128+i*32}', 'r2') for i in range(4)]
            S += [('lg', f'ds_read_b128 {vr(vCq+4*i,4)}, v{vE4} offset:{i*32}', 'r3') for i in range(4)]
            K1 = [('wlg', 'r1')] + [f'v_fma_f32 v{vK+r}, -v{vM+r}, v{vCs+1}, v{vK+r}' for r in range(16)]
            K1 += [('wlg', 'r2')] + [f'v_fma_f32 v{vK+r}, v{vK+r}, v{vR+r}, s{sE}' for r in range(16)]
            weave(g, mf, [[(0, 8, S), (9, 12, K1)], [(1, 11, dm, 1)]], 24, 'A7')
    g.stamp('A.loop')
    def phi_mid(b, extra=()):
        ex = list(extra)
        for r in range(16):
            a(f'v_exp_f32_e64 v{vEx+r}, v{b+r} clamp')
            a(f'v_max_f32 v{b+r}, s{sE}, v{b+r}')
            if ex and r % 4 == 1:
                while ex:
                    x = ex.pop(0); g.emit(x)
                    if cls(x) == 1: break
        g.emits(ex)
    def phi_end(b, d):
        for i in range(8):
            a(f'v_pk_fma_f32 {v2(b+2*i)}, {v2(b+2*i)}, s[{sL}:{sL+1}], {v2(vEx+2*i)} op_sel_hi:[1,0,1]')
        for i in range(8):
            a(f'v_cvt_pk_bf16_f32 v{d+i}, v{b+2*i}, v{b+2*i+1}')
    phi_mid(vK, dma_wo(7))
    for i in range(8):
        a(f'v_pk_fma_f32 {v2(vV+2*i)}, {v2(vM+2*i)}, {v2(vCs+2)}, {v2(vV+2*i)} op_sel_hi:[1,0,1] neg_lo:[1,0,0] neg_hi:[1,0,0]')
    for i in range(8):
        a(f'v_pk_mul_f32 {v2(vV+2*i)}, {v2(vV+2*i)}, {v2(vR+2*i)}')
    phi_end(vK, vPK)
    for i in range(8):
        a(f'v_cvt_pk_bf16_f32 v{vPV+i}, v{vV+2*i}, v{vV+2*i+1}')
    for i in range(4): a(f'v_permlane16_swap_b32 v{vPK+i}, v{vPK+4+i}')
    for i in range(4): a(f'v_permlane16_swap_b32 v{vPV+i}, v{vPV+4+i}')
    lg.wait('r3')
    Q1 = [f'v_fma_f32 v{vQ+r}, -v{vMean}, v{vCq+r}, v{vQ+r}' for r in range(16)]
    mf = [(f'v_mfma_f32_16x16x32_bf16 {vr(vD2+8,4)}, {vr(vPK,4)}, {vr(vOnes,4)}, 0', []),
          (f'v_mfma_f32_16x16x32_bf16 {vr(vD2+12,4)}, {vr(vPK+4,4)}, {vr(vOnes,4)}, 0', []),
          (f'v_mfma_f32_16x16x32_bf16 {vr(vD2,4)}, {vr(vPK,4)}, {vr(vPV,4)}, 0', []),
          (f'v_mfma_f32_16x16x32_bf16 {vr(vD2+4,4)}, {vr(vPK+4,4)}, {vr(vPV+4,4)}, 0', [])]
    weave(g, mf, [[(0, 4, Q1[:10])]], 8, 'kv')
    a('s_mov_b32 exec_lo, 0x00010001')
    a('s_mov_b32 exec_hi, 0x00010001')
    a(f'ds_write_b128 v{vE6}, {vr(vD2+8,4)} offset:{SC+1024+256}')
    a(f'ds_write_b128 v{vE6}, {vr(vD2+12,4)} offset:{SC+1024+1088+256}')
    a('s_mov_b64 exec, -1')
    a(f'ds_write_b128 v{vE5}, {vr(vD2,4)} offset:{SC+1024}')
    a(f'ds_write_b128 v{vE5}, {vr(vD2+4,4)} offset:{SC+1024+1088}')
    g.emits(Q1[10:])
    for i in range(8):
        a(f'v_pk_fma_f32 {v2(vQ+2*i)}, {v2(vQ+2*i)}, {v2(vMean)}, s[{sE}:{sE+1}] op_sel:[0,1,0] op_sel_hi:[1,1,0]')
    a('s_waitcnt lgkmcnt(0)')
    a('s_barrier')
    for i in range(3):
        for w in range(4):
            a(f'ds_read_b32 v{vD2+i*4+w}, v{vE8 if i < 2 else vE9} offset:{w*16384+i*1024}')
    g.emits(dma_wo(4))
    a(f's_mul_i32 s78, s{s_hp}, 2176')
    a(f's_add_u32 s78, s78, {WS_KV}')
    vm.wait('dbg')
    a.label('LA_chk')
    a(f'v_cmp_ne_u32 vcc, 1, v{vDbg}')
    a('s_cbranch_vccnz LX_dbg')
    def ool_dbg():
        a.label('LX_dbg')
        a(f'buffer_load_dword v{vDbg}, v{vDbgA}, {SR(SRD_DBG)}, 0 offen{DO} sc1')
        a('s_waitcnt vmcnt(0)')
        guard(g)
        a('s_branch LA_chk')
    OOL.append(ool_dbg)
    a('s_waitcnt lgkmcnt(0)')
    for i in range(3):
        a(f'v_pk_add_f32 {v2(vD2+4*i)}, {v2(vD2+4*i)}, {v2(vD2+4*i+2)}')
    for i in range(3):
        a(f'v_add_f32 v{vD2+4*i}, v{vD2+4*i}, v{vD2+4*i+1}')
    a(f's_cmp_eq_u32 s{W}, 0')
    vm.issue(f'buffer_atomic_add_f32 v{vD2}, v{vE7}, {SR(SRD_WS)}, s78 offen', 'st')
    vm.issue(f'buffer_atomic_add_f32 v{vD2+4}, v{vE7}, {SR(SRD_WS)}, s78 offen offset:1024', 'st')
    a('s_cbranch_scc0 LA_noat')
    a('s_mov_b32 exec_hi, 0')
    a(f'buffer_atomic_add_f32 v{vD2+8}, v{vE7}, {SR(SRD_WS)}, s78 offen offset:2048')
    a('s_mov_b32 exec_hi, -1')
    a.label('LA_noat')
    g.stamp('A.atom')
    phi_mid(vQ)
    a(f's_lshl_b32 s79, s{s_hp}, 11')
    a(f's_add_u32 s78, s{s_x}, s79')
    phi_end(vQ, vPK)
    vm.issue(f'buffer_store_dwordx4 {vr(vPK,4)}, v{vL16}, {SR(SRD_WS)}, s78 offen sc1', 'st')
    vm.issue(f'buffer_store_dwordx4 {vr(vPK+4,4)}, v{vL16}, {SR(SRD_WS)}, s78 offen offset:1024 sc1', 'st')
    g.stamp('A.pq')
    a(f's_lshl4_add_u32 s79, s{s_hp}, s{s_rb}')
    a(f's_lshl_b32 s79, s79, 7')
    a(f's_lshl2_add_u32 s79, s{W}, s79')
    a(f's_add_u32 s79, s79, {FA}')
    vA0 = 4
    vF1 = 39
    a(f'v_bfe_u32 v{vT}, v0, 2, 3')
    a(f'v_bfe_u32 v{vT+1}, v0, 2, 2')
    a(f'v_bfe_u32 v{vT+2}, v0, 4, 1')
    a(f'v_lshl_add_u32 v{vT+1}, v{vT+2}, 3, v{vT+1}')
    a(f'v_lshlrev_b32 v{vT+1}, 8, v{vT+1}')
    a(f'v_and_b32 v{vT+2}, 3, v0')
    a(f'v_lshl_add_u32 v{vT+1}, v{vT+2}, 3, v{vT+1}')
    a(f's_lshl_b32 s76, s{W}, 1')
    a(f'v_xor_b32 v{vT}, s76, v{vT}')
    a(f'v_lshl_add_u32 v{vT+1}, v{vT}, 5, v{vT+1}')
    a(f'v_lshrrev_b32 v{vT+2}, 5, v0')
    a(f'v_lshl_add_u32 v{vA0}, v{vT+2}, 14, v{vT+1}')
    a(f'v_lshl_add_u32 v{vA0+1}, v{vT+2}, 12, v{vT+1}')
    a(f'v_add_u32 v{vA0+1}, {98304+4096}, v{vA0+1}')
    for wp in range(4):
        a(f'v_mul_u32_u24 v{vT+3}, {32768+12288*wp}, v{vT+2}')
        a(f'v_add_u32 v{vA0+2+wp}, v{vT+3}, v{vT+1}')
        a(f'v_add_u32 v{vA0+2+wp}, {65536+4096*wp}, v{vA0+2+wp}')
    for i in range(6): a(f'v_xor_b32 v{vA0+6+i}, 32, v{vA0+i}')
    a(f'v_mov_b32 v{vF1}, 1')
    vm.wait('wo')
    a('s_barrier')
    g.stamp('E.wo')
    def aWO(t, ks): return 128 + (t*16 + ks)*4
    FK = int(cfg.get('fk', 5))
    for ks in range(16):
        wp, pr = ks >> 2, ks & 3
        for t in range(2):
            if pr < 2: ad, off = vA0, 4096*(8*pr + wp)
            elif pr == 2: ad, off = vA0+2+wp, 0
            else: ad, off = vA0+1, 16384*wp
            for h2 in range(2):
                a(f'ds_read_b64_tr_b16 {ar(aWO(t,ks)+2*h2,2)}, v{ad+6*t} offset:{off+h2*1024}')
        if ks == FK:
            vm.wait('st')
            vm.issue(f'buffer_store_dword v{vF1}, off, {SR(SRD_WS)}, s79 sc1', 'flag')
            g.stamp('E.flag')
    a(f's_mov_b32 s86, s{s_rb}')
    a(f's_and_b32 s70, s{S_J}, 7')
    a(f's_lshl3_add_u32 s70, s{S_XC}, s70')
    a(f's_lshr_b32 s71, s{S_J}, 3')
    a(f's_and_b32 s76, s{S_XC}, 1')
    a(f's_mul_i32 s76, s76, 7')
    a(f's_lshr_b32 s87, s{S_J}, 2')
    a(f's_add_u32 s87, s87, s76')
    vXres = 20
    a(f'v_and_b32 v{vT}, 15, v0')
    a(f'v_lshrrev_b32 v{vT+1}, 4, v0')
    a(f'v_lshlrev_b32 v{vT+2}, 3, v{vT+1}')
    a(f'v_lshl_add_u32 v{vT+2}, v{vT}, 10, v{vT+2}')
    a(f's_lshl_b32 s72, s70, 15')
    a(f's_lshl_b32 s73, s71, 8')
    a(f's_add_u32 s72, s72, s73')
    a(f's_lshl_b32 s73, s{W}, 6')
    a(f's_add_u32 s72, s72, s73')
    a(f's_add_u32 s73, s72, 16384')
    for m in range(2):
        for t in range(2):
            vm.issue(f'buffer_load_dwordx2 {vr(vXres+m*4+t*2,2)}, v{vT+2}, {SR(SRD_X)}, s{72+m} offen offset:{32*t}', 'xres')
    vGd = 16
    a(f'v_lshlrev_b32 v{vT+2}, 1, v{vT+1}')
    a(f'v_xor_b32 v{vT+2}, v{vT}, v{vT+2}')
    a(f'v_lshlrev_b32 v{vT+2}, 4, v{vT+2}')
    a(f'v_mul_u32_u24 v{vT+3}, 3584, v{vT+1}')
    a(f'v_add_u32 v{vGd}, v{vT+3}, v{vT+2}')
    a(f'v_xor_b32 v{vT+2}, 128, v{vT+2}')
    a(f'v_add_u32 v{vGd+1}, v{vT+3}, v{vT+2}')
    a(f'v_add_u32 v{vGd+1}, {4*3584-1024}, v{vGd+1}')
    a(f'v_add_u32 v{vGd+2}, {2*(4*3584-1024)}, v{vGd}')
    a(f'v_add_u32 v{vGd+3}, {2*(4*3584-1024)}, v{vGd+1}')
    a(f's_and_b32 s76, s{W}, 1')
    a(f's_mul_i32 s88, s76, {64*3584}')
    a(f's_lshl_b32 s76, s87, 8')
    a(f's_add_u32 s88, s88, s76')
    a(f's_lshl_b32 s89, s{W}, 14')
    def dma_gu(sg):
        L = []
        for blk in range(4):
            L += [f's_add_u32 m0, s89, {(sg&1)*65536+blk*4096}', f's_add_u32 s83, s88, {(sg*128+blk*16)*3584}']
            for i in range(4):
                L.append(('vm', f'buffer_load_dwordx4 v{vGd+i}, {SR(SRD_WGU)}, s83 offen offset:{i*1024} lds', f'S{sg}'))
        return L
    vG0 = 4
    a('s_waitcnt lgkmcnt(0)')
    a('s_barrier')
    g.emits(dma_gu(0))
    g.stamp('E.gu0')
    a(f'v_bfe_u32 v{vT}, v0, 2, 3')
    a(f's_lshl_b32 s76, s{W}, 1')
    a(f'v_xor_b32 v{vT}, s76, v{vT}')
    a(f'v_lshrrev_b32 v{vT+1}, 2, v0')
    a(f'v_lshlrev_b32 v{vT+1}, 8, v{vT+1}')
    a(f'v_and_b32 v{vT+2}, 3, v0')
    a(f'v_lshl_add_u32 v{vT+1}, v{vT+2}, 3, v{vT+1}')
    a(f'v_lshl_add_u32 v{vG0}, v{vT}, 5, v{vT+1}')
    a(f'v_xor_b32 v{vG0+1}, 32, v{vG0}')
    a(f'v_add_u32 v{vG0+2}, 65536, v{vG0}')
    a(f'v_add_u32 v{vG0+3}, 65536, v{vG0+1}')
    def aGU(rt, ks): return (ks >> 3)*128 + (rt*8 + (ks & 7))*4
    def rd_gu(sg):
        L = []
        for rt in range(4):
            for k4 in range(4):
                for h2 in range(2):
                    L.append(('lg', f'ds_read_b64_tr_b16 {ar(aGU(rt, sg*4+k4)+2*h2,2)}, v{vG0+2*(sg&1)+(rt>>1)} offset:{(rt&1)*32768+k4*8192+h2*4096}', f'g{sg}'))
        return L
    OX = 131072
    vKV = 40; vPQ = 104; vD = 136; vBa = 200; vH = 216
    a(f'v_and_b32 v{vT}, 31, v0')
    a(f'v_min_u32 v{vT}, 16, v{vT}')
    a(f'v_lshrrev_b32 v{vT+1}, 5, v0')
    a(f'v_mul_u32_u24 v{vT+1}, 272, v{vT+1}')
    a(f'v_lshl_add_u32 v{vT}, v{vT}, 4, v{vT+1}')
    a(f's_mul_i32 s72, s{W}, {8*1088}')
    a(f's_add_u32 s72, s72, {WS_KV}')
    a(f's_add_u32 s73, s72, {3*1088}')
    a(f's_add_u32 s76, s72, {6*1088}')
    a(f's_lshl_b32 s74, s70, 15')
    a(f's_lshl_b32 s78, s{W}, 13')
    a(f's_add_u32 s74, s74, s78')
    a(f's_add_u32 s75, s74, 4096')
    a(f's_add_u32 s79, s78, {FA}')
    a(f's_add_u32 s78, s78, {OX}')
    a(f'v_lshlrev_b32 v{vT+1}, 7, v0')
    a(f'v_mov_b32 v{vT+5}, {fbits(LOG2E)}')
    a(f'v_add_u32 v{vT+2}, s78, v{vL16}')
    a(f'v_and_b32 v{vT+3}, 15, v0')
    a(f'v_lshrrev_b32 v{vT+4}, 4, v0')
    vSa = 28
    a(f'v_and_b32 v{vSa}, 1, v{vT+4}')
    a(f'v_lshl_add_u32 v{vSa}, v{vT+3}, 1, v{vSa}')
    a(f'v_and_b32 v{vT+6}, 32, v0')
    a(f'v_add_lshl_u32 v{vSa}, v{vSa}, v{vT+6}, 2')
    a(f'v_lshlrev_b32 v{vT+4}, 9, v{vT+4}')
    a(f'v_lshl_add_u32 v{vT+3}, v{vT+3}, 4, v{vT+4}')
    a(f'v_add_u32 v{vT+3}, {OX}, v{vT+3}')
    poll(g, 'LB_poll', vT+1, vD, 4, 79, '1')
    g.stamp('B.sync')
    for h in range(8):
        so = (72, 73, 76)[h//3]
        for q in range(2):
            vm.issue(f'buffer_load_dwordx4 {vr(vKV+h*8+q*4,4)}, v{vT}, {SR(SRD_WS)}, s{so} offen offset:{(h%3)*1088+q*544} sc1', f'kv{h}')
        vm.issue(f'buffer_load_dwordx4 {vr(vPQ+h*4,4)}, v{vL16}, {SR(SRD_WS)}, s{74 if h<4 else 75} offen offset:{(h&3)*1024} sc1', f'kv{h}')
    a('s_barrier')
    g.emits(rd_gu(0))
    for i in range(8):
        a(f'v_lshlrev_b32 v{vBa+2*i}, 16, v{vXres+i}')
        a(f'v_and_b32 v{vBa+2*i+1}, 0xffff0000, v{vXres+i}')
    a(f's_lshl2_add_u32 s72, s71, s{W}')
    a(f's_lshl_b32 s73, s70, 15')
    a(f's_lshl_b32 s74, s72, 10')
    a(f's_add_u32 s73, s73, s74')
    a(f's_add_u32 s73, s73, {WS_H}')
    a(f's_add_u32 s75, s73, 16384')
    a(f's_lshl4_add_u32 s74, s70, s72')
    a(f's_lshl_b32 s74, s74, 8')
    a(f's_add_u32 s74, s74, {WS_STATS}')
    a(f's_lshl2_add_u32 s79, s70, s71')
    a(f's_lshl_b32 s79, s79, 7')
    a(f's_lshl2_add_u32 s79, s{W}, s79')
    a(f's_add_u32 s79, s79, {FB}')
    g.stamp('B.rd')
    def Dreg(h): return vD + (h % 4)*16
    def cvtkv(h):
        vm.wait(f'kv{h}')
        b = vKV + h*8
        for i in range(4): a(f'v_cvt_pk_bf16_f32 v{b+i}, v{b+2*i}, v{b+2*i+1}')
    def mmo(h): a(f'v_mfma_f32_32x32x16_bf16 {vr(Dreg(h),16)}, {vr(vKV+h*8,4)}, {vr(vPQ+h*4,4)}, 0')
    def den(h):
        d = Dreg(h)
        a(f'v_fma_f32 v{d+8}, v{d+8}, v{vT+5}, s{sE}')
        a(f'v_rcp_f32 v{d+8}, v{d+8}')
    S1 = dma_gu(1)
    def take(L, n):
        while L and n:
            x = L.pop(0); g.emit(x)
            if cls(x) == 1: n -= 1
    cvtkv(0); cvtkv(1); mmo(0); cvtkv(2); mmo(1); den(0)
    for h in range(8):
        d = Dreg(h)
        for i in range(4): a(f'v_pk_mul_f32 {v2(d+2*i)}, {v2(d+2*i)}, {v2(d+8)} op_sel_hi:[1,0]')
        if h + 2 < 8: mmo(h+2)
        take(S1, 2)
        for i in range(4): a(f'v_cvt_pk_bf16_f32 v{d+12+i}, v{d+2*i}, v{d+2*i+1}')
        if h + 1 < 8: den(h+1)
        lg.issue(f'ds_write_b128 v{vT+2}, {vr(d+12,4)} offset:{h*1024}', 'ow')
        if h + 3 < 8: cvtkv(h+3)
    if cfg.get('tdi'):
        a(f's_cmp_ge_u32 s{S_J}, 28')
        a('s_cbranch_scc1 LX_td')
        a.label('LX_td_ret')
        def ool_td():
            a.label('LX_td')
            a(f's_sub_u32 s76, s{S_WG}, 224')
            a(f's_lshl2_add_u32 s76, s76, s{W}')
            a(f's_mul_i32 s76, s76, {112*128}')
            a(f'v_min_u32 v{vTa}, 55, v0')
            a(f'v_lshlrev_b32 v{vTa}, 7, v{vTa}')
            a(f's_add_u32 s83, s76, {56*128}')
            a(f'buffer_load_dword v{vTd+5}, v{vTa}, {SR(SRD_WD)}, s76 offen')
            a(f'buffer_load_dword v{vTd+5}, v{vTa}, {SR(SRD_WD)}, s83 offen')
            a('s_branch LX_td_ret')
        OOL.append(ool_td)
    lg.wait_all()
    a('s_barrier')
    g.stamp('B.o')
    vO = 40
    def rdo(i): return ('lg', f'ds_read_b128 {vr(vO+i*4,4)}, v{vT+3} offset:{(i&15)*2048+(i>>4)*256}', f'o{i}')
    for i in range(12): g.emit(rdo(i))
    vS = 20
    def epiB(ch):
        m, t = ch >> 1, ch & 1
        b = vBa + 4*ch
        L = [f'v_cvt_pk_bf16_f32 v{vH+2*ch+i}, v{b+2*i}, v{b+2*i+1}' for i in range(2)]
        if t: L.append(('vm', f'buffer_store_dwordx4 {vr(vH+4*m,4)}, v{vL16}, {SR(SRD_WS)}, s{73+2*m} offen sc1', 'st'))
        for r in range(4):
            if t == 0 and r == 0:
                L += [f'v_add_f32 v{vS+2*m}, v{b}, v{b+1}', f'v_mul_f32 v{vS+2*m+1}, v{b}, v{b}']
            else:
                if not (t == 0 and r == 1): L.append(f'v_add_f32 v{vS+2*m}, v{vS+2*m}, v{b+r}')
                L.append(f'v_fmac_f32 v{vS+2*m+1}, v{b+r}, v{b+r}')
        return L
    MB = 22
    lg.wait('o1')
    mf = []
    for q in range(64):
        m, t, ks = q >> 5, (q >> 4) & 1, q & 15
        acc = vr(vBa + (2*m+t)*4, 4)
        fx = []
        q1 = q + 1
        if q1 < 64 and (q1 >> 4) & 1 == 0 and q1 % 2 == 0: fx.append(('wlg', f'o{(q1>>5)*16+(q1&15)+1}'))
        if q == MB: fx += [('wvm', 'S1'), 's_barrier']
        if 12+q < 32: fx.append(rdo(12+q))
        mf.append((f'v_mfma_f32_16x16x32_bf16 {acc}, {ar(aWO(t,ks),4)}, {vr(vO+(m*16+ks)*4,4)}, {acc}', fx))
    weave(g, mf, [[(19, 34, epiB(0)), (35, 50, epiB(1)), (51, 64, epiB(2))], [(1, 60, dma_gu(2), 3)], [(MB, 64, rd_gu(1))]], 8, 'B')
    g.emits(epiB(3))
    a(f'v_permlane32_swap_b32 v{vS}, v{vS+2}')
    a(f'v_permlane32_swap_b32 v{vS+1}, v{vS+3}')
    a(f'v_add_f32 v{vS}, v{vS}, v{vS+2}')
    a(f'v_add_f32 v{vS+1}, v{vS+1}, v{vS+3}')
    a(f'v_permlane16_swap_b32 v{vS}, v{vS+1}')
    a(f'v_add_f32 v{vS}, v{vS}, v{vS+1}')
    vm.issue(f'buffer_store_dword v{vS}, v{vSa}, {SR(SRD_WS)}, s74 offen sc1', 'st')
    g.stamp('B.st')
    vHf = 40; vCa = 104; vCsum = 120; vK4 = 136; vGt = 144; vOut = 156
    vDr = 4; vDd = 16; vHa = 20; vKa = 22; vPa = 23; vPl = 24; vOa = 25; vWa = 26; vRa = (27, 28, 2)
    vSt = 160
    CONST = 147456
    vm.wait('S2')
    lg.wait_all()
    a('s_barrier')
    g.stamp('P.s2')
    def csum(sgs):
        mf = []
        for rt in range(4):
            for sg in sgs:
                for k4 in range(4):
                    ks = sg*4 + k4
                    acc = vr(vCsum+rt*4, 4)
                    mf.append((f'v_mfma_f32_16x16x32_bf16 {acc}, {ar(aGU(rt,ks),4)}, {vr(vOnes,4)}, {"0" if ks==0 else acc}', []))
        return mf
    SU = [f's_and_b32 s70, s{S_J}, 1', f's_lshl1_add_u32 s70, s{S_XC}, s70', f's_lshr_b32 s71, s{S_J}, 2', f's_bfe_u32 s72, s{S_J}, 0x10001',
          f's_lshl_b32 s73, s86, 17', f's_add_u32 s73, s73, s85', f's_add_u32 s73, s73, {WS_H}',
          f's_lshl_b32 s74, s86, 14', f's_add_u32 s74, s74, s85', f's_add_u32 s74, s74, {WS_STATS}',
          f's_mul_i32 s75, s86, {8*56}', f's_lshl2_add_u32 s76, s87, s{W}', f's_add_u32 s75, s75, s76', f's_lshl_b32 s75, s75, 10', f's_add_u32 s75, s75, {WS_ACT}',
          f's_lshl4_add_u32 s77, s86, s87', f's_lshl_b32 s77, s77, 7', f's_lshl2_add_u32 s77, s{W}, s77', f's_add_u32 s77, s77, {FC}',
          f's_mov_b64 s[{SRD_ACT}:{SRD_ACT+1}], s[{SRD_WS}:{SRD_WS+1}]', f's_cmp_ge_u32 s{S_J}, 28\ns_cselect_b32 s{SRD_ACT+2}, 0, {WS_SIZE}',
          f's_lshl_b32 s84, s86, 11', f's_add_u32 s84, s84, {FB}']
    FL = [('wvm', 'st'), ('vm', f'buffer_store_dword v{vF1}, off, {SR(SRD_WS)}, s79 sc1', 'flag')] + g.st('P.flag')
    S3 = dma_gu(3)
    FP = int(cfg.get('fp', 12))
    weave(g, csum((0, 1)), [[(0, 32, S3[:FP] + FL + S3[FP:], 2)], [(0, 32, rd_gu(2))], [(0, 32, SU)]], 8, 'P1')
    SU2 = [f's_lshl_b32 s79, s70, 11', f's_add_u32 s79, s79, {FC}', f's_add_u32 s80, s72, 5', f's_add_u32 s81, s72, 7',
           f's_lshl3_add_u32 s87, s70, s72', f's_mul_i32 s82, s87, 56', f's_mul_i32 s76, s{W}, 14', f's_add_u32 s82, s82, s76',
           f's_lshl_b32 s82, s82, 10', f's_add_u32 s82, s82, {WS_ACT}',
           f's_lshl_b32 s78, s87, 14', f's_lshr_b32 s86, s{W}, 1', f's_lshl1_add_u32 s86, s71, s86', f's_lshl_b32 s86, s86, 10',
           f's_add_u32 s86, s86, s78', f's_and_b32 s87, s{W}, 1', f's_lshl3_add_u32 s86, s87, s86', f's_add_u32 s86, s86, {WS_H}',
           f's_lshl_b32 s87, s71, 7', f's_add_u32 s78, s78, s87', f's_mul_i32 s88, s{W}, {448*1024}', f's_add_u32 s88, s88, s87',
           f's_lshl_b32 s87, s{W}, 5', f's_add_u32 s78, s78, s87']
    VU = [f'v_lshrrev_b32 v{vT}, 3, v0', f'v_and_b32 v{vT+1}, 7, v0', f'v_and_b32 v{vT+2}, 6, v{vT}', f'v_xor_b32 v{vT+1}, v{vT+1}, v{vT+2}',
          f'v_lshlrev_b32 v{vT+1}, 4, v{vT+1}', f'v_lshl_add_u32 v{vDd}, v{vT}, 10, v{vT+1}']
    VU += [f'v_add_u32 v{vDd+i}, {i*(8192-1024)}, v{vDd}' for i in range(1, 4)]
    VU += [f'v_mov_b32 v{vHa}, v{vL16}', f'v_add_u32 v{vHa+1}, 65536, v{vL16}', f'v_and_b32 v{vT}, 15, v0',
           f'v_lshlrev_b32 v{vKa}, 4, v{vT}', f'v_add_u32 v{vKa}, {CONST}, v{vKa}',
           f'v_lshrrev_b32 v{vT+1}, 4, v0', f'v_lshlrev_b32 v{vT+1}, 3, v{vT+1}', f'v_lshl_add_u32 v{vOa}, v{vT}, 10, v{vT+1}',
           f'v_lshlrev_b32 v{vT+4}, 7, v{vT}',
           f'v_add_u32 v{vWa}, s85, v{vL16}']
    VU += [f'v_xor_b32 v{vRa[tau-1]}, {4096*tau}, v{vWa}' for tau in range(1, 4)]
    lg.wait_all()
    a('s_barrier')
    weave(g, csum((2,)), [[(0, 16, SU2)], [(0, 16, VU)]], 8, 'P2')
    a(f'v_min_u32 v{vT}, 13, v0')
    a(f'v_add_u32 v{vT}, s76, v{vT}')
    a(f'v_and_b32 v{vT+1}, 3, v{vT}')
    a(f'v_lshrrev_b32 v{vT}, 2, v{vT}')
    a(f'v_lshlrev_b32 v{vT}, 7, v{vT}')
    a(f'v_lshl_add_u32 v{vPa}, v{vT+1}, 2, v{vT}')
    def slot(sg): return 131072 if sg == 0 else 16384*(sg-1)
    def dma_wd(p, sg):
        L = [f's_add_u32 m0, s85, {slot(sg)}', f's_add_u32 s83, s88, {p*32768}']
        for i in range(4):
            L.append(('vm', f'buffer_load_dwordx4 v{vDd+i}, {SR(SRD_WD)}, s83 offen offset:{i*1024} lds', f'wd{p}'))
        return L
    VD = [f'v_lshrrev_b32 v{vT}, 2, v0', f'v_bfe_u32 v{vT+1}, v0, 3, 2', f'v_xor_b32 v{vT+1}, s{W}, v{vT+1}', f'v_lshlrev_b32 v{vT}, 7, v{vT}',
          f'v_lshl_add_u32 v{vT}, v{vT+1}, 5, v{vT}', f'v_and_b32 v{vT+1}, 3, v0', f'v_lshl_add_u32 v{vT}, v{vT+1}, 3, v{vT}', f'v_add_u32 v{vT}, s85, v{vT}']
    for tau in range(4):
        VD += [f'v_xor_b32 v{vDr+3*tau}, {32*tau}, v{vT}', f'v_add_u32 v{vDr+3*tau+1}, 65536, v{vDr+3*tau}', f'v_add_u32 v{vDr+3*tau+2}, 131072, v{vDr+3*tau}']
    AW = {6: 64, 7: 80, 8: 192, 9: 208, 10: 96, 11: 112, 12: 224, 13: 240}
    def wdreg(p, tau):
        if p < 6: return 'v', 160 + p*16 + tau*4
        return 'a', AW[p] + tau*4
    def rd_wd(p, sg):
        L = []
        ad = slot(sg)
        for tau in (1, 2, 3, 0):
            f, r = wdreg(p, tau)
            for h2 in range(2):
                L.append(('lg', f'ds_read_b64_tr_b16 {vr(r+2*h2,2,f)}, v{vDr+3*tau+(ad>>16)} offset:{(ad&65535)+h2*2048}', f'rw{p}'))
        return L
    FINAL = {6: 4, 7: 2, 8: 5, 9: 0, 10: 6, 11: 3, 12: 7, 13: 1}
    def actreg(m, i):
        if m == 2: return vr(40 + 4*i, 4)
        b = 32*(m & 1 if m < 2 else 0)
        return ar(b + 4*i if i < 8 else 128 + b + 4*(i-8), 4)
    def ld_act(m):
        L = []
        for i in range(14):
            if i % 4 == 0: L.append(f's_add_u32 s70, s82, {(2*m*56+i)*1024}')
            L.append(('vm', f'buffer_load_dwordx4 {actreg(m,i)}, v{vL16}, {SR(SRD_WS)}, s70 offen offset:{(i&3)*1024} sc1', f'a{m}_{i}'))
        return L
    a(f's_cmp_ge_u32 s{S_J}, 28')
    a('s_cbranch_scc1 LC_idle')
    def ool_idle():
        a.label('LC_idle')
        vm.q = []; lg.q = []
        a('s_waitcnt vmcnt(0)')
        a('s_barrier')
        g.emits(VD)
        for p in range(6): g.emits(dma_wd(p, p))
        vm.wait_all()
        for p in range(6): g.emits(rd_wd(p, p))
        lg.wait_all()
        for p in range(6, 14): g.emits(dma_wd(p, FINAL[p]))
        poll(g, 'LI_poll', vPa, vPl, 1, 79, '4')
        g.emits(ld_act(0))
        for p in range(6, 10): g.emits(rd_wd(p, FINAL[p]))
        g.emits(ld_act(1))
        vm.wait_all(); lg.wait_all()
        a('s_branch LD_start')
    OOL.append(ool_idle)
    g.stamp('P.cs')
    poll(g, 'LC_poll', vT+4, vGt, 4, 84, '1')
    g.stamp('C.sync')
    def dma_h(s):
        L = [f's_add_u32 m0, s85, {16384*s}', f's_add_u32 s83, s73, {16384*s}']
        for i in range(4):
            L.append(('vm', f'buffer_load_dwordx4 v{vL16}, {SR(SRD_WS)}, s83 offen offset:{i*1024} sc1 lds', f'h{s}'))
        return L
    g.emits(dma_h(0))
    for i in range(4):
        vm.issue(f'buffer_load_dwordx4 {vr(vSt+4*i,4)}, v{vL16}, {SR(SRD_WS)}, s74 offen offset:{i*1024} sc1', 'stats')
    g.emits(dma_h(1))
    a('s_barrier')
    g.emits(rd_gu(3))
    g.emits(dma_h(2))
    lg.wait_all()
    weave(g, csum((3,)), [[(0, 16, dma_h(3), 3)], [(0, 16, VD)]], 8, 'P3')
    def rdh(s, ks): return ('lg', f'ds_read_b128 {vr(vHf+ks*4,4)}, v{vHa+(s>>2)} offset:{(s&3)*16384+ks*1024}', f'f{ks}')
    vm.wait('h0')
    a('s_barrier')
    g.stamp('C.h0')
    for ks in range(16): g.emit(rdh(0, ks))
    c0 = -2*0.7978845608028654*LOG2E
    def consts():
        L = [('wvm', 'stats')]
        for st in (8, 4):
            for i in range(st): L.append(f'v_add_f32 v{vSt+i}, v{vSt+i}, v{vSt+i+st}')
        x, y = vSt, vSt+1
        o = vSt+4
        L += [f'v_lshrrev_b32 v{vSt+8}, 5, v0', f'v_and_b32 v{vSt+9}, 15, v0',
              f'v_permlane32_swap_b32 v{vSt}, v{vSt+2}', f'v_permlane32_swap_b32 v{vSt+1}, v{vSt+3}',
              f'v_add_f32 v{x}, v{x}, v{vSt+2}', f'v_add_f32 v{y}, v{y}, v{vSt+3}',
              f'v_mov_b32 v{vSt+2}, v{x}', f'v_mov_b32 v{vSt+3}, v{y}',
              f'v_lshl_add_u32 v{vSt+8}, v{vSt+9}, 1, v{vSt+8}', f's_lshl_b32 s76, s{W}, 9', f's_add_u32 s76, s76, {CONST}',
              f'v_permlane16_swap_b32 v{x}, v{vSt+2}', f'v_permlane16_swap_b32 v{y}, v{vSt+3}',
              f'v_add_f32 v{x}, v{x}, v{vSt+2}', f'v_add_f32 v{y}, v{y}, v{vSt+3}',
              f'v_mul_f32 v{o}, {fbits(-1/512)}, v{x}',
              f'v_mul_f32 v{y}, {fbits(1/512)}, v{y}',
              f'v_fma_f32 v{y}, -v{o}, v{o}, v{y}',
              f'v_max_f32 v{y}, 0, v{y}',
              f'v_add_f32 v{o+3}, {fbits(1e-5)}, v{y}',
              f'v_rsq_f32 v{x}, v{o+3}',
              f'v_lshl_add_u32 v{vSt+8}, v{vSt+8}, 4, s76',
              f'v_mul_f32 v{y}, v{x}, v{x}',
              f'v_mul_f32 v{o+1}, {fbits(c0)}, v{x}',
              f'v_mul_f32 v{y}, {fbits(0.044715)}, v{y}',
              f'v_mul_f32 v{o+2}, v{o+1}, v{y}',
              ('lg', f'ds_write_b128 v{vSt+8}, {vr(o,4)}', 'cw')]
        return L
    def gelu(pair, s):
        K = vK4 + 4*(s & 1)
        nm, k0, k1, vv = K, K+1, K+2, K+3
        ag = vCa + pair*8; au = ag + 4; cg = vCsum + pair*8; cu = cg + 4
        t, u, e = vGt, vGt+4, vGt+8
        L = []
        if pair == 0: L.append(('wlg', f'k{s}'))
        R = range(4)
        L += [f'v_fma_f32 v{t+i}, v{nm}, v{cg+i}, v{ag+i}' for i in R]
        L += [f'v_fma_f32 v{u+i}, v{nm}, v{cu+i}, v{au+i}' for i in R]
        n1 = len(L)
        L += [f'v_mul_f32 v{e+i}, v{t+i}, v{t+i}' for i in R]
        L += [f'v_fma_f32 v{e+i}, v{e+i}, v{k1}, v{k0}' for i in R]
        L += [f'v_mul_f32 v{e+i}, v{e+i}, v{t+i}' for i in R]
        L += [f'v_exp_f32 v{e+i}, v{e+i}' for i in R]
        L += [f'v_mul_f32 v{t+i}, v{t+i}, v{u+i}' for i in R]
        L += [f'v_fma_f32 v{e+i}, v{e+i}, v{vv}, v{vv}' for i in R]
        L += [f'v_rcp_f32 v{e+i}, v{e+i}' for i in R]
        L += [f'v_mul_f32 v{t+i}, v{t+i}, v{e+i}' for i in R]
        L += [f'v_cvt_pk_bf16_f32 v{vOut+2*pair+i}, v{t+2*i}, v{t+2*i+1}' for i in range(2)]
        if pair == 1:
            L.insert(n1, f's_add_u32 s76, s75, {s*56*1024}')
            L.append(('vm', f'buffer_store_dwordx4 {vr(vOut,4)}, v{vL16}, {SR(SRD_ACT)}, s76 offen sc1', f'act{s}'))
        return L
    def flagC(n): return [f'v_mov_b32 v{vF1}, {n}', ('wvm', f'act{n-1}'), ('vm', f'buffer_store_dword v{vF1}, off, {SR(SRD_ACT)}, s77 sc1', 'flag')]
    def pload(tag): return [('vm', f'buffer_load_dword v{vPl}, v{vPa}, {SR(SRD_WS)}, s79 offen sc1', tag)]
    def pcheck(tag, need):
        def f():
            a.label(f'LP_{tag}')
            a(f'v_cmp_gt_u32 vcc, {need}, v{vPl}')
            a(f's_cbranch_vccnz LX_{tag}')
        def o():
            a.label(f'LX_{tag}')
            a(f'buffer_load_dword v{vPl}, v{vPa}, {SR(SRD_WS)}, s79 offen sc1')
            a('s_waitcnt vmcnt(0)')
            guard(g)
            a(f's_branch LP_{tag}')
        OOL.append(o)
        return [('wvm', tag), f]
    RECY = {1: (0, 0, 3), 2: (1, 1, 5), 3: (2, 2, 7), 4: (3, 0, 9), 5: (4, 3, 11), 6: (5, 1, 13)}
    FRESH = {0: (1, 1), 1: (2, 2), 2: (4, 3), 3: (6, 4), 4: (8, 5), 5: (10, 6), 6: (12, 7)}
    lg.wait('f3')
    mf = []; GS = []; DS = []; RS = []; XS = []
    for s in range(8):
        bq = 27 if s == 0 else 13
        B = 64*s
        for q in range(64):
            rt, ks = q >> 4, q & 15
            acc = vr(vCa+rt*4, 4)
            fx = []
            if q in (3, 7, 11): fx.append(('wlg', f'f{q+4}'))
            if q == 63 and s < 7: fx.append(('wlg', 'f3'))
            if q == bq-1:
                if s == 0: fx.append(('wlg', 'cw'))
                if s < 7: fx.append(('wvm', f'h{s+1}'))
            if q == bq:
                fx.append('s_barrier')
                fx.append(('lg', f'ds_read_b128 {vr(vK4+4*(s&1),4)}, v{vKa} offset:{s*256}', f'k{s}'))
            if q == 63: fx += g.st(f'C.it{s}')
            if rt == 3 and s < 7: fx.append(rdh(s+1, ks))
            mf.append((f'v_mfma_f32_16x16x32_bf16 {acc}, {ar(aGU(rt,ks),4)}, {vr(vHf+ks*4,4)}, {"0" if ks==0 else acc}', fx))
        if s == 0: GS.append((0, bq-1, consts()))
        g0 = gelu(0, s); g1 = gelu(1, s)
        GS.append((B+34, B+63, g0[:9])); GS.append((B+34, B+64+8 if s < 7 else B+64, g0[9:]))
        GS.append((B+66, B+64+31, g1[:8])); GS.append((B+66, B+64+40, g1[8:]))
        if s == 0: DS.append((0, bq, dma_h(4) + dma_wd(0, 0), 3))
        elif s < 4: DS.append((B, B+30, dma_h(s+4), 4))
        if s in FRESH: DS.append((B+bq, B+50, dma_wd(*FRESH[s]), 4))
        if s in RECY:
            p, sg, pn = RECY[s]
            RS.append((B+16, B+44, [('wvm', f'wd{p}')] + rd_wd(p, sg)))
            DS.append((B+46, B+64, [('wlg', f'rw{p}')] + dma_wd(pn, sg), 4))
        if s >= 5: XS.append((B+10, B+16, flagC(s-1)))
        if s == 6: XS.append((B+40, B+46, pload('p1')))
    B = 448
    XS.append((B+14, B+17, pcheck('p1', '4')))
    XS.append((B+16, B+44, ld_act(0), 1))
    XS.append((B+32, B+64, ld_act(1), 1))
    RS.append((B+48, B+64, [('wvm', 'wd9')] + rd_wd(6, FINAL[6]) + rd_wd(7, FINAL[7]) + rd_wd(8, FINAL[8]) + rd_wd(9, FINAL[9])))
    DA = ((104, 108, 120, 124), (112, 116, 128, 132))
    vRd = 144; vHr = 96; vU4 = 136
    def red1(m):
        return [('lg', f'ds_write_b128 v{vWa}, {vr(DA[m&1][tau],4)} offset:{16384*m+1024*tau}', 'dw') for tau in range(1, 4)]
    def red2(m):
        b = DA[m&1][0]
        L = [('wlg', 'dw'), 's_barrier']
        L += [('lg', f'ds_read_b128 {vr(vRd+4*(tau-1),4)}, v{vRa[tau-1]} offset:{16384*m+1024*tau}', 'dr') for tau in range(1, 4)]
        L += [('wvm', 'hres'), f's_add_u32 s84, s78, {m*32768}']
        for i in range(2):
            L += [f'v_lshlrev_b32 v{vU4+2*i}, 16, v{vHr+2*m+i}', f'v_and_b32 v{vU4+2*i+1}, 0xffff0000, v{vHr+2*m+i}']
        L += [f'v_add_f32 v{vU4+i}, v{vU4+i}, v{b+i}' for i in range(4)]
        return L
    OB = cfg.get('ob', '')
    def red3(m):
        L = [('wlg', 'dr')]
        L += [f'v_add_f32 v{vRd+i}, v{vRd+i}, v{vRd+4+i}' for i in range(4)]
        L += [f'v_add_f32 v{vU4+i}, v{vU4+i}, v{vRd+8+i}' for i in range(4)]
        L += [f'v_add_f32 v{vU4+i}, v{vU4+i}, v{vRd+i}' for i in range(4)]
        L += [f'v_cvt_pk_bf16_f32 v{vHr+2*m+i}, v{vU4+2*i}, v{vU4+2*i+1}' for i in range(2)]
        L += [('vm', f'buffer_store_dwordx2 {vr(vHr+2*m,2)}, v{vOa}, {SR(SRD_OUT)}, s84 offen {OB}', 'out')]
        return L
    def dlabel():
        a.label('LD_start')
    tailseg = [GS.pop(), GS.pop()][::-1]
    weave(g, mf, [GS, DS, RS, XS], 8, 'C')
    dlabel()
    vm.wait('a0_1'); lg.wait('rw9')
    mf = []; GS = []; RS = []; XS = []; ES = []
    for m in range(4):
        B = 56*m
        order = [(tau, i) for tau in (1, 2, 3, 0) for i in range(14)]
        if m == 0: order = [(tau, i) for tau in (1, 2, 3, 0) for i in range(10)] + [(tau, i) for tau in (1, 2, 3, 0) for i in range(10, 14)]
        for q, (tau, i) in enumerate(order):
            acc = vr(DA[m&1][tau], 4)
            f, r = wdreg(i, tau)
            fx = []
            if q + 1 < 56:
                t1, i1 = order[q+1]
                if t1 == 1 and i1 % 2 == 0: fx.append(('wvm', f'a{m}_{i1+1}'))
                if m == 0 and q + 1 == 40: fx.append(('wlg', 'rw13'))
            elif m < 3: fx.append(('wvm', f'a{m+1}_1'))
            if q == 55: fx += g.st(f'D.m{m}')
            mf.append((f'v_mfma_f32_16x16x32_bf16 {acc}, {vr(r,4,f)}, {actreg(m,i)}, {"0" if i==0 else acc}', fx))
        if m:
            ES.append((B+3, B+16, red2(m-1))); ES.append((B+20, B+36, red3(m-1)))
        if m == 0: ES.append((B+55, B+59, red1(m)))
        else: ES.append((B+46, B+56, red1(m), 2))
    GS = [(2, 20, tailseg[0][2]), (2, 36, tailseg[1][2])]
    RS = [(0, 38, [('wvm', 'wd13')] + rd_wd(10, FINAL[10]) + rd_wd(11, FINAL[11]) + rd_wd(12, FINAL[12]) + rd_wd(13, FINAL[13]))]
    hres = []
    for m in range(4):
        hres += [f's_add_u32 s83, s86, {m*32768}', ('vm', f'buffer_load_dwordx2 {vr(vHr+2*m,2)}, v{vL16}, {SR(SRD_WS)}, s83 offen sc1', 'hres')]
    P2, P3 = int(cfg.get('p2', 56)), int(cfg.get('p3', 108))
    XS = [(4, 10, flagC(7)), (10, 36, hres), (37, 40, pload('p2')), (P2, P2+4, flagC(8) + pcheck('p2', 's80') + g.st('D.p2')), (P2+2, P2+32, ld_act(2), 1),
          (P3-22, P3-18, pload('p3')), (P3, P3+3, pcheck('p3', 's81') + g.st('D.p3')), (P3+1, P3+30, ld_act(3), 1)]
    weave(g, mf, [GS, RS, XS, ES], 8, 'D')
    g.emits(red2(3) + red3(3))
    g.stamp('D.end')
    if cfg.get('dbgst'):
        a('s_waitcnt lgkmcnt(0)')
        a(f's_lshl2_add_u32 s70, s{S_WG}, s{W}')
        a(f's_cmp_lg_u32 s70, {int(cfg["dbgst"])*4}')
        a('s_cbranch_scc1 Lend')
        for i in range(1, min(g.ns, 17)):
            a(f's_sub_u32 s70, s{TSREG[i]}, s{TSREG[0]}')
            a(f'v_mov_b32 v2, s70')
            a(f'buffer_store_dword v2, off, {SR(SRD_DBG)}, 0 offset:{4*(i-1)}')
    elif cfg.get('stamps'):
        a('s_waitcnt lgkmcnt(0)')
        a(f's_lshl2_add_u32 s70, s{S_WG}, s{W}')
        a(f's_lshl_b32 s70, s70, 7')
        a(f's_add_u32 s70, s70, {WS_TS}')
        for i in range(g.ns):
            a(f'v_mov_b32 v2, s{TSREG[i]}')
            a(f'buffer_store_dword v2, off, {SR(SRD_WS)}, s70 offset:{4*i}')
    a.label('Lend')
    a('s_endpgm')
    for o in OOL[::-1]:
        a.hist = []
        o()
    hdr = '; @launch grid=(256,1,1) block=(256,1,1) lds=163840\n'
    if cfg.get('stamps') and not cfg.get('dbgst'): hdr += '; stamps: ' + ','.join(g.names) + '\n'
    hdr += '.amdgcn_target "amdgcn-amd-amdhsa--gfx950"\n.text\n'
    KD = f""".section .rodata,"a"
.p2align 6
.amdhsa_kernel {k}
  .amdhsa_next_free_vgpr 512
  .amdhsa_next_free_sgpr 102
  .amdhsa_accum_offset 256
  .amdhsa_group_segment_fixed_size 0
  .amdhsa_kernarg_size 80
  .amdhsa_user_sgpr_count 2
  .amdhsa_user_sgpr_kernarg_segment_ptr 1
  .amdhsa_system_sgpr_workgroup_id_x 1
.end_amdhsa_kernel
"""
    print('nops', a.nops, 'stamps', g.ns, file=sys.stderr)
    return hdr + a.text() + KD

if __name__ == '__main__':
    out = sys.argv[1]
    cfg = {}
    for o in sys.argv[2:]:
        k_, _, v = o.partition('=')
        cfg[k_] = v.split(',') if k_ == 'sel' else (v or True)
    open(out, 'w').write(build(cfg))
```

```python
import sys, struct
from asmlib import *

NAME = 'sequential_preLN__linear_attn_block__geglu_ffn__prompt'
WS_PQ = 0x000000; WS_H = 0x200000; WS_ACT = 0x400000; WS_STATS = 0xB00000; WS_KV = 0xB40000
WS_FLAG = 0xB50000; WS_TS = 0xC00000; WS_SIZE = 0xD00000
FA = WS_FLAG; FB = WS_FLAG + 256*128; FC = WS_FLAG + 512*128
LOG2E = 1.4426950408889634; LN2 = 0.6931471805599453
def fbits(x): return '0x%08x' % struct.unpack('<I', struct.pack('<f', x))[0]

S_WG = 2; W = 3
SRD_X = 36; SRD_WQKV = 40; SRD_WO = 44; SRD_WGU = 48; SRD_WD = 52; SRD_OUT = 56; SRD_WS = 60; SRD_DBG = 64
SRD_ACT = 40
S_XC = 68; S_J = 69
def SR(b): return f's[{b}:{b+3}]'
def v2(b): return f'v[{b}:{b+1}]'

class Cnt:
    def __init__(self, a, name, cap): self.a = a; self.q = []; self.name = name; self.cap = cap; self.seen = set()
    def issue(self, text, tag='x'):
        self.a(text); self.q.append(tag); self.seen.add(tag)
        if self.name == 'vmcnt': assert len(self.q) <= self.cap, "vmcnt overflow"
    def wait(self, *tags):
        for t in tags: assert t in self.seen, ('wait on unissued', t)
        last = -1
        for i, t in enumerate(self.q):
            if t in tags: last = i
        if last < 0: return
        n = len(self.q) - 1 - last
        n = min(n, self.cap)
        self.a(f's_waitcnt {self.name}({n})')
        self.q = self.q[len(self.q)-n:] if n else []
    def wait_all(self):
        self.a(f's_waitcnt {self.name}(0)'); self.q = []

TSREG = list(range(90, 100, 2)) + list(range(8, 16, 2)) + [30,32,34,16,18,20,22,24,26,28,4,6]

class G:
    def __init__(self, cfg):
        self.a = Asm(); self.cfg = cfg
        self.vm = Cnt(self.a, 'vmcnt', 63); self.lg = Cnt(self.a, 'lgkmcnt', 15)
        self.ns = 0; self.names = []
    def want(self, name):
        if not self.cfg.get('stamps'): return False
        sel = self.cfg.get('sel')
        return not (sel and not any(name.startswith(p) for p in sel))
    def stamp(self, name):
        if not self.want(name): return
        r = TSREG[self.ns]; self.ns += 1; self.names.append(name)
        self.a(f'{"s_memtime" if self.cfg["stamps"] == "cyc" else "s_memrealtime"} s[{r}:{r+1}]')
    def st(self, name):
        return [lambda: self.stamp(name)] if self.want(name) else []
    def emit(self, t):
        if isinstance(t, str): self.a(t)
        elif callable(t): t()
        elif t[0] == 'vm': self.vm.issue(t[1], t[2])
        elif t[0] == 'lg': self.lg.issue(t[1], t[2])
        elif t[0] == 'wvm': self.vm.wait(*t[1:])
        elif t[0] == 'wlg': self.lg.wait(*t[1:])
        else: raise ValueError(t)
    def emits(self, L):
        for x in L: self.emit(x)

def cls(t):
    if callable(t): return 0
    if isinstance(t, tuple): return 1 if t[0] in ('vm', 'lg') else 0
    op = t.split()[0]
    if op.startswith('s_'): return 0
    if op.startswith(('ds_', 'buffer_', 'global_')): return 1
    return 2
def cost(t):
    c = cls(t)
    if c == 0: return 4
    tx = t if isinstance(t, str) else t[1]
    op = tx.split()[0]
    if c == 1: return 20 if op == 'ds_write_b128' else 4
    return 8 if (op.split('_e')[0] in TRANS or op in TRANS) else 4

def weave(g, mf, streams, cap, name=''):
    n = len(mf)
    def fcost(items):
        c = sum(cost(x) for x in items)
        return c - 4 if any(cls(x) == 0 for x in items) else c
    fixed = [fcost(m[1]) for m in mf]
    segs = [[[s[0], s[1], list(s[2]), s[3] if len(s) > 3 else 0] for s in st if s[2]] for st in streams]
    lastmem = [-99]*len(segs)
    tot = 0
    for i in range(n):
        gap = [[], [], []]; tail = []
        for x in mf[i][1]: gap[cls(x)].append(x)
        used = fixed[i]
        lc = [-1]*len(segs)
        blocked = set()
        while True:
            best = None
            for k, st in enumerate(segs):
                if not st or k in blocked or st[0][0] > i: continue
                if best is None or st[0][1] < segs[best][0][1]: best = k
            if best is None: break
            sg = segs[best][0]; it = sg[2][0]; c = cls(it)
            must = i >= sg[1]-1
            kk = 0 if (c == 0 and not gap[0]) else cost(it)
            if not must:
                if c < lc[best] or (c == 1 and sg[3] and i - lastmem[best] < sg[3]): blocked.add(best); continue
                if used + kk > cap:
                    dem = sum(sum(cost(x) for x in s[2] if cls(x)) for st in segs for s in st if s[1] <= sg[1])
                    room = sum(max(0, cap - fixed[j]) for j in range(i+1, min(n, sg[1])))
                    if not (used < cap and dem > room): blocked.add(best); continue
            if c < lc[best] or tail and must and lc[best] == 9:
                tail.append(it); lc[best] = 9
            else:
                gap[c].append(it); lc[best] = c
            used += kk
            if c == 1: lastmem[best] = i
            sg[2].pop(0)
            if not sg[2]: segs[best].pop(0)
        g.a(mf[i][0])
        for x in gap[0] + gap[1] + gap[2] + tail: g.emit(x)
        tot += max(cap, used) + 8
    assert not any(segs), ('unplaced', name)
    print(f'weave {name}: {n} mfma est {tot} cyc', file=sys.stderr)

def srd(a, d, ptr, size):
    a(f's_mov_b32 s{d}, s{ptr}')
    a(f's_mov_b32 s{d+1}, s{ptr+1}')
    a(f's_mov_b32 s{d+2}, {size}')
    a(f's_mov_b32 s{d+3}, 0x20000')

def guard(g):
    if g.cfg.get('safe'):
        g.a('s_sub_u32 s100, s100, 1')
        g.a('s_cbranch_scc1 Lend')

def poll(g, label, vaddr, vdst, n, soff, need):
    a = g.a
    a.label(label)
    sfx = {1: '', 4: 'x4'}[n]
    a(f'buffer_load_dword{sfx} {vr(vdst, n)}, v{vaddr}, {SR(SRD_WS)}, s{soff} offen sc1')
    g.vm.wait_all()
    if n == 4:
        a(f'v_min_u32 v{vdst}, v{vdst}, v{vdst+1}')
        a(f'v_min3_u32 v{vdst}, v{vdst}, v{vdst+2}, v{vdst+3}')
    a(f'v_cmp_gt_u32 vcc, {need}, v{vdst}')
    guard(g)
    a(f's_cbranch_vccnz {label}')

def build(cfg):
    g = G(cfg); a = g.a; vm = g.vm; lg = g.lg
    k = NAME + '_kernel'
    OOL = []
    FSH = 7
    SRD_FL = SRD_X
    a.raw(f'.globl {k}\n.p2align 8\n.type {k},@function\n{k}:')
    a(f's_cmp_ge_u32 s{S_WG}, 256')
    a('s_cbranch_scc1 Lend')
    a('s_load_dwordx16 s[16:31], s[0:1], 0')
    a('s_load_dwordx4 s[32:35], s[0:1], 64')
    g.stamp('A.start')
    if cfg.get('safe'): a('s_mov_b32 s100, 200000')
    a('v_lshrrev_b32 v1, 6, v0')
    a(f's_lshr_b32 s{S_J}, s{S_WG}, 3')
    a(f'v_readfirstlane_b32 s{W}, v1')
    a('v_and_b32 v0, 63, v0')
    a(f's_and_b32 s{S_XC}, s{S_WG}, 7')
    vTa, vTd = 218, 234
    a(f'v_lshlrev_b32 v{vTa}, 7, v0')
    if cfg.get('cpf'):
        a(f's_cmp_ge_u32 s{S_J}, 2')
        a('s_cbranch_scc1 LX_cpf_ret')
        a('s_getpc_b64 s[4:5]')
        a.label('LX_pc')
        a(f's_lshl2_add_u32 s76, s{S_J}, s{W}')
        a(f's_lshl_b32 s76, s76, 13')
        a(f'v_add_u32 v{vTd}, s76, v{vTa}')
        a(f'v_min_u32 v{vTd}, Lend-LX_pc, v{vTd}')
        a(f'global_load_dword v{vTd}, v{vTd}, s[4:5]')
        a.label('LX_cpf_ret')
    XR = 98304
    s_rb, s_hp, s_x, s_w, s_m0x, s_m0w, s_rot = 70, 71, 72, 73, 74, 75, 82
    a(f's_lshr_b32 s76, s{S_XC}, 1')
    a(f's_and_b32 s{s_rb}, s{S_J}, 3')
    a(f's_lshl2_add_u32 s{s_rb}, s76, s{s_rb}')
    a(f's_and_b32 s76, s{S_XC}, 1')
    a(f's_lshr_b32 s{s_hp}, s{S_J}, 2')
    a(f's_lshl3_add_u32 s{s_hp}, s76, s{s_hp}')
    a(f's_lshr_b32 s76, s{S_J}, 3')
    a(f's_add_u32 s{s_rot}, s{S_J}, s76')
    a(f's_add_u32 s{s_rot}, s{s_rot}, s{S_XC}')
    if cfg.get('rot'): a(f's_lshl_b32 s{s_rot}, s{s_rot}, {cfg["rot"]}')
    a(f's_lshl2_add_u32 s{s_x}, s{s_rb}, s{W}')
    a(f's_lshl_b32 s{s_x}, s{s_x}, 15')
    a(f's_mul_i32 s{s_w}, s{W}, {16*3072}')
    a(f's_lshl_b32 s76, s{s_hp}, 6')
    a(f's_add_u32 s{s_w}, s{s_w}, s76')
    a(f's_lshl_b32 s{s_m0x}, s{W}, 14')
    a(f's_add_u32 s{s_m0x}, s{s_m0x}, {XR}')
    a(f's_mul_i32 s{s_m0w}, s{W}, 3072')
    vXd = 4; vWd = 8; vXr = 12; vWn = 16; vWp = 20
    vSum, vSq, vCs = 24, 25, 26
    vOne = 29; vT = 30; vAcc = 40; vX = 88; vW = 120
    vWo = 220
    vDbg = 216; vDbgA = 217
    a(f'v_lshrrev_b32 v{vT}, 3, v0')
    a(f'v_and_b32 v{vT+1}, 7, v0')
    a(f'v_lshrrev_b32 v{vT+2}, 1, v{vT}')
    a(f'v_xor_b32 v{vT+1}, v{vT+1}, v{vT+2}')
    a(f'v_lshlrev_b32 v{vT+1}, 4, v{vT+1}')
    a(f'v_lshl_add_u32 v{vXd}, v{vT}, 10, v{vT+1}')
    a(f'v_xor_b32 v{vXd+1}, 64, v{vXd}')
    a(f'v_add_u32 v{vXd+1}, {8192-1024}, v{vXd+1}')
    a(f'v_add_u32 v{vXd+2}, {2*(8192-1024)}, v{vXd}')
    a(f'v_add_u32 v{vXd+3}, {2*(8192-1024)}, v{vXd+1}')
    for q in range(3):
        a(f'v_add_u32 v{vT}, {64*q}, v0')
        a(f'v_mul_u32_u24 v{vT+1}, 171, v{vT}')
        a(f'v_lshrrev_b32 v{vT+1}, 11, v{vT+1}')
        a(f'v_mul_u32_u24 v{vT+2}, 12, v{vT+1}')
        a(f'v_sub_u32 v{vT+2}, v{vT}, v{vT+2}')
        a(f'v_mul_u32_u24 v{vT+1}, 3072, v{vT+1}')
        a(f'v_lshrrev_b32 v{vT+3}, 2, v{vT+2}')
        a(f'v_lshl_add_u32 v{vT+1}, v{vT+3}, 10, v{vT+1}')
        a(f'v_and_b32 v{vT+2}, 3, v{vT+2}')
        a(f'v_lshl_add_u32 v{vWd+q}, v{vT+2}, 4, v{vT+1}')
        if q == 0: a(f'v_lshl_add_u32 v249, v{vT+2}, 7, v{vT+1}')
        if q: a(f'v_subrev_u32 v{vWd+q}, {1024*q}, v{vWd+q}')
    a(f'v_lshlrev_b32 v219, 6, v0')
    a(f's_lshl2_add_u32 s87, s{S_J}, s{W}')
    a(f's_and_b32 s83, s{S_WG}, 0xe4')
    a(f's_or_b32 s83, s83, s{W}')
    a(f's_mov_b32 s{SRD_X+2}, {2048*512*2}')
    a(f's_mov_b32 s{SRD_X+3}, 0x20000')
    a(f's_mov_b32 s{SRD_WQKV+2}, {512*1536*2}')
    a(f's_mov_b32 s{SRD_WQKV+3}, 0x20000')
    a(f's_mov_b32 s{SRD_WS+2}, {WS_SIZE}')
    a(f's_mov_b32 s{SRD_WS+3}, 0x20000')
    a('s_waitcnt lgkmcnt(0)')
    g.stamp('S.karg')
    a(f's_mov_b64 s[{SRD_X}:{SRD_X+1}], s[16:17]')
    a(f's_mov_b64 s[{SRD_WQKV}:{SRD_WQKV+1}], s[18:19]')
    a(f's_mov_b64 s[{SRD_WS}:{SRD_WS+1}], s[34:35]')
    def dma_xw(c):
        L = [f's_add_u32 s78, s{s_rot}, {c}', f's_and_b32 s78, s78, 7', f's_lshl_b32 s76, s78, 7', f's_add_u32 s76, s76, s{s_x}',
             f's_add_u32 m0, s{s_m0x}, {(c&3)*4096}', f's_mul_i32 s77, s78, {64*3072}']
        for i in range(4):
            L.append(('vm', f'buffer_load_dwordx4 v{vXd+i}, {SR(SRD_X)}, s76 offen offset:{i*1024} lds', f'c{c}'))
        L += [f's_add_u32 m0, s{s_m0w}, {c*12288}', f's_add_u32 s77, s77, s{s_w}']
        for q in range(3):
            L.append(('vm', f'buffer_load_dwordx4 v{vWd+q}, {SR(SRD_WQKV)}, s77 offen offset:{q*1024} lds', f'c{c}'))
        return L
    NX = int(cfg.get('nx', 4))
    TL = {}
    for it in (cfg.get('tl') or '').split('+'):
        if it:
            n_, p_ = it.split('@'); TL.setdefault(p_, []).append(n_)
    vT64, vTw, vTg = 219, 249, 250
    tcnt = [0]
    def touch1(n):
        tcnt[0] += 1
        lab = f'LT_{tcnt[0]}'
        def f():
            if n == 'x':
                a(f's_lshr_b32 s81, s{S_XC}, 1')
                a(f's_lshl_b32 s81, s81, 7')
                a(f's_add_u32 s81, s81, s87')
                a(f's_lshl_b32 s81, s81, 12')
                vm.issue(f'buffer_load_dword v{vTd+1}, v{vT64}, {SR(SRD_X)}, s81 offen', 'touch')
            elif n == 'w':
                a(f's_and_b32 s81, s{S_XC}, 1')
                a(f's_lshl_b32 s81, s81, 9')
                a(f's_mul_i32 s4, s87, {4*3072}')
                a(f's_add_u32 s81, s81, s4')
                a('s_mov_b32 exec_hi, 0xffff')
                vm.issue(f'buffer_load_dword v{vTd+1}, v{vTw}, {SR(SRD_WQKV)}, s81 offen', 'touch')
                a('s_mov_b32 exec_hi, -1')
            elif n == 'o':
                a(f's_lshl_b32 s81, s87, 12')
                vm.issue(f'buffer_load_dword v{vTd+1}, v{vT64}, {SR(SRD_WO)}, s81 offen', 'touch')
            elif n in ('g0', 'g1'):
                a(f's_bitcmp1_b32 s{W}, 0')
                a('s_cselect_b64 s[4:5], s[26:27], s[24:25]')
                a(f's_mov_b32 s6, {512*1792*2}')
                a('s_mov_b32 s7, 0x20000')
                a(f's_lshr_b32 s81, s87, 1')
                a(f's_lshl_b32 s81, s81, 4')
                a(f's_bitcmp1_b32 s{S_XC}, 0')
                a(f's_addc_u32 s81, s81, {8*int(n[1])}')
                a(f's_mul_i32 s81, s81, 1792')
                a('s_mov_b32 exec_hi, 0xffffff')
                vm.issue(f'buffer_load_dword v{vTd+1}, v{vTg}, s[4:7], s81 offen', 'touch')
                a('s_mov_b32 exec_hi, -1')
            elif n == 'G':
                nl = 14336 // (64*NX)
                if NX < 8:
                    a(f's_cmp_ge_u32 s{S_XC}, {NX}')
                    a(f's_cbranch_scc1 {lab}')
                a(f's_bitcmp1_b32 s{W}, 0')
                a('s_cselect_b64 s[4:5], s[26:27], s[24:25]')
                a(f's_mov_b32 s6, {512*1792*2}')
                a('s_mov_b32 s7, 0x20000')
                a(f's_lshr_b32 s81, s87, 1')
                a(f's_mul_i32 s81, s81, {NX}')
                a(f's_add_u32 s81, s81, s{S_XC}')
                a(f's_mul_i32 s81, s81, {nl*128}')
                a(f'v_min_u32 v{vTd}, {(min(nl,56)-1)*128}, v{vTa}')
                for i in range(0, nl, 56):
                    (a if NX < 8 else vm.issue)(f'buffer_load_dword v{vTd+1}, v{vTd}, s[4:7], s81 offen')
                    if i + 56 < nl: a(f's_add_u32 s81, s81, {56*128}')
                a.label(lab)
            elif n == 'D':
                nl = 14336 // (128*NX)
                if NX < 8:
                    a(f's_cmp_ge_u32 s{S_XC}, {NX}')
                    a(f's_cbranch_scc1 {lab}')
                a(f's_mul_i32 s81, s87, {NX}')
                a(f's_add_u32 s81, s81, s{S_XC}')
                a(f's_mul_i32 s81, s81, {nl*128}')
                a(f'v_min_u32 v{vTd}, {(nl-1)*128}, v{vTa}')
                (a if NX < 8 else vm.issue)(f'buffer_load_dword v{vTd+1}, v{vTd}, {SR(SRD_WD)}, s81 offen')
                a.label(lab)
            else: raise ValueError(n)
        return f
    def touch(p): return [touch1(n) for n in TL.get(p, [])]
    a(f's_cmp_eq_u32 s83, 0')
    a('s_cbranch_scc0 LX_zero_ret')
    def ool_zero():
        for i in range(4): a(f'v_mov_b32 v{vT+i}, 0')
        a(f's_lshl2_add_u32 s77, s{S_J}, s{S_XC}')
        a(f's_mul_i32 s76, s77, 2176')
        a(f's_add_u32 s76, s76, {WS_KV}')
        a(f'v_lshlrev_b32 v{vT+4}, 4, v0')
        a(f'v_min_u32 v{vT+5}, {128-16}, v{vT+4}')
        a(f'buffer_store_dwordx4 v[{vT}:{vT+3}], v{vT+4}, {SR(SRD_WS)}, s76 offen sc1')
        a(f'buffer_store_dwordx4 v[{vT}:{vT+3}], v{vT+4}, {SR(SRD_WS)}, s76 offen offset:1024 sc1')
        a(f'buffer_store_dwordx4 v[{vT}:{vT+3}], v{vT+5}, {SR(SRD_WS)}, s76 offen offset:2048 sc1')
        a(f's_mul_i32 s76, s77, {112*128}')
        a(f's_add_u32 s76, s76, {WS_FLAG}')
        a(f's_add_u32 s77, s76, {48*128}')
        a(f'buffer_store_dword v{vT}, v{vTa}, {SR(SRD_WS)}, s76 offen sc1')
        a(f'buffer_store_dword v{vT}, v{vTa}, {SR(SRD_WS)}, s77 offen sc1')
    ool_zero()
    a.label('LX_zero_ret')
    g.emits(touch('pre'))
    g.emits(dma_xw(0)); g.stamp('S.d0')
    g.emits(touch('d0'))
    D1 = dma_xw(1)
    g.emits(D1[:10]); g.stamp('S.d1')
    g.emits(touch('dx'))
    a('s_mov_b32 s79, s77')
    srd(a, SRD_DBG, 32, 256)
    srd(a, SRD_WO, 20, 512*512*2)
    a(f's_cmp_ge_u32 s{W}, 2')
    a(f's_cselect_b64 s[{SRD_WGU}:{SRD_WGU+1}], s[26:27], s[24:25]')
    a(f's_cmp_ge_u32 s{S_J}, 28')
    if cfg.get('iw'):
        a(f's_cselect_b64 s[{SRD_WGU}:{SRD_WGU+1}], s[28:29], s[{SRD_WGU}:{SRD_WGU+1}]')
        a(f's_mov_b32 s{SRD_WGU+2}, {512*1792*2}')
    else: a(f's_cselect_b32 s{SRD_WGU+2}, 0, {512*1792*2}')
    a(f's_mov_b32 s{SRD_WGU+3}, 0x20000')
    srd(a, SRD_WD, 28, 1792*512*2)
    srd(a, SRD_OUT, 30, 2048*512*2)
    a(f'v_and_b32 v{vT}, 31, v0')
    a(f'v_lshrrev_b32 v{vT+1}, 5, v0')
    a(f'v_lshrrev_b32 v{vT+2}, 1, v{vT}')
    a(f'v_and_b32 v{vT+2}, 7, v{vT+2}')
    a(f'v_xor_b32 v{vT+2}, v{vT+2}, v{vT+1}')
    a(f'v_lshlrev_b32 v{vT+2}, 4, v{vT+2}')
    a(f'v_lshl_add_u32 v{vT+2}, v{vT}, 7, v{vT+2}')
    a(f'v_add_u32 v{vT+2}, s{s_m0x}, v{vT+2}')
    for s in range(4):
        a(f's_xor_b32 s76, s{W}, {s}')
        a(f's_lshl_b32 s76, s76, 5')
        a(f'v_xor_b32 v{vXr+s}, s76, v{vT+2}')
    a(f'v_bfe_u32 v{vT+2}, v0, 2, 2')
    a(f'v_lshl_add_u32 v{vT+2}, v{vT+1}, 3, v{vT+2}')
    a(f'v_mul_u32_u24 v{vT+2}, 192, v{vT+2}')
    a(f'v_bfe_u32 v{vT+3}, v0, 4, 1')
    a(f'v_lshl_add_u32 v{vT+2}, v{vT+3}, 5, v{vT+2}')
    a(f'v_and_b32 v{vT+3}, 3, v0')
    a(f'v_lshl_add_u32 v{vT+4}, v{vT+3}, 3, v{vT+2}')
    a(f'v_and_b32 v{vT+5}, 1, v0')
    a(f'v_lshl_add_u32 v{vT+5}, v{vT+5}, 4, v{vT+2}')
    a(f'v_bfe_u32 v{vT+3}, v0, 1, 1')
    a(f'v_lshl_add_u32 v{vT+5}, v{vT+3}, 3, v{vT+5}')
    for s in range(4):
        a(f's_xor_b32 s76, s{W}, {s}')
        a(f's_mul_i32 s76, s76, 3072')
        a(f'v_add_u32 v{vWn+s}, s76, v{vT+4}')
        a(f'v_add_u32 v{vWp+s}, s76, v{vT+5}')
    for r in (vSum, vSq, vCs, vCs+1, vCs+2): a(f'v_mov_b32 v{r}, 0')
    a(f'v_mov_b32 v{vOne}, 0x3f803f80')
    a(f'v_lshrrev_b32 v{vT}, 4, v0')
    a(f'v_and_b32 v{vT+1}, 15, v0')
    a(f'v_lshlrev_b32 v{vT+2}, 1, v{vT}')
    a(f'v_xor_b32 v{vT+1}, v{vT+1}, v{vT+2}')
    a(f'v_lshlrev_b32 v{vT+1}, 4, v{vT+1}')
    a(f'v_lshl_add_u32 v{vWo}, v{vT}, 10, v{vT+1}')
    a(f'v_add_u32 v{vWo+1}, {4096-1024}, v{vWo}')
    a(f'v_xor_b32 v{vWo+2}, 128, v{vWo}')
    a(f'v_add_u32 v{vWo+2}, {2*(4096-1024)}, v{vWo+2}')
    a(f'v_add_u32 v{vWo+3}, {4096-1024}, v{vWo+2}')
    a(f'v_and_b32 v{vDbgA}, 15, v0')
    a(f'v_lshlrev_b32 v{vDbgA}, 2, v{vDbgA}')
    a(f's_lshr_b32 s84, s{S_J}, 3')
    a(f's_lshl_b32 s84, s84, 8')
    a(f's_lshl_b32 s76, s{W}, 17')
    a(f's_add_u32 s84, s84, s76')
    a(f's_lshl_b32 s85, s{W}, 12')
    SC = 12288; CSA = 81920
    vE1, vE2, vE3, vE4, vE5, vE6, vE7, vE8, vE9, vE2b = range(224, 234)
    vL16 = 1
    a(f'v_and_b32 v{vT}, 31, v0')
    a(f'v_lshl_add_u32 v{vE1}, v{vT}, 2, s{s_m0x}')
    a(f'v_add_u32 v{vE1}, {SC}, v{vE1}')
    a(f'v_lshlrev_b32 v{vE2}, 2, v{vT}')
    a(f'v_add_u32 v{vE2}, {CSA}, v{vE2}')
    a(f'v_add_u32 v{vE2b}, 768, v{vE2}')
    a(f'v_lshrrev_b32 v{vT+1}, 5, v0')
    a(f'v_lshl_add_u32 v{vE3}, v{vT+1}, 4, s{s_m0x}')
    a(f's_mul_i32 s76, s{W}, 384')
    a(f's_add_u32 s76, s76, {CSA}')
    a(f'v_lshl_add_u32 v{vE4}, v0, 2, s76')
    a(f'v_mul_u32_u24 v{vT+1}, 272, v{vT+1}')
    a(f'v_bfe_u32 v{vT+2}, v0, 4, 1')
    a(f'v_mul_u32_u24 v{vT+2}, 544, v{vT+2}')
    a(f'v_add3_u32 v{vE6}, v{vT+1}, v{vT+2}, s{s_m0x}')
    a(f'v_and_b32 v{vT+1}, 3, v0')
    a(f'v_bfe_u32 v{vT+2}, v0, 2, 1')
    a(f'v_lshl_add_u32 v{vT+1}, v{vT+2}, 3, v{vT+1}')
    a(f'v_bfe_u32 v{vT+2}, v0, 3, 1')
    a(f'v_lshl_add_u32 v{vT+1}, v{vT+2}, 2, v{vT+1}')
    a(f'v_lshl_add_u32 v{vE5}, v{vT+1}, 4, v{vE6}')
    a(f's_lshl_b32 s78, s{W}, 8')
    a(f'v_lshl_add_u32 v{vE7}, v0, 2, s78')
    a(f'v_add_u32 v{vE8}, {XR+SC+1024}, v{vE7}')
    a(f'v_min_u32 v{vE9}, {XR+SC+1024+124}, v{vE8}')
    a(f'v_lshlrev_b32 v{vL16}, 4, v0')
    vOnes = 236
    for i in range(4): a(f'v_mov_b32 v{vOnes+i}, v{vOne}')
    a(f'v_mul_u32_u24 v{vT}, 147, v0')
    a(f'v_lshrrev_b32 v{vT}, 11, v{vT}')
    a(f'v_mul_u32_u24 v{vT}, 1792, v{vT}')
    a(f'v_add_u32 v{vTg}, v{vT}, v{vTa}')
    vXres = 240; vXa = 248
    a(f'v_and_b32 v{vT}, 15, v0')
    a(f'v_lshrrev_b32 v{vT+1}, 4, v0')
    a(f'v_lshlrev_b32 v{vT+2}, 3, v{vT+1}')
    a(f'v_lshl_add_u32 v{vXa}, v{vT}, 10, v{vT+2}')
    a(f's_and_b32 s88, s{S_J}, 7')
    a(f's_lshl3_add_u32 s88, s{S_XC}, s88')
    a(f's_lshl_b32 s88, s88, 15')
    a(f's_lshr_b32 s89, s{S_J}, 3')
    a(f's_lshl2_add_u32 s89, s89, s{W}')
    a(f's_lshl_b32 s89, s89, 6')
    a(f's_add_u32 s88, s88, s89')
    a(f's_add_u32 s89, s88, 16384')
    XRES = [('vm', f'buffer_load_dwordx2 {vr(vXres+m*4+t*2,2)}, v{vXa}, {SR(SRD_X)}, s{88+m} offen offset:{32*t}', 'xres') for m in range(2) for t in range(2)]
    a('s_mov_b32 s77, s79')
    g.emits(D1[10:])
    g.emits(touch('d1'))
    g.stamp('A.issued')
    def dma_wo(n):
        L = [f's_add_u32 m0, s85, {16384*n}' if n < 5 else f's_add_u32 m0, s{s_m0x}, {4096*(n-5)}', f's_add_u32 s77, s84, {n*16384}']
        for i in range(4):
            L.append(('vm', f'buffer_load_dwordx4 v{vWo+i}, {SR(SRD_WO)}, s77 offen offset:{i*1024} lds', f'wo{n>>2}'))
        return L
    def rdX(c):
        return [('lg', f'ds_read_b128 {vr(vX+(c&1)*16+s*4,4)}, v{vXr+s} offset:{(c&3)*4096}', 'x') for s in range(4)]
    def rdW(c, s):
        base = vW + (c&1)*48 + s*12
        off = (c&3)*12288
        L = []
        for tile in (1, 2, 0):
            ad = (vWp if tile == 0 else vWn) + s
            for h2 in range(2):
                L.append(('lg', f'ds_read_b64_tr_b16 {vr(base+tile*4+h2*2,2)}, v{ad} offset:{off + h2*768 + tile*64}', f'w{s}'))
        return L
    def ismem(x): return cls(x) == 1 or callable(x)
    def sprinkle(L, ex, first=0):
        n = sum(1 for x in ex if ismem(x))
        tot = sum(cost(x) for x in L)
        acc = 0; k = 0
        for x in L:
            while ex and acc >= first + (tot - first)*k/max(n, 1):
                while ex:
                    y = ex.pop(0); g.emit(y)
                    if ismem(y): break
                k += 1
            g.emit(x); acc += cost(x)
        g.emits(ex); del ex[:]
    def dots(c):
        xb = vX + (c&1)*16; wb = vW + (c&1)*48
        L = []
        for i in range(4):
            for tile in range(3):
                L.append(f'v_dot2c_f32_bf16 v{vCs+tile}, v{wb+tile*4+i}, v{vOne}')
        for i in range(16):
            L.append(f'v_dot2c_f32_bf16 v{vSum}, v{xb+i}, v{vOne}')
            L.append(f'v_dot2c_f32_bf16 v{vSq}, v{xb+i}, v{xb+i}')
        return L
    def mm(c, s, t):
        xb = vr(vX + (c&1)*16 + s*4, 4); wb = vr(vW + (c&1)*48 + s*12 + 4*t, 4)
        C = '0' if (c == 0 and s == 0) else vr(vAcc+16*t, 16)
        if t: return f'v_mfma_f32_32x32x16_bf16 {vr(vAcc+16*t,16)}, {xb}, {wb}, {C}'
        return f'v_mfma_f32_32x32x16_bf16 {vr(vAcc,16)}, {wb}, {xb}, {C}'
    DO = ' offset:64' if cfg.get('dbgst') else ''
    vK, vV, vQ = vAcc+16, vAcc+32, vAcc
    vM, vR, vCq, vEx = 120, 136, 152, 168
    vPK, vPV, vD2 = 184, 192, 200
    vMean, vRstd = vSum, vSq
    sE, sL = 80, 86
    WOL = []
    for n in (0, 1, 2, 3, 5, 6, 7, 4): WOL += dma_wo(n)
    def cut(L, n):
        R = []
        while L and n:
            x = L.pop(0); R.append(x)
            if ismem(x): n -= 1
        return R
    def rdall(c): return rdX(c) + rdW(c, 0) + rdW(c, 1) + rdW(c, 2) + rdW(c, 3)
    vm.wait('c0')
    a('s_barrier')
    g.stamp('A.c0')
    R0 = rdall(0); D2 = dma_xw(2)
    while R0 or D2:
        g.emits(cut(R0, 4)); g.emits(cut(D2, 1))
    a(f's_cmp_eq_u32 s83, 0')
    a('s_cbranch_scc0 LX_sig_ret')
    a(f'v_mov_b32 v{vT}, 1')
    a(f's_lshl2_add_u32 s76, s{S_J}, s{S_XC}')
    a(f's_lshl_b32 s76, s76, 2')
    a(f'buffer_store_dword v{vT}, off, {SR(SRD_DBG)}, s76{DO} sc1')
    a.label('LX_sig_ret')
    a(f's_mov_b32 s{sE}, {fbits(1e-6*LOG2E)}')
    a(f's_mov_b32 s{sL}, {fbits(LN2)}')
    WN = [int(x) for x in cfg.get('wn', '0,0,0,0,0,0,0,0,0,0,0').split(',')]
    for c in range(8): assert sum(WN[:c+1]) <= (0, 4, 8, 12, 12, 24, 32, 32)[c]
    for c in range(4): assert WN[c] % 4 == 0
    for n_ in TL.get('pre', []) + TL.get('d0', []) + TL.get('dx', []): assert n_ in 'xwG'
    DF = int(cfg.get('df', 33)); rest = []
    for c in range(8):
        g.stamp(f'I.{c}e')
        lg.wait('x', 'w0')
        if c == 3:
            for s in range(4):
                a(f'v_add_u32 v{vWn+s}, 49152, v{vWn+s}'); a(f'v_add_u32 v{vWp+s}, 49152, v{vWp+s}')
        sprinkle(dots(c), rest)
        g.stamp(f'I.{c}m')
        dm = []
        if c + 3 < 8: dm += dma_xw(c+3)
        dm += touch(f's{c}')
        if c == 4: dm += XRES
        if c == int(cfg.get('dbs', 4)):
            dm.append(('vm', f'buffer_load_dword v{vDbg}, v{vDbgA}, {SR(SRD_DBG)}, 0 offen{DO} sc1', 'dbg'))
        dm += cut(WOL, WN[c])
        dm += touch(f'e{c}')
        rest = dm
        nd = sum(1 for x in dm if ismem(x))
        dm = cut(rest, nd - (nd*DF + 50)//100)
        nd = sum(1 for x in dm if ismem(x))
        DSEG = [(12*i//max(nd, 1), 12*i//max(nd, 1) + 2, cut(dm, 1)) for i in range(nd)]
        lg.wait_all()
        if c < 7:
            mf = [(mm(c, s, t), []) for s in range(4) for t in (1, 2, 0)]
            mf[0] = (mf[0][0], [('wvm', f'c{c+1}'), 's_barrier'] + g.st(f'A.c{c+1}'))
            rd = rdall(c+1)
            RSEG = [(i, i+1, cut(rd, 3 if (i % 3 == 1) else 2)) for i in range(11)] + [(11, 12, rd)]
            weave(g, mf, [RSEG, DSEG], 24, f'A{c}')
        else:
            mf = [(mm(7, s, t), []) for s in range(4) for t in (1, 2)] + [(mm(7, s, 0), []) for s in range(4)]
            vP = 88
            S = [f'v_mov_b32 v{vT}, v{vSum}', f'v_mov_b32 v{vT+1}, v{vSq}', f'v_mov_b32 v{vT+2}, v{vCs}',
                 f'v_permlane32_swap_b32 v{vCs+1}, v{vCs+2}',
                 f'v_permlane32_swap_b32 v{vSum}, v{vT}', f'v_permlane32_swap_b32 v{vSq}, v{vT+1}', f'v_permlane32_swap_b32 v{vCs}, v{vT+2}',
                 f'v_add_f32 v{vCs+1}, v{vCs+1}, v{vCs+2}',
                 f'v_add_f32 v{vSum}, v{vSum}, v{vT}', f'v_add_f32 v{vSq}, v{vSq}, v{vT+1}', f'v_add_f32 v{vCs}, v{vCs}, v{vT+2}',
                 f'v_mul_f32 v{vMean}, {fbits(1/512)}, v{vSum}',
                 ('lg', f'ds_write_b32 v{vE4}, v{vCs} offset:0', 'cs'),
                 ('lg', f'ds_write_b32 v{vE4}, v{vCs+1} offset:128', 'cs'),
                 f'v_mul_f32 v{vSq}, {fbits(1/512)}, v{vSq}',
                 f'v_fma_f32 v{vSq}, -v{vMean}, v{vMean}, v{vSq}', f'v_max_f32 v{vSq}, 0, v{vSq}',
                 f'v_add_f32 v{vSq}, {fbits(1e-5)}, v{vSq}', f'v_mul_f32 v{vSq}, {fbits(LN2*LN2)}, v{vSq}',
                 f'v_rsq_f32 v{vRstd}, v{vSq}',
                 ('wlg', 'cs'), 's_barrier',
                 ('lg', f'ds_write2_b32 v{vE1}, v{vMean}, v{vRstd} offset1:32', 'sw')]
            S += [('lg', f'ds_read2_b32 {v2(vP+2*w)}, v{vE2} offset0:{96*w+32} offset1:{96*w+64}', 'r0') for w in range(2)]
            S += [('lg', f'ds_read2_b32 {v2(vP+2*w)}, v{vE2b} offset0:{96*(w-2)+32} offset1:{96*(w-2)+64}', 'r0') for w in range(2, 4)]
            S += [('lg', f'ds_read_b128 {vr(vM+4*i,4)}, v{vE3} offset:{SC+i*32}', 'r1') for i in range(4)]
            S += [('lg', f'ds_read2_b32 {v2(vP+8)}, v{vE2} offset0:0 offset1:96', 'rq'), ('lg', f'ds_read2_b32 {v2(vP+10)}, v{vE2b} offset0:0 offset1:96', 'rq')]
            S += [('lg', f'ds_read_b128 {vr(vR+4*i,4)}, v{vE3} offset:{SC+128+i*32}', 'r2') for i in range(4)]
            S += [('wlg', 'r0'), f'v_add_f32 v{vP}, v{vP}, v{vP+2}', f'v_add_f32 v{vP+4}, v{vP+4}, v{vP+6}',
                  f'v_add_f32 v{vP+1}, v{vP+1}, v{vP+3}', f'v_add_f32 v{vP+5}, v{vP+5}, v{vP+7}',
                  f'v_add_f32 v{vCs+1}, v{vP}, v{vP+4}', f'v_add_f32 v{vCs+2}, v{vP+1}, v{vP+5}',
                  ('wlg', 'rq'), f'v_add_f32 v{vP+8}, v{vP+8}, v{vP+9}', f'v_add_f32 v{vP+10}, v{vP+10}, v{vP+11}', f'v_add_f32 v{vCs}, v{vP+8}, v{vP+10}',
                  ('lg', f'ds_write_b32 v{vE1}, v{vCs} offset:256', 'qw')]
            S += [('lg', f'ds_read_b128 {vr(vCq+4*i,4)}, v{vE3} offset:{SC+256+i*32}', 'r3') for i in range(4)]
            K1 = [f'v_fma_f32 v{vK+r}, -v{vM+r}, v{vCs+1}, v{vK+r}' for r in range(16)]
            K1 += [('wlg', 'r2')] + [f'v_fma_f32 v{vK+r}, v{vK+r}, v{vR+r}, s{sE}' for r in range(16)]
            weave(g, mf, [[(0, 11, S), (9, 12, K1[:8])], DSEG], 24, 'A7')
    g.stamp('A.loop')
    def phi_mid(b):
        L = []
        for r in range(16):
            L += [f'v_exp_f32_e64 v{vEx+r}, v{b+r} clamp', f'v_max_f32 v{b+r}, s{sE}, v{b+r}']
        return L
    def phi_end(b, d):
        L = [f'v_pk_fma_f32 {v2(b+2*i)}, {v2(b+2*i)}, s[{sL}:{sL+1}], {v2(vEx+2*i)} op_sel_hi:[1,0,1]' for i in range(8)]
        return L + [f'v_cvt_pk_bf16_f32 v{d+i}, v{b+2*i}, v{b+2*i+1}' for i in range(8)]
    EP = K1[8:] + phi_mid(vK)
    EP += [f'v_pk_fma_f32 {v2(vV+2*i)}, {v2(vM+2*i)}, {v2(vCs+2)}, {v2(vV+2*i)} op_sel_hi:[1,0,1] neg_lo:[1,0,0] neg_hi:[1,0,0]' for i in range(8)]
    EP += [f'v_pk_mul_f32 {v2(vV+2*i)}, {v2(vV+2*i)}, {v2(vR+2*i)}' for i in range(8)]
    EP += phi_end(vK, vPK)
    EP += [f'v_cvt_pk_bf16_f32 v{vPV+i}, v{vV+2*i}, v{vV+2*i+1}' for i in range(8)]
    EP += [f'v_permlane16_swap_b32 v{vPK+i}, v{vPK+4+i}' for i in range(4)]
    EP += [f'v_permlane16_swap_b32 v{vPV+i}, v{vPV+4+i}' for i in range(4)]
    sprinkle(EP, rest + cut(WOL, WN[8]))
    g.stamp('A.ep')
    lg.wait('r3')
    Q1 = [f'v_fma_f32 v{vQ+r}, -v{vMean}, v{vCq+r}, v{vQ+r}' for r in range(16)]
    mf = [(f'v_mfma_f32_16x16x32_bf16 {vr(vD2+8,4)}, {vr(vPK,4)}, {vr(vOnes,4)}, 0', []),
          (f'v_mfma_f32_16x16x32_bf16 {vr(vD2+12,4)}, {vr(vPK+4,4)}, {vr(vOnes,4)}, 0', []),
          (f'v_mfma_f32_16x16x32_bf16 {vr(vD2,4)}, {vr(vPK,4)}, {vr(vPV,4)}, 0', []),
          (f'v_mfma_f32_16x16x32_bf16 {vr(vD2+4,4)}, {vr(vPK+4,4)}, {vr(vPV+4,4)}, 0', [])]
    weave(g, mf, [[(0, 4, Q1[:10])]], 8, 'kv')
    a('s_mov_b32 exec_lo, 0x00010001')
    a('s_mov_b32 exec_hi, 0x00010001')
    a(f'ds_write_b128 v{vE6}, {vr(vD2+8,4)} offset:{SC+1024+256}')
    a(f'ds_write_b128 v{vE6}, {vr(vD2+12,4)} offset:{SC+1024+1088+256}')
    a('s_mov_b64 exec, -1')
    a(f'ds_write_b128 v{vE5}, {vr(vD2,4)} offset:{SC+1024}')
    a(f'ds_write_b128 v{vE5}, {vr(vD2+4,4)} offset:{SC+1024+1088}')
    sprinkle(Q1[10:] + [f'v_pk_fma_f32 {v2(vQ+2*i)}, {v2(vQ+2*i)}, {v2(vMean)}, s[{sE}:{sE+1}] op_sel:[0,1,0] op_sel_hi:[1,1,0]' for i in range(8)], cut(WOL, WN[9]))
    a('s_waitcnt lgkmcnt(0)')
    a('s_barrier')
    for i in range(3):
        for w in range(4):
            a(f'ds_read_b32 v{vD2+i*4+w}, v{vE8 if i < 2 else vE9} offset:{w*16384+i*1024}')
    a(f's_mul_i32 s78, s{s_hp}, 2176')
    a(f's_add_u32 s78, s78, {WS_KV}')
    vm.wait('dbg')
    a.label('LA_chk')
    a(f'v_cmp_ne_u32 vcc, 1, v{vDbg}')
    a('s_cbranch_vccnz LX_dbg')
    def ool_dbg():
        a.label('LX_dbg')
        a(f'buffer_load_dword v{vDbg}, v{vDbgA}, {SR(SRD_DBG)}, 0 offen{DO} sc1')
        a('s_waitcnt vmcnt(0)')
        guard(g)
        a('s_branch LA_chk')
    OOL.append(ool_dbg)
    a('s_waitcnt lgkmcnt(0)')
    for i in range(3):
        a(f'v_pk_add_f32 {v2(vD2+4*i)}, {v2(vD2+4*i)}, {v2(vD2+4*i+2)}')
    for i in range(3):
        a(f'v_add_f32 v{vD2+4*i}, v{vD2+4*i}, v{vD2+4*i+1}')
    a(f's_cmp_eq_u32 s{W}, 0')
    vm.issue(f'buffer_atomic_add_f32 v{vD2}, v{vE7}, {SR(SRD_WS)}, s78 offen', 'st')
    vm.issue(f'buffer_atomic_add_f32 v{vD2+4}, v{vE7}, {SR(SRD_WS)}, s78 offen offset:1024', 'st')
    a('s_cbranch_scc0 LA_noat')
    a('s_mov_b32 exec_hi, 0')
    a(f'buffer_atomic_add_f32 v{vD2+8}, v{vE7}, {SR(SRD_WS)}, s78 offen offset:2048')
    a('s_mov_b32 exec_hi, -1')
    a.label('LA_noat')
    g.stamp('A.atom')
    a(f's_lshl_b32 s79, s{s_hp}, 11')
    a(f's_add_u32 s78, s{s_x}, s79')
    sprinkle(phi_mid(vQ) + phi_end(vQ, vPK), cut(WOL, WN[10]))
    vm.issue(f'buffer_store_dwordx4 {vr(vPK,4)}, v{vL16}, {SR(SRD_WS)}, s78 offen sc1', 'st')
    vm.issue(f'buffer_store_dwordx4 {vr(vPK+4,4)}, v{vL16}, {SR(SRD_WS)}, s78 offen offset:1024 sc1', 'st')
    g.stamp('A.pq')
    vA0 = 4
    vF1 = 39
    vGd = 16
    vG0 = 224
    OX = 131072
    vKV = 40; vPQ = 104; vD = 136; vBa = 200; vH = 216
    vSa = 28
    U = 100
    E1 = [f's_lshl4_add_u32 s79, s{s_hp}, s{s_rb}', f's_lshl_b32 s79, s79, {FSH}', f's_add_u32 s79, s79, {FA}',
          f's_mov_b64 s[{SRD_FL}:{SRD_FL+1}], s[{SRD_WS}:{SRD_WS+1}]', f's_cmp_eq_u32 s{W}, 0\ns_cselect_b32 s{SRD_FL+2}, {WS_SIZE}, 0',
          f'v_mov_b32 v{vF1}, 1',
          f'v_bfe_u32 v{U}, v0, 2, 3', f'v_bfe_u32 v{U+1}, v0, 2, 2', f'v_bfe_u32 v{U+2}, v0, 4, 1',
          f'v_lshl_add_u32 v{U+1}, v{U+2}, 3, v{U+1}', f'v_lshlrev_b32 v{U+1}, 8, v{U+1}', f'v_and_b32 v{U+2}, 3, v0',
          f'v_lshl_add_u32 v{U+1}, v{U+2}, 3, v{U+1}', f's_lshl_b32 s76, s{W}, 1', f'v_xor_b32 v{U}, s76, v{U}',
          f'v_lshrrev_b32 v{U+3}, 2, v0', f'v_lshlrev_b32 v{U+3}, 8, v{U+3}', f'v_lshl_add_u32 v{U+3}, v{U+2}, 3, v{U+3}',
          f'v_lshl_add_u32 v{vG0}, v{U}, 5, v{U+3}', f'v_xor_b32 v{vG0+1}, 32, v{vG0}', f'v_add_u32 v{vG0+2}, 65536, v{vG0}', f'v_add_u32 v{vG0+3}, 65536, v{vG0+1}',
          f'v_lshl_add_u32 v{U+1}, v{U}, 5, v{U+1}', f'v_lshrrev_b32 v{U+2}, 5, v0',
          f'v_lshl_add_u32 v{vA0}, v{U+2}, 14, v{U+1}', f'v_lshl_add_u32 v{vA0+1}, v{U+2}, 12, v{U+1}', f'v_add_u32 v{vA0+1}, {98304+4096}, v{vA0+1}']
    for wp in range(4):
        E1 += [f'v_mul_u32_u24 v{U+3}, {32768+12288*wp}, v{U+2}', f'v_add_u32 v{vA0+2+wp}, v{U+3}, v{U+1}', f'v_add_u32 v{vA0+2+wp}, {65536+4096*wp}, v{vA0+2+wp}']
    E1 += [f'v_xor_b32 v{vA0+6+i}, 32, v{vA0+i}' for i in range(6)]
    E1 += [f's_mov_b32 s86, s{s_rb}', f's_and_b32 s70, s{S_J}, 7', f's_lshl3_add_u32 s70, s{S_XC}, s70', f's_lshr_b32 s71, s{S_J}, 3',
           f's_and_b32 s76, s{S_XC}, 1', f's_mul_i32 s76, s76, 7', f's_lshr_b32 s87, s{S_J}, 2', f's_add_u32 s87, s87, s76',
           f'v_and_b32 v{U}, 15, v0', f'v_lshrrev_b32 v{U+1}, 4, v0', f'v_lshlrev_b32 v{U+2}, 1, v{U+1}', f'v_xor_b32 v{U+2}, v{U}, v{U+2}',
           f'v_lshlrev_b32 v{U+2}, 4, v{U+2}', f'v_mul_u32_u24 v{U+3}, 3584, v{U+1}', f'v_add_u32 v{vGd}, v{U+3}, v{U+2}',
           f'v_xor_b32 v{U+2}, 128, v{U+2}', f'v_add_u32 v{vGd+1}, v{U+3}, v{U+2}', f'v_add_u32 v{vGd+1}, {4*3584-1024}, v{vGd+1}',
           f'v_add_u32 v{vGd+2}, {2*(4*3584-1024)}, v{vGd}', f'v_add_u32 v{vGd+3}, {2*(4*3584-1024)}, v{vGd+1}',
           f's_and_b32 s76, s{W}, 1', f's_mul_i32 s88, s76, {64*3584}', f's_lshl_b32 s76, s87, 8', f's_add_u32 s88, s88, s76', f's_lshl_b32 s89, s{W}, 14']
    def idle_gu():
        a(f's_cmp_lt_u32 s{S_J}, 28')
        a('s_cbranch_scc1 LE_ni')
        a(f's_and_b32 s88, s{S_J}, 3')
        a(f's_lshl2_add_u32 s88, s88, s{W}')
        a(f's_lshl_b32 s88, s88, 12')
        for i in range(4): a(f'v_mov_b32 v{vGd+i}, v{vL16}')
        a.label('LE_ni')
    E2 = [f'v_and_b32 v{vT}, 31, v0', f'v_min_u32 v{vT}, 16, v{vT}', f'v_lshrrev_b32 v{vT+1}, 5, v0', f'v_mul_u32_u24 v{vT+1}, 272, v{vT+1}',
          f'v_lshl_add_u32 v{vT}, v{vT}, 4, v{vT+1}',
          f's_mul_i32 s72, s{W}, {8*1088}', f's_add_u32 s72, s72, {WS_KV}', f's_add_u32 s73, s72, {3*1088}', f's_add_u32 s76, s72, {6*1088}',
          f's_lshl_b32 s81, s70, 15', f's_lshl_b32 s78, s{W}, 13', f's_add_u32 s81, s81, s78', f's_add_u32 s75, s81, 4096',
          f's_lshl_b32 s82, s{W}, {FSH+6}', f's_add_u32 s82, s82, {FA}', f's_add_u32 s78, s78, {OX}',
          f'v_lshlrev_b32 v{vT+1}, {FSH}, v0', f'v_mov_b32 v{vT+5}, {fbits(LOG2E)}', f'v_add_u32 v{vT+2}, s78, v{vL16}',
          f'v_and_b32 v{vT+3}, 15, v0', f'v_lshrrev_b32 v{vT+4}, 4, v0',
          f'v_and_b32 v{vSa}, 1, v{vT+4}', f'v_lshl_add_u32 v{vSa}, v{vT+3}, 1, v{vSa}', f'v_and_b32 v{vT+6}, 32, v0', f'v_add_lshl_u32 v{vSa}, v{vSa}, v{vT+6}, 2',
          f'v_lshlrev_b32 v{vT+4}, 9, v{vT+4}', f'v_lshl_add_u32 v{vT+3}, v{vT+3}, 4, v{vT+4}', f'v_add_u32 v{vT+3}, {OX}, v{vT+3}']
    for i in range(8):
        E2 += [f'v_lshlrev_b32 v{vBa+2*i}, 16, v{vXres+i}', f'v_and_b32 v{vBa+2*i+1}, 0xffff0000, v{vXres+i}']
    def dma_gu(sg):
        L = []
        for blk in range(4):
            L += [f's_add_u32 m0, s89, {(sg&1)*65536+blk*4096}', f's_add_u32 s83, s88, {(sg*128+blk*16)*3584}']
            for i in range(4):
                L.append(('vm', f'buffer_load_dwordx4 v{vGd+i}, {SR(SRD_WGU)}, s83 offen offset:{i*1024} lds', f'S{sg}'))
        return L
    def aWO(t, ks): return 128 + (t*16 + ks)*4
    def rd_wo(prs):
        L = []
        for ks in range(16):
            wp, pr = ks >> 2, ks & 3
            if pr not in prs: continue
            for t in range(2):
                if pr < 2: ad, off = vA0, 4096*(8*pr + wp)
                elif pr == 2: ad, off = vA0+2+wp, 0
                else: ad, off = vA0+1, 16384*wp
                for h2 in range(2):
                    L.append(('lg', f'ds_read_b64_tr_b16 {ar(aWO(t,ks)+2*h2,2)}, v{ad+6*t} offset:{off+h2*1024}', f'wo{min(prs)}'))
        return L
    def aGU(rt, ks): return (ks >> 3)*128 + (rt*8 + (ks & 7))*4
    def rd_gu(sg):
        L = []
        for rt in range(4):
            for k4 in range(4):
                for h2 in range(2):
                    L.append(('lg', f'ds_read_b64_tr_b16 {ar(aGU(rt, sg*4+k4)+2*h2,2)}, v{vG0+2*(sg&1)+(rt>>1)} offset:{(rt&1)*32768+k4*8192+h2*4096}', f'g{sg}'))
        return L
    nw = sum(1 for x in WOL if ismem(x))
    FK = int(cfg.get('fk', 10)); RK = int(cfg.get('rk', 8)); N0 = int(cfg.get('n0', 6)); N1 = int(cfg.get('n1', 6))
    sprinkle(E1, cut(WOL, min(FK, nw - RK)))
    if cfg.get('iw'): idle_gu()
    vm.wait('st')
    a('s_barrier')
    vm.issue(f'buffer_store_dword v{vF1}, off, {SR(SRD_FL)}, s79 sc1', 'flag')
    g.stamp('E.flag')
    nw = sum(1 for x in WOL if ismem(x))
    sprinkle(E2, cut(WOL, nw - RK))
    vm.wait('wo0')
    a('s_barrier')
    g.stamp('E.wo0')
    PL = ('vm', f'buffer_load_dword v{vD}, v{vT+1}, {SR(SRD_WS)}, s82 offen sc1', 'pl')
    sprinkle(rd_wo((0, 1)), WOL + [PL])
    SS = dma_gu(0) + dma_gu(1)
    lg.wait_all()
    a('s_barrier')
    g.emits(cut(SS, N0))
    vm.wait('pl')
    g.stamp('E.wo')
    def ldkv():
        for h in range(8):
            so = (72, 73, 76)[h//3]
            for q in range(2):
                vm.issue(f'buffer_load_dwordx4 {vr(vKV+h*8+q*4,4)}, v{vT}, {SR(SRD_WS)}, s{so} offen offset:{(h%3)*1088+q*544} sc1', f'kv{h}')
            vm.issue(f'buffer_load_dwordx4 {vr(vPQ+h*4,4)}, v{vL16}, {SR(SRD_WS)}, s{81 if h<4 else 75} offen offset:{(h&3)*1024} sc1', f'kv{h}')
    a(f'v_cmp_gt_u32 vcc, 1, v{vD}')
    a('s_cbranch_vccnz LX_early')
    SN1 = cut(SS, N1)
    def ool_early():
        a.label('LX_early')
        vm.q = []; lg.q = []
        a('s_barrier')
        g.emits(rd_wo((2, 3)))
        poll(g, 'LB_poll', vT+1, vD, 1, 82, '1')
        ldkv()
        g.emits(SN1)
        a('s_branch LB_join')
    OOL.append(ool_early)
    ldkv()
    a('s_barrier')
    sprinkle(rd_wo((2, 3)), list(SN1))
    a.label('LB_join')
    g.stamp('B.sync')
    a(f's_lshl2_add_u32 s72, s71, s{W}')
    a(f's_lshl_b32 s73, s70, 15')
    a(f's_lshl_b32 s74, s72, 10')
    a(f's_add_u32 s73, s73, s74')
    a(f's_add_u32 s73, s73, {WS_H}')
    a(f's_add_u32 s75, s73, 16384')
    a(f's_lshl4_add_u32 s74, s70, s72')
    a(f's_lshl_b32 s74, s74, 8')
    a(f's_add_u32 s74, s74, {WS_STATS}')
    a(f's_lshl2_add_u32 s79, s70, s71')
    a(f's_lshl_b32 s79, s79, {FSH}')
    a(f's_add_u32 s79, s79, {FB}')
    lg.wait_all()
    a('s_barrier')
    g.stamp('B.rd')
    def Dreg(h): return vD + (h % 4)*16
    def cvtkv(h):
        vm.wait(f'kv{h}')
        b = vKV + h*8
        for i in range(4): a(f'v_cvt_pk_bf16_f32 v{b+i}, v{b+2*i}, v{b+2*i+1}')
    def mmo(h): a(f'v_mfma_f32_32x32x16_bf16 {vr(Dreg(h),16)}, {vr(vKV+h*8,4)}, {vr(vPQ+h*4,4)}, 0')
    def den(h):
        d = Dreg(h)
        a(f'v_fma_f32 v{d+8}, v{d+8}, v{vT+5}, s{sE}')
        a(f'v_rcp_f32 v{d+8}, v{d+8}')
    assert N0 + N1 <= 16
    S1 = SS
    S1N = [int(x) for x in cfg.get('s1n', '1,1,1,1,1,1,1,1,1').split(',')]
    g.emits(cut(S1, S1N[8]))
    cvtkv(0); cvtkv(1); mmo(0); cvtkv(2); mmo(1); den(0)
    g.stamp('B.kv')
    for h in range(8):
        d = Dreg(h)
        for i in range(4): a(f'v_pk_mul_f32 {v2(d+2*i)}, {v2(d+2*i)}, {v2(d+8)} op_sel_hi:[1,0]')
        if h + 2 < 8: mmo(h+2)
        g.emits(cut(S1, S1N[h]))
        for i in range(4): a(f'v_cvt_pk_bf16_f32 v{d+12+i}, v{d+2*i}, v{d+2*i+1}')
        if h + 1 < 8: den(h+1)
        lg.issue(f'ds_write_b128 v{vT+2}, {vr(d+12,4)} offset:{h*1024}', 'ow')
        if h + 3 < 8: cvtkv(h+3)
    lg.wait_all()
    a('s_barrier')
    g.stamp('B.o')
    vO = 40
    def rdo(i): return ('lg', f'ds_read_b128 {vr(vO+i*4,4)}, v{vT+3} offset:{(i&15)*2048+(i>>4)*256}', f'o{i}')
    for i in range(12): g.emit(rdo(i))
    vS = 20
    def epiB(ch):
        m, t = ch >> 1, ch & 1
        b = vBa + 4*ch
        L = [f'v_cvt_pk_bf16_f32 v{vH+2*ch+i}, v{b+2*i}, v{b+2*i+1}' for i in range(2)]
        if t: L.append(('vm', f'buffer_store_dwordx4 {vr(vH+4*m,4)}, v{vL16}, {SR(SRD_WS)}, s{73+2*m} offen sc1', 'st'))
        for r in range(4):
            if t == 0 and r == 0:
                L += [f'v_add_f32 v{vS+2*m}, v{b}, v{b+1}', f'v_mul_f32 v{vS+2*m+1}, v{b}, v{b}']
            else:
                if not (t == 0 and r == 1): L.append(f'v_add_f32 v{vS+2*m}, v{vS+2*m}, v{b+r}')
                L.append(f'v_fmac_f32 v{vS+2*m+1}, v{b+r}, v{b+r}')
        return L
    MB = int(cfg.get('mb', 20)); MB2 = int(cfg.get('mb2', 48)); S2G = int(cfg.get('s2g', 3))
    lg.wait('o1')
    ZS = dma_gu(2) + dma_gu(3); S1P = int(cfg.get('s1p', 4))
    mf = []
    for q in range(64):
        m, t, ks = q >> 5, (q >> 4) & 1, q & 15
        acc = vr(vBa + (2*m+t)*4, 4)
        fx = []
        q1 = q + 1
        if q1 < 64 and (q1 >> 4) & 1 == 0 and q1 % 2 == 0: fx.append(('wlg', f'o{(q1>>5)*16+(q1&15)+1}'))
        if q == MB: fx += [('wvm', 'S0'), 's_barrier']
        if q == MB2: fx += [('wlg', 'g0'), 's_barrier']
        if 12+q < 32: fx.append(rdo(12+q))
        mf.append((f'v_mfma_f32_16x16x32_bf16 {acc}, {ar(aWO(t,ks),4)}, {vr(vO+(m*16+ks)*4,4)}, {acc}', fx))
    weave(g, mf, [[(19, 34, epiB(0)), (35, 50, epiB(1)), (51, 64, epiB(2))], [(0, MB2+2, S1, S1P), (MB2+1, 64, cut(ZS, S2G), S1P)], [(MB, MB2-3, rd_gu(0))]], 8, 'B')
    g.emits(epiB(3))
    a(f'v_permlane32_swap_b32 v{vS}, v{vS+2}')
    a(f'v_permlane32_swap_b32 v{vS+1}, v{vS+3}')
    a(f'v_add_f32 v{vS}, v{vS}, v{vS+2}')
    a(f'v_add_f32 v{vS+1}, v{vS+1}, v{vS+3}')
    a(f'v_permlane16_swap_b32 v{vS}, v{vS+1}')
    a(f'v_add_f32 v{vS}, v{vS}, v{vS+1}')
    vm.issue(f'buffer_store_dword v{vS}, v{vSa}, {SR(SRD_WS)}, s74 offen sc1', 'st')
    g.stamp('B.st')
    vHf = 40; vCa = 104; vCsum = 120; vK4 = 136; vGt = 144; vOut = 156
    vDr = 4; vDd = 16; vHa = 20; vKa = 22; vPa = 23; vPl = 24; vOa = 25; vWa = 26; vRa = (27, 28, 2)
    vSt = 160
    CONST = 147456
    def csum(sgs):
        mf = []
        for rt in range(4):
            for sg in sgs:
                for k4 in range(4):
                    ks = sg*4 + k4
                    acc = vr(vCsum+rt*4, 4)
                    mf.append((f'v_mfma_f32_16x16x32_bf16 {acc}, {ar(aGU(rt,ks),4)}, {vr(vOnes,4)}, {"0" if ks==0 else acc}', []))
        return mf
    SU = [f's_and_b32 s70, s{S_J}, 1', f's_lshl1_add_u32 s70, s{S_XC}, s70', f's_lshr_b32 s71, s{S_J}, 2', f's_xor_b32 s71, s71, {cfg.get("nbx", 0)}', f's_bfe_u32 s72, s{S_J}, 0x10001',
          f's_lshl_b32 s73, s86, 17', f's_add_u32 s73, s73, s85', f's_add_u32 s73, s73, {WS_H}',
          f's_lshl_b32 s74, s86, 14', f's_add_u32 s74, s74, s85', f's_add_u32 s74, s74, {WS_STATS}',
          f's_mul_i32 s75, s86, {8*56}', f's_lshl2_add_u32 s76, s87, s{W}', f's_add_u32 s75, s75, s76', f's_lshl_b32 s75, s75, 10', f's_add_u32 s75, s75, {WS_ACT}',
          f's_lshl4_add_u32 s77, s86, s87', f's_lshl_b32 s77, s77, {FSH}', f's_add_u32 s77, s77, {FC}',
          f's_mov_b64 s[{SRD_ACT}:{SRD_ACT+1}], s[{SRD_WS}:{SRD_WS+1}]', f's_cmp_ge_u32 s{S_J}, 28\ns_cselect_b32 s{SRD_ACT+2}, 0, {WS_SIZE}',
          f's_lshl_b32 s84, s86, {FSH+4}', f's_add_u32 s84, s84, {FB}']
    SU2 = [f's_lshl_b32 s79, s70, {FSH+4}', f's_add_u32 s79, s79, {FC}', f's_lshl_b32 s80, s72, 15', f's_add_u32 s80, s80, s79', f's_add_u32 s81, s80, {3*32768}', f's_add_u32 s80, s80, 32768',
           f's_and_b32 s{SRD_FL+2}, s{SRD_FL+2}, s{SRD_ACT+2}',
           f's_lshl3_add_u32 s87, s70, s72', f's_mul_i32 s82, s87, 56', f's_mul_i32 s76, s{W}, 14', f's_add_u32 s82, s82, s76',
           f's_lshl_b32 s82, s82, 10', f's_add_u32 s82, s82, {WS_ACT}',
           f's_lshl_b32 s78, s87, 14', f's_lshr_b32 s86, s{W}, 1', f's_lshl1_add_u32 s86, s71, s86', f's_lshl_b32 s86, s86, 10',
           f's_add_u32 s86, s86, s78', f's_and_b32 s87, s{W}, 1', f's_lshl3_add_u32 s86, s87, s86', f's_add_u32 s86, s86, {WS_H}',
           f's_lshl_b32 s87, s71, 7', f's_add_u32 s78, s78, s87', f's_mul_i32 s88, s{W}, {448*1024}', f's_add_u32 s88, s88, s87',
           f's_lshl_b32 s87, s{W}, 5', f's_add_u32 s78, s78, s87']
    VU = [f'v_lshrrev_b32 v{vT}, 3, v0', f'v_and_b32 v{vT+1}, 7, v0', f'v_and_b32 v{vT+2}, 6, v{vT}', f'v_xor_b32 v{vT+1}, v{vT+1}, v{vT+2}',
          f'v_lshlrev_b32 v{vT+1}, 4, v{vT+1}', f'v_lshl_add_u32 v{vDd}, v{vT}, 10, v{vT+1}']
    VU += [f'v_add_u32 v{vDd+i}, {i*(8192-1024)}, v{vDd}' for i in range(1, 4)]
    VU += [f'v_mov_b32 v{vHa}, v{vL16}', f'v_add_u32 v{vHa+1}, 65536, v{vL16}', f'v_and_b32 v{vT}, 15, v0',
           f'v_lshlrev_b32 v{vKa}, 4, v{vT}', f'v_add_u32 v{vKa}, {CONST}, v{vKa}',
           f'v_lshrrev_b32 v{vT+1}, 4, v0', f'v_lshlrev_b32 v{vT+1}, 3, v{vT+1}', f'v_lshl_add_u32 v{vOa}, v{vT}, 10, v{vT+1}',
           f'v_lshlrev_b32 v{vT+4}, {FSH}, v{vT}',
           f'v_add_u32 v{vWa}, s85, v{vL16}']
    VU += [f'v_xor_b32 v{vRa[tau-1]}, {4096*tau}, v{vWa}' for tau in range(1, 4)]
    VP = [f'v_min_u32 v{vT}, 13, v0', f'v_add_u32 v{vT}, s76, v{vT}', f'v_lshrrev_b32 v{vT}, 2, v{vT}', f'v_lshlrev_b32 v{vPa}, {FSH}, v{vT}']
    G1, FP, G2, PP = int(cfg.get('g1', 2)), int(cfg.get('fp', 8)), int(cfg.get('g2', 5)), int(cfg.get('pp', 6))
    mf = csum((0,)) + csum((1,))
    n2 = 16 - S2G; nz = n2 + 16
    fx = [[] for _ in mf]
    fx[G1] += [('wvm', 'S1'), 's_barrier'] + g.st('P.s1')
    fx[FP] += [('wvm', 'st'), 's_barrier', ('vm', f'buffer_store_dword v{vF1}, off, {SR(SRD_FL)}, s79 sc1', 'flag')] + g.st('P.flag')
    fx[n2] += [('wlg', 'g1'), 's_barrier'] + g.st('P.r1')
    fx[n2+G2] += [('wvm', 'S2'), 's_barrier'] + g.st('P.s2')
    for i in range(nz): fx[i] += cut(ZS, 1)
    fx[nz-PP] += [('vm', f'buffer_load_dword v{vGt}, v{vT+4}, {SR(SRD_WS)}, s84 offen sc1', 'pl')]
    R1 = rd_gu(1); R2 = rd_gu(2)
    for i in range(8): fx[G1+i] += cut(R1, 4); fx[n2+G2+i] += cut(R2, 4)
    assert G1 + 8 < n2 and n2 <= 15 and n2 + G2 + 8 <= 32 and FP < nz
    weave(g, [(m[0], sorted(f, key=cls)) for m, f in zip(mf, fx)], [[(0, 12, SU), (12, nz-PP, VU[9:]), (nz, 32, SU2 + VU[:9] + VP)]], 56, 'P1')
    lg.wait_all()
    a('s_barrier')
    def slot(sg): return 131072 if sg == 0 else 16384*(sg-1)
    def dma_wd(p, sg):
        L = [f's_add_u32 m0, s85, {slot(sg)}', f's_add_u32 s83, s88, {p*32768}']
        for i in range(4):
            L.append(('vm', f'buffer_load_dwordx4 v{vDd+i}, {SR(SRD_WD)}, s83 offen offset:{i*1024} lds', f'wd{p}'))
        return L
    VD = [f'v_lshrrev_b32 v{vT}, 2, v0', f'v_bfe_u32 v{vT+1}, v0, 3, 2', f'v_xor_b32 v{vT+1}, s{W}, v{vT+1}', f'v_lshlrev_b32 v{vT}, 7, v{vT}',
          f'v_lshl_add_u32 v{vT}, v{vT+1}, 5, v{vT}', f'v_and_b32 v{vT+1}, 3, v0', f'v_lshl_add_u32 v{vT}, v{vT+1}, 3, v{vT}', f'v_add_u32 v{vT}, s85, v{vT}']
    for tau in range(4):
        VD += [f'v_xor_b32 v{vDr+3*tau}, {32*tau}, v{vT}', f'v_add_u32 v{vDr+3*tau+1}, 65536, v{vDr+3*tau}', f'v_add_u32 v{vDr+3*tau+2}, 131072, v{vDr+3*tau}']
    AW = {6: 64, 7: 80, 8: 192, 9: 208, 10: 96, 11: 112, 12: 224, 13: 240}
    def wdreg(p, tau):
        if p < 6: return 'v', 160 + p*16 + tau*4
        return 'a', AW[p] + tau*4
    def rd_wd(p, sg):
        L = []
        ad = slot(sg)
        for tau in (1, 2, 3, 0):
            f, r = wdreg(p, tau)
            for h2 in range(2):
                L.append(('lg', f'ds_read_b64_tr_b16 {vr(r+2*h2,2,f)}, v{vDr+3*tau+(ad>>16)} offset:{(ad&65535)+h2*2048}', f'rw{p}'))
        return L
    FINAL = {6: 4, 7: 2, 8: 5, 9: 0, 10: 6, 11: 3, 12: 7, 13: 1}
    def actreg(m, i):
        if m == 2: return vr(40 + 4*i, 4)
        b = 32*(m & 1 if m < 2 else 0)
        return ar(b + 4*i if i < 8 else 128 + b + 4*(i-8), 4)
    def ld_act(m):
        L = []
        for i in range(14):
            if i % 4 == 0: L.append(f's_add_u32 s70, s82, {(2*m*56+i)*1024}')
            L.append(('vm', f'buffer_load_dwordx4 {actreg(m,i)}, v{vL16}, {SR(SRD_WS)}, s70 offen offset:{(i&3)*1024} sc1', f'a{m}_{i}'))
        return L
    a(f's_cmp_ge_u32 s{S_J}, 28')
    a('s_cbranch_scc1 LC_idle')
    def ool_idle():
        a.label('LC_idle')
        vm.q = []; lg.q = []
        if cfg.get('iw'):
            a(f's_and_b32 s70, s{S_J}, 3')
            a(f's_lshl_b32 s70, s70, 13')
            a(f's_mul_i32 s83, s{W}, {448*1024}')
            a(f's_add_u32 s70, s70, s83')
            a(f'v_lshlrev_b32 v{vTa}, 7, v0')
            for t in range(7):
                a(f's_add_u32 s83, s70, {(224+32*t)*1024}')
                a(f'buffer_load_dword v{vTa+1}, v{vTa}, {SR(SRD_WD)}, s83 offen')
        a('s_waitcnt vmcnt(0)')
        a('s_barrier')
        g.emits(VD)
        for p in range(6): g.emits(dma_wd(p, p))
        vm.wait_all()
        for p in range(6): g.emits(rd_wd(p, p))
        lg.wait_all()
        for p in range(6, 14): g.emits(dma_wd(p, FINAL[p]))
        for i in range(int(cfg.get('isl', 0))): a('s_sleep 127')
        poll(g, 'LI_poll', vPa, vPl, 1, 79, '1')
        g.emits(ld_act(0))
        for p in range(6, 10): g.emits(rd_wd(p, FINAL[p]))
        g.emits(ld_act(1))
        vm.wait_all(); lg.wait_all()
        a('s_branch LD_start')
    OOL.append(ool_idle)
    g.stamp('P.cs')
    vm.wait('pl')
    a.label('LC_chk')
    a(f'v_cmp_gt_u32 vcc, 1, v{vGt}')
    a('s_cbranch_vccnz LX_cp')
    def ool_cp():
        a.label('LX_cp')
        a(f'buffer_load_dword v{vGt}, v{vT+4}, {SR(SRD_WS)}, s84 offen sc1')
        a('s_waitcnt vmcnt(0)')
        guard(g)
        a('s_branch LC_chk')
    OOL.append(ool_cp)
    g.stamp('C.sync')
    def dma_h(s):
        L = [f's_add_u32 m0, s85, {16384*s}', f's_add_u32 s83, s73, {16384*s}']
        for i in range(4):
            L.append(('vm', f'buffer_load_dwordx4 v{vL16}, {SR(SRD_WS)}, s83 offen offset:{i*1024} sc1 lds', f'h{s}'))
        return L
    g.emits(dma_h(0))
    STL = [('vm', f'buffer_load_dwordx4 {vr(vSt+4*i,4)}, v{vL16}, {SR(SRD_WS)}, s74 offen offset:{i*1024} sc1', 'stats') for i in range(4)]
    vm.wait('S3')
    a('s_barrier')
    R3 = rd_gu(3)
    weave(g, csum((2,)), [[(0, 16, STL + dma_h(1), 2)], [(i, i+1, cut(R3, 3)) for i in range(11)]], 24, 'P2')
    lg.wait_all()
    weave(g, csum((3,)), [[(0, 16, dma_h(2), 4)], [(0, 16, VD)]], 8, 'P3')
    def rdh(s, ks): return ('lg', f'ds_read_b128 {vr(vHf+ks*4,4)}, v{vHa+(s>>2)} offset:{(s&3)*16384+ks*1024}', f'f{ks}')
    vm.wait('h0')
    a('s_barrier')
    g.stamp('C.h0')
    for ks in range(16): g.emit(rdh(0, ks))
    c0 = -2*0.7978845608028654*LOG2E
    def consts():
        L = [('wvm', 'stats')]
        for st in (8, 4):
            for i in range(st): L.append(f'v_add_f32 v{vSt+i}, v{vSt+i}, v{vSt+i+st}')
        x, y = vSt, vSt+1
        o = vSt+4
        L += [f'v_lshrrev_b32 v{vSt+8}, 5, v0', f'v_and_b32 v{vSt+9}, 15, v0',
              f'v_permlane32_swap_b32 v{vSt}, v{vSt+2}', f'v_permlane32_swap_b32 v{vSt+1}, v{vSt+3}',
              f'v_add_f32 v{x}, v{x}, v{vSt+2}', f'v_add_f32 v{y}, v{y}, v{vSt+3}',
              f'v_mov_b32 v{vSt+2}, v{x}', f'v_mov_b32 v{vSt+3}, v{y}',
              f'v_lshl_add_u32 v{vSt+8}, v{vSt+9}, 1, v{vSt+8}', f's_lshl_b32 s76, s{W}, 9', f's_add_u32 s76, s76, {CONST}',
              f'v_permlane16_swap_b32 v{x}, v{vSt+2}', f'v_permlane16_swap_b32 v{y}, v{vSt+3}',
              f'v_add_f32 v{x}, v{x}, v{vSt+2}', f'v_add_f32 v{y}, v{y}, v{vSt+3}',
              f'v_mul_f32 v{o}, {fbits(-1/512)}, v{x}',
              f'v_mul_f32 v{y}, {fbits(1/512)}, v{y}',
              f'v_fma_f32 v{y}, -v{o}, v{o}, v{y}',
              f'v_max_f32 v{y}, 0, v{y}',
              f'v_add_f32 v{o+3}, {fbits(1e-5)}, v{y}',
              f'v_rsq_f32 v{x}, v{o+3}',
              f'v_lshl_add_u32 v{vSt+8}, v{vSt+8}, 4, s76',
              f'v_mul_f32 v{y}, v{x}, v{x}',
              f'v_mul_f32 v{o+1}, {fbits(c0)}, v{x}',
              f'v_mul_f32 v{y}, {fbits(0.044715)}, v{y}',
              f'v_mul_f32 v{o+2}, v{o+1}, v{y}',
              ('lg', f'ds_write_b128 v{vSt+8}, {vr(o,4)}', 'cw')]
        return L
    def gelu(pair, s):
        K = vK4 + 4*(s & 1)
        nm, k0, k1, vv = K, K+1, K+2, K+3
        ag = vCa + pair*8; au = ag + 4; cg = vCsum + pair*8; cu = cg + 4
        t, u, e = vGt, vGt+4, vGt+8
        L = []
        if pair == 0: L.append(('wlg', f'k{s}'))
        R = range(4)
        L += [f'v_fma_f32 v{t+i}, v{nm}, v{cg+i}, v{ag+i}' for i in R]
        L += [f'v_fma_f32 v{u+i}, v{nm}, v{cu+i}, v{au+i}' for i in R]
        n1 = len(L)
        L += [f'v_mul_f32 v{e+i}, v{t+i}, v{t+i}' for i in R]
        L += [f'v_fma_f32 v{e+i}, v{e+i}, v{k1}, v{k0}' for i in R]
        L += [f'v_mul_f32 v{e+i}, v{e+i}, v{t+i}' for i in R]
        L += [f'v_exp_f32 v{e+i}, v{e+i}' for i in R]
        L += [f'v_mul_f32 v{t+i}, v{t+i}, v{u+i}' for i in R]
        L += [f'v_fma_f32 v{e+i}, v{e+i}, v{vv}, v{vv}' for i in R]
        L += [f'v_rcp_f32 v{e+i}, v{e+i}' for i in R]
        L += [f'v_mul_f32 v{t+i}, v{t+i}, v{e+i}' for i in R]
        L += [f'v_cvt_pk_bf16_f32 v{vOut+2*pair+i}, v{t+2*i}, v{t+2*i+1}' for i in range(2)]
        if pair == 1:
            L.insert(n1, f's_add_u32 s76, s75, {s*56*1024}')
            L.append(('vm', f'buffer_store_dwordx4 {vr(vOut,4)}, v{vL16}, {SR(SRD_ACT)}, s76 offen sc1', f'act{s}'))
        return L
    def flagW(): return [('vm', f'buffer_store_dword v{vF1}, off, {SR(SRD_FL)}, s77 sc1', 'flag'), 's_add_u32 s77, s77, 32768']
    def flagC(n): return g.st(f'F.{n}a') + [('wvm', f'act{n-1}'), 's_barrier'] + g.st(f'F.{n}b') + flagW()
    PS = {'p1': 79, 'p2': 80, 'p3': 81}
    def pload(tag): return [('vm', f'buffer_load_dword v{vPl}, v{vPa}, {SR(SRD_WS)}, s{PS[tag]} offen sc1', tag)]
    def pcheck(tag, need=1):
        def f():
            a.label(f'LP_{tag}')
            a(f'v_cmp_gt_u32 vcc, {need}, v{vPl}')
            a(f's_cbranch_vccnz LX_{tag}')
        def o():
            a.label(f'LX_{tag}')
            a(f'buffer_load_dword v{vPl}, v{vPa}, {SR(SRD_WS)}, s{PS[tag]} offen sc1')
            a('s_waitcnt vmcnt(0)')
            guard(g)
            a(f's_branch LP_{tag}')
        OOL.append(o)
        return g.st(f'Q.{tag}a') + [('wvm', tag)] + g.st(f'Q.{tag}b') + [f] + g.st(f'Q.{tag}c')
    RECY = {1: (0, 0, 3), 2: (1, 1, 5), 3: (2, 2, 7), 4: (3, 0, 9), 5: (4, 3, 11), 6: (5, 1, 13)}
    FRESH = {0: (1, 1), 1: (2, 2), 2: (4, 3), 3: (6, 4), 4: (8, 5), 5: (10, 6), 6: (12, 7)}
    lg.wait('f3')
    mf = []; GS = []; DS = []; RS = []; XS = []
    for s in range(8):
        bq = 27 if s == 0 else 13
        B = 64*s
        for q in range(64):
            rt, ks = q >> 4, q & 15
            acc = vr(vCa+rt*4, 4)
            fx = []
            if q in (3, 7, 11): fx.append(('wlg', f'f{q+4}'))
            if q == 63 and s < 7: fx.append(('wlg', 'f3'))
            if q == bq-1:
                if s == 0: fx.append(('wlg', 'cw'))
                if s < 7 or s >= 5: fx.append(('wvm',) + ((f'h{s+1}',) if s < 7 else ()) + ((f'act{s-2}',) if s >= 5 else ()))
            if q == bq:
                fx.append('s_barrier')
                fx.append(('lg', f'ds_read_b128 {vr(vK4+4*(s&1),4)}, v{vKa} offset:{s*256}', f'k{s}'))
            if q == 63: fx += g.st(f'C.it{s}')
            if rt == 3 and s < 7: fx.append(rdh(s+1, ks))
            mf.append((f'v_mfma_f32_16x16x32_bf16 {acc}, {ar(aGU(rt,ks),4)}, {vr(vHf+ks*4,4)}, {"0" if ks==0 else acc}', fx))
        if s == 0: GS.append((0, bq-1, consts()))
        g0 = gelu(0, s); g1 = gelu(1, s)
        GS.append((B+34, B+63, g0[:9])); GS.append((B+34, B+64+8 if s < 7 else B+64, g0[9:]))
        GS.append((B+66, B+64+31, g1[:8])); GS.append((B+66, B+64+40, g1[8:]))
        if s == 0: DS.append((0, bq+8, dma_h(3) + dma_h(4) + dma_wd(0, 0), 3))
        elif s < 4: DS.append((B, B+30, dma_h(s+4), 4))
        if s in FRESH: DS.append((B+bq, B+50, dma_wd(*FRESH[s]), 4))
        if s in RECY:
            p, sg, pn = RECY[s]
            RS.append((B+16, B+44, g.st(f'R.{p}a') + [('wvm', f'wd{p}')] + g.st(f'R.{p}b') + rd_wd(p, sg)))
            DS.append((B+46, B+64, [('wlg', f'rw{p}')] + dma_wd(pn, sg), 4))
        if s >= 5: XS.append((B+bq, B+bq+2, flagW()))
        if s == 6: XS.append((B+40, B+46, pload('p1')))
    B = 448
    XS.append((B+14, B+17, pcheck('p1')))
    XS.append((B+16, B+44, ld_act(0), 1))
    XS.append((B+32, B+64, ld_act(1), 1))
    RS.append((B+48, B+64, [('wvm', 'wd9')] + rd_wd(6, FINAL[6]) + rd_wd(7, FINAL[7]) + rd_wd(8, FINAL[8]) + rd_wd(9, FINAL[9])))
    DA = ((104, 108, 120, 124), (112, 116, 128, 132))
    vRd = 144; vHr = 96; vU4 = 136
    def red1(m):
        return [('lg', f'ds_write_b128 v{vWa}, {vr(DA[m&1][tau],4)} offset:{16384*m+1024*tau}', 'dw') for tau in range(1, 4)]
    def red2(m):
        b = DA[m&1][0]
        L = [('wlg', 'dw'), 's_barrier']
        L += [('lg', f'ds_read_b128 {vr(vRd+4*(tau-1),4)}, v{vRa[tau-1]} offset:{16384*m+1024*tau}', 'dr') for tau in range(1, 4)]
        L += [('wvm', 'hres'), f's_add_u32 s84, s78, {m*32768}']
        for i in range(2):
            L += [f'v_lshlrev_b32 v{vU4+2*i}, 16, v{vHr+2*m+i}', f'v_and_b32 v{vU4+2*i+1}, 0xffff0000, v{vHr+2*m+i}']
        L += [f'v_add_f32 v{vU4+i}, v{vU4+i}, v{b+i}' for i in range(4)]
        return L
    OB = cfg.get('ob', '')
    def red3(m):
        L = [('wlg', 'dr')]
        L += [f'v_add_f32 v{vRd+i}, v{vRd+i}, v{vRd+4+i}' for i in range(4)]
        L += [f'v_add_f32 v{vU4+i}, v{vU4+i}, v{vRd+8+i}' for i in range(4)]
        L += [f'v_add_f32 v{vU4+i}, v{vU4+i}, v{vRd+i}' for i in range(4)]
        L += [f'v_cvt_pk_bf16_f32 v{vHr+2*m+i}, v{vU4+2*i}, v{vU4+2*i+1}' for i in range(2)]
        L += [('vm', f'buffer_store_dwordx2 {vr(vHr+2*m,2)}, v{vOa}, {SR(SRD_OUT)}, s84 offen {OB}', 'out')]
        return L
    def dlabel():
        a.label('LD_start')
    tailseg = [GS.pop(), GS.pop()][::-1]
    weave(g, mf, [GS, DS, RS, XS], 8, 'C')
    dlabel()
    vm.wait('a0_1'); lg.wait('rw9')
    mf = []; GS = []; RS = []; XS = []; ES = []
    for m in range(4):
        B = 56*m
        order = [(tau, i) for tau in (1, 2, 3, 0) for i in range(14)]
        if m == 0: order = [(tau, i) for tau in (1, 2, 3, 0) for i in range(10)] + [(tau, i) for tau in (1, 2, 3, 0) for i in range(10, 14)]
        for q, (tau, i) in enumerate(order):
            acc = vr(DA[m&1][tau], 4)
            f, r = wdreg(i, tau)
            fx = []
            if q + 1 < 56:
                t1, i1 = order[q+1]
                if t1 == 1 and i1 % 2 == 0: fx.append(('wvm', f'a{m}_{i1+1}'))
                if m == 0 and q + 1 == 40: fx.append(('wlg', 'rw13'))
            elif m < 3: fx.append(('wvm', f'a{m+1}_1'))
            if q == 55: fx += g.st(f'D.m{m}')
            mf.append((f'v_mfma_f32_16x16x32_bf16 {acc}, {vr(r,4,f)}, {actreg(m,i)}, {"0" if i==0 else acc}', fx))
        if m:
            ES.append((B+3, B+16, red2(m-1))); ES.append((B+20, B+36, red3(m-1)))
        if m == 0: ES.append((B+55, B+59, red1(m)))
        else: ES.append((B+46, B+56, red1(m), 2))
    GS = [(2, 20, tailseg[0][2]), (2, 36, tailseg[1][2])]
    RS = [(0, 38, [('wvm', 'wd13')] + rd_wd(10, FINAL[10]) + rd_wd(11, FINAL[11]) + rd_wd(12, FINAL[12]) + rd_wd(13, FINAL[13]))]
    hres = []
    for m in range(4):
        hres += [f's_add_u32 s83, s86, {m*32768}', ('vm', f'buffer_load_dwordx2 {vr(vHr+2*m,2)}, v{vL16}, {SR(SRD_WS)}, s83 offen sc1', 'hres')]
    P2, P3 = int(cfg.get('p2', 56)), int(cfg.get('p3', 108))
    XS = [(4, 10, flagC(7)), (10, 36, hres), (37, 40, pload('p2')), (P2, P2+4, flagC(8) + pcheck('p2') + g.st('D.p2')), (P2+2, P2+32, ld_act(2), 1),
          (P3-22, P3-18, pload('p3')), (P3, P3+3, pcheck('p3') + g.st('D.p3')), (P3+1, P3+30, ld_act(3), 1)]
    weave(g, mf, [GS, RS, XS, ES], 8, 'D')
    g.emits(red2(3) + red3(3))
    g.stamp('D.end')
    if cfg.get('dbgst'):
        a('s_waitcnt lgkmcnt(0)')
        a(f's_lshl2_add_u32 s70, s{S_WG}, s{W}')
        a(f's_cmp_lg_u32 s70, {int(cfg["dbgst"])*4}')
        a('s_cbranch_scc1 Lend')
        for i in range(1, min(g.ns, 17)):
            a(f's_sub_u32 s70, s{TSREG[i]}, s{TSREG[0]}')
            a(f'v_mov_b32 v2, s70')
            a(f'buffer_store_dword v2, off, {SR(SRD_DBG)}, 0 offset:{4*(i-1)}')
    elif cfg.get('stamps'):
        a('s_waitcnt lgkmcnt(0)')
        a(f's_lshl2_add_u32 s70, s{S_WG}, s{W}')
        a(f's_lshl_b32 s70, s70, 7')
        a(f's_add_u32 s70, s70, {WS_TS}')
        for i in range(g.ns):
            a(f'v_mov_b32 v2, s{TSREG[i]}')
            a(f'buffer_store_dword v2, off, {SR(SRD_WS)}, s70 offset:{4*i}')
    a.label('Lend')
    a('s_endpgm')
    for o in OOL[::-1]:
        a.hist = []
        o()
    hdr = '; @launch grid=(256,1,1) block=(256,1,1) lds=163840\n'
    if cfg.get('stamps') and not cfg.get('dbgst'): hdr += '; stamps: ' + ','.join(g.names) + '\n'
    hdr += '.amdgcn_target "amdgcn-amd-amdhsa--gfx950"\n.text\n'
    KD = f""".section .rodata,"a"
.p2align 6
.amdhsa_kernel {k}
  .amdhsa_next_free_vgpr 512
  .amdhsa_next_free_sgpr 102
  .amdhsa_accum_offset 256
  .amdhsa_group_segment_fixed_size 0
  .amdhsa_kernarg_size 80
  .amdhsa_user_sgpr_count 2
  .amdhsa_user_sgpr_kernarg_segment_ptr 1
  .amdhsa_system_sgpr_workgroup_id_x 1
.end_amdhsa_kernel
"""
    print('nops', a.nops, 'stamps', g.ns, file=sys.stderr)
    return hdr + a.text() + KD

if __name__ == '__main__':
    out = sys.argv[1]
    cfg = {}
    for o in sys.argv[2:]:
        k_, _, v = o.partition('=')
        cfg[k_] = v.split(',') if k_ == 'sel' else (v or True)
    open(out, 'w').write(build(cfg))
```

```python
import sys, struct
from asmlib import *

NAME = 'sequential_preLN__linear_attn_block__geglu_ffn__prompt'
WS_PQ = 0x000000; WS_H = 0x200000; WS_ACT = 0x400000; WS_STATS = 0xB00000; WS_KV = 0xB40000
WS_FLAG = 0xB50000; WS_TS = 0xC00000; WS_SIZE = 0xD00000
FA = WS_FLAG; FB = WS_FLAG + 256*128; FC = WS_FLAG + 512*128
LOG2E = 1.4426950408889634; LN2 = 0.6931471805599453
def fbits(x): return '0x%08x' % struct.unpack('<I', struct.pack('<f', x))[0]

S_WG = 2; W = 3
SRD_X = 36; SRD_WQKV = 40; SRD_WO = 44; SRD_WGU = 48; SRD_WD = 52; SRD_OUT = 56; SRD_WS = 60; SRD_DBG = 64
SRD_ACT = 40
S_XC = 68; S_J = 69
def SR(b): return f's[{b}:{b+3}]'
def v2(b): return f'v[{b}:{b+1}]'

class Cnt:
    def __init__(self, a, name, cap): self.a = a; self.q = []; self.name = name; self.cap = cap; self.seen = set()
    def issue(self, text, tag='x'):
        self.a(text); self.q.append(tag); self.seen.add(tag)
        if self.name == 'vmcnt': assert len(self.q) <= self.cap, "vmcnt overflow"
    def wait(self, *tags):
        for t in tags: assert t in self.seen, ('wait on unissued', t)
        last = -1
        for i, t in enumerate(self.q):
            if t in tags: last = i
        if last < 0: return
        n = len(self.q) - 1 - last
        n = min(n, self.cap)
        self.a(f's_waitcnt {self.name}({n})')
        self.q = self.q[len(self.q)-n:] if n else []
    def wait_all(self):
        self.a(f's_waitcnt {self.name}(0)'); self.q = []

TSREG = list(range(90, 100, 2)) + list(range(8, 16, 2)) + [30,32,34,16,18,20,22,24,26,28,4,6]

class G:
    def __init__(self, cfg):
        self.a = Asm(); self.cfg = cfg
        self.vm = Cnt(self.a, 'vmcnt', 63); self.lg = Cnt(self.a, 'lgkmcnt', 15)
        self.ns = 0; self.names = []
    def want(self, name):
        if not self.cfg.get('stamps'): return False
        sel = self.cfg.get('sel')
        return not (sel and not any(name.startswith(p) for p in sel))
    def stamp(self, name):
        if not self.want(name): return
        r = TSREG[self.ns]; self.ns += 1; self.names.append(name)
        self.a(f'{"s_memtime" if self.cfg["stamps"] == "cyc" else "s_memrealtime"} s[{r}:{r+1}]')
    def st(self, name):
        return [lambda: self.stamp(name)] if self.want(name) else []
    def emit(self, t):
        if isinstance(t, str): self.a(t)
        elif callable(t): t()
        elif t[0] == 'vm': self.vm.issue(t[1], t[2])
        elif t[0] == 'lg': self.lg.issue(t[1], t[2])
        elif t[0] == 'wvm': self.vm.wait(*t[1:])
        elif t[0] == 'wlg': self.lg.wait(*t[1:])
        else: raise ValueError(t)
    def emits(self, L):
        for x in L: self.emit(x)

def cls(t):
    if callable(t): return 0
    if isinstance(t, tuple): return 1 if t[0] in ('vm', 'lg') else 0
    op = t.split()[0]
    if op.startswith('s_'): return 0
    if op.startswith(('ds_', 'buffer_', 'global_')): return 1
    return 2
def cost(t):
    c = cls(t)
    if c == 0: return 4
    tx = t if isinstance(t, str) else t[1]
    op = tx.split()[0]
    if c == 1: return 20 if op == 'ds_write_b128' else 4
    return 8 if (op.split('_e')[0] in TRANS or op in TRANS) else 4

def weave(g, mf, streams, cap, name=''):
    n = len(mf)
    def fcost(items):
        c = sum(cost(x) for x in items)
        return c - 4 if any(cls(x) == 0 for x in items) else c
    fixed = [fcost(m[1]) for m in mf]
    segs = [[[s[0], s[1], list(s[2]), s[3] if len(s) > 3 else 0] for s in st if s[2]] for st in streams]
    lastmem = [-99]*len(segs)
    tot = 0
    for i in range(n):
        gap = [[], [], []]; tail = []
        for x in mf[i][1]: gap[cls(x)].append(x)
        used = fixed[i]
        lc = [-1]*len(segs)
        blocked = set()
        while True:
            best = None
            for k, st in enumerate(segs):
                if not st or k in blocked or st[0][0] > i: continue
                if best is None or st[0][1] < segs[best][0][1]: best = k
            if best is None: break
            sg = segs[best][0]; it = sg[2][0]; c = cls(it)
            must = i >= sg[1]-1
            kk = 0 if (c == 0 and not gap[0]) else cost(it)
            if not must:
                if c < lc[best] or (c == 1 and sg[3] and i - lastmem[best] < sg[3]): blocked.add(best); continue
                if used + kk > cap:
                    dem = sum(sum(cost(x) for x in s[2] if cls(x)) for st in segs for s in st if s[1] <= sg[1])
                    room = sum(max(0, cap - fixed[j]) for j in range(i+1, min(n, sg[1])))
                    if not (used < cap and dem > room): blocked.add(best); continue
            if c < lc[best] or tail and must and lc[best] == 9:
                tail.append(it); lc[best] = 9
            else:
                gap[c].append(it); lc[best] = c
            used += kk
            if c == 1: lastmem[best] = i
            sg[2].pop(0)
            if not sg[2]: segs[best].pop(0)
        g.a(mf[i][0])
        for x in gap[0] + gap[1] + gap[2] + tail: g.emit(x)
        tot += max(cap, used) + 8
    assert not any(segs), ('unplaced', name)
    print(f'weave {name}: {n} mfma est {tot} cyc', file=sys.stderr)

def srd(a, d, ptr, size):
    a(f's_mov_b32 s{d}, s{ptr}')
    a(f's_mov_b32 s{d+1}, s{ptr+1}')
    a(f's_mov_b32 s{d+2}, {size}')
    a(f's_mov_b32 s{d+3}, 0x20000')

def guard(g):
    if g.cfg.get('safe'):
        g.a('s_sub_u32 s100, s100, 1')
        g.a('s_cbranch_scc1 Lend')

def poll(g, label, vaddr, vdst, n, soff, need):
    a = g.a
    a.label(label)
    sfx = {1: '', 4: 'x4'}[n]
    a(f'buffer_load_dword{sfx} {vr(vdst, n)}, v{vaddr}, {SR(SRD_WS)}, s{soff} offen sc1')
    g.vm.wait_all()
    if n == 4:
        a(f'v_min_u32 v{vdst}, v{vdst}, v{vdst+1}')
        a(f'v_min3_u32 v{vdst}, v{vdst}, v{vdst+2}, v{vdst+3}')
    a(f'v_cmp_gt_u32 vcc, {need}, v{vdst}')
    guard(g)
    a(f's_cbranch_vccnz {label}')

def build(cfg):
    g = G(cfg); a = g.a; vm = g.vm; lg = g.lg
    k = NAME + '_kernel'
    OOL = []
    FSH = 7
    SRD_FL = SRD_X
    a.raw(f'.globl {k}\n.p2align {12 if cfg.get("tour") or cfg.get("al") else 8}\n.type {k},@function\n{k}:')
    a(f's_cmp_ge_u32 s{S_WG}, 256')
    a('s_cbranch_scc1 Lend')
    a('s_load_dwordx16 s[16:31], s[0:1], 0')
    a('s_load_dwordx4 s[32:35], s[0:1], 64')
    g.stamp('A.start')
    if cfg.get('safe'): a('s_mov_b32 s100, 200000')
    a('v_lshrrev_b32 v1, 6, v0')
    a(f's_lshr_b32 s{S_J}, s{S_WG}, 3')
    a(f'v_readfirstlane_b32 s{W}, v1')
    a('v_and_b32 v0, 63, v0')
    a(f's_and_b32 s{S_XC}, s{S_WG}, 7')
    vTa, vTd = 218, 234
    a(f'v_lshlrev_b32 v{vTa}, 7, v0')
    if cfg.get('cpf'):
        a(f's_cmp_ge_u32 s{S_J}, 2')
        a('s_cbranch_scc1 LX_cpf_ret')
        a('s_getpc_b64 s[4:5]')
        a.label('LX_pc')
        a(f's_lshl2_add_u32 s76, s{S_J}, s{W}')
        a(f's_lshl_b32 s76, s76, 13')
        a(f'v_add_u32 v{vTd}, s76, v{vTa}')
        a(f'v_min_u32 v{vTd}, Lfin-LX_pc-4, v{vTd}')
        a(f'global_load_dword v{vTd}, v{vTd}, s[4:5]')
        a.label('LX_cpf_ret')
    XR = 98304
    s_rb, s_hp, s_x, s_w, s_m0x, s_m0w, s_rot = 70, 71, 72, 73, 74, 75, 82
    a(f's_lshr_b32 s76, s{S_XC}, 1')
    a(f's_and_b32 s{s_rb}, s{S_J}, 3')
    a(f's_lshl2_add_u32 s{s_rb}, s76, s{s_rb}')
    a(f's_and_b32 s76, s{S_XC}, 1')
    a(f's_lshr_b32 s{s_hp}, s{S_J}, 2')
    a(f's_lshl3_add_u32 s{s_hp}, s76, s{s_hp}')
    a(f's_lshr_b32 s76, s{S_J}, 3')
    a(f's_add_u32 s{s_rot}, s{S_J}, s76')
    a(f's_add_u32 s{s_rot}, s{s_rot}, s{S_XC}')
    if cfg.get('rot'): a(f's_lshl_b32 s{s_rot}, s{s_rot}, {cfg["rot"]}')
    a(f's_lshl2_add_u32 s{s_x}, s{s_rb}, s{W}')
    a(f's_lshl_b32 s{s_x}, s{s_x}, 15')
    a(f's_mul_i32 s{s_w}, s{W}, {16*3072}')
    a(f's_lshl_b32 s76, s{s_hp}, 6')
    a(f's_add_u32 s{s_w}, s{s_w}, s76')
    a(f's_lshl_b32 s{s_m0x}, s{W}, 14')
    a(f's_add_u32 s{s_m0x}, s{s_m0x}, {XR}')
    a(f's_mul_i32 s{s_m0w}, s{W}, 3072')
    vXd = 4; vWd = 8; vXr = 12; vWn = 16; vWp = 20
    vSum, vSq, vCs = 24, 25, 26
    vOne = 29; vT = 30; vAcc = 40; vX = 88; vW = 120
    vWo = 220
    vDbg = 216; vDbgA = 217
    a(f'v_lshrrev_b32 v{vT}, 3, v0')
    a(f'v_and_b32 v{vT+1}, 7, v0')
    a(f'v_lshrrev_b32 v{vT+2}, 1, v{vT}')
    a(f'v_xor_b32 v{vT+1}, v{vT+1}, v{vT+2}')
    a(f'v_lshlrev_b32 v{vT+1}, 4, v{vT+1}')
    a(f'v_lshl_add_u32 v{vXd}, v{vT}, 10, v{vT+1}')
    a(f'v_xor_b32 v{vXd+1}, 64, v{vXd}')
    a(f'v_add_u32 v{vXd+1}, {8192-1024}, v{vXd+1}')
    a(f'v_add_u32 v{vXd+2}, {2*(8192-1024)}, v{vXd}')
    a(f'v_add_u32 v{vXd+3}, {2*(8192-1024)}, v{vXd+1}')
    for q in range(3):
        a(f'v_add_u32 v{vT}, {64*q}, v0')
        a(f'v_mul_u32_u24 v{vT+1}, 171, v{vT}')
        a(f'v_lshrrev_b32 v{vT+1}, 11, v{vT+1}')
        a(f'v_mul_u32_u24 v{vT+2}, 12, v{vT+1}')
        a(f'v_sub_u32 v{vT+2}, v{vT}, v{vT+2}')
        a(f'v_mul_u32_u24 v{vT+1}, 3072, v{vT+1}')
        a(f'v_lshrrev_b32 v{vT+3}, 2, v{vT+2}')
        a(f'v_lshl_add_u32 v{vT+1}, v{vT+3}, 10, v{vT+1}')
        a(f'v_and_b32 v{vT+2}, 3, v{vT+2}')
        a(f'v_lshl_add_u32 v{vWd+q}, v{vT+2}, 4, v{vT+1}')
        if q == 0: a(f'v_lshl_add_u32 v249, v{vT+2}, 7, v{vT+1}')
        if q: a(f'v_subrev_u32 v{vWd+q}, {1024*q}, v{vWd+q}')
    a(f'v_lshlrev_b32 v219, 6, v0')
    a(f's_lshl2_add_u32 s87, s{S_J}, s{W}')
    a(f's_and_b32 s83, s{S_WG}, 0xe4')
    a(f's_or_b32 s83, s83, s{W}')
    a(f's_mov_b32 s{SRD_X+2}, {2048*512*2}')
    a(f's_mov_b32 s{SRD_X+3}, 0x20000')
    a(f's_mov_b32 s{SRD_WQKV+2}, {512*1536*2}')
    a(f's_mov_b32 s{SRD_WQKV+3}, 0x20000')
    a(f's_mov_b32 s{SRD_WS+2}, {WS_SIZE}')
    a(f's_mov_b32 s{SRD_WS+3}, 0x20000')
    a('s_waitcnt lgkmcnt(0)')
    g.stamp('S.karg')
    a(f's_mov_b64 s[{SRD_X}:{SRD_X+1}], s[16:17]')
    a(f's_mov_b64 s[{SRD_WQKV}:{SRD_WQKV+1}], s[18:19]')
    a(f's_mov_b64 s[{SRD_WS}:{SRD_WS+1}], s[34:35]')
    def dma_xw(c):
        L = [f's_add_u32 s78, s{s_rot}, {c}', f's_and_b32 s78, s78, 7', f's_lshl_b32 s76, s78, 7', f's_add_u32 s76, s76, s{s_x}',
             f's_add_u32 m0, s{s_m0x}, {(c&3)*4096}', f's_mul_i32 s77, s78, {64*3072}']
        for i in range(4):
            L.append(('vm', f'buffer_load_dwordx4 v{vXd+i}, {SR(SRD_X)}, s76 offen offset:{i*1024} lds', f'c{c}'))
        L += [f's_add_u32 m0, s{s_m0w}, {c*12288}', f's_add_u32 s77, s77, s{s_w}']
        for q in range(3):
            L.append(('vm', f'buffer_load_dwordx4 v{vWd+q}, {SR(SRD_WQKV)}, s77 offen offset:{q*1024} lds', f'c{c}'))
        return L
    NX = int(cfg.get('nx', 4))
    TL = {}
    for it in (cfg.get('tl') or '').split('+'):
        if it:
            n_, p_ = it.split('@'); TL.setdefault(p_, []).append(n_)
    vT64, vTw, vTg = 219, 249, 250
    tcnt = [0]
    def touch1(n):
        tcnt[0] += 1
        lab = f'LT_{tcnt[0]}'
        def f():
            if n == 'x':
                a(f's_lshr_b32 s81, s{S_XC}, 1')
                a(f's_lshl_b32 s81, s81, 7')
                a(f's_add_u32 s81, s81, s87')
                a(f's_lshl_b32 s81, s81, 12')
                vm.issue(f'buffer_load_dword v{vTd+1}, v{vT64}, {SR(SRD_X)}, s81 offen', 'touch')
            elif n == 'w':
                a(f's_and_b32 s81, s{S_XC}, 1')
                a(f's_lshl_b32 s81, s81, 9')
                a(f's_mul_i32 s4, s87, {4*3072}')
                a(f's_add_u32 s81, s81, s4')
                a('s_mov_b32 exec_hi, 0xffff')
                vm.issue(f'buffer_load_dword v{vTd+1}, v{vTw}, {SR(SRD_WQKV)}, s81 offen', 'touch')
                a('s_mov_b32 exec_hi, -1')
            elif n == 'o':
                a(f's_lshl_b32 s81, s87, 12')
                vm.issue(f'buffer_load_dword v{vTd+1}, v{vT64}, {SR(SRD_WO)}, s81 offen', 'touch')
            elif n in ('g0', 'g1'):
                a(f's_bitcmp1_b32 s{W}, 0')
                a('s_cselect_b64 s[4:5], s[26:27], s[24:25]')
                a(f's_mov_b32 s6, {512*1792*2}')
                a('s_mov_b32 s7, 0x20000')
                a(f's_lshr_b32 s81, s87, 1')
                a(f's_lshl_b32 s81, s81, 4')
                a(f's_bitcmp1_b32 s{S_XC}, 0')
                a(f's_addc_u32 s81, s81, {8*int(n[1])}')
                a(f's_mul_i32 s81, s81, 1792')
                a('s_mov_b32 exec_hi, 0xffffff')
                vm.issue(f'buffer_load_dword v{vTd+1}, v{vTg}, s[4:7], s81 offen', 'touch')
                a('s_mov_b32 exec_hi, -1')
            elif n == 'G':
                nl = 14336 // (64*NX)
                if NX < 8:
                    a(f's_cmp_ge_u32 s{S_XC}, {NX}')
                    a(f's_cbranch_scc1 {lab}')
                a(f's_bitcmp1_b32 s{W}, 0')
                a('s_cselect_b64 s[4:5], s[26:27], s[24:25]')
                a(f's_mov_b32 s6, {512*1792*2}')
                a('s_mov_b32 s7, 0x20000')
                a(f's_lshr_b32 s81, s87, 1')
                a(f's_mul_i32 s81, s81, {NX}')
                a(f's_add_u32 s81, s81, s{S_XC}')
                a(f's_mul_i32 s81, s81, {nl*128}')
                a(f'v_min_u32 v{vTd}, {(min(nl,56)-1)*128}, v{vTa}')
                for i in range(0, nl, 56):
                    (a if NX < 8 else vm.issue)(f'buffer_load_dword v{vTd+1}, v{vTd}, s[4:7], s81 offen')
                    if i + 56 < nl: a(f's_add_u32 s81, s81, {56*128}')
                a.label(lab)
            elif n == 'D':
                nl = 14336 // (128*NX)
                if NX < 8:
                    a(f's_cmp_ge_u32 s{S_XC}, {NX}')
                    a(f's_cbranch_scc1 {lab}')
                a(f's_mul_i32 s81, s87, {NX}')
                a(f's_add_u32 s81, s81, s{S_XC}')
                a(f's_mul_i32 s81, s81, {nl*128}')
                a(f'v_min_u32 v{vTd}, {(nl-1)*128}, v{vTa}')
                (a if NX < 8 else vm.issue)(f'buffer_load_dword v{vTd+1}, v{vTd}, {SR(SRD_WD)}, s81 offen')
                a.label(lab)
            else: raise ValueError(n)
        return f
    def touch(p): return [touch1(n) for n in TL.get(p, [])]
    a(f's_cmp_eq_u32 s83, 0')
    a('s_cbranch_scc0 LX_zero_ret')
    def ool_zero():
        for i in range(4): a(f'v_mov_b32 v{vT+i}, 0')
        a(f's_lshl2_add_u32 s77, s{S_J}, s{S_XC}')
        a(f's_mul_i32 s76, s77, 2176')
        a(f's_add_u32 s76, s76, {WS_KV}')
        a(f'v_lshlrev_b32 v{vT+4}, 4, v0')
        a(f'v_min_u32 v{vT+5}, {128-16}, v{vT+4}')
        a(f'buffer_store_dwordx4 v[{vT}:{vT+3}], v{vT+4}, {SR(SRD_WS)}, s76 offen sc1')
        a(f'buffer_store_dwordx4 v[{vT}:{vT+3}], v{vT+4}, {SR(SRD_WS)}, s76 offen offset:1024 sc1')
        a(f'buffer_store_dwordx4 v[{vT}:{vT+3}], v{vT+5}, {SR(SRD_WS)}, s76 offen offset:2048 sc1')
        a(f's_mul_i32 s76, s77, {112*128}')
        a(f's_add_u32 s76, s76, {WS_FLAG}')
        a(f's_add_u32 s77, s76, {48*128}')
        a(f'buffer_store_dword v{vT}, v{vTa}, {SR(SRD_WS)}, s76 offen sc1')
        a(f'buffer_store_dword v{vT}, v{vTa}, {SR(SRD_WS)}, s77 offen sc1')
    ool_zero()
    a.label('LX_zero_ret')
    g.emits(touch('pre'))
    g.emits(dma_xw(0)); g.stamp('S.d0')
    g.emits(touch('d0'))
    D1 = dma_xw(1)
    g.emits(D1[:10]); g.stamp('S.d1')
    g.emits(touch('dx'))
    a('s_mov_b32 s79, s77')
    srd(a, SRD_DBG, 32, 256)
    srd(a, SRD_WO, 20, 512*512*2)
    a(f's_cmp_ge_u32 s{W}, 2')
    a(f's_cselect_b64 s[{SRD_WGU}:{SRD_WGU+1}], s[26:27], s[24:25]')
    a(f's_cmp_ge_u32 s{S_J}, 28')
    if cfg.get('iw'):
        a(f's_cselect_b64 s[{SRD_WGU}:{SRD_WGU+1}], s[28:29], s[{SRD_WGU}:{SRD_WGU+1}]')
        a(f's_mov_b32 s{SRD_WGU+2}, {512*1792*2}')
    else: a(f's_cselect_b32 s{SRD_WGU+2}, 0, {512*1792*2}')
    a(f's_mov_b32 s{SRD_WGU+3}, 0x20000')
    srd(a, SRD_WD, 28, 1792*512*2)
    srd(a, SRD_OUT, 30, 2048*512*2)
    a(f'v_and_b32 v{vT}, 31, v0')
    a(f'v_lshrrev_b32 v{vT+1}, 5, v0')
    a(f'v_lshrrev_b32 v{vT+2}, 1, v{vT}')
    a(f'v_and_b32 v{vT+2}, 7, v{vT+2}')
    a(f'v_xor_b32 v{vT+2}, v{vT+2}, v{vT+1}')
    a(f'v_lshlrev_b32 v{vT+2}, 4, v{vT+2}')
    a(f'v_lshl_add_u32 v{vT+2}, v{vT}, 7, v{vT+2}')
    a(f'v_add_u32 v{vT+2}, s{s_m0x}, v{vT+2}')
    for s in range(4):
        a(f's_xor_b32 s76, s{W}, {s}')
        a(f's_lshl_b32 s76, s76, 5')
        a(f'v_xor_b32 v{vXr+s}, s76, v{vT+2}')
    a(f'v_bfe_u32 v{vT+2}, v0, 2, 2')
    a(f'v_lshl_add_u32 v{vT+2}, v{vT+1}, 3, v{vT+2}')
    a(f'v_mul_u32_u24 v{vT+2}, 192, v{vT+2}')
    a(f'v_bfe_u32 v{vT+3}, v0, 4, 1')
    a(f'v_lshl_add_u32 v{vT+2}, v{vT+3}, 5, v{vT+2}')
    a(f'v_and_b32 v{vT+3}, 3, v0')
    a(f'v_lshl_add_u32 v{vT+4}, v{vT+3}, 3, v{vT+2}')
    a(f'v_and_b32 v{vT+5}, 1, v0')
    a(f'v_lshl_add_u32 v{vT+5}, v{vT+5}, 4, v{vT+2}')
    a(f'v_bfe_u32 v{vT+3}, v0, 1, 1')
    a(f'v_lshl_add_u32 v{vT+5}, v{vT+3}, 3, v{vT+5}')
    for s in range(4):
        a(f's_xor_b32 s76, s{W}, {s}')
        a(f's_mul_i32 s76, s76, 3072')
        a(f'v_add_u32 v{vWn+s}, s76, v{vT+4}')
        a(f'v_add_u32 v{vWp+s}, s76, v{vT+5}')
    for r in (vSum, vSq, vCs, vCs+1, vCs+2): a(f'v_mov_b32 v{r}, 0')
    a(f'v_mov_b32 v{vOne}, 0x3f803f80')
    a(f'v_lshrrev_b32 v{vT}, 4, v0')
    a(f'v_and_b32 v{vT+1}, 15, v0')
    a(f'v_lshlrev_b32 v{vT+2}, 1, v{vT}')
    a(f'v_xor_b32 v{vT+1}, v{vT+1}, v{vT+2}')
    a(f'v_lshlrev_b32 v{vT+1}, 4, v{vT+1}')
    a(f'v_lshl_add_u32 v{vWo}, v{vT}, 10, v{vT+1}')
    a(f'v_add_u32 v{vWo+1}, {4096-1024}, v{vWo}')
    a(f'v_xor_b32 v{vWo+2}, 128, v{vWo}')
    a(f'v_add_u32 v{vWo+2}, {2*(4096-1024)}, v{vWo+2}')
    a(f'v_add_u32 v{vWo+3}, {4096-1024}, v{vWo+2}')
    a(f'v_and_b32 v{vDbgA}, 15, v0')
    a(f'v_lshlrev_b32 v{vDbgA}, 2, v{vDbgA}')
    a(f's_lshr_b32 s84, s{S_J}, 3')
    a(f's_lshl_b32 s84, s84, 8')
    a(f's_lshl_b32 s76, s{W}, 17')
    a(f's_add_u32 s84, s84, s76')
    a(f's_lshl_b32 s85, s{W}, 12')
    SC = 12288; CSA = 81920
    vE1, vE2, vE3, vE4, vE5, vE6, vE7, vE8, vE9, vE2b = range(224, 234)
    vL16 = 1
    a(f'v_and_b32 v{vT}, 31, v0')
    a(f'v_lshl_add_u32 v{vE1}, v{vT}, 2, s{s_m0x}')
    a(f'v_add_u32 v{vE1}, {SC}, v{vE1}')
    a(f'v_lshlrev_b32 v{vE2}, 2, v{vT}')
    a(f'v_add_u32 v{vE2}, {CSA}, v{vE2}')
    a(f'v_add_u32 v{vE2b}, 768, v{vE2}')
    a(f'v_lshrrev_b32 v{vT+1}, 5, v0')
    a(f'v_lshl_add_u32 v{vE3}, v{vT+1}, 4, s{s_m0x}')
    a(f's_mul_i32 s76, s{W}, 384')
    a(f's_add_u32 s76, s76, {CSA}')
    a(f'v_lshl_add_u32 v{vE4}, v0, 2, s76')
    a(f'v_mul_u32_u24 v{vT+1}, 272, v{vT+1}')
    a(f'v_bfe_u32 v{vT+2}, v0, 4, 1')
    a(f'v_mul_u32_u24 v{vT+2}, 544, v{vT+2}')
    a(f'v_add3_u32 v{vE6}, v{vT+1}, v{vT+2}, s{s_m0x}')
    a(f'v_and_b32 v{vT+1}, 3, v0')
    a(f'v_bfe_u32 v{vT+2}, v0, 2, 1')
    a(f'v_lshl_add_u32 v{vT+1}, v{vT+2}, 3, v{vT+1}')
    a(f'v_bfe_u32 v{vT+2}, v0, 3, 1')
    a(f'v_lshl_add_u32 v{vT+1}, v{vT+2}, 2, v{vT+1}')
    a(f'v_lshl_add_u32 v{vE5}, v{vT+1}, 4, v{vE6}')
    a(f's_lshl_b32 s78, s{W}, 8')
    a(f'v_lshl_add_u32 v{vE7}, v0, 2, s78')
    a(f'v_add_u32 v{vE8}, {XR+SC+1024}, v{vE7}')
    a(f'v_min_u32 v{vE9}, {XR+SC+1024+124}, v{vE8}')
    a(f'v_lshlrev_b32 v{vL16}, 4, v0')
    vOnes = 236
    for i in range(4): a(f'v_mov_b32 v{vOnes+i}, v{vOne}')
    a(f'v_mul_u32_u24 v{vT}, 147, v0')
    a(f'v_lshrrev_b32 v{vT}, 11, v{vT}')
    a(f'v_mul_u32_u24 v{vT}, 1792, v{vT}')
    a(f'v_add_u32 v{vTg}, v{vT}, v{vTa}')
    vXres = 240; vXa = 248
    a(f'v_and_b32 v{vT}, 15, v0')
    a(f'v_lshrrev_b32 v{vT+1}, 4, v0')
    a(f'v_lshlrev_b32 v{vT+2}, 3, v{vT+1}')
    a(f'v_lshl_add_u32 v{vXa}, v{vT}, 10, v{vT+2}')
    a(f's_and_b32 s88, s{S_J}, 7')
    a(f's_lshl3_add_u32 s88, s{S_XC}, s88')
    a(f's_lshl_b32 s88, s88, 15')
    a(f's_lshr_b32 s89, s{S_J}, 3')
    a(f's_lshl2_add_u32 s89, s89, s{W}')
    a(f's_lshl_b32 s89, s89, 6')
    a(f's_add_u32 s88, s88, s89')
    a(f's_add_u32 s89, s88, 16384')
    XRES = [('vm', f'buffer_load_dwordx2 {vr(vXres+m*4+t*2,2)}, v{vXa}, {SR(SRD_X)}, s{88+m} offen offset:{32*t}', 'xres') for m in range(2) for t in range(2)]
    a('s_mov_b32 s77, s79')
    g.emits(D1[10:])
    g.emits(touch('d1'))
    g.stamp('A.issued')
    def dma_wo(n):
        L = [f's_add_u32 m0, s85, {16384*n}' if n < 5 else f's_add_u32 m0, s{s_m0x}, {4096*(n-5)}', f's_add_u32 s77, s84, {n*16384}']
        for i in range(4):
            L.append(('vm', f'buffer_load_dwordx4 v{vWo+i}, {SR(SRD_WO)}, s77 offen offset:{i*1024} lds', f'wo{n>>2}'))
        return L
    def rdX(c):
        return [('lg', f'ds_read_b128 {vr(vX+(c&1)*16+s*4,4)}, v{vXr+s} offset:{(c&3)*4096}', 'x') for s in range(4)]
    def rdW(c, s):
        base = vW + (c&1)*48 + s*12
        off = (c&3)*12288
        L = []
        for tile in (1, 2, 0):
            ad = (vWp if tile == 0 else vWn) + s
            for h2 in range(2):
                L.append(('lg', f'ds_read_b64_tr_b16 {vr(base+tile*4+h2*2,2)}, v{ad} offset:{off + h2*768 + tile*64}', f'w{s}'))
        return L
    def ismem(x): return cls(x) == 1 or callable(x)
    def sprinkle(L, ex, first=0):
        n = sum(1 for x in ex if ismem(x))
        tot = sum(cost(x) for x in L)
        acc = 0; k = 0
        for x in L:
            while ex and acc >= first + (tot - first)*k/max(n, 1):
                while ex:
                    y = ex.pop(0); g.emit(y)
                    if ismem(y): break
                k += 1
            g.emit(x); acc += cost(x)
        g.emits(ex); del ex[:]
    def dots(c):
        xb = vX + (c&1)*16; wb = vW + (c&1)*48
        L = []
        for i in range(4):
            for tile in range(3):
                L.append(f'v_dot2c_f32_bf16 v{vCs+tile}, v{wb+tile*4+i}, v{vOne}')
        for i in range(16):
            L.append(f'v_dot2c_f32_bf16 v{vSum}, v{xb+i}, v{vOne}')
            L.append(f'v_dot2c_f32_bf16 v{vSq}, v{xb+i}, v{xb+i}')
        return L
    def mm(c, s, t):
        xb = vr(vX + (c&1)*16 + s*4, 4); wb = vr(vW + (c&1)*48 + s*12 + 4*t, 4)
        C = '0' if (c == 0 and s == 0) else vr(vAcc+16*t, 16)
        if t: return f'v_mfma_f32_32x32x16_bf16 {vr(vAcc+16*t,16)}, {xb}, {wb}, {C}'
        return f'v_mfma_f32_32x32x16_bf16 {vr(vAcc,16)}, {wb}, {xb}, {C}'
    DO = ' offset:64' if cfg.get('dbgst') else ''
    vK, vV, vQ = vAcc+16, vAcc+32, vAcc
    vM, vR, vCq, vEx = 120, 136, 152, 168
    vPK, vPV, vD2 = 184, 192, 200
    vMean, vRstd = vSum, vSq
    sE, sL = 80, 86
    WOL = []
    for n in (0, 1, 2, 3, 5, 6, 7, 4): WOL += dma_wo(n)
    def cut(L, n):
        R = []
        while L and n:
            x = L.pop(0); R.append(x)
            if ismem(x): n -= 1
        return R
    def rdall(c): return rdX(c) + rdW(c, 0) + rdW(c, 1) + rdW(c, 2) + rdW(c, 3)
    if cfg.get('tour'):
        for w in range(3):
            a(f's_cmp_eq_u32 s{W}, {w}')
            a(f's_cbranch_scc1 Lpad_e{w}')
        a('s_branch Lpad_e3')
        a.label('Lpad_ret')
        g.stamp('A.tour')
    vm.wait('c0')
    a('s_barrier')
    g.stamp('A.c0')
    R0 = rdall(0); D2 = dma_xw(2)
    while R0 or D2:
        g.emits(cut(R0, 4)); g.emits(cut(D2, 1))
    a(f's_cmp_eq_u32 s83, 0')
    a('s_cbranch_scc0 LX_sig_ret')
    a(f'v_mov_b32 v{vT}, 1')
    a(f's_lshl2_add_u32 s76, s{S_J}, s{S_XC}')
    a(f's_lshl_b32 s76, s76, 2')
    a(f'buffer_store_dword v{vT}, off, {SR(SRD_DBG)}, s76{DO} sc1')
    a.label('LX_sig_ret')
    a(f's_mov_b32 s{sE}, {fbits(1e-6*LOG2E)}')
    a(f's_mov_b32 s{sL}, {fbits(LN2)}')
    WN = [int(x) for x in cfg.get('wn', '0,0,0,0,0,0,0,0,0,0,0').split(',')]
    for c in range(8): assert sum(WN[:c+1]) <= (0, 4, 8, 12, 12, 24, 32, 32)[c]
    for c in range(4): assert WN[c] % 4 == 0
    for n_ in TL.get('pre', []) + TL.get('d0', []) + TL.get('dx', []): assert n_ in 'xwG'
    DF = int(cfg.get('df', 33)); rest = []
    for c in range(8):
        g.stamp(f'I.{c}e')
        lg.wait('x', 'w0')
        if c == 3:
            for s in range(4):
                a(f'v_add_u32 v{vWn+s}, 49152, v{vWn+s}'); a(f'v_add_u32 v{vWp+s}, 49152, v{vWp+s}')
        sprinkle(dots(c), rest)
        g.stamp(f'I.{c}m')
        dm = []
        if c + 3 < 8: dm += dma_xw(c+3)
        dm += touch(f's{c}')
        if c == 4: dm += XRES
        if c == int(cfg.get('dbs', 4)):
            dm.append(('vm', f'buffer_load_dword v{vDbg}, v{vDbgA}, {SR(SRD_DBG)}, 0 offen{DO} sc1', 'dbg'))
        dm += cut(WOL, WN[c])
        dm += touch(f'e{c}')
        rest = dm
        nd = sum(1 for x in dm if ismem(x))
        dm = cut(rest, nd - (nd*DF + 50)//100)
        nd = sum(1 for x in dm if ismem(x))
        DSEG = [(12*i//max(nd, 1), 12*i//max(nd, 1) + 2, cut(dm, 1)) for i in range(nd)]
        lg.wait_all()
        if c < 7:
            mf = [(mm(c, s, t), []) for s in range(4) for t in (1, 2, 0)]
            mf[0] = (mf[0][0], [('wvm', f'c{c+1}'), 's_barrier'] + g.st(f'A.c{c+1}'))
            rd = rdall(c+1)
            RSEG = [(i, i+1, cut(rd, 3 if (i % 3 == 1) else 2)) for i in range(11)] + [(11, 12, rd)]
            weave(g, mf, [RSEG, DSEG], 24, f'A{c}')
        else:
            mf = [(mm(7, s, t), []) for s in range(4) for t in (1, 2)] + [(mm(7, s, 0), []) for s in range(4)]
            vP = 88
            S = [f'v_mov_b32 v{vT}, v{vSum}', f'v_mov_b32 v{vT+1}, v{vSq}', f'v_mov_b32 v{vT+2}, v{vCs}',
                 f'v_permlane32_swap_b32 v{vCs+1}, v{vCs+2}',
                 f'v_permlane32_swap_b32 v{vSum}, v{vT}', f'v_permlane32_swap_b32 v{vSq}, v{vT+1}', f'v_permlane32_swap_b32 v{vCs}, v{vT+2}',
                 f'v_add_f32 v{vCs+1}, v{vCs+1}, v{vCs+2}',
                 f'v_add_f32 v{vSum}, v{vSum}, v{vT}', f'v_add_f32 v{vSq}, v{vSq}, v{vT+1}', f'v_add_f32 v{vCs}, v{vCs}, v{vT+2}',
                 f'v_mul_f32 v{vMean}, {fbits(1/512)}, v{vSum}',
                 ('lg', f'ds_write_b32 v{vE4}, v{vCs} offset:0', 'cs'),
                 ('lg', f'ds_write_b32 v{vE4}, v{vCs+1} offset:128', 'cs'),
                 f'v_mul_f32 v{vSq}, {fbits(1/512)}, v{vSq}',
                 f'v_fma_f32 v{vSq}, -v{vMean}, v{vMean}, v{vSq}', f'v_max_f32 v{vSq}, 0, v{vSq}',
                 f'v_add_f32 v{vSq}, {fbits(1e-5)}, v{vSq}', f'v_mul_f32 v{vSq}, {fbits(LN2*LN2)}, v{vSq}',
                 f'v_rsq_f32 v{vRstd}, v{vSq}',
                 ('wlg', 'cs'), 's_barrier',
                 ('lg', f'ds_write2_b32 v{vE1}, v{vMean}, v{vRstd} offset1:32', 'sw')]
            S += [('lg', f'ds_read2_b32 {v2(vP+2*w)}, v{vE2} offset0:{96*w+32} offset1:{96*w+64}', 'r0') for w in range(2)]
            S += [('lg', f'ds_read2_b32 {v2(vP+2*w)}, v{vE2b} offset0:{96*(w-2)+32} offset1:{96*(w-2)+64}', 'r0') for w in range(2, 4)]
            S += [('lg', f'ds_read_b128 {vr(vM+4*i,4)}, v{vE3} offset:{SC+i*32}', 'r1') for i in range(4)]
            S += [('lg', f'ds_read2_b32 {v2(vP+8)}, v{vE2} offset0:0 offset1:96', 'rq'), ('lg', f'ds_read2_b32 {v2(vP+10)}, v{vE2b} offset0:0 offset1:96', 'rq')]
            S += [('lg', f'ds_read_b128 {vr(vR+4*i,4)}, v{vE3} offset:{SC+128+i*32}', 'r2') for i in range(4)]
            S += [('wlg', 'r0'), f'v_add_f32 v{vP}, v{vP}, v{vP+2}', f'v_add_f32 v{vP+4}, v{vP+4}, v{vP+6}',
                  f'v_add_f32 v{vP+1}, v{vP+1}, v{vP+3}', f'v_add_f32 v{vP+5}, v{vP+5}, v{vP+7}',
                  f'v_add_f32 v{vCs+1}, v{vP}, v{vP+4}', f'v_add_f32 v{vCs+2}, v{vP+1}, v{vP+5}',
                  ('wlg', 'rq'), f'v_add_f32 v{vP+8}, v{vP+8}, v{vP+9}', f'v_add_f32 v{vP+10}, v{vP+10}, v{vP+11}', f'v_add_f32 v{vCs}, v{vP+8}, v{vP+10}',
                  ('lg', f'ds_write_b32 v{vE1}, v{vCs} offset:256', 'qw')]
            S += [('lg', f'ds_read_b128 {vr(vCq+4*i,4)}, v{vE3} offset:{SC+256+i*32}', 'r3') for i in range(4)]
            K1 = [f'v_fma_f32 v{vK+r}, -v{vM+r}, v{vCs+1}, v{vK+r}' for r in range(16)]
            K1 += [('wlg', 'r2')] + [f'v_fma_f32 v{vK+r}, v{vK+r}, v{vR+r}, s{sE}' for r in range(16)]
            weave(g, mf, [[(0, 11, S), (9, 12, K1[:8])], DSEG], 24, 'A7')
    g.stamp('A.loop')
    def phi_mid(b):
        L = []
        for r in range(16):
            L += [f'v_exp_f32_e64 v{vEx+r}, v{b+r} clamp', f'v_max_f32 v{b+r}, s{sE}, v{b+r}']
        return L
    def phi_end(b, d):
        L = [f'v_pk_fma_f32 {v2(b+2*i)}, {v2(b+2*i)}, s[{sL}:{sL+1}], {v2(vEx+2*i)} op_sel_hi:[1,0,1]' for i in range(8)]
        return L + [f'v_cvt_pk_bf16_f32 v{d+i}, v{b+2*i}, v{b+2*i+1}' for i in range(8)]
    EP = K1[8:] + phi_mid(vK)
    EP += [f'v_pk_fma_f32 {v2(vV+2*i)}, {v2(vM+2*i)}, {v2(vCs+2)}, {v2(vV+2*i)} op_sel_hi:[1,0,1] neg_lo:[1,0,0] neg_hi:[1,0,0]' for i in range(8)]
    EP += [f'v_pk_mul_f32 {v2(vV+2*i)}, {v2(vV+2*i)}, {v2(vR+2*i)}' for i in range(8)]
    EP += phi_end(vK, vPK)
    EP += [f'v_cvt_pk_bf16_f32 v{vPV+i}, v{vV+2*i}, v{vV+2*i+1}' for i in range(8)]
    EP += [f'v_permlane16_swap_b32 v{vPK+i}, v{vPK+4+i}' for i in range(4)]
    EP += [f'v_permlane16_swap_b32 v{vPV+i}, v{vPV+4+i}' for i in range(4)]
    sprinkle(EP, rest + cut(WOL, WN[8]))
    g.stamp('A.ep')
    lg.wait('r3')
    Q1 = [f'v_fma_f32 v{vQ+r}, -v{vMean}, v{vCq+r}, v{vQ+r}' for r in range(16)]
    mf = [(f'v_mfma_f32_16x16x32_bf16 {vr(vD2+8,4)}, {vr(vPK,4)}, {vr(vOnes,4)}, 0', []),
          (f'v_mfma_f32_16x16x32_bf16 {vr(vD2+12,4)}, {vr(vPK+4,4)}, {vr(vOnes,4)}, 0', []),
          (f'v_mfma_f32_16x16x32_bf16 {vr(vD2,4)}, {vr(vPK,4)}, {vr(vPV,4)}, 0', []),
          (f'v_mfma_f32_16x16x32_bf16 {vr(vD2+4,4)}, {vr(vPK+4,4)}, {vr(vPV+4,4)}, 0', [])]
    weave(g, mf, [[(0, 4, Q1[:10])]], 8, 'kv')
    a('s_mov_b32 exec_lo, 0x00010001')
    a('s_mov_b32 exec_hi, 0x00010001')
    a(f'ds_write_b128 v{vE6}, {vr(vD2+8,4)} offset:{SC+1024+256}')
    a(f'ds_write_b128 v{vE6}, {vr(vD2+12,4)} offset:{SC+1024+1088+256}')
    a('s_mov_b64 exec, -1')
    a(f'ds_write_b128 v{vE5}, {vr(vD2,4)} offset:{SC+1024}')
    a(f'ds_write_b128 v{vE5}, {vr(vD2+4,4)} offset:{SC+1024+1088}')
    sprinkle(Q1[10:] + [f'v_pk_fma_f32 {v2(vQ+2*i)}, {v2(vQ+2*i)}, {v2(vMean)}, s[{sE}:{sE+1}] op_sel:[0,1,0] op_sel_hi:[1,1,0]' for i in range(8)], cut(WOL, WN[9]))
    a('s_waitcnt lgkmcnt(0)')
    a('s_barrier')
    for i in range(3):
        for w in range(4):
            a(f'ds_read_b32 v{vD2+i*4+w}, v{vE8 if i < 2 else vE9} offset:{w*16384+i*1024}')
    a(f's_mul_i32 s78, s{s_hp}, 2176')
    a(f's_add_u32 s78, s78, {WS_KV}')
    vm.wait('dbg')
    a.label('LA_chk')
    a(f'v_cmp_ne_u32 vcc, 1, v{vDbg}')
    a('s_cbranch_vccnz LX_dbg')
    def ool_dbg():
        a.label('LX_dbg')
        a(f'buffer_load_dword v{vDbg}, v{vDbgA}, {SR(SRD_DBG)}, 0 offen{DO} sc1')
        a('s_waitcnt vmcnt(0)')
        guard(g)
        a('s_branch LA_chk')
    OOL.append(ool_dbg)
    a('s_waitcnt lgkmcnt(0)')
    for i in range(3):
        a(f'v_pk_add_f32 {v2(vD2+4*i)}, {v2(vD2+4*i)}, {v2(vD2+4*i+2)}')
    for i in range(3):
        a(f'v_add_f32 v{vD2+4*i}, v{vD2+4*i}, v{vD2+4*i+1}')
    a(f's_cmp_eq_u32 s{W}, 0')
    vm.issue(f'buffer_atomic_add_f32 v{vD2}, v{vE7}, {SR(SRD_WS)}, s78 offen', 'st')
    vm.issue(f'buffer_atomic_add_f32 v{vD2+4}, v{vE7}, {SR(SRD_WS)}, s78 offen offset:1024', 'st')
    a('s_cbranch_scc0 LA_noat')
    a('s_mov_b32 exec_hi, 0')
    a(f'buffer_atomic_add_f32 v{vD2+8}, v{vE7}, {SR(SRD_WS)}, s78 offen offset:2048')
    a('s_mov_b32 exec_hi, -1')
    a.label('LA_noat')
    g.stamp('A.atom')
    a(f's_lshl_b32 s79, s{s_hp}, 11')
    a(f's_add_u32 s78, s{s_x}, s79')
    sprinkle(phi_mid(vQ) + phi_end(vQ, vPK), cut(WOL, WN[10]))
    vm.issue(f'buffer_store_dwordx4 {vr(vPK,4)}, v{vL16}, {SR(SRD_WS)}, s78 offen sc1', 'st')
    vm.issue(f'buffer_store_dwordx4 {vr(vPK+4,4)}, v{vL16}, {SR(SRD_WS)}, s78 offen offset:1024 sc1', 'st')
    g.stamp('A.pq')
    vA0 = 4
    vF1 = 39
    vGd = 16
    vG0 = 224
    OX = 131072
    vKV = 40; vPQ = 104; vD = 136; vBa = 200; vH = 216
    vSa = 28
    U = 100
    E1 = [f's_lshl4_add_u32 s79, s{s_hp}, s{s_rb}', f's_lshl_b32 s79, s79, {FSH}', f's_add_u32 s79, s79, {FA}',
          f's_mov_b64 s[{SRD_FL}:{SRD_FL+1}], s[{SRD_WS}:{SRD_WS+1}]', f's_cmp_eq_u32 s{W}, 0\ns_cselect_b32 s{SRD_FL+2}, {WS_SIZE}, 0',
          f'v_mov_b32 v{vF1}, 1',
          f'v_bfe_u32 v{U}, v0, 2, 3', f'v_bfe_u32 v{U+1}, v0, 2, 2', f'v_bfe_u32 v{U+2}, v0, 4, 1',
          f'v_lshl_add_u32 v{U+1}, v{U+2}, 3, v{U+1}', f'v_lshlrev_b32 v{U+1}, 8, v{U+1}', f'v_and_b32 v{U+2}, 3, v0',
          f'v_lshl_add_u32 v{U+1}, v{U+2}, 3, v{U+1}', f's_lshl_b32 s76, s{W}, 1', f'v_xor_b32 v{U}, s76, v{U}',
          f'v_lshrrev_b32 v{U+3}, 2, v0', f'v_lshlrev_b32 v{U+3}, 8, v{U+3}', f'v_lshl_add_u32 v{U+3}, v{U+2}, 3, v{U+3}',
          f'v_lshl_add_u32 v{vG0}, v{U}, 5, v{U+3}', f'v_xor_b32 v{vG0+1}, 32, v{vG0}', f'v_add_u32 v{vG0+2}, 65536, v{vG0}', f'v_add_u32 v{vG0+3}, 65536, v{vG0+1}',
          f'v_lshl_add_u32 v{U+1}, v{U}, 5, v{U+1}', f'v_lshrrev_b32 v{U+2}, 5, v0',
          f'v_lshl_add_u32 v{vA0}, v{U+2}, 14, v{U+1}', f'v_lshl_add_u32 v{vA0+1}, v{U+2}, 12, v{U+1}', f'v_add_u32 v{vA0+1}, {98304+4096}, v{vA0+1}']
    for wp in range(4):
        E1 += [f'v_mul_u32_u24 v{U+3}, {32768+12288*wp}, v{U+2}', f'v_add_u32 v{vA0+2+wp}, v{U+3}, v{U+1}', f'v_add_u32 v{vA0+2+wp}, {65536+4096*wp}, v{vA0+2+wp}']
    E1 += [f'v_xor_b32 v{vA0+6+i}, 32, v{vA0+i}' for i in range(6)]
    E1 += [f's_mov_b32 s86, s{s_rb}', f's_and_b32 s70, s{S_J}, 7', f's_lshl3_add_u32 s70, s{S_XC}, s70', f's_lshr_b32 s71, s{S_J}, 3',
           f's_and_b32 s76, s{S_XC}, 1', f's_mul_i32 s76, s76, 7', f's_lshr_b32 s87, s{S_J}, 2', f's_add_u32 s87, s87, s76',
           f'v_and_b32 v{U}, 15, v0', f'v_lshrrev_b32 v{U+1}, 4, v0', f'v_lshlrev_b32 v{U+2}, 1, v{U+1}', f'v_xor_b32 v{U+2}, v{U}, v{U+2}',
           f'v_lshlrev_b32 v{U+2}, 4, v{U+2}', f'v_mul_u32_u24 v{U+3}, 3584, v{U+1}', f'v_add_u32 v{vGd}, v{U+3}, v{U+2}',
           f'v_xor_b32 v{U+2}, 128, v{U+2}', f'v_add_u32 v{vGd+1}, v{U+3}, v{U+2}', f'v_add_u32 v{vGd+1}, {4*3584-1024}, v{vGd+1}',
           f'v_add_u32 v{vGd+2}, {2*(4*3584-1024)}, v{vGd}', f'v_add_u32 v{vGd+3}, {2*(4*3584-1024)}, v{vGd+1}',
           f's_and_b32 s76, s{W}, 1', f's_mul_i32 s88, s76, {64*3584}', f's_lshl_b32 s76, s87, 8', f's_add_u32 s88, s88, s76', f's_lshl_b32 s89, s{W}, 14']
    def idle_gu():
        a(f's_cmp_lt_u32 s{S_J}, 28')
        a('s_cbranch_scc1 LE_ni')
        a(f's_and_b32 s88, s{S_J}, 3')
        a(f's_lshl2_add_u32 s88, s88, s{W}')
        a(f's_lshl_b32 s88, s88, 12')
        for i in range(4): a(f'v_mov_b32 v{vGd+i}, v{vL16}')
        a.label('LE_ni')
    E2 = [f'v_and_b32 v{vT}, 31, v0', f'v_min_u32 v{vT}, 16, v{vT}', f'v_lshrrev_b32 v{vT+1}, 5, v0', f'v_mul_u32_u24 v{vT+1}, 272, v{vT+1}',
          f'v_lshl_add_u32 v{vT}, v{vT}, 4, v{vT+1}',
          f's_mul_i32 s72, s{W}, {8*1088}', f's_add_u32 s72, s72, {WS_KV}', f's_add_u32 s73, s72, {3*1088}', f's_add_u32 s76, s72, {6*1088}',
          f's_lshl_b32 s81, s70, 15', f's_lshl_b32 s78, s{W}, 13', f's_add_u32 s81, s81, s78', f's_add_u32 s75, s81, 4096',
          f's_lshl_b32 s82, s{W}, {FSH+6}', f's_add_u32 s82, s82, {FA}', f's_add_u32 s78, s78, {OX}',
          f'v_lshlrev_b32 v{vT+1}, {FSH}, v0', f'v_mov_b32 v{vT+5}, {fbits(LOG2E)}', f'v_add_u32 v{vT+2}, s78, v{vL16}',
          f'v_and_b32 v{vT+3}, 15, v0', f'v_lshrrev_b32 v{vT+4}, 4, v0',
          f'v_and_b32 v{vSa}, 1, v{vT+4}', f'v_lshl_add_u32 v{vSa}, v{vT+3}, 1, v{vSa}', f'v_and_b32 v{vT+6}, 32, v0', f'v_add_lshl_u32 v{vSa}, v{vSa}, v{vT+6}, 2',
          f'v_lshlrev_b32 v{vT+4}, 9, v{vT+4}', f'v_lshl_add_u32 v{vT+3}, v{vT+3}, 4, v{vT+4}', f'v_add_u32 v{vT+3}, {OX}, v{vT+3}']
    for i in range(8):
        E2 += [f'v_lshlrev_b32 v{vBa+2*i}, 16, v{vXres+i}', f'v_and_b32 v{vBa+2*i+1}, 0xffff0000, v{vXres+i}']
    def dma_gu(sg):
        L = []
        for blk in range(4):
            L += [f's_add_u32 m0, s89, {(sg&1)*65536+blk*4096}', f's_add_u32 s83, s88, {(sg*128+blk*16)*3584}']
            for i in range(4):
                L.append(('vm', f'buffer_load_dwordx4 v{vGd+i}, {SR(SRD_WGU)}, s83 offen offset:{i*1024} lds', f'S{sg}'))
        return L
    def aWO(t, ks): return 128 + (t*16 + ks)*4
    def rd_wo(prs):
        L = []
        for ks in range(16):
            wp, pr = ks >> 2, ks & 3
            if pr not in prs: continue
            for t in range(2):
                if pr < 2: ad, off = vA0, 4096*(8*pr + wp)
                elif pr == 2: ad, off = vA0+2+wp, 0
                else: ad, off = vA0+1, 16384*wp
                for h2 in range(2):
                    L.append(('lg', f'ds_read_b64_tr_b16 {ar(aWO(t,ks)+2*h2,2)}, v{ad+6*t} offset:{off+h2*1024}', f'wo{min(prs)}'))
        return L
    def aGU(rt, ks): return (ks >> 3)*128 + (rt*8 + (ks & 7))*4
    def rd_gu(sg):
        L = []
        for rt in range(4):
            for k4 in range(4):
                for h2 in range(2):
                    L.append(('lg', f'ds_read_b64_tr_b16 {ar(aGU(rt, sg*4+k4)+2*h2,2)}, v{vG0+2*(sg&1)+(rt>>1)} offset:{(rt&1)*32768+k4*8192+h2*4096}', f'g{sg}'))
        return L
    nw = sum(1 for x in WOL if ismem(x))
    FK = int(cfg.get('fk', 10)); RK = int(cfg.get('rk', 8)); N0 = int(cfg.get('n0', 6)); N1 = int(cfg.get('n1', 6))
    sprinkle(E1, cut(WOL, min(FK, nw - RK)))
    if cfg.get('iw'): idle_gu()
    vm.wait('st')
    a('s_barrier')
    vm.issue(f'buffer_store_dword v{vF1}, off, {SR(SRD_FL)}, s79 sc1', 'flag')
    g.stamp('E.flag')
    nw = sum(1 for x in WOL if ismem(x))
    sprinkle(E2, cut(WOL, nw - RK))
    vm.wait('wo0')
    a('s_barrier')
    g.stamp('E.wo0')
    PL = ('vm', f'buffer_load_dword v{vD}, v{vT+1}, {SR(SRD_WS)}, s82 offen sc1', 'pl')
    sprinkle(rd_wo((0, 1)), WOL + [PL])
    SS = dma_gu(0) + dma_gu(1)
    lg.wait_all()
    a('s_barrier')
    g.emits(cut(SS, N0))
    vm.wait('pl')
    g.stamp('E.wo')
    def ldkv():
        for h in range(8):
            so = (72, 73, 76)[h//3]
            for q in range(2):
                vm.issue(f'buffer_load_dwordx4 {vr(vKV+h*8+q*4,4)}, v{vT}, {SR(SRD_WS)}, s{so} offen offset:{(h%3)*1088+q*544} sc1', f'kv{h}')
            vm.issue(f'buffer_load_dwordx4 {vr(vPQ+h*4,4)}, v{vL16}, {SR(SRD_WS)}, s{81 if h<4 else 75} offen offset:{(h&3)*1024} sc1', f'kv{h}')
    a(f'v_cmp_gt_u32 vcc, 1, v{vD}')
    a('s_cbranch_vccnz LX_early')
    SN1 = cut(SS, N1)
    def ool_early():
        a.label('LX_early')
        vm.q = []; lg.q = []
        a('s_barrier')
        g.emits(rd_wo((2, 3)))
        poll(g, 'LB_poll', vT+1, vD, 1, 82, '1')
        ldkv()
        g.emits(SN1)
        a('s_branch LB_join')
    OOL.append(ool_early)
    ldkv()
    a('s_barrier')
    sprinkle(rd_wo((2, 3)), list(SN1))
    a.label('LB_join')
    g.stamp('B.sync')
    a(f's_lshl2_add_u32 s72, s71, s{W}')
    a(f's_lshl_b32 s73, s70, 15')
    a(f's_lshl_b32 s74, s72, 10')
    a(f's_add_u32 s73, s73, s74')
    a(f's_add_u32 s73, s73, {WS_H}')
    a(f's_add_u32 s75, s73, 16384')
    a(f's_lshl4_add_u32 s74, s70, s72')
    a(f's_lshl_b32 s74, s74, 8')
    a(f's_add_u32 s74, s74, {WS_STATS}')
    a(f's_lshl2_add_u32 s79, s70, s71')
    a(f's_lshl_b32 s79, s79, {FSH}')
    a(f's_add_u32 s79, s79, {FB}')
    lg.wait_all()
    a('s_barrier')
    g.stamp('B.rd')
    def Dreg(h): return vD + (h % 4)*16
    def cvtkv(h):
        vm.wait(f'kv{h}')
        b = vKV + h*8
        for i in range(4): a(f'v_cvt_pk_bf16_f32 v{b+i}, v{b+2*i}, v{b+2*i+1}')
    def mmo(h): a(f'v_mfma_f32_32x32x16_bf16 {vr(Dreg(h),16)}, {vr(vKV+h*8,4)}, {vr(vPQ+h*4,4)}, 0')
    def den(h):
        d = Dreg(h)
        a(f'v_fma_f32 v{d+8}, v{d+8}, v{vT+5}, s{sE}')
        a(f'v_rcp_f32 v{d+8}, v{d+8}')
    assert N0 + N1 <= 16
    S1 = SS
    S1N = [int(x) for x in cfg.get('s1n', '1,1,1,1,1,1,1,1,1').split(',')]
    g.emits(cut(S1, S1N[8]))
    cvtkv(0); cvtkv(1); mmo(0); cvtkv(2); mmo(1); den(0)
    g.stamp('B.kv')
    for h in range(8):
        d = Dreg(h)
        for i in range(4): a(f'v_pk_mul_f32 {v2(d+2*i)}, {v2(d+2*i)}, {v2(d+8)} op_sel_hi:[1,0]')
        if h + 2 < 8: mmo(h+2)
        g.emits(cut(S1, S1N[h]))
        for i in range(4): a(f'v_cvt_pk_bf16_f32 v{d+12+i}, v{d+2*i}, v{d+2*i+1}')
        if h + 1 < 8: den(h+1)
        lg.issue(f'ds_write_b128 v{vT+2}, {vr(d+12,4)} offset:{h*1024}', 'ow')
        if h + 3 < 8: cvtkv(h+3)
    lg.wait_all()
    a('s_barrier')
    g.stamp('B.o')
    vO = 40
    def rdo(i): return ('lg', f'ds_read_b128 {vr(vO+i*4,4)}, v{vT+3} offset:{(i&15)*2048+(i>>4)*256}', f'o{i}')
    for i in range(12): g.emit(rdo(i))
    vS = 20
    def epiB(ch):
        m, t = ch >> 1, ch & 1
        b = vBa + 4*ch
        L = [f'v_cvt_pk_bf16_f32 v{vH+2*ch+i}, v{b+2*i}, v{b+2*i+1}' for i in range(2)]
        if t: L.append(('vm', f'buffer_store_dwordx4 {vr(vH+4*m,4)}, v{vL16}, {SR(SRD_WS)}, s{73+2*m} offen sc1', 'st'))
        for r in range(4):
            if t == 0 and r == 0:
                L += [f'v_add_f32 v{vS+2*m}, v{b}, v{b+1}', f'v_mul_f32 v{vS+2*m+1}, v{b}, v{b}']
            else:
                if not (t == 0 and r == 1): L.append(f'v_add_f32 v{vS+2*m}, v{vS+2*m}, v{b+r}')
                L.append(f'v_fmac_f32 v{vS+2*m+1}, v{b+r}, v{b+r}')
        return L
    MB = int(cfg.get('mb', 20)); MB2 = int(cfg.get('mb2', 48)); S2G = int(cfg.get('s2g', 3))
    lg.wait('o1')
    ZS = dma_gu(2) + dma_gu(3); S1P = int(cfg.get('s1p', 4))
    mf = []
    for q in range(64):
        m, t, ks = q >> 5, (q >> 4) & 1, q & 15
        acc = vr(vBa + (2*m+t)*4, 4)
        fx = []
        q1 = q + 1
        if q1 < 64 and (q1 >> 4) & 1 == 0 and q1 % 2 == 0: fx.append(('wlg', f'o{(q1>>5)*16+(q1&15)+1}'))
        if q == MB: fx += [('wvm', 'S0'), 's_barrier']
        if q == MB2: fx += [('wlg', 'g0'), 's_barrier']
        if 12+q < 32: fx.append(rdo(12+q))
        mf.append((f'v_mfma_f32_16x16x32_bf16 {acc}, {ar(aWO(t,ks),4)}, {vr(vO+(m*16+ks)*4,4)}, {acc}', fx))
    weave(g, mf, [[(19, 34, epiB(0)), (35, 50, epiB(1)), (51, 64, epiB(2))], [(0, MB2+2, S1, S1P), (MB2+1, 64, cut(ZS, S2G), S1P)], [(MB, MB2-3, rd_gu(0))]], 8, 'B')
    g.emits(epiB(3))
    a(f'v_permlane32_swap_b32 v{vS}, v{vS+2}')
    a(f'v_permlane32_swap_b32 v{vS+1}, v{vS+3}')
    a(f'v_add_f32 v{vS}, v{vS}, v{vS+2}')
    a(f'v_add_f32 v{vS+1}, v{vS+1}, v{vS+3}')
    a(f'v_permlane16_swap_b32 v{vS}, v{vS+1}')
    a(f'v_add_f32 v{vS}, v{vS}, v{vS+1}')
    vm.issue(f'buffer_store_dword v{vS}, v{vSa}, {SR(SRD_WS)}, s74 offen sc1', 'st')
    g.stamp('B.st')
    vHf = 40; vCa = 104; vCsum = 120; vK4 = 136; vGt = 144; vOut = 156
    vDr = 4; vDd = 16; vHa = 20; vKa = 22; vPa = 23; vPl = 24; vOa = 25; vWa = 26; vRa = (27, 28, 2)
    vSt = 160
    CONST = 147456
    def csum(sgs):
        mf = []
        for rt in range(4):
            for sg in sgs:
                for k4 in range(4):
                    ks = sg*4 + k4
                    acc = vr(vCsum+rt*4, 4)
                    mf.append((f'v_mfma_f32_16x16x32_bf16 {acc}, {ar(aGU(rt,ks),4)}, {vr(vOnes,4)}, {"0" if ks==0 else acc}', []))
        return mf
    SU = [f's_and_b32 s70, s{S_J}, 1', f's_lshl1_add_u32 s70, s{S_XC}, s70', f's_lshr_b32 s71, s{S_J}, 2', f's_xor_b32 s71, s71, {cfg.get("nbx", 0)}', f's_bfe_u32 s72, s{S_J}, 0x10001',
          f's_lshl_b32 s73, s86, 17', f's_add_u32 s73, s73, s85', f's_add_u32 s73, s73, {WS_H}',
          f's_lshl_b32 s74, s86, 14', f's_add_u32 s74, s74, s85', f's_add_u32 s74, s74, {WS_STATS}',
          f's_mul_i32 s75, s86, {8*56}', f's_lshl2_add_u32 s76, s87, s{W}', f's_add_u32 s75, s75, s76', f's_lshl_b32 s75, s75, 10', f's_add_u32 s75, s75, {WS_ACT}',
          f's_lshl4_add_u32 s77, s86, s87', f's_lshl_b32 s77, s77, {FSH}', f's_add_u32 s77, s77, {FC}',
          f's_mov_b64 s[{SRD_ACT}:{SRD_ACT+1}], s[{SRD_WS}:{SRD_WS+1}]', f's_cmp_ge_u32 s{S_J}, 28\ns_cselect_b32 s{SRD_ACT+2}, 0, {WS_SIZE}',
          f's_lshl_b32 s84, s86, {FSH+4}', f's_add_u32 s84, s84, {FB}']
    SU2 = [f's_lshl_b32 s79, s70, {FSH+4}', f's_add_u32 s79, s79, {FC}', f's_lshl_b32 s80, s72, 15', f's_add_u32 s80, s80, s79', f's_add_u32 s81, s80, {3*32768}', f's_add_u32 s80, s80, 32768',
           f's_and_b32 s{SRD_FL+2}, s{SRD_FL+2}, s{SRD_ACT+2}',
           f's_lshl3_add_u32 s87, s70, s72', f's_mul_i32 s82, s87, 56', f's_mul_i32 s76, s{W}, 14', f's_add_u32 s82, s82, s76',
           f's_lshl_b32 s82, s82, 10', f's_add_u32 s82, s82, {WS_ACT}',
           f's_lshl_b32 s78, s87, 14', f's_lshr_b32 s86, s{W}, 1', f's_lshl1_add_u32 s86, s71, s86', f's_lshl_b32 s86, s86, 10',
           f's_add_u32 s86, s86, s78', f's_and_b32 s87, s{W}, 1', f's_lshl3_add_u32 s86, s87, s86', f's_add_u32 s86, s86, {WS_H}',
           f's_lshl_b32 s87, s71, 7', f's_add_u32 s78, s78, s87', f's_mul_i32 s88, s{W}, {448*1024}', f's_add_u32 s88, s88, s87',
           f's_lshl_b32 s87, s{W}, 5', f's_add_u32 s78, s78, s87']
    VU = [f'v_lshrrev_b32 v{vT}, 3, v0', f'v_and_b32 v{vT+1}, 7, v0', f'v_and_b32 v{vT+2}, 6, v{vT}', f'v_xor_b32 v{vT+1}, v{vT+1}, v{vT+2}',
          f'v_lshlrev_b32 v{vT+1}, 4, v{vT+1}', f'v_lshl_add_u32 v{vDd}, v{vT}, 10, v{vT+1}']
    VU += [f'v_add_u32 v{vDd+i}, {i*(8192-1024)}, v{vDd}' for i in range(1, 4)]
    VU += [f'v_mov_b32 v{vHa}, v{vL16}', f'v_add_u32 v{vHa+1}, 65536, v{vL16}', f'v_and_b32 v{vT}, 15, v0',
           f'v_lshlrev_b32 v{vKa}, 4, v{vT}', f'v_add_u32 v{vKa}, {CONST}, v{vKa}',
           f'v_lshrrev_b32 v{vT+1}, 4, v0', f'v_lshlrev_b32 v{vT+1}, 3, v{vT+1}', f'v_lshl_add_u32 v{vOa}, v{vT}, 10, v{vT+1}',
           f'v_lshlrev_b32 v{vT+4}, {FSH}, v{vT}',
           f'v_add_u32 v{vWa}, s85, v{vL16}']
    VU += [f'v_xor_b32 v{vRa[tau-1]}, {4096*tau}, v{vWa}' for tau in range(1, 4)]
    VP = [f'v_min_u32 v{vT}, 13, v0', f'v_add_u32 v{vT}, s76, v{vT}', f'v_lshrrev_b32 v{vT}, 2, v{vT}', f'v_lshlrev_b32 v{vPa}, {FSH}, v{vT}']
    G1, FP, G2, PP = int(cfg.get('g1', 2)), int(cfg.get('fp', 8)), int(cfg.get('g2', 5)), int(cfg.get('pp', 6))
    mf = csum((0,)) + csum((1,))
    n2 = 16 - S2G; nz = n2 + 16
    fx = [[] for _ in mf]
    fx[G1] += [('wvm', 'S1'), 's_barrier'] + g.st('P.s1')
    fx[FP] += [('wvm', 'st'), 's_barrier', ('vm', f'buffer_store_dword v{vF1}, off, {SR(SRD_FL)}, s79 sc1', 'flag')] + g.st('P.flag')
    fx[n2] += [('wlg', 'g1'), 's_barrier'] + g.st('P.r1')
    fx[n2+G2] += [('wvm', 'S2'), 's_barrier'] + g.st('P.s2')
    for i in range(nz): fx[i] += cut(ZS, 1)
    fx[nz-PP] += [('vm', f'buffer_load_dword v{vGt}, v{vT+4}, {SR(SRD_WS)}, s84 offen sc1', 'pl')]
    R1 = rd_gu(1); R2 = rd_gu(2)
    for i in range(8): fx[G1+i] += cut(R1, 4); fx[n2+G2+i] += cut(R2, 4)
    assert G1 + 8 < n2 and n2 <= 15 and n2 + G2 + 8 <= 32 and FP < nz
    weave(g, [(m[0], sorted(f, key=cls)) for m, f in zip(mf, fx)], [[(0, 12, SU), (12, nz-PP, VU[9:]), (nz, 32, SU2 + VU[:9] + VP)]], 56, 'P1')
    lg.wait_all()
    a('s_barrier')
    def slot(sg): return 131072 if sg == 0 else 16384*(sg-1)
    def dma_wd(p, sg):
        L = [f's_add_u32 m0, s85, {slot(sg)}', f's_add_u32 s83, s88, {p*32768}']
        for i in range(4):
            L.append(('vm', f'buffer_load_dwordx4 v{vDd+i}, {SR(SRD_WD)}, s83 offen offset:{i*1024} lds', f'wd{p}'))
        return L
    VD = [f'v_lshrrev_b32 v{vT}, 2, v0', f'v_bfe_u32 v{vT+1}, v0, 3, 2', f'v_xor_b32 v{vT+1}, s{W}, v{vT+1}', f'v_lshlrev_b32 v{vT}, 7, v{vT}',
          f'v_lshl_add_u32 v{vT}, v{vT+1}, 5, v{vT}', f'v_and_b32 v{vT+1}, 3, v0', f'v_lshl_add_u32 v{vT}, v{vT+1}, 3, v{vT}', f'v_add_u32 v{vT}, s85, v{vT}']
    for tau in range(4):
        VD += [f'v_xor_b32 v{vDr+3*tau}, {32*tau}, v{vT}', f'v_add_u32 v{vDr+3*tau+1}, 65536, v{vDr+3*tau}', f'v_add_u32 v{vDr+3*tau+2}, 131072, v{vDr+3*tau}']
    AW = {6: 64, 7: 80, 8: 192, 9: 208, 10: 96, 11: 112, 12: 224, 13: 240}
    def wdreg(p, tau):
        if p < 6: return 'v', 160 + p*16 + tau*4
        return 'a', AW[p] + tau*4
    def rd_wd(p, sg):
        L = []
        ad = slot(sg)
        for tau in (1, 2, 3, 0):
            f, r = wdreg(p, tau)
            for h2 in range(2):
                L.append(('lg', f'ds_read_b64_tr_b16 {vr(r+2*h2,2,f)}, v{vDr+3*tau+(ad>>16)} offset:{(ad&65535)+h2*2048}', f'rw{p}'))
        return L
    FINAL = {6: 4, 7: 2, 8: 5, 9: 0, 10: 6, 11: 3, 12: 7, 13: 1}
    def actreg(m, i):
        if m == 2: return vr(40 + 4*i, 4)
        b = 32*(m & 1 if m < 2 else 0)
        return ar(b + 4*i if i < 8 else 128 + b + 4*(i-8), 4)
    def ld_act(m):
        L = []
        for i in range(14):
            if i % 4 == 0: L.append(f's_add_u32 s70, s82, {(2*m*56+i)*1024}')
            L.append(('vm', f'buffer_load_dwordx4 {actreg(m,i)}, v{vL16}, {SR(SRD_WS)}, s70 offen offset:{(i&3)*1024} sc1', f'a{m}_{i}'))
        return L
    a(f's_cmp_ge_u32 s{S_J}, 28')
    a('s_cbranch_scc1 LC_idle')
    def ool_idle():
        a.label('LC_idle')
        vm.q = []; lg.q = []
        if cfg.get('iw'):
            a(f's_and_b32 s70, s{S_J}, 3')
            a(f's_lshl_b32 s70, s70, 13')
            a(f's_mul_i32 s83, s{W}, {448*1024}')
            a(f's_add_u32 s70, s70, s83')
            a(f'v_lshlrev_b32 v{vTa}, 7, v0')
            for t in range(7):
                a(f's_add_u32 s83, s70, {(224+32*t)*1024}')
                a(f'buffer_load_dword v{vTa+1}, v{vTa}, {SR(SRD_WD)}, s83 offen')
        a('s_waitcnt vmcnt(0)')
        a('s_barrier')
        g.emits(VD)
        for p in range(6): g.emits(dma_wd(p, p))
        vm.wait_all()
        for p in range(6): g.emits(rd_wd(p, p))
        lg.wait_all()
        for p in range(6, 14): g.emits(dma_wd(p, FINAL[p]))
        for i in range(int(cfg.get('isl', 0))): a('s_sleep 127')
        poll(g, 'LI_poll', vPa, vPl, 1, 79, '1')
        g.emits(ld_act(0))
        for p in range(6, 10): g.emits(rd_wd(p, FINAL[p]))
        g.emits(ld_act(1))
        vm.wait_all(); lg.wait_all()
        a('s_branch LD_start')
    OOL.append(ool_idle)
    g.stamp('P.cs')
    vm.wait('pl')
    a.label('LC_chk')
    a(f'v_cmp_gt_u32 vcc, 1, v{vGt}')
    a('s_cbranch_vccnz LX_cp')
    def ool_cp():
        a.label('LX_cp')
        a(f'buffer_load_dword v{vGt}, v{vT+4}, {SR(SRD_WS)}, s84 offen sc1')
        a('s_waitcnt vmcnt(0)')
        guard(g)
        a('s_branch LC_chk')
    OOL.append(ool_cp)
    g.stamp('C.sync')
    def dma_h(s):
        L = [f's_add_u32 m0, s85, {16384*s}', f's_add_u32 s83, s73, {16384*s}']
        for i in range(4):
            L.append(('vm', f'buffer_load_dwordx4 v{vL16}, {SR(SRD_WS)}, s83 offen offset:{i*1024} sc1 lds', f'h{s}'))
        return L
    g.emits(dma_h(0))
    STL = [('vm', f'buffer_load_dwordx4 {vr(vSt+4*i,4)}, v{vL16}, {SR(SRD_WS)}, s74 offen offset:{i*1024} sc1', 'stats') for i in range(4)]
    vm.wait('S3')
    a('s_barrier')
    R3 = rd_gu(3)
    weave(g, csum((2,)), [[(0, 16, STL + dma_h(1), 2)], [(i, i+1, cut(R3, 3)) for i in range(11)]], 24, 'P2')
    lg.wait_all()
    weave(g, csum((3,)), [[(0, 16, dma_h(2), 4)], [(0, 16, VD)]], 8, 'P3')
    def rdh(s, ks): return ('lg', f'ds_read_b128 {vr(vHf+ks*4,4)}, v{vHa+(s>>2)} offset:{(s&3)*16384+ks*1024}', f'f{ks}')
    vm.wait('h0')
    a('s_barrier')
    g.stamp('C.h0')
    for ks in range(16): g.emit(rdh(0, ks))
    c0 = -2*0.7978845608028654*LOG2E
    def consts():
        L = [('wvm', 'stats')]
        for st in (8, 4):
            for i in range(st): L.append(f'v_add_f32 v{vSt+i}, v{vSt+i}, v{vSt+i+st}')
        x, y = vSt, vSt+1
        o = vSt+4
        L += [f'v_lshrrev_b32 v{vSt+8}, 5, v0', f'v_and_b32 v{vSt+9}, 15, v0',
              f'v_permlane32_swap_b32 v{vSt}, v{vSt+2}', f'v_permlane32_swap_b32 v{vSt+1}, v{vSt+3}',
              f'v_add_f32 v{x}, v{x}, v{vSt+2}', f'v_add_f32 v{y}, v{y}, v{vSt+3}',
              f'v_mov_b32 v{vSt+2}, v{x}', f'v_mov_b32 v{vSt+3}, v{y}',
              f'v_lshl_add_u32 v{vSt+8}, v{vSt+9}, 1, v{vSt+8}', f's_lshl_b32 s76, s{W}, 9', f's_add_u32 s76, s76, {CONST}',
              f'v_permlane16_swap_b32 v{x}, v{vSt+2}', f'v_permlane16_swap_b32 v{y}, v{vSt+3}',
              f'v_add_f32 v{x}, v{x}, v{vSt+2}', f'v_add_f32 v{y}, v{y}, v{vSt+3}',
              f'v_mul_f32 v{o}, {fbits(-1/512)}, v{x}',
              f'v_mul_f32 v{y}, {fbits(1/512)}, v{y}',
              f'v_fma_f32 v{y}, -v{o}, v{o}, v{y}',
              f'v_max_f32 v{y}, 0, v{y}',
              f'v_add_f32 v{o+3}, {fbits(1e-5)}, v{y}',
              f'v_rsq_f32 v{x}, v{o+3}',
              f'v_lshl_add_u32 v{vSt+8}, v{vSt+8}, 4, s76',
              f'v_mul_f32 v{y}, v{x}, v{x}',
              f'v_mul_f32 v{o+1}, {fbits(c0)}, v{x}',
              f'v_mul_f32 v{y}, {fbits(0.044715)}, v{y}',
              f'v_mul_f32 v{o+2}, v{o+1}, v{y}',
              ('lg', f'ds_write_b128 v{vSt+8}, {vr(o,4)}', 'cw')]
        return L
    def gelu(pair, s):
        K = vK4 + 4*(s & 1)
        nm, k0, k1, vv = K, K+1, K+2, K+3
        ag = vCa + pair*8; au = ag + 4; cg = vCsum + pair*8; cu = cg + 4
        t, u, e = vGt, vGt+4, vGt+8
        L = []
        if pair == 0: L.append(('wlg', f'k{s}'))
        R = range(4)
        L += [f'v_fma_f32 v{t+i}, v{nm}, v{cg+i}, v{ag+i}' for i in R]
        L += [f'v_fma_f32 v{u+i}, v{nm}, v{cu+i}, v{au+i}' for i in R]
        n1 = len(L)
        L += [f'v_mul_f32 v{e+i}, v{t+i}, v{t+i}' for i in R]
        L += [f'v_fma_f32 v{e+i}, v{e+i}, v{k1}, v{k0}' for i in R]
        L += [f'v_mul_f32 v{e+i}, v{e+i}, v{t+i}' for i in R]
        L += [f'v_exp_f32 v{e+i}, v{e+i}' for i in R]
        L += [f'v_mul_f32 v{t+i}, v{t+i}, v{u+i}' for i in R]
        L += [f'v_fma_f32 v{e+i}, v{e+i}, v{vv}, v{vv}' for i in R]
        L += [f'v_rcp_f32 v{e+i}, v{e+i}' for i in R]
        L += [f'v_mul_f32 v{t+i}, v{t+i}, v{e+i}' for i in R]
        L += [f'v_cvt_pk_bf16_f32 v{vOut+2*pair+i}, v{t+2*i}, v{t+2*i+1}' for i in range(2)]
        if pair == 1:
            L.insert(n1, f's_add_u32 s76, s75, {s*56*1024}')
            L.append(('vm', f'buffer_store_dwordx4 {vr(vOut,4)}, v{vL16}, {SR(SRD_ACT)}, s76 offen sc1', f'act{s}'))
        return L
    def flagW(): return [('vm', f'buffer_store_dword v{vF1}, off, {SR(SRD_FL)}, s77 sc1', 'flag'), 's_add_u32 s77, s77, 32768']
    def flagC(n): return g.st(f'F.{n}a') + [('wvm', f'act{n-1}'), 's_barrier'] + g.st(f'F.{n}b') + flagW()
    PS = {'p1': 79, 'p2': 80, 'p3': 81}
    def pload(tag): return [('vm', f'buffer_load_dword v{vPl}, v{vPa}, {SR(SRD_WS)}, s{PS[tag]} offen sc1', tag)]
    def pcheck(tag, need=1):
        def f():
            a.label(f'LP_{tag}')
            a(f'v_cmp_gt_u32 vcc, {need}, v{vPl}')
            a(f's_cbranch_vccnz LX_{tag}')
        def o():
            a.label(f'LX_{tag}')
            a(f'buffer_load_dword v{vPl}, v{vPa}, {SR(SRD_WS)}, s{PS[tag]} offen sc1')
            a('s_waitcnt vmcnt(0)')
            guard(g)
            a(f's_branch LP_{tag}')
        OOL.append(o)
        return g.st(f'Q.{tag}a') + [('wvm', tag)] + g.st(f'Q.{tag}b') + [f] + g.st(f'Q.{tag}c')
    RECY = {1: (0, 0, 3), 2: (1, 1, 5), 3: (2, 2, 7), 4: (3, 0, 9), 5: (4, 3, 11), 6: (5, 1, 13)}
    FRESH = {0: (1, 1), 1: (2, 2), 2: (4, 3), 3: (6, 4), 4: (8, 5), 5: (10, 6), 6: (12, 7)}
    lg.wait('f3')
    mf = []; GS = []; DS = []; RS = []; XS = []
    for s in range(8):
        bq = 27 if s == 0 else 13
        B = 64*s
        for q in range(64):
            rt, ks = q >> 4, q & 15
            acc = vr(vCa+rt*4, 4)
            fx = []
            if q in (3, 7, 11): fx.append(('wlg', f'f{q+4}'))
            if q == 63 and s < 7: fx.append(('wlg', 'f3'))
            if q == bq-1:
                if s == 0: fx.append(('wlg', 'cw'))
                if s < 7 or s >= 5: fx.append(('wvm',) + ((f'h{s+1}',) if s < 7 else ()) + ((f'act{s-2}',) if s >= 5 else ()))
            if q == bq:
                fx.append('s_barrier')
                fx.append(('lg', f'ds_read_b128 {vr(vK4+4*(s&1),4)}, v{vKa} offset:{s*256}', f'k{s}'))
            if q == 63: fx += g.st(f'C.it{s}')
            if rt == 3 and s < 7: fx.append(rdh(s+1, ks))
            mf.append((f'v_mfma_f32_16x16x32_bf16 {acc}, {ar(aGU(rt,ks),4)}, {vr(vHf+ks*4,4)}, {"0" if ks==0 else acc}', fx))
        if s == 0: GS.append((0, bq-1, consts()))
        g0 = gelu(0, s); g1 = gelu(1, s)
        GS.append((B+34, B+63, g0[:9])); GS.append((B+34, B+64+8 if s < 7 else B+64, g0[9:]))
        GS.append((B+66, B+64+31, g1[:8])); GS.append((B+66, B+64+40, g1[8:]))
        if s == 0: DS.append((0, bq+8, dma_h(3) + dma_h(4) + dma_wd(0, 0), 3))
        elif s < 4: DS.append((B, B+30, dma_h(s+4), 4))
        if s in FRESH: DS.append((B+bq, B+50, dma_wd(*FRESH[s]), 4))
        if s in RECY:
            p, sg, pn = RECY[s]
            RS.append((B+16, B+44, g.st(f'R.{p}a') + [('wvm', f'wd{p}')] + g.st(f'R.{p}b') + rd_wd(p, sg)))
            DS.append((B+46, B+64, [('wlg', f'rw{p}')] + dma_wd(pn, sg), 4))
        if s >= 5: XS.append((B+bq, B+bq+2, flagW()))
        if s == 6: XS.append((B+40, B+46, pload('p1')))
    B = 448
    XS.append((B+14, B+17, pcheck('p1')))
    XS.append((B+16, B+44, ld_act(0), 1))
    XS.append((B+32, B+64, ld_act(1), 1))
    RS.append((B+48, B+64, [('wvm', 'wd9')] + rd_wd(6, FINAL[6]) + rd_wd(7, FINAL[7]) + rd_wd(8, FINAL[8]) + rd_wd(9, FINAL[9])))
    DA = ((104, 108, 120, 124), (112, 116, 128, 132))
    vRd = 144; vHr = 96; vU4 = 136
    def red1(m):
        return [('lg', f'ds_write_b128 v{vWa}, {vr(DA[m&1][tau],4)} offset:{16384*m+1024*tau}', 'dw') for tau in range(1, 4)]
    def red2(m):
        b = DA[m&1][0]
        L = [('wlg', 'dw'), 's_barrier']
        L += [('lg', f'ds_read_b128 {vr(vRd+4*(tau-1),4)}, v{vRa[tau-1]} offset:{16384*m+1024*tau}', 'dr') for tau in range(1, 4)]
        L += [('wvm', 'hres'), f's_add_u32 s84, s78, {m*32768}']
        for i in range(2):
            L += [f'v_lshlrev_b32 v{vU4+2*i}, 16, v{vHr+2*m+i}', f'v_and_b32 v{vU4+2*i+1}, 0xffff0000, v{vHr+2*m+i}']
        L += [f'v_add_f32 v{vU4+i}, v{vU4+i}, v{b+i}' for i in range(4)]
        return L
    OB = cfg.get('ob', '')
    def red3(m):
        L = [('wlg', 'dr')]
        L += [f'v_add_f32 v{vRd+i}, v{vRd+i}, v{vRd+4+i}' for i in range(4)]
        L += [f'v_add_f32 v{vU4+i}, v{vU4+i}, v{vRd+8+i}' for i in range(4)]
        L += [f'v_add_f32 v{vU4+i}, v{vU4+i}, v{vRd+i}' for i in range(4)]
        L += [f'v_cvt_pk_bf16_f32 v{vHr+2*m+i}, v{vU4+2*i}, v{vU4+2*i+1}' for i in range(2)]
        L += [('vm', f'buffer_store_dwordx2 {vr(vHr+2*m,2)}, v{vOa}, {SR(SRD_OUT)}, s84 offen {OB}', 'out')]
        return L
    def dlabel():
        a.label('LD_start')
    tailseg = [GS.pop(), GS.pop()][::-1]
    weave(g, mf, [GS, DS, RS, XS], 8, 'C')
    dlabel()
    vm.wait('a0_1'); lg.wait('rw9')
    mf = []; GS = []; RS = []; XS = []; ES = []
    for m in range(4):
        B = 56*m
        order = [(tau, i) for tau in (1, 2, 3, 0) for i in range(14)]
        if m == 0: order = [(tau, i) for tau in (1, 2, 3, 0) for i in range(10)] + [(tau, i) for tau in (1, 2, 3, 0) for i in range(10, 14)]
        for q, (tau, i) in enumerate(order):
            acc = vr(DA[m&1][tau], 4)
            f, r = wdreg(i, tau)
            fx = []
            if q + 1 < 56:
                t1, i1 = order[q+1]
                if t1 == 1 and i1 % 2 == 0: fx.append(('wvm', f'a{m}_{i1+1}'))
                if m == 0 and q + 1 == 40: fx.append(('wlg', 'rw13'))
            elif m < 3: fx.append(('wvm', f'a{m+1}_1'))
            if q == 55: fx += g.st(f'D.m{m}')
            mf.append((f'v_mfma_f32_16x16x32_bf16 {acc}, {vr(r,4,f)}, {actreg(m,i)}, {"0" if i==0 else acc}', fx))
        if m:
            ES.append((B+3, B+16, red2(m-1))); ES.append((B+20, B+36, red3(m-1)))
        if m == 0: ES.append((B+55, B+59, red1(m)))
        else: ES.append((B+46, B+56, red1(m), 2))
    GS = [(2, 20, tailseg[0][2]), (2, 36, tailseg[1][2])]
    RS = [(0, 38, [('wvm', 'wd13')] + rd_wd(10, FINAL[10]) + rd_wd(11, FINAL[11]) + rd_wd(12, FINAL[12]) + rd_wd(13, FINAL[13]))]
    hres = []
    for m in range(4):
        hres += [f's_add_u32 s83, s86, {m*32768}', ('vm', f'buffer_load_dwordx2 {vr(vHr+2*m,2)}, v{vL16}, {SR(SRD_WS)}, s83 offen sc1', 'hres')]
    P2, P3 = int(cfg.get('p2', 56)), int(cfg.get('p3', 108))
    XS = [(4, 10, flagC(7)), (10, 36, hres), (37, 40, pload('p2')), (P2, P2+4, flagC(8) + pcheck('p2') + g.st('D.p2')), (P2+2, P2+32, ld_act(2), 1),
          (P3-22, P3-18, pload('p3')), (P3, P3+3, pcheck('p3') + g.st('D.p3')), (P3+1, P3+30, ld_act(3), 1)]
    weave(g, mf, [GS, RS, XS, ES], 8, 'D')
    g.emits(red2(3) + red3(3))
    g.stamp('D.end')
    if cfg.get('dbgst'):
        a('s_waitcnt lgkmcnt(0)')
        a(f's_lshl2_add_u32 s70, s{S_WG}, s{W}')
        a(f's_cmp_lg_u32 s70, {int(cfg["dbgst"])*4}')
        a('s_cbranch_scc1 Lend')
        for i in range(1, min(g.ns, 17)):
            a(f's_sub_u32 s70, s{TSREG[i]}, s{TSREG[0]}')
            a(f'v_mov_b32 v2, s70')
            a(f'buffer_store_dword v2, off, {SR(SRD_DBG)}, 0 offset:{4*(i-1)}')
    elif cfg.get('stamps'):
        a('s_waitcnt lgkmcnt(0)')
        a(f's_lshl2_add_u32 s70, s{S_WG}, s{W}')
        a(f's_lshl_b32 s70, s70, 7')
        a(f's_add_u32 s70, s70, {WS_TS}')
        for i in range(g.ns):
            a(f'v_mov_b32 v2, s{TSREG[i]}')
            a(f'buffer_store_dword v2, off, {SR(SRD_WS)}, s70 offset:{4*i}')
    a.label('Lend')
    a('s_endpgm')
    for o in OOL[::-1]:
        a.hist = []
        o()
    a.label('Lfin')
    hdr = '; @launch grid=(256,1,1) block=(256,1,1) lds=163840\n'
    if cfg.get('stamps') and not cfg.get('dbgst'): hdr += '; stamps: ' + ','.join(g.names) + '\n'
    hdr += '.amdgcn_target "amdgcn-amd-amdhsa--gfx950"\n.text\n'
    KD = f""".section .rodata,"a"
.p2align 6
.amdhsa_kernel {k}
  .amdhsa_next_free_vgpr 512
  .amdhsa_next_free_sgpr 102
  .amdhsa_accum_offset 256
  .amdhsa_group_segment_fixed_size 0
  .amdhsa_kernarg_size 80
  .amdhsa_user_sgpr_count 2
  .amdhsa_user_sgpr_kernarg_segment_ptr 1
  .amdhsa_system_sgpr_workgroup_id_x 1
.end_amdhsa_kernel
"""
    print('nops', a.nops, 'stamps', g.ns, file=sys.stderr)
    if cfg.get('tour'): add_pads(a, hdr, KD, [int(x) for x in str(cfg['tour']).split('+')])
    return hdr + a.text() + KD

def add_pads(a, hdr, KD, offs):
    import subprocess, re
    stub = ''.join(f'Lpad_e{w}:\n' for w in range(4))
    open('_pad.s', 'w').write(hdr + a.text() + stub + KD)
    subprocess.run(['clang', '-x', 'assembler', '-target', 'amdgcn-amd-amdhsa', '-mcpu=gfx950', '-c', '_pad.s', '-o', '_pad.o'], check=True)
    dis = subprocess.run(['llvm-objdump', '-d', '_pad.o'], capture_output=True, text=True).stdout
    addr = [int(m.group(1), 16) for m in re.finditer(r'// ([0-9A-F]{12}):', dis)]
    idx = [i for i, l in enumerate(a.lines) if l.startswith('    ') and not l.strip().startswith(';')]
    assert len(addr) == len(idx), (len(addr), len(idx))
    end = addr[-1]
    pads = []; sh = 0
    for pg in range(1, end // 4096 + 2):
        for o in offs:
            t = pg*4096 + o
            c = [j for j in range(1, len(addr)) if t <= addr[j] + sh + 4 < t + 60]
            if not c: continue
            best = [j for j in c if 'v_mfma' in a.lines[idx[j-1]] and idx[j] == idx[j-1] + 1] or [j for j in c if idx[j] == idx[j-1] + 1]
            pads.append(best[0]); sh += 8
    n = len(pads); per = -(-n // 4)
    for k_ in range(n-1, -1, -1):
        nxt = f'Lpad_{k_+1}' if (k_+1) % per and k_+1 < n else 'Lpad_ret'
        ent = f'Lpad_e{k_//per}:\n' if k_ % per == 0 else ''
        a.lines.insert(idx[pads[k_]], f'    s_branch Lpad_s{k_}\n{ent}Lpad_{k_}:\n    s_branch {nxt}\nLpad_s{k_}:')
    r = a.lines.index('Lpad_ret:')
    for w in range(-(-n // per), 4): a.lines.insert(r, f'Lpad_e{w}:')
    print('pads', n, file=sys.stderr)

if __name__ == '__main__':
    out = sys.argv[1]
    cfg = {}
    for o in sys.argv[2:]:
        k_, _, v = o.partition('=')
        cfg[k_] = v.split(',') if k_ == 'sel' else (v or True)
    open(out, 'w').write(build(cfg))
```

```python
import sys, struct
from asmlib import *

NAME = 'sequential_preLN__linear_attn_block__geglu_ffn__prompt'
WS_PQ = 0x000000; WS_H = 0x200000; WS_ACT = 0x400000; WS_STATS = 0xB00000; WS_KV = 0xB40000
WS_FLAG = 0xB50000; WS_TS = 0xC00000; WS_SIZE = 0xD00000
FA = WS_FLAG; FB = WS_FLAG + 256*128; FC = WS_FLAG + 512*128
LOG2E = 1.4426950408889634; LN2 = 0.6931471805599453
def fbits(x): return '0x%08x' % struct.unpack('<I', struct.pack('<f', x))[0]

S_WG = 2; W = 3
SRD_X = 36; SRD_WQKV = 40; SRD_WO = 44; SRD_WGU = 48; SRD_WD = 52; SRD_OUT = 56; SRD_WS = 60; SRD_DBG = 64
SRD_ACT = 40
S_XC = 68; S_J = 69
def SR(b): return f's[{b}:{b+3}]'
def v2(b): return f'v[{b}:{b+1}]'

class Cnt:
    def __init__(self, a, name, cap): self.a = a; self.q = []; self.name = name; self.cap = cap; self.seen = set()
    def issue(self, text, tag='x'):
        self.a(text); self.q.append(tag); self.seen.add(tag)
        if self.name == 'vmcnt': assert len(self.q) <= self.cap, "vmcnt overflow"
    def wait(self, *tags):
        for t in tags: assert t in self.seen, ('wait on unissued', t)
        last = -1
        for i, t in enumerate(self.q):
            if t in tags: last = i
        if last < 0: return
        n = len(self.q) - 1 - last
        n = min(n, self.cap)
        self.a(f's_waitcnt {self.name}({n})')
        self.q = self.q[len(self.q)-n:] if n else []
    def wait_all(self):
        self.a(f's_waitcnt {self.name}(0)'); self.q = []

TSREG = list(range(90, 100, 2)) + list(range(8, 16, 2)) + [30,32,34,16,18,20,22,24,26,28,4,6]

class G:
    def __init__(self, cfg):
        self.a = Asm(); self.cfg = cfg
        self.vm = Cnt(self.a, 'vmcnt', 63); self.lg = Cnt(self.a, 'lgkmcnt', 15)
        self.ns = 0; self.names = []
    def want(self, name):
        if not self.cfg.get('stamps'): return False
        sel = self.cfg.get('sel')
        return not (sel and not any(name.startswith(p) for p in sel))
    def stamp(self, name):
        if not self.want(name): return
        r = TSREG[self.ns]; self.ns += 1; self.names.append(name)
        self.a(f'{"s_memtime" if self.cfg["stamps"] == "cyc" else "s_memrealtime"} s[{r}:{r+1}]')
    def st(self, name):
        return [lambda: self.stamp(name)] if self.want(name) else []
    def emit(self, t):
        if isinstance(t, str): self.a(t)
        elif callable(t): t()
        elif t[0] == 'vm': self.vm.issue(t[1], t[2])
        elif t[0] == 'lg': self.lg.issue(t[1], t[2])
        elif t[0] == 'wvm': self.vm.wait(*t[1:])
        elif t[0] == 'wlg': self.lg.wait(*t[1:])
        else: raise ValueError(t)
    def emits(self, L):
        for x in L: self.emit(x)

def cls(t):
    if callable(t): return 0
    if isinstance(t, tuple): return 1 if t[0] in ('vm', 'lg') else 0
    op = t.split()[0]
    if op.startswith('s_'): return 0
    if op.startswith(('ds_', 'buffer_', 'global_')): return 1
    return 2
def cost(t):
    c = cls(t)
    if c == 0: return 4
    tx = t if isinstance(t, str) else t[1]
    op = tx.split()[0]
    if c == 1: return 20 if op == 'ds_write_b128' else 4
    return 8 if (op.split('_e')[0] in TRANS or op in TRANS) else 4

def weave(g, mf, streams, cap, name=''):
    n = len(mf)
    def fcost(items):
        c = sum(cost(x) for x in items)
        return c - 4 if any(cls(x) == 0 for x in items) else c
    fixed = [fcost(m[1]) for m in mf]
    segs = [[[s[0], s[1], list(s[2]), s[3] if len(s) > 3 else 0] for s in st if s[2]] for st in streams]
    lastmem = [-99]*len(segs)
    tot = 0
    for i in range(n):
        gap = [[], [], []]; tail = []
        for x in mf[i][1]: gap[cls(x)].append(x)
        used = fixed[i]
        lc = [-1]*len(segs)
        blocked = set()
        while True:
            best = None
            for k, st in enumerate(segs):
                if not st or k in blocked or st[0][0] > i: continue
                if best is None or st[0][1] < segs[best][0][1]: best = k
            if best is None: break
            sg = segs[best][0]; it = sg[2][0]; c = cls(it)
            must = i >= sg[1]-1
            kk = 0 if (c == 0 and not gap[0]) else cost(it)
            if not must:
                if c < lc[best] or (c == 1 and sg[3] and i - lastmem[best] < sg[3]): blocked.add(best); continue
                if used + kk > cap:
                    dem = sum(sum(cost(x) for x in s[2] if cls(x)) for st in segs for s in st if s[1] <= sg[1])
                    room = sum(max(0, cap - fixed[j]) for j in range(i+1, min(n, sg[1])))
                    if not (used < cap and dem > room): blocked.add(best); continue
            if c < lc[best] or tail and must and lc[best] == 9:
                tail.append(it); lc[best] = 9
            else:
                gap[c].append(it); lc[best] = c
            used += kk
            if c == 1: lastmem[best] = i
            sg[2].pop(0)
            if not sg[2]: segs[best].pop(0)
        g.a(mf[i][0])
        for x in gap[0] + gap[1] + gap[2] + tail: g.emit(x)
        tot += max(cap, used) + 8
    assert not any(segs), ('unplaced', name)
    print(f'weave {name}: {n} mfma est {tot} cyc', file=sys.stderr)

def srd(a, d, ptr, size):
    a(f's_mov_b32 s{d}, s{ptr}')
    a(f's_mov_b32 s{d+1}, s{ptr+1}')
    a(f's_mov_b32 s{d+2}, {size}')
    a(f's_mov_b32 s{d+3}, 0x20000')

def guard(g):
    if g.cfg.get('safe'):
        g.a('s_sub_u32 s100, s100, 1')
        g.a('s_cbranch_scc1 Lend')

def poll(g, label, vaddr, vdst, n, soff, need):
    a = g.a
    a.label(label)
    sfx = {1: '', 4: 'x4'}[n]
    a(f'buffer_load_dword{sfx} {vr(vdst, n)}, v{vaddr}, {SR(SRD_WS)}, s{soff} offen sc1')
    g.vm.wait_all()
    if n == 4:
        a(f'v_min_u32 v{vdst}, v{vdst}, v{vdst+1}')
        a(f'v_min3_u32 v{vdst}, v{vdst}, v{vdst+2}, v{vdst+3}')
    a(f'v_cmp_gt_u32 vcc, {need}, v{vdst}')
    guard(g)
    a(f's_cbranch_vccnz {label}')

def build(cfg):
    g = G(cfg); a = g.a; vm = g.vm; lg = g.lg
    k = NAME + '_kernel'
    OOL = []
    FSH = 7
    SRD_FL = SRD_X
    a.raw(f'.globl {k}\n.p2align {12 if cfg.get("tour") or cfg.get("al") else 8}\n.type {k},@function\n{k}:')
    a(f's_cmp_ge_u32 s{S_WG}, 256')
    a('s_cbranch_scc1 Lend')
    a('s_load_dwordx16 s[16:31], s[0:1], 0')
    a('s_load_dwordx4 s[32:35], s[0:1], 64')
    g.stamp('A.start')
    if cfg.get('safe'): a('s_mov_b32 s100, 200000')
    a('v_lshrrev_b32 v1, 6, v0')
    a(f's_lshr_b32 s{S_J}, s{S_WG}, 3')
    a(f'v_readfirstlane_b32 s{W}, v1')
    a('v_and_b32 v0, 63, v0')
    a(f's_and_b32 s{S_XC}, s{S_WG}, 7')
    vTa, vTd = 218, 234
    a(f'v_lshlrev_b32 v{vTa}, 7, v0')
    if cfg.get('cpf'):
        a(f's_cmp_ge_u32 s{S_J}, 2')
        a('s_cbranch_scc1 LX_cpf_ret')
        a('s_getpc_b64 s[4:5]')
        a.label('LX_pc')
        a(f's_lshl2_add_u32 s76, s{S_J}, s{W}')
        a(f's_lshl_b32 s76, s76, 13')
        a(f'v_add_u32 v{vTd}, s76, v{vTa}')
        a(f'v_min_u32 v{vTd}, Lfin-LX_pc-4, v{vTd}')
        a(f'global_load_dword v{vTd}, v{vTd}, s[4:5]')
        a.label('LX_cpf_ret')
    XR = 98304
    s_rb, s_hp, s_x, s_w, s_m0x, s_m0w, s_rot = 70, 71, 72, 73, 74, 75, 82
    a(f's_lshr_b32 s76, s{S_XC}, 1')
    a(f's_and_b32 s{s_rb}, s{S_J}, 3')
    a(f's_lshl2_add_u32 s{s_rb}, s76, s{s_rb}')
    a(f's_and_b32 s76, s{S_XC}, 1')
    a(f's_lshr_b32 s{s_hp}, s{S_J}, 2')
    a(f's_lshl3_add_u32 s{s_hp}, s76, s{s_hp}')
    a(f's_lshr_b32 s76, s{S_J}, 3')
    a(f's_add_u32 s{s_rot}, s{S_J}, s76')
    a(f's_add_u32 s{s_rot}, s{s_rot}, s{S_XC}')
    if cfg.get('rot'): a(f's_lshl_b32 s{s_rot}, s{s_rot}, {cfg["rot"]}')
    a(f's_lshl2_add_u32 s{s_x}, s{s_rb}, s{W}')
    a(f's_lshl_b32 s{s_x}, s{s_x}, 15')
    a(f's_mul_i32 s{s_w}, s{W}, {16*3072}')
    a(f's_lshl_b32 s76, s{s_hp}, 6')
    a(f's_add_u32 s{s_w}, s{s_w}, s76')
    a(f's_lshl_b32 s{s_m0x}, s{W}, 14')
    a(f's_add_u32 s{s_m0x}, s{s_m0x}, {XR}')
    a(f's_mul_i32 s{s_m0w}, s{W}, 3072')
    vXd = 4; vWd = 8; vXr = 12; vWn = 16; vWp = 20
    vSum, vSq, vCs = 24, 25, 26
    vOne = 29; vT = 30; vAcc = 40; vX = 88; vW = 120
    vWo = 220
    vDbg = 216; vDbgA = 217
    a(f'v_lshrrev_b32 v{vT}, 3, v0')
    a(f'v_and_b32 v{vT+1}, 7, v0')
    a(f'v_lshrrev_b32 v{vT+2}, 1, v{vT}')
    a(f'v_xor_b32 v{vT+1}, v{vT+1}, v{vT+2}')
    a(f'v_lshlrev_b32 v{vT+1}, 4, v{vT+1}')
    a(f'v_lshl_add_u32 v{vXd}, v{vT}, 10, v{vT+1}')
    a(f'v_xor_b32 v{vXd+1}, 64, v{vXd}')
    a(f'v_add_u32 v{vXd+1}, {8192-1024}, v{vXd+1}')
    a(f'v_add_u32 v{vXd+2}, {2*(8192-1024)}, v{vXd}')
    a(f'v_add_u32 v{vXd+3}, {2*(8192-1024)}, v{vXd+1}')
    for q in range(3):
        a(f'v_add_u32 v{vT}, {64*q}, v0')
        a(f'v_mul_u32_u24 v{vT+1}, 171, v{vT}')
        a(f'v_lshrrev_b32 v{vT+1}, 11, v{vT+1}')
        a(f'v_mul_u32_u24 v{vT+2}, 12, v{vT+1}')
        a(f'v_sub_u32 v{vT+2}, v{vT}, v{vT+2}')
        a(f'v_mul_u32_u24 v{vT+1}, 3072, v{vT+1}')
        a(f'v_lshrrev_b32 v{vT+3}, 2, v{vT+2}')
        a(f'v_lshl_add_u32 v{vT+1}, v{vT+3}, 10, v{vT+1}')
        a(f'v_and_b32 v{vT+2}, 3, v{vT+2}')
        a(f'v_lshl_add_u32 v{vWd+q}, v{vT+2}, 4, v{vT+1}')
        if q == 0: a(f'v_lshl_add_u32 v249, v{vT+2}, 7, v{vT+1}')
        if q: a(f'v_subrev_u32 v{vWd+q}, {1024*q}, v{vWd+q}')
    a(f'v_lshlrev_b32 v219, 6, v0')
    a(f's_lshl2_add_u32 s87, s{S_J}, s{W}')
    a(f's_and_b32 s83, s{S_WG}, 0xe4')
    a(f's_or_b32 s83, s83, s{W}')
    a(f's_mov_b32 s{SRD_X+2}, {2048*512*2}')
    a(f's_mov_b32 s{SRD_X+3}, 0x20000')
    a(f's_mov_b32 s{SRD_WQKV+2}, {512*1536*2}')
    a(f's_mov_b32 s{SRD_WQKV+3}, 0x20000')
    a(f's_mov_b32 s{SRD_WS+2}, {WS_SIZE}')
    a(f's_mov_b32 s{SRD_WS+3}, 0x20000')
    a('s_waitcnt lgkmcnt(0)')
    g.stamp('S.karg')
    a(f's_mov_b64 s[{SRD_X}:{SRD_X+1}], s[16:17]')
    a(f's_mov_b64 s[{SRD_WQKV}:{SRD_WQKV+1}], s[18:19]')
    a(f's_mov_b64 s[{SRD_WS}:{SRD_WS+1}], s[34:35]')
    def dma_xw(c):
        L = [f's_add_u32 s78, s{s_rot}, {c}', f's_and_b32 s78, s78, 7', f's_lshl_b32 s76, s78, 7', f's_add_u32 s76, s76, s{s_x}',
             f's_add_u32 m0, s{s_m0x}, {(c&3)*4096}', f's_mul_i32 s77, s78, {64*3072}']
        for i in range(4):
            L.append(('vm', f'buffer_load_dwordx4 v{vXd+i}, {SR(SRD_X)}, s76 offen offset:{i*1024} lds', f'c{c}'))
        L += [f's_add_u32 m0, s{s_m0w}, {c*12288}', f's_add_u32 s77, s77, s{s_w}']
        for q in range(3):
            L.append(('vm', f'buffer_load_dwordx4 v{vWd+q}, {SR(SRD_WQKV)}, s77 offen offset:{q*1024} lds', f'c{c}'))
        return L
    NX = int(cfg.get('nx', 4))
    TL = {}
    for it in (cfg.get('tl') or '').split('+'):
        if it:
            n_, p_ = it.split('@'); TL.setdefault(p_, []).append(n_)
    vT64, vTw, vTg = 219, 249, 250
    tcnt = [0]
    def touch1(n):
        tcnt[0] += 1
        lab = f'LT_{tcnt[0]}'
        def f():
            if n == 'x':
                a(f's_lshr_b32 s81, s{S_XC}, 1')
                a(f's_lshl_b32 s81, s81, 7')
                a(f's_add_u32 s81, s81, s87')
                a(f's_lshl_b32 s81, s81, 12')
                vm.issue(f'buffer_load_dword v{vTd+1}, v{vT64}, {SR(SRD_X)}, s81 offen', 'touch')
            elif n == 'w':
                a(f's_and_b32 s81, s{S_XC}, 1')
                a(f's_lshl_b32 s81, s81, 9')
                a(f's_mul_i32 s4, s87, {4*3072}')
                a(f's_add_u32 s81, s81, s4')
                a('s_mov_b32 exec_hi, 0xffff')
                vm.issue(f'buffer_load_dword v{vTd+1}, v{vTw}, {SR(SRD_WQKV)}, s81 offen', 'touch')
                a('s_mov_b32 exec_hi, -1')
            elif n == 'o':
                a(f's_lshl_b32 s81, s87, 12')
                vm.issue(f'buffer_load_dword v{vTd+1}, v{vT64}, {SR(SRD_WO)}, s81 offen', 'touch')
            elif n in ('g0', 'g1'):
                a(f's_bitcmp1_b32 s{W}, 0')
                a('s_cselect_b64 s[4:5], s[26:27], s[24:25]')
                a(f's_mov_b32 s6, {512*1792*2}')
                a('s_mov_b32 s7, 0x20000')
                a(f's_lshr_b32 s81, s87, 1')
                a(f's_lshl_b32 s81, s81, 4')
                a(f's_bitcmp1_b32 s{S_XC}, 0')
                a(f's_addc_u32 s81, s81, {8*int(n[1])}')
                a(f's_mul_i32 s81, s81, 1792')
                a('s_mov_b32 exec_hi, 0xffffff')
                vm.issue(f'buffer_load_dword v{vTd+1}, v{vTg}, s[4:7], s81 offen', 'touch')
                a('s_mov_b32 exec_hi, -1')
            elif n == 'G':
                nl = 14336 // (64*NX)
                if NX < 8:
                    a(f's_cmp_ge_u32 s{S_XC}, {NX}')
                    a(f's_cbranch_scc1 {lab}')
                a(f's_bitcmp1_b32 s{W}, 0')
                a('s_cselect_b64 s[4:5], s[26:27], s[24:25]')
                a(f's_mov_b32 s6, {512*1792*2}')
                a('s_mov_b32 s7, 0x20000')
                a(f's_lshr_b32 s81, s87, 1')
                a(f's_mul_i32 s81, s81, {NX}')
                a(f's_add_u32 s81, s81, s{S_XC}')
                a(f's_mul_i32 s81, s81, {nl*128}')
                a(f'v_min_u32 v{vTd}, {(min(nl,56)-1)*128}, v{vTa}')
                for i in range(0, nl, 56):
                    (a if NX < 8 else vm.issue)(f'buffer_load_dword v{vTd+1}, v{vTd}, s[4:7], s81 offen')
                    if i + 56 < nl: a(f's_add_u32 s81, s81, {56*128}')
                a.label(lab)
            elif n == 'D':
                nl = 14336 // (128*NX)
                if NX < 8:
                    a(f's_cmp_ge_u32 s{S_XC}, {NX}')
                    a(f's_cbranch_scc1 {lab}')
                a(f's_mul_i32 s81, s87, {NX}')
                a(f's_add_u32 s81, s81, s{S_XC}')
                a(f's_mul_i32 s81, s81, {nl*128}')
                a(f'v_min_u32 v{vTd}, {(nl-1)*128}, v{vTa}')
                (a if NX < 8 else vm.issue)(f'buffer_load_dword v{vTd+1}, v{vTd}, {SR(SRD_WD)}, s81 offen')
                a.label(lab)
            else: raise ValueError(n)
        return f
    def touch(p): return [touch1(n) for n in TL.get(p, [])]
    a(f's_cmp_eq_u32 s83, 0')
    a('s_cbranch_scc0 LX_zero_ret')
    def ool_zero():
        for i in range(4): a(f'v_mov_b32 v{vT+i}, 0')
        a(f's_lshl2_add_u32 s77, s{S_J}, s{S_XC}')
        a(f's_mul_i32 s76, s77, 2176')
        a(f's_add_u32 s76, s76, {WS_KV}')
        a(f'v_lshlrev_b32 v{vT+4}, 4, v0')
        a(f'v_min_u32 v{vT+5}, {128-16}, v{vT+4}')
        a(f'buffer_store_dwordx4 v[{vT}:{vT+3}], v{vT+4}, {SR(SRD_WS)}, s76 offen sc1')
        a(f'buffer_store_dwordx4 v[{vT}:{vT+3}], v{vT+4}, {SR(SRD_WS)}, s76 offen offset:1024 sc1')
        a(f'buffer_store_dwordx4 v[{vT}:{vT+3}], v{vT+5}, {SR(SRD_WS)}, s76 offen offset:2048 sc1')
        a(f's_mul_i32 s76, s77, {112*128}')
        a(f's_add_u32 s76, s76, {WS_FLAG}')
        a(f's_add_u32 s77, s76, {48*128}')
        a(f'buffer_store_dword v{vT}, v{vTa}, {SR(SRD_WS)}, s76 offen sc1')
        a(f'buffer_store_dword v{vT}, v{vTa}, {SR(SRD_WS)}, s77 offen sc1')
    ool_zero()
    a.label('LX_zero_ret')
    g.emits(touch('pre'))
    g.emits(dma_xw(0)); g.stamp('S.d0')
    g.emits(touch('d0'))
    D1 = dma_xw(1)
    g.emits(D1[:10]); g.stamp('S.d1')
    g.emits(touch('dx'))
    a('s_mov_b32 s79, s77')
    srd(a, SRD_DBG, 32, 256)
    srd(a, SRD_WO, 20, 512*512*2)
    a(f's_cmp_ge_u32 s{W}, 2')
    a(f's_cselect_b64 s[{SRD_WGU}:{SRD_WGU+1}], s[26:27], s[24:25]')
    a(f's_cmp_ge_u32 s{S_J}, 28')
    if cfg.get('iw'):
        a(f's_cselect_b64 s[{SRD_WGU}:{SRD_WGU+1}], s[28:29], s[{SRD_WGU}:{SRD_WGU+1}]')
        a(f's_mov_b32 s{SRD_WGU+2}, {512*1792*2}')
    else: a(f's_cselect_b32 s{SRD_WGU+2}, 0, {512*1792*2}')
    a(f's_mov_b32 s{SRD_WGU+3}, 0x20000')
    srd(a, SRD_WD, 28, 1792*512*2)
    srd(a, SRD_OUT, 30, 2048*512*2)
    a(f'v_and_b32 v{vT}, 31, v0')
    a(f'v_lshrrev_b32 v{vT+1}, 5, v0')
    a(f'v_lshrrev_b32 v{vT+2}, 1, v{vT}')
    a(f'v_and_b32 v{vT+2}, 7, v{vT+2}')
    a(f'v_xor_b32 v{vT+2}, v{vT+2}, v{vT+1}')
    a(f'v_lshlrev_b32 v{vT+2}, 4, v{vT+2}')
    a(f'v_lshl_add_u32 v{vT+2}, v{vT}, 7, v{vT+2}')
    a(f'v_add_u32 v{vT+2}, s{s_m0x}, v{vT+2}')
    for s in range(4):
        a(f's_xor_b32 s76, s{W}, {s}')
        a(f's_lshl_b32 s76, s76, 5')
        a(f'v_xor_b32 v{vXr+s}, s76, v{vT+2}')
    a(f'v_bfe_u32 v{vT+2}, v0, 2, 2')
    a(f'v_lshl_add_u32 v{vT+2}, v{vT+1}, 3, v{vT+2}')
    a(f'v_mul_u32_u24 v{vT+2}, 192, v{vT+2}')
    a(f'v_bfe_u32 v{vT+3}, v0, 4, 1')
    a(f'v_lshl_add_u32 v{vT+2}, v{vT+3}, 5, v{vT+2}')
    a(f'v_and_b32 v{vT+3}, 3, v0')
    a(f'v_lshl_add_u32 v{vT+4}, v{vT+3}, 3, v{vT+2}')
    a(f'v_and_b32 v{vT+5}, 1, v0')
    a(f'v_lshl_add_u32 v{vT+5}, v{vT+5}, 4, v{vT+2}')
    a(f'v_bfe_u32 v{vT+3}, v0, 1, 1')
    a(f'v_lshl_add_u32 v{vT+5}, v{vT+3}, 3, v{vT+5}')
    for s in range(4):
        a(f's_xor_b32 s76, s{W}, {s}')
        a(f's_mul_i32 s76, s76, 3072')
        a(f'v_add_u32 v{vWn+s}, s76, v{vT+4}')
        a(f'v_add_u32 v{vWp+s}, s76, v{vT+5}')
    for r in (vSum, vSq, vCs, vCs+1, vCs+2): a(f'v_mov_b32 v{r}, 0')
    a(f'v_mov_b32 v{vOne}, 0x3f803f80')
    a(f'v_lshrrev_b32 v{vT}, 4, v0')
    a(f'v_and_b32 v{vT+1}, 15, v0')
    a(f'v_lshlrev_b32 v{vT+2}, 1, v{vT}')
    a(f'v_xor_b32 v{vT+1}, v{vT+1}, v{vT+2}')
    a(f'v_lshlrev_b32 v{vT+1}, 4, v{vT+1}')
    a(f'v_lshl_add_u32 v{vWo}, v{vT}, 10, v{vT+1}')
    a(f'v_add_u32 v{vWo+1}, {4096-1024}, v{vWo}')
    a(f'v_xor_b32 v{vWo+2}, 128, v{vWo}')
    a(f'v_add_u32 v{vWo+2}, {2*(4096-1024)}, v{vWo+2}')
    a(f'v_add_u32 v{vWo+3}, {4096-1024}, v{vWo+2}')
    a(f'v_and_b32 v{vDbgA}, 15, v0')
    a(f'v_lshlrev_b32 v{vDbgA}, 2, v{vDbgA}')
    a(f's_lshr_b32 s84, s{S_J}, 3')
    a(f's_lshl_b32 s84, s84, 8')
    a(f's_lshl_b32 s76, s{W}, 17')
    a(f's_add_u32 s84, s84, s76')
    a(f's_lshl_b32 s85, s{W}, 12')
    SC = 12288; CSA = 81920
    vE1, vE2, vE3, vE4, vE5, vE6, vE7, vE8, vE9, vE2b = range(224, 234)
    vL16 = 1
    a(f'v_and_b32 v{vT}, 31, v0')
    a(f'v_lshl_add_u32 v{vE1}, v{vT}, 2, s{s_m0x}')
    a(f'v_add_u32 v{vE1}, {SC}, v{vE1}')
    a(f'v_lshlrev_b32 v{vE2}, 2, v{vT}')
    a(f'v_add_u32 v{vE2}, {CSA}, v{vE2}')
    a(f'v_add_u32 v{vE2b}, 768, v{vE2}')
    a(f'v_lshrrev_b32 v{vT+1}, 5, v0')
    a(f'v_lshl_add_u32 v{vE3}, v{vT+1}, 4, s{s_m0x}')
    a(f's_mul_i32 s76, s{W}, 384')
    a(f's_add_u32 s76, s76, {CSA}')
    a(f'v_lshl_add_u32 v{vE4}, v0, 2, s76')
    a(f'v_mul_u32_u24 v{vT+1}, 272, v{vT+1}')
    a(f'v_bfe_u32 v{vT+2}, v0, 4, 1')
    a(f'v_mul_u32_u24 v{vT+2}, 544, v{vT+2}')
    a(f'v_add3_u32 v{vE6}, v{vT+1}, v{vT+2}, s{s_m0x}')
    a(f'v_and_b32 v{vT+1}, 3, v0')
    a(f'v_bfe_u32 v{vT+2}, v0, 2, 1')
    a(f'v_lshl_add_u32 v{vT+1}, v{vT+2}, 3, v{vT+1}')
    a(f'v_bfe_u32 v{vT+2}, v0, 3, 1')
    a(f'v_lshl_add_u32 v{vT+1}, v{vT+2}, 2, v{vT+1}')
    a(f'v_lshl_add_u32 v{vE5}, v{vT+1}, 4, v{vE6}')
    a(f's_lshl_b32 s78, s{W}, 8')
    a(f'v_lshl_add_u32 v{vE7}, v0, 2, s78')
    a(f'v_add_u32 v{vE8}, {XR+SC+1024}, v{vE7}')
    a(f'v_min_u32 v{vE9}, {XR+SC+1024+124}, v{vE8}')
    a(f'v_lshlrev_b32 v{vL16}, 4, v0')
    vOnes = 236
    for i in range(4): a(f'v_mov_b32 v{vOnes+i}, v{vOne}')
    a(f'v_mul_u32_u24 v{vT}, 147, v0')
    a(f'v_lshrrev_b32 v{vT}, 11, v{vT}')
    a(f'v_mul_u32_u24 v{vT}, 1792, v{vT}')
    a(f'v_add_u32 v{vTg}, v{vT}, v{vTa}')
    vXres = 240; vXa = 248
    a(f'v_and_b32 v{vT}, 15, v0')
    a(f'v_lshrrev_b32 v{vT+1}, 4, v0')
    a(f'v_lshlrev_b32 v{vT+2}, 3, v{vT+1}')
    a(f'v_lshl_add_u32 v{vXa}, v{vT}, 10, v{vT+2}')
    a(f's_and_b32 s88, s{S_J}, 7')
    a(f's_lshl3_add_u32 s88, s{S_XC}, s88')
    a(f's_lshl_b32 s88, s88, 15')
    a(f's_lshr_b32 s89, s{S_J}, 3')
    a(f's_lshl2_add_u32 s89, s89, s{W}')
    a(f's_lshl_b32 s89, s89, 6')
    a(f's_add_u32 s88, s88, s89')
    a(f's_add_u32 s89, s88, 16384')
    XRES = [('vm', f'buffer_load_dwordx2 {vr(vXres+m*4+t*2,2)}, v{vXa}, {SR(SRD_X)}, s{88+m} offen offset:{32*t}', 'xres') for m in range(2) for t in range(2)]
    a('s_mov_b32 s77, s79')
    g.emits(D1[10:])
    g.emits(touch('d1'))
    g.stamp('A.issued')
    def dma_wo(n):
        L = [f's_add_u32 m0, s85, {16384*n}' if n < 5 else f's_add_u32 m0, s{s_m0x}, {4096*(n-5)}', f's_add_u32 s77, s84, {n*16384}']
        for i in range(4):
            L.append(('vm', f'buffer_load_dwordx4 v{vWo+i}, {SR(SRD_WO)}, s77 offen offset:{i*1024} lds', f'wo{n>>2}'))
        return L
    def rdX(c):
        return [('lg', f'ds_read_b128 {vr(vX+(c&1)*16+s*4,4)}, v{vXr+s} offset:{(c&3)*4096}', 'x') for s in range(4)]
    def rdW(c, s):
        base = vW + (c&1)*48 + s*12
        off = (c&3)*12288
        L = []
        for tile in (1, 2, 0):
            ad = (vWp if tile == 0 else vWn) + s
            for h2 in range(2):
                L.append(('lg', f'ds_read_b64_tr_b16 {vr(base+tile*4+h2*2,2)}, v{ad} offset:{off + h2*768 + tile*64}', f'w{s}'))
        return L
    def ismem(x): return cls(x) == 1 or callable(x)
    def sprinkle(L, ex, first=0):
        n = sum(1 for x in ex if ismem(x))
        tot = sum(cost(x) for x in L)
        acc = 0; k = 0
        for x in L:
            while ex and acc >= first + (tot - first)*k/max(n, 1):
                while ex:
                    y = ex.pop(0); g.emit(y)
                    if ismem(y): break
                k += 1
            g.emit(x); acc += cost(x)
        g.emits(ex); del ex[:]
    def dots(c):
        xb = vX + (c&1)*16; wb = vW + (c&1)*48
        L = []
        for i in range(4):
            for tile in range(3):
                L.append(f'v_dot2c_f32_bf16 v{vCs+tile}, v{wb+tile*4+i}, v{vOne}')
        for i in range(16):
            L.append(f'v_dot2c_f32_bf16 v{vSum}, v{xb+i}, v{vOne}')
            L.append(f'v_dot2c_f32_bf16 v{vSq}, v{xb+i}, v{xb+i}')
        return L
    def mm(c, s, t):
        xb = vr(vX + (c&1)*16 + s*4, 4); wb = vr(vW + (c&1)*48 + s*12 + 4*t, 4)
        C = '0' if (c == 0 and s == 0) else vr(vAcc+16*t, 16)
        if t: return f'v_mfma_f32_32x32x16_bf16 {vr(vAcc+16*t,16)}, {xb}, {wb}, {C}'
        return f'v_mfma_f32_32x32x16_bf16 {vr(vAcc,16)}, {wb}, {xb}, {C}'
    DO = ' offset:64' if cfg.get('dbgst') else ''
    vK, vV, vQ = vAcc+16, vAcc+32, vAcc
    vM, vR, vCq, vEx = 120, 136, 152, 168
    vPK, vPV, vD2 = 184, 192, 200
    vMean, vRstd = vSum, vSq
    sE, sL = 80, 86
    WOL = []
    for n in (0, 1, 2, 3, 5, 6, 7, 4): WOL += dma_wo(n)
    def cut(L, n):
        R = []
        while L and n:
            x = L.pop(0); R.append(x)
            if ismem(x): n -= 1
        return R
    def rdall(c): return rdX(c) + rdW(c, 0) + rdW(c, 1) + rdW(c, 2) + rdW(c, 3)
    if cfg.get('tour'):
        for w in range(3):
            a(f's_cmp_eq_u32 s{W}, {w}')
            a(f's_cbranch_scc1 Lpad_e{w}')
        a('s_branch Lpad_e3')
        a.label('Lpad_ret')
        g.stamp('A.tour')
    vm.wait('c0')
    a('s_barrier')
    g.stamp('A.c0')
    R0 = rdall(0); D2 = dma_xw(2)
    while R0 or D2:
        g.emits(cut(R0, 4)); g.emits(cut(D2, 1))
    a(f's_cmp_eq_u32 s83, 0')
    a('s_cbranch_scc0 LX_sig_ret')
    a(f'v_mov_b32 v{vT}, 1')
    a(f's_lshl2_add_u32 s76, s{S_J}, s{S_XC}')
    a(f's_lshl_b32 s76, s76, 2')
    a(f'buffer_store_dword v{vT}, off, {SR(SRD_DBG)}, s76{DO} sc1')
    a.label('LX_sig_ret')
    a(f's_mov_b32 s{sE}, {fbits(1e-6*LOG2E)}')
    a(f's_mov_b32 s{sL}, {fbits(LN2)}')
    WN = [int(x) for x in cfg.get('wn', '0,0,0,0,0,0,0,0,0,0,0').split(',')]
    for c in range(8): assert sum(WN[:c+1]) <= (0, 4, 8, 12, 12, 24, 32, 32)[c]
    for c in range(4): assert WN[c] % 4 == 0
    for n_ in TL.get('pre', []) + TL.get('d0', []) + TL.get('dx', []): assert n_ in 'xwG'
    DF = int(cfg.get('df', 33)); rest = []
    for c in range(8):
        g.stamp(f'I.{c}e')
        lg.wait('x', 'w0')
        if c == 3:
            for s in range(4):
                a(f'v_add_u32 v{vWn+s}, 49152, v{vWn+s}'); a(f'v_add_u32 v{vWp+s}, 49152, v{vWp+s}')
        sprinkle(dots(c), rest)
        g.stamp(f'I.{c}m')
        dm = []
        if c + 3 < 8: dm += dma_xw(c+3)
        dm += touch(f's{c}')
        if c == 4: dm += XRES
        if c == int(cfg.get('dbs', 4)):
            dm.append(('vm', f'buffer_load_dword v{vDbg}, v{vDbgA}, {SR(SRD_DBG)}, 0 offen{DO} sc1', 'dbg'))
        dm += cut(WOL, WN[c])
        dm += touch(f'e{c}')
        rest = dm
        nd = sum(1 for x in dm if ismem(x))
        dm = cut(rest, nd - (nd*DF + 50)//100)
        nd = sum(1 for x in dm if ismem(x))
        DSEG = [(12*i//max(nd, 1), 12*i//max(nd, 1) + 2, cut(dm, 1)) for i in range(nd)]
        lg.wait_all()
        if c < 7:
            mf = [(mm(c, s, t), []) for s in range(4) for t in (1, 2, 0)]
            mf[0] = (mf[0][0], [('wvm', f'c{c+1}'), 's_barrier'] + g.st(f'A.c{c+1}'))
            rd = rdall(c+1)
            RSEG = [(i, i+1, cut(rd, 3 if (i % 3 == 1) else 2)) for i in range(11)] + [(11, 12, rd)]
            weave(g, mf, [RSEG, DSEG], 24, f'A{c}')
        else:
            mf = [(mm(7, s, t), []) for s in range(4) for t in (1, 2)] + [(mm(7, s, 0), []) for s in range(4)]
            vP = 88
            S = [f'v_mov_b32 v{vT}, v{vSum}', f'v_mov_b32 v{vT+1}, v{vSq}', f'v_mov_b32 v{vT+2}, v{vCs}',
                 f'v_permlane32_swap_b32 v{vCs+1}, v{vCs+2}',
                 f'v_permlane32_swap_b32 v{vSum}, v{vT}', f'v_permlane32_swap_b32 v{vSq}, v{vT+1}', f'v_permlane32_swap_b32 v{vCs}, v{vT+2}',
                 f'v_add_f32 v{vCs+1}, v{vCs+1}, v{vCs+2}',
                 f'v_add_f32 v{vSum}, v{vSum}, v{vT}', f'v_add_f32 v{vSq}, v{vSq}, v{vT+1}', f'v_add_f32 v{vCs}, v{vCs}, v{vT+2}',
                 f'v_mul_f32 v{vMean}, {fbits(1/512)}, v{vSum}',
                 ('lg', f'ds_write_b32 v{vE4}, v{vCs} offset:0', 'cs'),
                 ('lg', f'ds_write_b32 v{vE4}, v{vCs+1} offset:128', 'cs'),
                 f'v_mul_f32 v{vSq}, {fbits(1/512)}, v{vSq}',
                 f'v_fma_f32 v{vSq}, -v{vMean}, v{vMean}, v{vSq}', f'v_max_f32 v{vSq}, 0, v{vSq}',
                 f'v_add_f32 v{vSq}, {fbits(1e-5)}, v{vSq}', f'v_mul_f32 v{vSq}, {fbits(LN2*LN2)}, v{vSq}',
                 f'v_rsq_f32 v{vRstd}, v{vSq}',
                 ('wlg', 'cs'), 's_barrier',
                 ('lg', f'ds_write2_b32 v{vE1}, v{vMean}, v{vRstd} offset1:32', 'sw')]
            S += [('lg', f'ds_read2_b32 {v2(vP+2*w)}, v{vE2} offset0:{96*w+32} offset1:{96*w+64}', 'r0') for w in range(2)]
            S += [('lg', f'ds_read2_b32 {v2(vP+2*w)}, v{vE2b} offset0:{96*(w-2)+32} offset1:{96*(w-2)+64}', 'r0') for w in range(2, 4)]
            S += [('lg', f'ds_read_b128 {vr(vM+4*i,4)}, v{vE3} offset:{SC+i*32}', 'r1') for i in range(4)]
            S += [('lg', f'ds_read2_b32 {v2(vP+8)}, v{vE2} offset0:0 offset1:96', 'rq'), ('lg', f'ds_read2_b32 {v2(vP+10)}, v{vE2b} offset0:0 offset1:96', 'rq')]
            S += [('lg', f'ds_read_b128 {vr(vR+4*i,4)}, v{vE3} offset:{SC+128+i*32}', 'r2') for i in range(4)]
            S += [('wlg', 'r0'), f'v_add_f32 v{vP}, v{vP}, v{vP+2}', f'v_add_f32 v{vP+4}, v{vP+4}, v{vP+6}',
                  f'v_add_f32 v{vP+1}, v{vP+1}, v{vP+3}', f'v_add_f32 v{vP+5}, v{vP+5}, v{vP+7}',
                  f'v_add_f32 v{vCs+1}, v{vP}, v{vP+4}', f'v_add_f32 v{vCs+2}, v{vP+1}, v{vP+5}',
                  ('wlg', 'rq'), f'v_add_f32 v{vP+8}, v{vP+8}, v{vP+9}', f'v_add_f32 v{vP+10}, v{vP+10}, v{vP+11}', f'v_add_f32 v{vCs}, v{vP+8}, v{vP+10}',
                  ('lg', f'ds_write_b32 v{vE1}, v{vCs} offset:256', 'qw')]
            S += [('lg', f'ds_read_b128 {vr(vCq+4*i,4)}, v{vE3} offset:{SC+256+i*32}', 'r3') for i in range(4)]
            K1 = [f'v_fma_f32 v{vK+r}, -v{vM+r}, v{vCs+1}, v{vK+r}' for r in range(16)]
            K1 += [('wlg', 'r2')] + [f'v_fma_f32 v{vK+r}, v{vK+r}, v{vR+r}, s{sE}' for r in range(16)]
            weave(g, mf, [[(0, 11, S), (9, 12, K1[:8])], DSEG], 24, 'A7')
    g.stamp('A.loop')
    def phi_mid(b):
        L = []
        for r in range(16):
            L += [f'v_exp_f32_e64 v{vEx+r}, v{b+r} clamp', f'v_max_f32 v{b+r}, s{sE}, v{b+r}']
        return L
    def phi_end(b, d):
        L = [f'v_pk_fma_f32 {v2(b+2*i)}, {v2(b+2*i)}, s[{sL}:{sL+1}], {v2(vEx+2*i)} op_sel_hi:[1,0,1]' for i in range(8)]
        return L + [f'v_cvt_pk_bf16_f32 v{d+i}, v{b+2*i}, v{b+2*i+1}' for i in range(8)]
    EP = K1[8:] + phi_mid(vK)
    EP += [f'v_pk_fma_f32 {v2(vV+2*i)}, {v2(vM+2*i)}, {v2(vCs+2)}, {v2(vV+2*i)} op_sel_hi:[1,0,1] neg_lo:[1,0,0] neg_hi:[1,0,0]' for i in range(8)]
    EP += [f'v_pk_mul_f32 {v2(vV+2*i)}, {v2(vV+2*i)}, {v2(vR+2*i)}' for i in range(8)]
    EP += phi_end(vK, vPK)
    EP += [f'v_cvt_pk_bf16_f32 v{vPV+i}, v{vV+2*i}, v{vV+2*i+1}' for i in range(8)]
    EP += [f'v_permlane16_swap_b32 v{vPK+i}, v{vPK+4+i}' for i in range(4)]
    EP += [f'v_permlane16_swap_b32 v{vPV+i}, v{vPV+4+i}' for i in range(4)]
    sprinkle(EP, rest + cut(WOL, WN[8]))
    g.stamp('A.ep')
    lg.wait('r3')
    Q1 = [f'v_fma_f32 v{vQ+r}, -v{vMean}, v{vCq+r}, v{vQ+r}' for r in range(16)]
    mf = [(f'v_mfma_f32_16x16x32_bf16 {vr(vD2+8,4)}, {vr(vPK,4)}, {vr(vOnes,4)}, 0', []),
          (f'v_mfma_f32_16x16x32_bf16 {vr(vD2+12,4)}, {vr(vPK+4,4)}, {vr(vOnes,4)}, 0', []),
          (f'v_mfma_f32_16x16x32_bf16 {vr(vD2,4)}, {vr(vPK,4)}, {vr(vPV,4)}, 0', []),
          (f'v_mfma_f32_16x16x32_bf16 {vr(vD2+4,4)}, {vr(vPK+4,4)}, {vr(vPV+4,4)}, 0', [])]
    weave(g, mf, [[(0, 4, Q1[:10])]], 8, 'kv')
    a('s_mov_b32 exec_lo, 0x00010001')
    a('s_mov_b32 exec_hi, 0x00010001')
    a(f'ds_write_b128 v{vE6}, {vr(vD2+8,4)} offset:{SC+1024+256}')
    a(f'ds_write_b128 v{vE6}, {vr(vD2+12,4)} offset:{SC+1024+1088+256}')
    a('s_mov_b64 exec, -1')
    a(f'ds_write_b128 v{vE5}, {vr(vD2,4)} offset:{SC+1024}')
    a(f'ds_write_b128 v{vE5}, {vr(vD2+4,4)} offset:{SC+1024+1088}')
    sprinkle(Q1[10:] + [f'v_pk_fma_f32 {v2(vQ+2*i)}, {v2(vQ+2*i)}, {v2(vMean)}, s[{sE}:{sE+1}] op_sel:[0,1,0] op_sel_hi:[1,1,0]' for i in range(8)], cut(WOL, WN[9]))
    a('s_waitcnt lgkmcnt(0)')
    a('s_barrier')
    for i in range(3):
        for w in range(4):
            a(f'ds_read_b32 v{vD2+i*4+w}, v{vE8 if i < 2 else vE9} offset:{w*16384+i*1024}')
    a(f's_mul_i32 s78, s{s_hp}, 2176')
    a(f's_add_u32 s78, s78, {WS_KV}')
    vm.wait('dbg')
    a.label('LA_chk')
    a(f'v_cmp_ne_u32 vcc, 1, v{vDbg}')
    a('s_cbranch_vccnz LX_dbg')
    def ool_dbg():
        a.label('LX_dbg')
        a(f'buffer_load_dword v{vDbg}, v{vDbgA}, {SR(SRD_DBG)}, 0 offen{DO} sc1')
        a('s_waitcnt vmcnt(0)')
        guard(g)
        a('s_branch LA_chk')
    OOL.append(ool_dbg)
    a('s_waitcnt lgkmcnt(0)')
    for i in range(3):
        a(f'v_pk_add_f32 {v2(vD2+4*i)}, {v2(vD2+4*i)}, {v2(vD2+4*i+2)}')
    for i in range(3):
        a(f'v_add_f32 v{vD2+4*i}, v{vD2+4*i}, v{vD2+4*i+1}')
    a(f's_cmp_eq_u32 s{W}, 0')
    vm.issue(f'buffer_atomic_add_f32 v{vD2}, v{vE7}, {SR(SRD_WS)}, s78 offen', 'st')
    vm.issue(f'buffer_atomic_add_f32 v{vD2+4}, v{vE7}, {SR(SRD_WS)}, s78 offen offset:1024', 'st')
    a('s_cbranch_scc0 LA_noat')
    a('s_mov_b32 exec_hi, 0')
    a(f'buffer_atomic_add_f32 v{vD2+8}, v{vE7}, {SR(SRD_WS)}, s78 offen offset:2048')
    a('s_mov_b32 exec_hi, -1')
    a.label('LA_noat')
    g.stamp('A.atom')
    a(f's_lshl_b32 s79, s{s_hp}, 11')
    a(f's_add_u32 s78, s{s_x}, s79')
    sprinkle(phi_mid(vQ) + phi_end(vQ, vPK), cut(WOL, WN[10]))
    vm.issue(f'buffer_store_dwordx4 {vr(vPK,4)}, v{vL16}, {SR(SRD_WS)}, s78 offen sc1', 'st')
    vm.issue(f'buffer_store_dwordx4 {vr(vPK+4,4)}, v{vL16}, {SR(SRD_WS)}, s78 offen offset:1024 sc1', 'st')
    g.stamp('A.pq')
    vA0 = 4
    vF1 = 39
    vGd = 16
    vG0 = 224
    OX = 131072
    vKV = 40; vPQ = 104; vD = 136; vBa = 200; vH = 216
    vSa = 28
    U = 100
    E1 = [f's_lshl4_add_u32 s79, s{s_hp}, s{s_rb}', f's_lshl_b32 s79, s79, {FSH}', f's_add_u32 s79, s79, {FA}',
          f's_mov_b64 s[{SRD_FL}:{SRD_FL+1}], s[{SRD_WS}:{SRD_WS+1}]', f's_cmp_eq_u32 s{W}, 0\ns_cselect_b32 s{SRD_FL+2}, {WS_SIZE}, 0',
          f'v_mov_b32 v{vF1}, 1',
          f'v_bfe_u32 v{U}, v0, 2, 3', f'v_bfe_u32 v{U+1}, v0, 2, 2', f'v_bfe_u32 v{U+2}, v0, 4, 1',
          f'v_lshl_add_u32 v{U+1}, v{U+2}, 3, v{U+1}', f'v_lshlrev_b32 v{U+1}, 8, v{U+1}', f'v_and_b32 v{U+2}, 3, v0',
          f'v_lshl_add_u32 v{U+1}, v{U+2}, 3, v{U+1}', f's_lshl_b32 s76, s{W}, 1', f'v_xor_b32 v{U}, s76, v{U}',
          f'v_lshrrev_b32 v{U+3}, 2, v0', f'v_lshlrev_b32 v{U+3}, 8, v{U+3}', f'v_lshl_add_u32 v{U+3}, v{U+2}, 3, v{U+3}',
          f'v_lshl_add_u32 v{vG0}, v{U}, 5, v{U+3}', f'v_xor_b32 v{vG0+1}, 32, v{vG0}', f'v_add_u32 v{vG0+2}, 65536, v{vG0}', f'v_add_u32 v{vG0+3}, 65536, v{vG0+1}',
          f'v_lshl_add_u32 v{U+1}, v{U}, 5, v{U+1}', f'v_lshrrev_b32 v{U+2}, 5, v0',
          f'v_lshl_add_u32 v{vA0}, v{U+2}, 14, v{U+1}', f'v_lshl_add_u32 v{vA0+1}, v{U+2}, 12, v{U+1}', f'v_add_u32 v{vA0+1}, {98304+4096}, v{vA0+1}']
    for wp in range(4):
        E1 += [f'v_mul_u32_u24 v{U+3}, {32768+12288*wp}, v{U+2}', f'v_add_u32 v{vA0+2+wp}, v{U+3}, v{U+1}', f'v_add_u32 v{vA0+2+wp}, {65536+4096*wp}, v{vA0+2+wp}']
    E1 += [f'v_xor_b32 v{vA0+6+i}, 32, v{vA0+i}' for i in range(6)]
    E1 += [f's_mov_b32 s86, s{s_rb}', f's_and_b32 s70, s{S_J}, 7', f's_lshl3_add_u32 s70, s{S_XC}, s70', f's_lshr_b32 s71, s{S_J}, 3',
           f's_and_b32 s76, s{S_XC}, 1', f's_mul_i32 s76, s76, 7', f's_lshr_b32 s87, s{S_J}, 2', f's_add_u32 s87, s87, s76',
           f'v_and_b32 v{U}, 15, v0', f'v_lshrrev_b32 v{U+1}, 4, v0', f'v_lshlrev_b32 v{U+2}, 1, v{U+1}', f'v_xor_b32 v{U+2}, v{U}, v{U+2}',
           f'v_lshlrev_b32 v{U+2}, 4, v{U+2}', f'v_mul_u32_u24 v{U+3}, 3584, v{U+1}', f'v_add_u32 v{vGd}, v{U+3}, v{U+2}',
           f'v_xor_b32 v{U+2}, 128, v{U+2}', f'v_add_u32 v{vGd+1}, v{U+3}, v{U+2}', f'v_add_u32 v{vGd+1}, {4*3584-1024}, v{vGd+1}',
           f'v_add_u32 v{vGd+2}, {2*(4*3584-1024)}, v{vGd}', f'v_add_u32 v{vGd+3}, {2*(4*3584-1024)}, v{vGd+1}',
           f's_and_b32 s76, s{W}, 1', f's_mul_i32 s88, s76, {64*3584}', f's_lshl_b32 s76, s87, 8', f's_add_u32 s88, s88, s76', f's_lshl_b32 s89, s{W}, 14']
    def idle_gu():
        a(f's_cmp_lt_u32 s{S_J}, 28')
        a('s_cbranch_scc1 LE_ni')
        a(f's_and_b32 s88, s{S_J}, 3')
        a(f's_lshl2_add_u32 s88, s88, s{W}')
        a(f's_lshl_b32 s88, s88, 12')
        for i in range(4): a(f'v_mov_b32 v{vGd+i}, v{vL16}')
        a.label('LE_ni')
    E2 = [f'v_and_b32 v{vT}, 31, v0', f'v_min_u32 v{vT}, 16, v{vT}', f'v_lshrrev_b32 v{vT+1}, 5, v0', f'v_mul_u32_u24 v{vT+1}, 272, v{vT+1}',
          f'v_lshl_add_u32 v{vT}, v{vT}, 4, v{vT+1}',
          f's_mul_i32 s72, s{W}, {8*1088}', f's_add_u32 s72, s72, {WS_KV}', f's_add_u32 s73, s72, {3*1088}', f's_add_u32 s76, s72, {6*1088}',
          f's_lshl_b32 s81, s70, 15', f's_lshl_b32 s78, s{W}, 13', f's_add_u32 s81, s81, s78', f's_add_u32 s75, s81, 4096',
          f's_lshl_b32 s82, s{W}, {FSH+6}', f's_add_u32 s82, s82, {FA}', f's_add_u32 s78, s78, {OX}',
          f'v_lshlrev_b32 v{vT+1}, {FSH}, v0', f'v_mov_b32 v{vT+5}, {fbits(LOG2E)}', f'v_add_u32 v{vT+2}, s78, v{vL16}',
          f'v_and_b32 v{vT+3}, 15, v0', f'v_lshrrev_b32 v{vT+4}, 4, v0',
          f'v_and_b32 v{vSa}, 1, v{vT+4}', f'v_lshl_add_u32 v{vSa}, v{vT+3}, 1, v{vSa}', f'v_and_b32 v{vT+6}, 32, v0', f'v_add_lshl_u32 v{vSa}, v{vSa}, v{vT+6}, 2',
          f'v_lshlrev_b32 v{vT+4}, 9, v{vT+4}', f'v_lshl_add_u32 v{vT+3}, v{vT+3}, 4, v{vT+4}', f'v_add_u32 v{vT+3}, {OX}, v{vT+3}']
    for i in range(8):
        E2 += [f'v_lshlrev_b32 v{vBa+2*i}, 16, v{vXres+i}', f'v_and_b32 v{vBa+2*i+1}, 0xffff0000, v{vXres+i}']
    def dma_gu(sg):
        L = []
        for blk in range(4):
            L += [f's_add_u32 m0, s89, {(sg&1)*65536+blk*4096}', f's_add_u32 s83, s88, {(sg*128+blk*16)*3584}']
            for i in range(4):
                L.append(('vm', f'buffer_load_dwordx4 v{vGd+i}, {SR(SRD_WGU)}, s83 offen offset:{i*1024} lds', f'S{sg}'))
        return L
    def aWO(t, ks): return 128 + (t*16 + ks)*4
    def rd_wo(prs):
        L = []
        for ks in range(16):
            wp, pr = ks >> 2, ks & 3
            if pr not in prs: continue
            for t in range(2):
                if pr < 2: ad, off = vA0, 4096*(8*pr + wp)
                elif pr == 2: ad, off = vA0+2+wp, 0
                else: ad, off = vA0+1, 16384*wp
                for h2 in range(2):
                    L.append(('lg', f'ds_read_b64_tr_b16 {ar(aWO(t,ks)+2*h2,2)}, v{ad+6*t} offset:{off+h2*1024}', f'wo{min(prs)}'))
        return L
    def aGU(rt, ks): return (ks >> 3)*128 + (rt*8 + (ks & 7))*4
    def rd_gu(sg):
        L = []
        for rt in range(4):
            for k4 in range(4):
                for h2 in range(2):
                    L.append(('lg', f'ds_read_b64_tr_b16 {ar(aGU(rt, sg*4+k4)+2*h2,2)}, v{vG0+2*(sg&1)+(rt>>1)} offset:{(rt&1)*32768+k4*8192+h2*4096}', f'g{sg}'))
        return L
    nw = sum(1 for x in WOL if ismem(x))
    FK = int(cfg.get('fk', 10)); RK = int(cfg.get('rk', 8)); N0 = int(cfg.get('n0', 6)); N1 = int(cfg.get('n1', 6))
    sprinkle(E1, cut(WOL, min(FK, nw - RK)))
    if cfg.get('iw'): idle_gu()
    vm.wait('st')
    a('s_barrier')
    vm.issue(f'buffer_store_dword v{vF1}, off, {SR(SRD_FL)}, s79 sc1', 'flag')
    g.stamp('E.flag')
    nw = sum(1 for x in WOL if ismem(x))
    sprinkle(E2, cut(WOL, nw - RK))
    vm.wait('wo0')
    a('s_barrier')
    g.stamp('E.wo0')
    PL = ('vm', f'buffer_load_dword v{vD}, v{vT+1}, {SR(SRD_WS)}, s82 offen sc1', 'pl')
    sprinkle(rd_wo((0, 1)), WOL + [PL])
    SS = dma_gu(0) + dma_gu(1)
    lg.wait_all()
    a('s_barrier')
    g.emits(cut(SS, N0))
    vm.wait('pl')
    g.stamp('E.wo')
    def ldkv():
        for h in range(8):
            so = (72, 73, 76)[h//3]
            for q in range(2):
                vm.issue(f'buffer_load_dwordx4 {vr(vKV+h*8+q*4,4)}, v{vT}, {SR(SRD_WS)}, s{so} offen offset:{(h%3)*1088+q*544} sc1', f'kv{h}')
            vm.issue(f'buffer_load_dwordx4 {vr(vPQ+h*4,4)}, v{vL16}, {SR(SRD_WS)}, s{81 if h<4 else 75} offen offset:{(h&3)*1024} sc1', f'kv{h}')
    a(f'v_cmp_gt_u32 vcc, 1, v{vD}')
    a('s_cbranch_vccnz LX_early')
    SN1 = cut(SS, N1)
    def ool_early():
        a.label('LX_early')
        vm.q = []; lg.q = []
        a('s_barrier')
        g.emits(rd_wo((2, 3)))
        poll(g, 'LB_poll', vT+1, vD, 1, 82, '1')
        ldkv()
        g.emits(SN1)
        a('s_branch LB_join')
    OOL.append(ool_early)
    ldkv()
    a('s_barrier')
    sprinkle(rd_wo((2, 3)), list(SN1))
    a.label('LB_join')
    g.stamp('B.sync')
    a(f's_lshl2_add_u32 s72, s71, s{W}')
    a(f's_lshl_b32 s73, s70, 15')
    a(f's_lshl_b32 s74, s72, 10')
    a(f's_add_u32 s73, s73, s74')
    a(f's_add_u32 s73, s73, {WS_H}')
    a(f's_add_u32 s75, s73, 16384')
    a(f's_lshl4_add_u32 s74, s70, s72')
    a(f's_lshl_b32 s74, s74, 8')
    a(f's_add_u32 s74, s74, {WS_STATS}')
    a(f's_lshl2_add_u32 s79, s70, s71')
    a(f's_lshl_b32 s79, s79, {FSH}')
    a(f's_add_u32 s79, s79, {FB}')
    lg.wait_all()
    a('s_barrier')
    g.stamp('B.rd')
    def Dreg(h): return vD + (h % 4)*16
    def cvtkv(h):
        vm.wait(f'kv{h}')
        b = vKV + h*8
        for i in range(4): a(f'v_cvt_pk_bf16_f32 v{b+i}, v{b+2*i}, v{b+2*i+1}')
    def mmo(h): a(f'v_mfma_f32_32x32x16_bf16 {vr(Dreg(h),16)}, {vr(vKV+h*8,4)}, {vr(vPQ+h*4,4)}, 0')
    def den(h):
        d = Dreg(h)
        a(f'v_fma_f32 v{d+8}, v{d+8}, v{vT+5}, s{sE}')
        a(f'v_rcp_f32 v{d+8}, v{d+8}')
    assert N0 + N1 <= 16
    S1 = SS
    S1N = [int(x) for x in cfg.get('s1n', '1,1,1,1,1,1,1,1,1').split(',')]
    g.emits(cut(S1, S1N[8]))
    cvtkv(0); cvtkv(1); mmo(0); cvtkv(2); mmo(1); den(0)
    g.stamp('B.kv')
    for h in range(8):
        d = Dreg(h)
        for i in range(4): a(f'v_pk_mul_f32 {v2(d+2*i)}, {v2(d+2*i)}, {v2(d+8)} op_sel_hi:[1,0]')
        if h + 2 < 8: mmo(h+2)
        g.emits(cut(S1, S1N[h]))
        for i in range(4): a(f'v_cvt_pk_bf16_f32 v{d+12+i}, v{d+2*i}, v{d+2*i+1}')
        if h + 1 < 8: den(h+1)
        lg.issue(f'ds_write_b128 v{vT+2}, {vr(d+12,4)} offset:{h*1024}', 'ow')
        if h + 3 < 8: cvtkv(h+3)
    lg.wait_all()
    a('s_barrier')
    g.stamp('B.o')
    vO = 40
    def rdo(i): return ('lg', f'ds_read_b128 {vr(vO+i*4,4)}, v{vT+3} offset:{(i&15)*2048+(i>>4)*256}', f'o{i}')
    for i in range(12): g.emit(rdo(i))
    vS = 20
    def epiB(ch):
        m, t = ch >> 1, ch & 1
        b = vBa + 4*ch
        L = [f'v_cvt_pk_bf16_f32 v{vH+2*ch+i}, v{b+2*i}, v{b+2*i+1}' for i in range(2)]
        if t: L.append(('vm', f'buffer_store_dwordx4 {vr(vH+4*m,4)}, v{vL16}, {SR(SRD_WS)}, s{73+2*m} offen sc1', 'st'))
        for r in range(4):
            if t == 0 and r == 0:
                L += [f'v_add_f32 v{vS+2*m}, v{b}, v{b+1}', f'v_mul_f32 v{vS+2*m+1}, v{b}, v{b}']
            else:
                if not (t == 0 and r == 1): L.append(f'v_add_f32 v{vS+2*m}, v{vS+2*m}, v{b+r}')
                L.append(f'v_fmac_f32 v{vS+2*m+1}, v{b+r}, v{b+r}')
        return L
    MB = int(cfg.get('mb', 20)); MB2 = int(cfg.get('mb2', 48)); S2G = int(cfg.get('s2g', 3))
    lg.wait('o1')
    ZS = dma_gu(2) + dma_gu(3); S1P = int(cfg.get('s1p', 4))
    mf = []
    for q in range(64):
        m, t, ks = q >> 5, (q >> 4) & 1, q & 15
        acc = vr(vBa + (2*m+t)*4, 4)
        fx = []
        q1 = q + 1
        if q1 < 64 and (q1 >> 4) & 1 == 0 and q1 % 2 == 0: fx.append(('wlg', f'o{(q1>>5)*16+(q1&15)+1}'))
        if q == MB: fx += [('wvm', 'S0'), 's_barrier']
        if q == MB2: fx += [('wlg', 'g0'), 's_barrier']
        if 12+q < 32: fx.append(rdo(12+q))
        mf.append((f'v_mfma_f32_16x16x32_bf16 {acc}, {ar(aWO(t,ks),4)}, {vr(vO+(m*16+ks)*4,4)}, {acc}', fx))
    weave(g, mf, [[(19, 34, epiB(0)), (35, 50, epiB(1)), (51, 64, epiB(2))], [(0, MB2+2, S1, S1P), (MB2+1, 64, cut(ZS, S2G), S1P)], [(MB, MB2-3, rd_gu(0))]], 8, 'B')
    g.emits(epiB(3))
    a(f'v_permlane32_swap_b32 v{vS}, v{vS+2}')
    a(f'v_permlane32_swap_b32 v{vS+1}, v{vS+3}')
    a(f'v_add_f32 v{vS}, v{vS}, v{vS+2}')
    a(f'v_add_f32 v{vS+1}, v{vS+1}, v{vS+3}')
    a(f'v_permlane16_swap_b32 v{vS}, v{vS+1}')
    a(f'v_add_f32 v{vS}, v{vS}, v{vS+1}')
    vm.issue(f'buffer_store_dword v{vS}, v{vSa}, {SR(SRD_WS)}, s74 offen sc1', 'st')
    g.stamp('B.st')
    vHf = 40; vCa = 104; vCsum = 120; vK4 = 136; vGt = 144; vOut = 156
    vDr = 4; vDd = 16; vHa = 20; vKa = 22; vPa = 23; vPl = 24; vOa = 25; vWa = 26; vRa = (27, 28, 2)
    vSt = 160
    CONST = 147456
    def csum(sgs):
        mf = []
        for rt in range(4):
            for sg in sgs:
                for k4 in range(4):
                    ks = sg*4 + k4
                    acc = vr(vCsum+rt*4, 4)
                    mf.append((f'v_mfma_f32_16x16x32_bf16 {acc}, {ar(aGU(rt,ks),4)}, {vr(vOnes,4)}, {"0" if ks==0 else acc}', []))
        return mf
    SU = [f's_and_b32 s70, s{S_J}, 1', f's_lshl1_add_u32 s70, s{S_XC}, s70', f's_lshr_b32 s71, s{S_J}, 2', f's_xor_b32 s71, s71, {cfg.get("nbx", 0)}', f's_bfe_u32 s72, s{S_J}, 0x10001',
          f's_lshl_b32 s73, s86, 17', f's_add_u32 s73, s73, s85', f's_add_u32 s73, s73, {WS_H}',
          f's_lshl_b32 s74, s86, 14', f's_add_u32 s74, s74, s85', f's_add_u32 s74, s74, {WS_STATS}',
          f's_mul_i32 s75, s86, {8*56}', f's_lshl2_add_u32 s76, s87, s{W}', f's_add_u32 s75, s75, s76', f's_lshl_b32 s75, s75, 10', f's_add_u32 s75, s75, {WS_ACT}',
          f's_lshl4_add_u32 s77, s86, s87', f's_lshl_b32 s77, s77, {FSH}', f's_add_u32 s77, s77, {FC}',
          f's_mov_b64 s[{SRD_ACT}:{SRD_ACT+1}], s[{SRD_WS}:{SRD_WS+1}]', f's_cmp_ge_u32 s{S_J}, 28\ns_cselect_b32 s{SRD_ACT+2}, 0, {WS_SIZE}',
          f's_lshl_b32 s84, s86, {FSH+4}', f's_add_u32 s84, s84, {FB}']
    SU2 = [f's_lshl_b32 s79, s70, {FSH+4}', f's_add_u32 s79, s79, {FC}', f's_lshl_b32 s80, s72, 15', f's_add_u32 s80, s80, s79', f's_add_u32 s81, s80, {3*32768}', f's_add_u32 s80, s80, 32768',
           f's_and_b32 s{SRD_FL+2}, s{SRD_FL+2}, s{SRD_ACT+2}',
           f's_lshl3_add_u32 s87, s70, s72', f's_mul_i32 s82, s87, 56', f's_mul_i32 s76, s{W}, 14', f's_add_u32 s82, s82, s76',
           f's_lshl_b32 s82, s82, 10', f's_add_u32 s82, s82, {WS_ACT}',
           f's_lshl_b32 s78, s87, 14', f's_lshr_b32 s86, s{W}, 1', f's_lshl1_add_u32 s86, s71, s86', f's_lshl_b32 s86, s86, 10',
           f's_add_u32 s86, s86, s78', f's_and_b32 s87, s{W}, 1', f's_lshl3_add_u32 s86, s87, s86', f's_add_u32 s86, s86, {WS_H}',
           f's_lshl_b32 s87, s71, 7', f's_add_u32 s78, s78, s87', f's_mul_i32 s88, s{W}, {448*1024}', f's_add_u32 s88, s88, s87',
           f's_lshl_b32 s87, s{W}, 5', f's_add_u32 s78, s78, s87']
    VU = [f'v_lshrrev_b32 v{vT}, 3, v0', f'v_and_b32 v{vT+1}, 7, v0', f'v_and_b32 v{vT+2}, 6, v{vT}', f'v_xor_b32 v{vT+1}, v{vT+1}, v{vT+2}',
          f'v_lshlrev_b32 v{vT+1}, 4, v{vT+1}', f'v_lshl_add_u32 v{vDd}, v{vT}, 10, v{vT+1}']
    VU += [f'v_add_u32 v{vDd+i}, {i*(8192-1024)}, v{vDd}' for i in range(1, 4)]
    VU += [f'v_mov_b32 v{vHa}, v{vL16}', f'v_add_u32 v{vHa+1}, 65536, v{vL16}', f'v_and_b32 v{vT}, 15, v0',
           f'v_lshlrev_b32 v{vKa}, 4, v{vT}', f'v_add_u32 v{vKa}, {CONST}, v{vKa}',
           f'v_lshrrev_b32 v{vT+1}, 4, v0', f'v_lshlrev_b32 v{vT+1}, 3, v{vT+1}', f'v_lshl_add_u32 v{vOa}, v{vT}, 10, v{vT+1}',
           f'v_lshlrev_b32 v{vT+4}, {FSH}, v{vT}',
           f'v_add_u32 v{vWa}, s85, v{vL16}']
    VU += [f'v_xor_b32 v{vRa[tau-1]}, {4096*tau}, v{vWa}' for tau in range(1, 4)]
    VP = [f'v_min_u32 v{vT}, 13, v0', f'v_add_u32 v{vT}, s76, v{vT}', f'v_lshrrev_b32 v{vT}, 2, v{vT}', f'v_lshlrev_b32 v{vPa}, {FSH}, v{vT}']
    G1, FP, G2, PP = int(cfg.get('g1', 2)), int(cfg.get('fp', 8)), int(cfg.get('g2', 5)), int(cfg.get('pp', 6))
    mf = csum((0,)) + csum((1,))
    n2 = 16 - S2G; nz = n2 + 16
    fx = [[] for _ in mf]
    fx[G1] += [('wvm', 'S1'), 's_barrier'] + g.st('P.s1')
    fx[FP] += [('wvm', 'st'), 's_barrier', ('vm', f'buffer_store_dword v{vF1}, off, {SR(SRD_FL)}, s79 sc1', 'flag')] + g.st('P.flag')
    fx[n2] += [('wlg', 'g1'), 's_barrier'] + g.st('P.r1')
    fx[n2+G2] += [('wvm', 'S2'), 's_barrier'] + g.st('P.s2')
    for i in range(nz): fx[i] += cut(ZS, 1)
    fx[nz-PP] += [('vm', f'buffer_load_dword v{vGt}, v{vT+4}, {SR(SRD_WS)}, s84 offen sc1', 'pl')]
    R1 = rd_gu(1); R2 = rd_gu(2)
    for i in range(8): fx[G1+i] += cut(R1, 4); fx[n2+G2+i] += cut(R2, 4)
    assert G1 + 8 < n2 and n2 <= 15 and n2 + G2 + 8 <= 32 and FP < nz
    weave(g, [(m[0], sorted(f, key=cls)) for m, f in zip(mf, fx)], [[(0, 12, SU), (12, nz-PP, VU[9:]), (nz, 32, SU2 + VU[:9] + VP)]], 56, 'P1')
    lg.wait_all()
    a('s_barrier')
    def slot(sg): return 131072 if sg == 0 else 16384*(sg-1)
    def dma_wd(p, sg):
        L = [f's_add_u32 m0, s85, {slot(sg)}', f's_add_u32 s83, s88, {p*32768}']
        for i in range(4):
            L.append(('vm', f'buffer_load_dwordx4 v{vDd+i}, {SR(SRD_WD)}, s83 offen offset:{i*1024} lds', f'wd{p}'))
        return L
    VD = [f'v_lshrrev_b32 v{vT}, 2, v0', f'v_bfe_u32 v{vT+1}, v0, 3, 2', f'v_xor_b32 v{vT+1}, s{W}, v{vT+1}', f'v_lshlrev_b32 v{vT}, 7, v{vT}',
          f'v_lshl_add_u32 v{vT}, v{vT+1}, 5, v{vT}', f'v_and_b32 v{vT+1}, 3, v0', f'v_lshl_add_u32 v{vT}, v{vT+1}, 3, v{vT}', f'v_add_u32 v{vT}, s85, v{vT}']
    for tau in range(4):
        VD += [f'v_xor_b32 v{vDr+3*tau}, {32*tau}, v{vT}', f'v_add_u32 v{vDr+3*tau+1}, 65536, v{vDr+3*tau}', f'v_add_u32 v{vDr+3*tau+2}, 131072, v{vDr+3*tau}']
    AW = {6: 64, 7: 80, 8: 192, 9: 208, 10: 96, 11: 112, 12: 224, 13: 240}
    def wdreg(p, tau):
        if p < 6: return 'v', 160 + p*16 + tau*4
        return 'a', AW[p] + tau*4
    def rd_wd(p, sg):
        L = []
        ad = slot(sg)
        for tau in (1, 2, 3, 0):
            f, r = wdreg(p, tau)
            for h2 in range(2):
                L.append(('lg', f'ds_read_b64_tr_b16 {vr(r+2*h2,2,f)}, v{vDr+3*tau+(ad>>16)} offset:{(ad&65535)+h2*2048}', f'rw{p}'))
        return L
    FINAL = {6: 4, 7: 2, 8: 5, 9: 0, 10: 6, 11: 3, 12: 7, 13: 1}
    def actreg(m, i):
        if m == 2: return vr(40 + 4*i, 4)
        b = 32*(m & 1 if m < 2 else 0)
        return ar(b + 4*i if i < 8 else 128 + b + 4*(i-8), 4)
    def ld_act(m):
        L = []
        for i in range(14):
            if i % 4 == 0: L.append(f's_add_u32 s70, s82, {(2*m*56+i)*1024}')
            L.append(('vm', f'buffer_load_dwordx4 {actreg(m,i)}, v{vL16}, {SR(SRD_WS)}, s70 offen offset:{(i&3)*1024} sc1', f'a{m}_{i}'))
        return L
    NA0 = int(cfg.get('na0', 12)); NW7 = int(cfg.get('nw7', 2))
    a(f's_cmp_ge_u32 s{S_J}, 28')
    a('s_cbranch_scc1 LC_idle')
    def ool_idle():
        a.label('LC_idle')
        vm.q = []; lg.q = []
        if cfg.get('iw'):
            a(f's_and_b32 s70, s{S_J}, 3')
            a(f's_lshl_b32 s70, s70, 13')
            a(f's_mul_i32 s83, s{W}, {448*1024}')
            a(f's_add_u32 s70, s70, s83')
            a(f'v_lshlrev_b32 v{vTa}, 7, v0')
            for t in range(7):
                a(f's_add_u32 s83, s70, {(224+32*t)*1024}')
                a(f'buffer_load_dword v{vTa+1}, v{vTa}, {SR(SRD_WD)}, s83 offen')
        a('s_waitcnt vmcnt(0)')
        a('s_barrier')
        g.emits(VD)
        for p in range(6): g.emits(dma_wd(p, p))
        vm.wait_all()
        for p in range(6): g.emits(rd_wd(p, p))
        lg.wait_all()
        for p in range(6, 14): g.emits(dma_wd(p, FINAL[p]))
        for i in range(int(cfg.get('isl', 0))): a('s_sleep 127')
        poll(g, 'LI_poll', vPa, vPl, 1, 79, '1')
        g.emits(cut(ld_act(0), NA0))
        for p in range(6, 6+NW7): g.emits(rd_wd(p, FINAL[p]))
        vm.wait_all(); lg.wait_all()
        a('s_branch LD_start')
    OOL.append(ool_idle)
    g.stamp('P.cs')
    vm.wait('pl')
    a.label('LC_chk')
    a(f'v_cmp_gt_u32 vcc, 1, v{vGt}')
    a('s_cbranch_vccnz LX_cp')
    def ool_cp():
        a.label('LX_cp')
        a(f'buffer_load_dword v{vGt}, v{vT+4}, {SR(SRD_WS)}, s84 offen sc1')
        a('s_waitcnt vmcnt(0)')
        guard(g)
        a('s_branch LC_chk')
    OOL.append(ool_cp)
    g.stamp('C.sync')
    def dma_h(s):
        L = [f's_add_u32 m0, s85, {16384*s}', f's_add_u32 s83, s73, {16384*s}']
        for i in range(4):
            L.append(('vm', f'buffer_load_dwordx4 v{vL16}, {SR(SRD_WS)}, s83 offen offset:{i*1024} sc1 lds', f'h{s}'))
        return L
    g.emits(dma_h(0))
    STL = [('vm', f'buffer_load_dwordx4 {vr(vSt+4*i,4)}, v{vL16}, {SR(SRD_WS)}, s74 offen offset:{i*1024} sc1', 'stats') for i in range(4)]
    vm.wait('S3')
    a('s_barrier')
    R3 = rd_gu(3)
    weave(g, csum((2,)), [[(0, 16, STL + dma_h(1), 2)], [(i, i+1, cut(R3, 3)) for i in range(11)]], 24, 'P2')
    lg.wait_all()
    weave(g, csum((3,)), [[(0, 16, dma_h(2), 4)], [(0, 16, VD)]], 8, 'P3')
    def rdh(s, ks): return ('lg', f'ds_read_b128 {vr(vHf+ks*4,4)}, v{vHa+(s>>2)} offset:{(s&3)*16384+ks*1024}', f'f{ks}')
    vm.wait('h0')
    a('s_barrier')
    g.stamp('C.h0')
    for ks in range(16): g.emit(rdh(0, ks))
    c0 = -2*0.7978845608028654*LOG2E
    def consts():
        L = [('wvm', 'stats')]
        for st in (8, 4):
            for i in range(st): L.append(f'v_add_f32 v{vSt+i}, v{vSt+i}, v{vSt+i+st}')
        x, y = vSt, vSt+1
        o = vSt+4
        L += [f'v_lshrrev_b32 v{vSt+8}, 5, v0', f'v_and_b32 v{vSt+9}, 15, v0',
              f'v_permlane32_swap_b32 v{vSt}, v{vSt+2}', f'v_permlane32_swap_b32 v{vSt+1}, v{vSt+3}',
              f'v_add_f32 v{x}, v{x}, v{vSt+2}', f'v_add_f32 v{y}, v{y}, v{vSt+3}',
              f'v_mov_b32 v{vSt+2}, v{x}', f'v_mov_b32 v{vSt+3}, v{y}',
              f'v_lshl_add_u32 v{vSt+8}, v{vSt+9}, 1, v{vSt+8}', f's_lshl_b32 s76, s{W}, 9', f's_add_u32 s76, s76, {CONST}',
              f'v_permlane16_swap_b32 v{x}, v{vSt+2}', f'v_permlane16_swap_b32 v{y}, v{vSt+3}',
              f'v_add_f32 v{x}, v{x}, v{vSt+2}', f'v_add_f32 v{y}, v{y}, v{vSt+3}',
              f'v_mul_f32 v{o}, {fbits(-1/512)}, v{x}',
              f'v_mul_f32 v{y}, {fbits(1/512)}, v{y}',
              f'v_fma_f32 v{y}, -v{o}, v{o}, v{y}',
              f'v_max_f32 v{y}, 0, v{y}',
              f'v_add_f32 v{o+3}, {fbits(1e-5)}, v{y}',
              f'v_rsq_f32 v{x}, v{o+3}',
              f'v_lshl_add_u32 v{vSt+8}, v{vSt+8}, 4, s76',
              f'v_mul_f32 v{y}, v{x}, v{x}',
              f'v_mul_f32 v{o+1}, {fbits(c0)}, v{x}',
              f'v_mul_f32 v{y}, {fbits(0.044715)}, v{y}',
              f'v_mul_f32 v{o+2}, v{o+1}, v{y}',
              ('lg', f'ds_write_b128 v{vSt+8}, {vr(o,4)}', 'cw')]
        return L
    def gelu(pair, s):
        K = vK4 + 4*(s & 1)
        nm, k0, k1, vv = K, K+1, K+2, K+3
        ag = vCa + pair*8; au = ag + 4; cg = vCsum + pair*8; cu = cg + 4
        t, u, e = vGt, vGt+4, vGt+8
        L = []
        if pair == 0: L.append(('wlg', f'k{s}'))
        R = range(4)
        L += [f'v_fma_f32 v{t+i}, v{nm}, v{cg+i}, v{ag+i}' for i in R]
        L += [f'v_fma_f32 v{u+i}, v{nm}, v{cu+i}, v{au+i}' for i in R]
        n1 = len(L)
        L += [f'v_mul_f32 v{e+i}, v{t+i}, v{t+i}' for i in R]
        L += [f'v_fma_f32 v{e+i}, v{e+i}, v{k1}, v{k0}' for i in R]
        L += [f'v_mul_f32 v{e+i}, v{e+i}, v{t+i}' for i in R]
        L += [f'v_exp_f32 v{e+i}, v{e+i}' for i in R]
        L += [f'v_mul_f32 v{t+i}, v{t+i}, v{u+i}' for i in R]
        L += [f'v_fma_f32 v{e+i}, v{e+i}, v{vv}, v{vv}' for i in R]
        L += [f'v_rcp_f32 v{e+i}, v{e+i}' for i in R]
        L += [f'v_mul_f32 v{t+i}, v{t+i}, v{e+i}' for i in R]
        L += [f'v_cvt_pk_bf16_f32 v{vOut+2*pair+i}, v{t+2*i}, v{t+2*i+1}' for i in range(2)]
        if pair == 1:
            L.insert(n1, f's_add_u32 s76, s75, {s*56*1024}')
            L.append(('vm', f'buffer_store_dwordx4 {vr(vOut,4)}, v{vL16}, {SR(SRD_ACT)}, s76 offen sc1', f'act{s}'))
        return L
    def flagW(): return [('vm', f'buffer_store_dword v{vF1}, off, {SR(SRD_FL)}, s77 sc1', 'flag'), 's_add_u32 s77, s77, 32768']
    def flagC(n): return g.st(f'F.{n}a') + [('wvm', f'act{n-1}'), 's_barrier'] + g.st(f'F.{n}b') + flagW()
    PS = {'p1': 79, 'p2': 80, 'p3': 81}
    def pload(tag): return [('vm', f'buffer_load_dword v{vPl}, v{vPa}, {SR(SRD_WS)}, s{PS[tag]} offen sc1', tag)]
    def pcheck(tag, need=1):
        def f():
            a.label(f'LP_{tag}')
            a(f'v_cmp_gt_u32 vcc, {need}, v{vPl}')
            a(f's_cbranch_vccnz LX_{tag}')
        def o():
            a.label(f'LX_{tag}')
            a(f'buffer_load_dword v{vPl}, v{vPa}, {SR(SRD_WS)}, s{PS[tag]} offen sc1')
            a('s_waitcnt vmcnt(0)')
            guard(g)
            a(f's_branch LP_{tag}')
        OOL.append(o)
        return g.st(f'Q.{tag}a') + [('wvm', tag)] + g.st(f'Q.{tag}b') + [f] + g.st(f'Q.{tag}c')
    RECY = {1: (0, 0, 3), 2: (1, 1, 5), 3: (2, 2, 7), 4: (3, 0, 9), 5: (4, 3, 11), 6: (5, 1, 13)}
    FRESH = {0: (1, 1), 1: (2, 2), 2: (4, 3), 3: (6, 4), 4: (8, 5), 5: (10, 6), 6: (12, 7)}
    lg.wait('f3')
    mf = []; GS = []; DS = []; RS = []; XS = []
    for s in range(8):
        bq = 27 if s == 0 else 13
        B = 64*s
        for q in range(64):
            rt, ks = q >> 4, q & 15
            acc = vr(vCa+rt*4, 4)
            fx = []
            if q in (3, 7, 11): fx.append(('wlg', f'f{q+4}'))
            if q == 63 and s < 7: fx.append(('wlg', 'f3'))
            if q == bq-1:
                if s == 0: fx.append(('wlg', 'cw'))
                if s < 7 or s >= 5: fx.append(('wvm',) + ((f'h{s+1}',) if s < 7 else ()) + ((f'act{s-2}',) if s >= 5 else ()))
            if q == bq:
                fx.append('s_barrier')
                fx.append(('lg', f'ds_read_b128 {vr(vK4+4*(s&1),4)}, v{vKa} offset:{s*256}', f'k{s}'))
            if q == 63: fx += g.st(f'C.it{s}')
            if rt == 3 and s < 7: fx.append(rdh(s+1, ks))
            mf.append((f'v_mfma_f32_16x16x32_bf16 {acc}, {ar(aGU(rt,ks),4)}, {vr(vHf+ks*4,4)}, {"0" if ks==0 else acc}', fx))
        if s == 0: GS.append((0, bq-1, consts()))
        g0 = gelu(0, s); g1 = gelu(1, s)
        GS.append((B+34, B+63, g0[:9])); GS.append((B+34, B+64+8 if s < 7 else B+64, g0[9:]))
        GS.append((B+66, B+64+31, g1[:8])); GS.append((B+66, B+64+40, g1[8:]))
        if s == 0: DS.append((0, bq+8, dma_h(3) + dma_h(4) + dma_wd(0, 0), 3))
        elif s < 4: DS.append((B, B+30, dma_h(s+4), 4))
        if s in FRESH: DS.append((B+bq, B+50, dma_wd(*FRESH[s]), 4))
        if s in RECY:
            p, sg, pn = RECY[s]
            RS.append((B+16, B+44, g.st(f'R.{p}a') + [('wvm', f'wd{p}')] + g.st(f'R.{p}b') + rd_wd(p, sg)))
            DS.append((B+46, B+64, [('wlg', f'rw{p}')] + dma_wd(pn, sg), 4))
        if s >= 5: XS.append((B+bq, B+bq+2, flagW()))
        if s == 6: XS.append((B+40, B+46, pload('p1')))
    B = 448
    XS.append((B+14, B+17, pcheck('p1')))
    LA = ld_act(0)
    for i in range(NA0):
        q = B + 16 + 48*i//NA0
        XS.append((q, q+2, cut(LA, 1)))
    RW = []
    for p in range(6, 6+NW7): RW += rd_wd(p, FINAL[p])
    RS.append((B+48, B+64, [('wvm', f'wd{5+NW7}')] + RW))
    DA = ((104, 108, 120, 124), (112, 116, 128, 132))
    vRd = 144; vHr = 96; vU4 = 136
    def red1(m):
        return [('lg', f'ds_write_b128 v{vWa}, {vr(DA[m&1][tau],4)} offset:{16384*m+1024*tau}', 'dw') for tau in range(1, 4)]
    def red2(m):
        b = DA[m&1][0]
        L = [('wlg', 'dw'), 's_barrier']
        L += [('lg', f'ds_read_b128 {vr(vRd+4*(tau-1),4)}, v{vRa[tau-1]} offset:{16384*m+1024*tau}', 'dr') for tau in range(1, 4)]
        L += [('wvm', f'hres{m}'), f's_add_u32 s84, s78, {m*32768}']
        for i in range(2):
            L += [f'v_lshlrev_b32 v{vU4+2*i}, 16, v{vHr+2*m+i}', f'v_and_b32 v{vU4+2*i+1}, 0xffff0000, v{vHr+2*m+i}']
        L += [f'v_add_f32 v{vU4+i}, v{vU4+i}, v{b+i}' for i in range(4)]
        return L
    OB = cfg.get('ob', '')
    def red3(m):
        L = [('wlg', 'dr')]
        L += [f'v_add_f32 v{vRd+i}, v{vRd+i}, v{vRd+4+i}' for i in range(4)]
        L += [f'v_add_f32 v{vU4+i}, v{vU4+i}, v{vRd+8+i}' for i in range(4)]
        L += [f'v_add_f32 v{vU4+i}, v{vU4+i}, v{vRd+i}' for i in range(4)]
        L += [f'v_cvt_pk_bf16_f32 v{vHr+2*m+i}, v{vU4+2*i}, v{vU4+2*i+1}' for i in range(2)]
        L += [('vm', f'buffer_store_dwordx2 {vr(vHr+2*m,2)}, v{vOa}, {SR(SRD_OUT)}, s84 offen {OB}', 'out')]
        return L
    def dlabel():
        a.label('LD_start')
    tailseg = [GS.pop(), GS.pop()][::-1]
    weave(g, mf, [GS, DS, RS, XS], 8, 'C')
    dlabel()
    vm.wait('a0_0')
    mf = []; GS = []; RS = []; XS = []; ES = []
    I3 = int(cfg.get('i3', 10))
    for m in range(4):
        B = 56*m
        n1 = I3 if m == 3 else 14
        order = [(tau, i) for i in range(n1) for tau in (1, 2, 3, 0)] + [(tau, i) for tau in (1, 2, 3, 0) for i in range(n1, 14)]
        for q, (tau, i) in enumerate(order):
            acc = vr(DA[m&1][tau], 4)
            f, r = wdreg(i, tau)
            fx = []
            if q + 1 < 56:
                t1, i1 = order[q+1]
                if t1 == 1:
                    fx.append(('wvm', f'a{m}_{i1}'))
                    if m == 0 and i1 >= 6: fx.append(('wlg', f'rw{i1}'))
            elif m < 3: fx.append(('wvm', f'a{m+1}_0'))
            if q == 55: fx += g.st(f'D.m{m}')
            mf.append((f'v_mfma_f32_16x16x32_bf16 {acc}, {vr(r,4,f)}, {actreg(m,i)}, {"0" if i==0 else acc}', fx))
        if m:
            ES.append((B, B+8, red1(m-1), 2)); ES.append((B+12, B+26, red2(m-1))); ES.append((B+30, B+44, red3(m-1)))
        if m == 3:
            R = red1(3); k3 = 14 - n1
            for t in range(3): ES.append((B+4*n1+k3*(t+1)+1, B+min(4*n1+k3*(t+1)+3, 56), [R[t]]))
    GT = int(cfg.get('gt', 20))
    GS = [(2, GT, tailseg[0][2] + tailseg[1][2])]
    RS = [(0, 1, [('wvm', 'wd13')])]
    for p in range(6+NW7, 14): RS.append((0, 4*p-4, rd_wd(p, FINAL[p])))
    def hres(m): return [f's_add_u32 s83, s86, {m*32768}', ('vm', f'buffer_load_dwordx2 {vr(vHr+2*m,2)}, v{vL16}, {SR(SRD_WS)}, s83 offen sc1', f'hres{m}')]
    F7, F8, PL2, PL3 = int(cfg.get('f7', 8)), int(cfg.get('f8', 70)), int(cfg.get('pl2', 30)), int(cfg.get('pl3', 110))
    P3 = int(cfg.get('p3', 128)); PC = float(cfg.get('pc', 4))
    LS = LA + hres(0) + ld_act(1) + hres(1) + pcheck('p2') + g.st('D.p2') + ld_act(2) + hres(2) + hres(3)
    LQ = []; q = 0.0
    def cutm(L):
        R = []
        while L:
            x = L.pop(0); R.append(x)
            if cls(x) == 1: break
        return R
    while LS:
        LQ.append((int(q), int(q)+2, cutm(LS))); q += PC
    q = max(q, P3); LS = pcheck('p3') + g.st('D.p3') + ld_act(3)
    PC3 = float(cfg.get('pc3', 2.5))
    while LS:
        LQ.append((int(q), int(q)+2, cutm(LS))); q += PC3
    XS = [(F7, F7+2, flagC(7)), (PL2, PL2+2, pload('p2')), (F8, F8+2, flagC(8)), (PL3, PL3+2, pload('p3'))]
    weave(g, mf, [GS, RS, XS, LQ, ES], 8, 'D')
    g.emits(red2(3) + red3(3))
    g.stamp('D.end')
    if cfg.get('dbgst'):
        a('s_waitcnt lgkmcnt(0)')
        a(f's_lshl2_add_u32 s70, s{S_WG}, s{W}')
        a(f's_cmp_lg_u32 s70, {int(cfg["dbgst"])*4}')
        a('s_cbranch_scc1 Lend')
        for i in range(1, min(g.ns, 17)):
            a(f's_sub_u32 s70, s{TSREG[i]}, s{TSREG[0]}')
            a(f'v_mov_b32 v2, s70')
            a(f'buffer_store_dword v2, off, {SR(SRD_DBG)}, 0 offset:{4*(i-1)}')
    elif cfg.get('stamps'):
        a('s_waitcnt lgkmcnt(0)')
        a(f's_lshl2_add_u32 s70, s{S_WG}, s{W}')
        a(f's_lshl_b32 s70, s70, 7')
        a(f's_add_u32 s70, s70, {WS_TS}')
        for i in range(g.ns):
            a(f'v_mov_b32 v2, s{TSREG[i]}')
            a(f'buffer_store_dword v2, off, {SR(SRD_WS)}, s70 offset:{4*i}')
    a.label('Lend')
    a('s_endpgm')
    for o in OOL[::-1]:
        a.hist = []
        o()
    a.label('Lfin')
    hdr = '; @launch grid=(256,1,1) block=(256,1,1) lds=163840\n'
    if cfg.get('stamps') and not cfg.get('dbgst'): hdr += '; stamps: ' + ','.join(g.names) + '\n'
    hdr += '.amdgcn_target "amdgcn-amd-amdhsa--gfx950"\n.text\n'
    KD = f""".section .rodata,"a"
.p2align 6
.amdhsa_kernel {k}
  .amdhsa_next_free_vgpr 512
  .amdhsa_next_free_sgpr 102
  .amdhsa_accum_offset 256
  .amdhsa_group_segment_fixed_size 0
  .amdhsa_kernarg_size 80
  .amdhsa_user_sgpr_count 2
  .amdhsa_user_sgpr_kernarg_segment_ptr 1
  .amdhsa_system_sgpr_workgroup_id_x 1
.end_amdhsa_kernel
"""
    print('nops', a.nops, 'stamps', g.ns, file=sys.stderr)
    if cfg.get('tour'): add_pads(a, hdr, KD, [int(x) for x in str(cfg['tour']).split('+')])
    return hdr + a.text() + KD

def add_pads(a, hdr, KD, offs):
    import subprocess, re
    stub = ''.join(f'Lpad_e{w}:\n' for w in range(4))
    open('_pad.s', 'w').write(hdr + a.text() + stub + KD)
    subprocess.run(['clang', '-x', 'assembler', '-target', 'amdgcn-amd-amdhsa', '-mcpu=gfx950', '-c', '_pad.s', '-o', '_pad.o'], check=True)
    dis = subprocess.run(['llvm-objdump', '-d', '_pad.o'], capture_output=True, text=True).stdout
    addr = [int(m.group(1), 16) for m in re.finditer(r'// ([0-9A-F]{12}):', dis)]
    idx = [i for i, l in enumerate(a.lines) if l.startswith('    ') and not l.strip().startswith(';')]
    assert len(addr) == len(idx), (len(addr), len(idx))
    end = addr[-1]
    pads = []; sh = 0
    for pg in range(1, end // 4096 + 2):
        for o in offs:
            t = pg*4096 + o
            c = [j for j in range(1, len(addr)) if t <= addr[j] + sh + 4 < t + 60]
            if not c: continue
            best = [j for j in c if 'v_mfma' in a.lines[idx[j-1]] and idx[j] == idx[j-1] + 1] or [j for j in c if idx[j] == idx[j-1] + 1]
            pads.append(best[0]); sh += 8
    n = len(pads); per = -(-n // 4)
    for k_ in range(n-1, -1, -1):
        nxt = f'Lpad_{k_+1}' if (k_+1) % per and k_+1 < n else 'Lpad_ret'
        ent = f'Lpad_e{k_//per}:\n' if k_ % per == 0 else ''
        a.lines.insert(idx[pads[k_]], f'    s_branch Lpad_s{k_}\n{ent}Lpad_{k_}:\n    s_branch {nxt}\nLpad_s{k_}:')
    r = a.lines.index('Lpad_ret:')
    for w in range(-(-n // per), 4): a.lines.insert(r, f'Lpad_e{w}:')
    print('pads', n, file=sys.stderr)

if __name__ == '__main__':
    out = sys.argv[1]
    cfg = {}
    for o in sys.argv[2:]:
        k_, _, v = o.partition('=')
        cfg[k_] = v.split(',') if k_ == 'sel' else (v or True)
    open(out, 'w').write(build(cfg))
```

```python
import sys, struct
from asmlib import *

NAME = 'sequential_preLN__linear_attn_block__geglu_ffn__prompt'
WS_PQ = 0x000000; WS_H = 0x200000; WS_ACT = 0x400000; WS_STATS = 0xB00000; WS_KV = 0xB40000
WS_FLAG = 0xB50000; WS_TS = 0xC00000; WS_SIZE = 0xD00000
FA = WS_FLAG; FB = WS_FLAG + 256*128; FC = WS_FLAG + 512*128
LOG2E = 1.4426950408889634; LN2 = 0.6931471805599453
def fbits(x): return '0x%08x' % struct.unpack('<I', struct.pack('<f', x))[0]

S_WG = 2; W = 3
SRD_X = 36; SRD_WQKV = 40; SRD_WO = 44; SRD_WGU = 48; SRD_WD = 52; SRD_OUT = 56; SRD_WS = 60; SRD_DBG = 64
SRD_ACT = 40
S_XC = 68; S_J = 69
def SR(b): return f's[{b}:{b+3}]'
def v2(b): return f'v[{b}:{b+1}]'

class Cnt:
    def __init__(self, a, name, cap): self.a = a; self.q = []; self.name = name; self.cap = cap; self.seen = set(); self.n = {}
    def issue(self, text, tag='x'):
        self.a(text); self.q.append(tag); self.seen.add(tag); self.n[tag] = self.n.get(tag, 0) + 1
        if self.name == 'vmcnt': assert len(self.q) <= self.cap, "vmcnt overflow"
    def wait(self, *tags):
        for t in tags:
            assert t in self.seen, ('wait on unissued', t)
            if len(t) == 3 and t[0] in 'Sg' and t[2] in 'ab': assert self.n[t] == (8 if t[0] == 'S' else 16), (t, self.n[t])
        last = -1
        for i, t in enumerate(self.q):
            if t in tags: last = i
        if last < 0: return
        n = len(self.q) - 1 - last
        n = min(n, self.cap)
        self.a(f's_waitcnt {self.name}({n})')
        self.q = self.q[len(self.q)-n:] if n else []
    def wait_all(self):
        self.a(f's_waitcnt {self.name}(0)'); self.q = []

TSREG = list(range(90, 100, 2)) + list(range(8, 16, 2)) + [30,32,34,16,18,20,22,24,26,28,4,6]

class G:
    def __init__(self, cfg):
        self.a = Asm(); self.cfg = cfg
        self.vm = Cnt(self.a, 'vmcnt', 63); self.lg = Cnt(self.a, 'lgkmcnt', 15)
        self.ns = 0; self.names = []
    def want(self, name):
        if not self.cfg.get('stamps'): return False
        sel = self.cfg.get('sel')
        return not (sel and not any(name.startswith(p) for p in sel))
    def stamp(self, name):
        if not self.want(name): return
        r = TSREG[self.ns]; self.ns += 1; self.names.append(name)
        self.a(f'{"s_memtime" if self.cfg["stamps"] == "cyc" else "s_memrealtime"} s[{r}:{r+1}]')
    def st(self, name):
        return [lambda: self.stamp(name)] if self.want(name) else []
    def emit(self, t):
        if isinstance(t, str): self.a(t)
        elif callable(t): t()
        elif t[0] == 'vm': self.vm.issue(t[1], t[2])
        elif t[0] == 'lg': self.lg.issue(t[1], t[2])
        elif t[0] == 'wvm': self.vm.wait(*t[1:])
        elif t[0] == 'wlg': self.lg.wait(*t[1:])
        else: raise ValueError(t)
    def emits(self, L):
        for x in L: self.emit(x)

def cls(t):
    if callable(t): return 0
    if isinstance(t, tuple): return 1 if t[0] in ('vm', 'lg') else 0
    op = t.split()[0]
    if op.startswith('s_'): return 0
    if op.startswith(('ds_', 'buffer_', 'global_')): return 1
    return 2
def cost(t):
    c = cls(t)
    if c == 0: return 4
    tx = t if isinstance(t, str) else t[1]
    op = tx.split()[0]
    if c == 1: return 20 if op == 'ds_write_b128' else 4
    return 8 if (op.split('_e')[0] in TRANS or op in TRANS) else 4

def weave(g, mf, streams, cap, name=''):
    n = len(mf)
    def fcost(items):
        c = sum(cost(x) for x in items)
        return c - 4 if any(cls(x) == 0 for x in items) else c
    fixed = [fcost(m[1]) for m in mf]
    segs = [[[s[0], s[1], list(s[2]), s[3] if len(s) > 3 else 0] for s in st if s[2]] for st in streams]
    lastmem = [-99]*len(segs)
    tot = 0; ov = [0]*((n+15) >> 4)
    for i in range(n):
        gap = [[], [], []]; tail = []
        for x in mf[i][1]: gap[cls(x)].append(x)
        used = fixed[i]
        lc = [-1]*len(segs)
        blocked = set()
        while True:
            best = None
            for k, st in enumerate(segs):
                if not st or k in blocked or st[0][0] > i: continue
                if best is None or st[0][1] < segs[best][0][1]: best = k
            if best is None: break
            sg = segs[best][0]; it = sg[2][0]; c = cls(it)
            must = i >= sg[1]-1
            kk = 0 if (c == 0 and not gap[0]) else cost(it)
            if not must:
                if c < lc[best] or (c == 1 and sg[3] and i - lastmem[best] < sg[3]): blocked.add(best); continue
                if used + kk > cap:
                    dem = sum(sum(cost(x) for x in s[2] if cls(x)) for st in segs for s in st if s[1] <= sg[1])
                    room = sum(max(0, cap - fixed[j]) for j in range(i+1, min(n, sg[1])))
                    if not (used < cap and dem > room): blocked.add(best); continue
            if c < lc[best] or tail and must and lc[best] == 9:
                tail.append(it); lc[best] = 9
            else:
                gap[c].append(it); lc[best] = c
            used += kk
            if c == 1: lastmem[best] = i
            sg[2].pop(0)
            if not sg[2]: segs[best].pop(0)
        g.a(mf[i][0])
        for x in gap[0] + gap[1] + gap[2] + tail: g.emit(x)
        tot += max(cap, used) + 8
        ov[i >> 4] += max(0, used - cap)
    assert not any(segs), ('unplaced', name)
    print(f'weave {name}: {n} mfma est {tot} cyc', ov if n > 100 else '', file=sys.stderr)

def srd(a, d, ptr, size):
    a(f's_mov_b32 s{d}, s{ptr}')
    a(f's_mov_b32 s{d+1}, s{ptr+1}')
    a(f's_mov_b32 s{d+2}, {size}')
    a(f's_mov_b32 s{d+3}, 0x20000')

def guard(g, n=None):
    if g.cfg.get('stamps') and n is not None: g.a(f's_add_u32 s101, s101, {1 << (5*n)}')
    if g.cfg.get('safe'):
        g.a('s_sub_u32 s100, s100, 1')
        g.a('s_cbranch_scc1 Lend')

def poll(g, label, vaddr, vdst, n, soff, need):
    a = g.a
    a.label(label)
    sfx = {1: '', 4: 'x4'}[n]
    a(f'buffer_load_dword{sfx} {vr(vdst, n)}, v{vaddr}, {SR(SRD_WS)}, s{soff} offen sc1')
    g.vm.wait_all()
    if n == 4:
        a(f'v_min_u32 v{vdst}, v{vdst}, v{vdst+1}')
        a(f'v_min3_u32 v{vdst}, v{vdst}, v{vdst+2}, v{vdst+3}')
    a(f'v_cmp_gt_u32 vcc, {need}, v{vdst}')
    guard(g, 0)
    a(f's_cbranch_vccnz {label}')

def build(cfg):
    g = G(cfg); a = g.a; vm = g.vm; lg = g.lg
    k = NAME + '_kernel'
    OOL = []
    FSH = 7
    SRD_FL = SRD_X
    a.raw(f'.globl {k}\n.p2align {12 if cfg.get("tour") or cfg.get("al") else 8}\n.type {k},@function\n{k}:')
    a(f's_cmp_ge_u32 s{S_WG}, 256')
    a('s_cbranch_scc1 Lend')
    a('s_load_dwordx16 s[16:31], s[0:1], 0')
    a('s_load_dwordx4 s[32:35], s[0:1], 64')
    g.stamp('A.start')
    if cfg.get('safe'): a('s_mov_b32 s100, 200000')
    if cfg.get('stamps'): a('s_mov_b32 s101, 0')
    a('v_lshrrev_b32 v1, 6, v0')
    a(f's_lshr_b32 s{S_J}, s{S_WG}, 3')
    a(f'v_readfirstlane_b32 s{W}, v1')
    a('v_and_b32 v0, 63, v0')
    a(f's_and_b32 s{S_XC}, s{S_WG}, 7')
    vTa, vTd = 218, 234
    a(f'v_lshlrev_b32 v{vTa}, 7, v0')
    if cfg.get('cpf'):
        a(f's_cmp_ge_u32 s{S_J}, 2')
        a('s_cbranch_scc1 LX_cpf_ret')
        a('s_getpc_b64 s[4:5]')
        a.label('LX_pc')
        a(f's_lshl2_add_u32 s76, s{S_J}, s{W}')
        a(f's_lshl_b32 s76, s76, 13')
        a(f'v_add_u32 v{vTd}, s76, v{vTa}')
        a(f'v_min_u32 v{vTd}, Lfin-LX_pc-4, v{vTd}')
        a(f'global_load_dword v{vTd}, v{vTd}, s[4:5]')
        a.label('LX_cpf_ret')
    XR = 98304
    s_rb, s_hp, s_x, s_w, s_m0x, s_m0w, s_rot = 70, 71, 72, 73, 74, 75, 82
    a(f's_lshr_b32 s76, s{S_XC}, 1')
    a(f's_and_b32 s{s_rb}, s{S_J}, 3')
    a(f's_lshl2_add_u32 s{s_rb}, s76, s{s_rb}')
    a(f's_and_b32 s76, s{S_XC}, 1')
    a(f's_lshr_b32 s{s_hp}, s{S_J}, 2')
    a(f's_lshl3_add_u32 s{s_hp}, s76, s{s_hp}')
    a(f's_lshr_b32 s76, s{S_J}, 3')
    a(f's_add_u32 s{s_rot}, s{S_J}, s76')
    a(f's_add_u32 s{s_rot}, s{s_rot}, s{S_XC}')
    if cfg.get('rot'): a(f's_lshl_b32 s{s_rot}, s{s_rot}, {cfg["rot"]}')
    RM = cfg.get('rotm')
    if RM == '1': a(f's_lshl_b32 s{s_rot}, s76, 1')
    if RM == '2': a(f's_lshl_b32 s{s_rot}, s{S_J}, 1')
    if RM == '3': a(f's_lshr_b32 s{s_rot}, s{S_J}, 2')
    if RM == '4': a(f's_lshl1_add_u32 s{s_rot}, s76, s{S_XC}')
    if RM == '5': a(f's_lshl_b32 s{s_rot}, s76, 2')
    if RM == '6': a(f's_mov_b32 s{s_rot}, s76')
    a(f's_lshl2_add_u32 s{s_x}, s{s_rb}, s{W}')
    a(f's_lshl_b32 s{s_x}, s{s_x}, 15')
    a(f's_mul_i32 s{s_w}, s{W}, {16*3072}')
    a(f's_lshl_b32 s76, s{s_hp}, 6')
    a(f's_add_u32 s{s_w}, s{s_w}, s76')
    a(f's_lshl_b32 s{s_m0x}, s{W}, 14')
    a(f's_add_u32 s{s_m0x}, s{s_m0x}, {XR}')
    a(f's_mul_i32 s{s_m0w}, s{W}, 3072')
    vXd = 4; vWd = 8; vXr = 12; vWn = 16; vWp = 20
    vSum, vSq, vCs = 24, 25, 26
    vOne = 29; vT = 30; vAcc = 40; vX = 88; vW = 120
    vWo = 220
    vDbg = 216; vDbgA = 217
    a(f'v_lshrrev_b32 v{vT}, 3, v0')
    a(f'v_and_b32 v{vT+1}, 7, v0')
    a(f'v_lshrrev_b32 v{vT+2}, 1, v{vT}')
    a(f'v_xor_b32 v{vT+1}, v{vT+1}, v{vT+2}')
    a(f'v_lshlrev_b32 v{vT+1}, 4, v{vT+1}')
    a(f'v_lshl_add_u32 v{vXd}, v{vT}, 10, v{vT+1}')
    a(f'v_xor_b32 v{vXd+1}, 64, v{vXd}')
    a(f'v_add_u32 v{vXd+1}, {8192-1024}, v{vXd+1}')
    a(f'v_add_u32 v{vXd+2}, {2*(8192-1024)}, v{vXd}')
    a(f'v_add_u32 v{vXd+3}, {2*(8192-1024)}, v{vXd+1}')
    for q in range(3):
        a(f'v_add_u32 v{vT}, {64*q}, v0')
        a(f'v_mul_u32_u24 v{vT+1}, 171, v{vT}')
        a(f'v_lshrrev_b32 v{vT+1}, 11, v{vT+1}')
        a(f'v_mul_u32_u24 v{vT+2}, 12, v{vT+1}')
        a(f'v_sub_u32 v{vT+2}, v{vT}, v{vT+2}')
        a(f'v_mul_u32_u24 v{vT+1}, 3072, v{vT+1}')
        a(f'v_lshrrev_b32 v{vT+3}, 2, v{vT+2}')
        a(f'v_lshl_add_u32 v{vT+1}, v{vT+3}, 10, v{vT+1}')
        a(f'v_and_b32 v{vT+2}, 3, v{vT+2}')
        a(f'v_lshl_add_u32 v{vWd+q}, v{vT+2}, 4, v{vT+1}')
        if q == 0: a(f'v_lshl_add_u32 v249, v{vT+2}, 7, v{vT+1}')
        if q: a(f'v_subrev_u32 v{vWd+q}, {1024*q}, v{vWd+q}')
    a(f'v_lshlrev_b32 v219, 6, v0')
    a(f's_lshl2_add_u32 s87, s{S_J}, s{W}')
    a(f's_and_b32 s83, s{S_WG}, 0xe4')
    a(f's_or_b32 s83, s83, s{W}')
    a(f's_mov_b32 s{SRD_X+2}, {2048*512*2}')
    a(f's_mov_b32 s{SRD_X+3}, 0x20000')
    a(f's_mov_b32 s{SRD_WQKV+2}, {512*1536*2}')
    a(f's_mov_b32 s{SRD_WQKV+3}, 0x20000')
    a(f's_mov_b32 s{SRD_WS+2}, {WS_SIZE}')
    a(f's_mov_b32 s{SRD_WS+3}, 0x20000')
    a('s_waitcnt lgkmcnt(0)')
    g.stamp('S.karg')
    a(f's_mov_b64 s[{SRD_X}:{SRD_X+1}], s[16:17]')
    a(f's_mov_b64 s[{SRD_WQKV}:{SRD_WQKV+1}], s[18:19]')
    a(f's_mov_b64 s[{SRD_WS}:{SRD_WS+1}], s[34:35]')
    def dma_xw(c):
        L = [f's_add_u32 s78, s{s_rot}, {c}', f's_and_b32 s78, s78, 7', f's_lshl_b32 s76, s78, 7', f's_add_u32 s76, s76, s{s_x}',
             f's_add_u32 m0, s{s_m0x}, {(c&3)*4096}', f's_mul_i32 s77, s78, {64*3072}']
        for i in range(4):
            L.append(('vm', f'buffer_load_dwordx4 v{vXd+i}, {SR(SRD_X)}, s76 offen offset:{i*1024} lds', f'c{c}'))
        L += [f's_add_u32 m0, s{s_m0w}, {c*12288}', f's_add_u32 s77, s77, s{s_w}']
        for q in range(3):
            L.append(('vm', f'buffer_load_dwordx4 v{vWd+q}, {SR(SRD_WQKV)}, s77 offen offset:{q*1024} lds', f'c{c}'))
        return L
    NX = int(cfg.get('nx', 4))
    TL = {}
    for it in (cfg.get('tl') or '').split('+'):
        if it:
            n_, p_ = it.split('@'); TL.setdefault(p_, []).append(n_)
    vT64, vTw, vTg = 219, 249, 250
    tcnt = [0]
    def touch1(n):
        tcnt[0] += 1
        lab = f'LT_{tcnt[0]}'
        def f():
            if n == 'x':
                a(f's_lshr_b32 s81, s{S_XC}, 1')
                a(f's_lshl_b32 s81, s81, 7')
                a(f's_add_u32 s81, s81, s87')
                a(f's_lshl_b32 s81, s81, 12')
                vm.issue(f'buffer_load_dword v{vTd+1}, v{vT64}, {SR(SRD_X)}, s81 offen', 'touch')
            elif n == 'w':
                a(f's_and_b32 s81, s{S_XC}, 1')
                a(f's_lshl_b32 s81, s81, 9')
                a(f's_mul_i32 s4, s87, {4*3072}')
                a(f's_add_u32 s81, s81, s4')
                a('s_mov_b32 exec_hi, 0xffff')
                vm.issue(f'buffer_load_dword v{vTd+1}, v{vTw}, {SR(SRD_WQKV)}, s81 offen', 'touch')
                a('s_mov_b32 exec_hi, -1')
            elif n == 'o':
                a(f's_lshl_b32 s81, s87, 12')
                vm.issue(f'buffer_load_dword v{vTd+1}, v{vT64}, {SR(SRD_WO)}, s81 offen', 'touch')
            elif n in ('g0', 'g1'):
                a(f's_bitcmp1_b32 s{W}, 0')
                a('s_cselect_b64 s[4:5], s[26:27], s[24:25]')
                a(f's_mov_b32 s6, {512*1792*2}')
                a('s_mov_b32 s7, 0x20000')
                a(f's_lshr_b32 s81, s87, 1')
                a(f's_lshl_b32 s81, s81, 4')
                a(f's_bitcmp1_b32 s{S_XC}, 0')
                a(f's_addc_u32 s81, s81, {8*int(n[1])}')
                a(f's_mul_i32 s81, s81, 1792')
                a('s_mov_b32 exec_hi, 0xffffff')
                vm.issue(f'buffer_load_dword v{vTd+1}, v{vTg}, s[4:7], s81 offen', 'touch')
                a('s_mov_b32 exec_hi, -1')
            elif n == 'G':
                nl = 14336 // (64*NX)
                if NX < 8:
                    a(f's_cmp_ge_u32 s{S_XC}, {NX}')
                    a(f's_cbranch_scc1 {lab}')
                a(f's_bitcmp1_b32 s{W}, 0')
                a('s_cselect_b64 s[4:5], s[26:27], s[24:25]')
                a(f's_mov_b32 s6, {512*1792*2}')
                a('s_mov_b32 s7, 0x20000')
                a(f's_lshr_b32 s81, s87, 1')
                a(f's_mul_i32 s81, s81, {NX}')
                a(f's_add_u32 s81, s81, s{S_XC}')
                a(f's_mul_i32 s81, s81, {nl*128}')
                a(f'v_min_u32 v{vTd}, {(min(nl,56)-1)*128}, v{vTa}')
                for i in range(0, nl, 56):
                    (a if NX < 8 else vm.issue)(f'buffer_load_dword v{vTd+1}, v{vTd}, s[4:7], s81 offen')
                    if i + 56 < nl: a(f's_add_u32 s81, s81, {56*128}')
                a.label(lab)
            elif n == 'D':
                nl = 14336 // (128*NX)
                if NX < 8:
                    a(f's_cmp_ge_u32 s{S_XC}, {NX}')
                    a(f's_cbranch_scc1 {lab}')
                a(f's_mul_i32 s81, s87, {NX}')
                a(f's_add_u32 s81, s81, s{S_XC}')
                a(f's_mul_i32 s81, s81, {nl*128}')
                a(f'v_min_u32 v{vTd}, {(nl-1)*128}, v{vTa}')
                (a if NX < 8 else vm.issue)(f'buffer_load_dword v{vTd+1}, v{vTd}, {SR(SRD_WD)}, s81 offen')
                a.label(lab)
            else: raise ValueError(n)
        return f
    def touch(p): return [touch1(n) for n in TL.get(p, [])]
    a(f's_cmp_eq_u32 s83, 0')
    a('s_cbranch_scc0 LX_zero_ret')
    def ool_zero():
        for i in range(4): a(f'v_mov_b32 v{vT+i}, 0')
        a(f's_lshl2_add_u32 s77, s{S_J}, s{S_XC}')
        a(f's_mul_i32 s76, s77, 2176')
        a(f's_add_u32 s76, s76, {WS_KV}')
        a(f'v_lshlrev_b32 v{vT+4}, 4, v0')
        a(f'v_min_u32 v{vT+5}, {128-16}, v{vT+4}')
        a(f'buffer_store_dwordx4 v[{vT}:{vT+3}], v{vT+4}, {SR(SRD_WS)}, s76 offen sc1')
        a(f'buffer_store_dwordx4 v[{vT}:{vT+3}], v{vT+4}, {SR(SRD_WS)}, s76 offen offset:1024 sc1')
        a(f'buffer_store_dwordx4 v[{vT}:{vT+3}], v{vT+5}, {SR(SRD_WS)}, s76 offen offset:2048 sc1')
        a(f's_mul_i32 s76, s77, {112*128}')
        a(f's_add_u32 s76, s76, {WS_FLAG}')
        a(f's_add_u32 s77, s76, {48*128}')
        a(f'buffer_store_dword v{vT}, v{vTa}, {SR(SRD_WS)}, s76 offen sc1')
        a(f'buffer_store_dword v{vT}, v{vTa}, {SR(SRD_WS)}, s77 offen sc1')
    ool_zero()
    a.label('LX_zero_ret')
    g.emits(touch('pre'))
    g.emits(dma_xw(0)); g.stamp('S.d0')
    g.emits(touch('d0'))
    D1 = dma_xw(1)
    g.emits(D1[:10]); g.stamp('S.d1')
    g.emits(touch('dx'))
    a('s_mov_b32 s79, s77')
    srd(a, SRD_DBG, 32, 256)
    srd(a, SRD_WO, 20, 512*512*2)
    a(f's_cmp_ge_u32 s{W}, 2')
    a(f's_cselect_b64 s[{SRD_WGU}:{SRD_WGU+1}], s[26:27], s[24:25]')
    a(f's_cmp_ge_u32 s{S_J}, 28')
    if cfg.get('iw'):
        a(f's_cselect_b64 s[{SRD_WGU}:{SRD_WGU+1}], s[28:29], s[{SRD_WGU}:{SRD_WGU+1}]')
        a(f's_mov_b32 s{SRD_WGU+2}, {512*1792*2}')
    else: a(f's_cselect_b32 s{SRD_WGU+2}, 0, {512*1792*2}')
    a(f's_mov_b32 s{SRD_WGU+3}, 0x20000')
    srd(a, SRD_WD, 28, 1792*512*2)
    srd(a, SRD_OUT, 30, 2048*512*2)
    a(f'v_and_b32 v{vT}, 31, v0')
    a(f'v_lshrrev_b32 v{vT+1}, 5, v0')
    a(f'v_lshrrev_b32 v{vT+2}, 1, v{vT}')
    a(f'v_and_b32 v{vT+2}, 7, v{vT+2}')
    a(f'v_xor_b32 v{vT+2}, v{vT+2}, v{vT+1}')
    a(f'v_lshlrev_b32 v{vT+2}, 4, v{vT+2}')
    a(f'v_lshl_add_u32 v{vT+2}, v{vT}, 7, v{vT+2}')
    a(f'v_add_u32 v{vT+2}, s{s_m0x}, v{vT+2}')
    for s in range(4):
        a(f's_xor_b32 s76, s{W}, {s}')
        a(f's_lshl_b32 s76, s76, 5')
        a(f'v_xor_b32 v{vXr+s}, s76, v{vT+2}')
    a(f'v_bfe_u32 v{vT+2}, v0, 2, 2')
    a(f'v_lshl_add_u32 v{vT+2}, v{vT+1}, 3, v{vT+2}')
    a(f'v_mul_u32_u24 v{vT+2}, 192, v{vT+2}')
    a(f'v_bfe_u32 v{vT+3}, v0, 4, 1')
    a(f'v_lshl_add_u32 v{vT+2}, v{vT+3}, 5, v{vT+2}')
    a(f'v_and_b32 v{vT+3}, 3, v0')
    a(f'v_lshl_add_u32 v{vT+4}, v{vT+3}, 3, v{vT+2}')
    a(f'v_and_b32 v{vT+5}, 1, v0')
    a(f'v_lshl_add_u32 v{vT+5}, v{vT+5}, 4, v{vT+2}')
    a(f'v_bfe_u32 v{vT+3}, v0, 1, 1')
    a(f'v_lshl_add_u32 v{vT+5}, v{vT+3}, 3, v{vT+5}')
    for s in range(4):
        a(f's_xor_b32 s76, s{W}, {s}')
        a(f's_mul_i32 s76, s76, 3072')
        a(f'v_add_u32 v{vWn+s}, s76, v{vT+4}')
        a(f'v_add_u32 v{vWp+s}, s76, v{vT+5}')
    for r in (vSum, vSq, vCs, vCs+1, vCs+2): a(f'v_mov_b32 v{r}, 0')
    a(f'v_mov_b32 v{vOne}, 0x3f803f80')
    a(f'v_lshrrev_b32 v{vT}, 4, v0')
    a(f'v_and_b32 v{vT+1}, 15, v0')
    a(f'v_lshlrev_b32 v{vT+2}, 1, v{vT}')
    a(f'v_xor_b32 v{vT+1}, v{vT+1}, v{vT+2}')
    a(f'v_lshlrev_b32 v{vT+1}, 4, v{vT+1}')
    a(f'v_lshl_add_u32 v{vWo}, v{vT}, 10, v{vT+1}')
    a(f'v_add_u32 v{vWo+1}, {4096-1024}, v{vWo}')
    a(f'v_xor_b32 v{vWo+2}, 128, v{vWo}')
    a(f'v_add_u32 v{vWo+2}, {2*(4096-1024)}, v{vWo+2}')
    a(f'v_add_u32 v{vWo+3}, {4096-1024}, v{vWo+2}')
    a(f'v_and_b32 v{vDbgA}, 15, v0')
    a(f'v_lshlrev_b32 v{vDbgA}, 2, v{vDbgA}')
    a(f's_lshr_b32 s84, s{S_J}, 3')
    a(f's_lshl_b32 s84, s84, 8')
    a(f's_lshl_b32 s76, s{W}, 17')
    a(f's_add_u32 s84, s84, s76')
    a(f's_lshl_b32 s85, s{W}, 12')
    SC = 12288; CSA = 81920
    vE1, vE2, vE3, vE4, vE5, vE6, vE7, vE8, vE9, vE2b = range(224, 234)
    vL16 = 1
    a(f'v_and_b32 v{vT}, 31, v0')
    a(f'v_lshl_add_u32 v{vE1}, v{vT}, 2, s{s_m0x}')
    a(f'v_add_u32 v{vE1}, {SC}, v{vE1}')
    a(f'v_lshlrev_b32 v{vE2}, 2, v{vT}')
    a(f'v_add_u32 v{vE2}, {CSA}, v{vE2}')
    a(f'v_add_u32 v{vE2b}, 768, v{vE2}')
    a(f'v_lshrrev_b32 v{vT+1}, 5, v0')
    a(f'v_lshl_add_u32 v{vE3}, v{vT+1}, 4, s{s_m0x}')
    a(f's_mul_i32 s76, s{W}, 384')
    a(f's_add_u32 s76, s76, {CSA}')
    a(f'v_lshl_add_u32 v{vE4}, v0, 2, s76')
    a(f'v_mul_u32_u24 v{vT+1}, 272, v{vT+1}')
    a(f'v_bfe_u32 v{vT+2}, v0, 4, 1')
    a(f'v_mul_u32_u24 v{vT+2}, 544, v{vT+2}')
    a(f'v_add3_u32 v{vE6}, v{vT+1}, v{vT+2}, s{s_m0x}')
    a(f'v_and_b32 v{vT+1}, 3, v0')
    a(f'v_bfe_u32 v{vT+2}, v0, 2, 1')
    a(f'v_lshl_add_u32 v{vT+1}, v{vT+2}, 3, v{vT+1}')
    a(f'v_bfe_u32 v{vT+2}, v0, 3, 1')
    a(f'v_lshl_add_u32 v{vT+1}, v{vT+2}, 2, v{vT+1}')
    a(f'v_lshl_add_u32 v{vE5}, v{vT+1}, 4, v{vE6}')
    a(f's_lshl_b32 s78, s{W}, 8')
    a(f'v_lshl_add_u32 v{vE7}, v0, 2, s78')
    a(f'v_add_u32 v{vE8}, {XR+SC+1024}, v{vE7}')
    a(f'v_min_u32 v{vE9}, {XR+SC+1024+124}, v{vE8}')
    a(f'v_lshlrev_b32 v{vL16}, 4, v0')
    vOnes = 236
    for i in range(4): a(f'v_mov_b32 v{vOnes+i}, v{vOne}')
    vSen = 252; SEN = '0xff81ff81'
    a(f'v_mov_b32 v{vSen}, {SEN}')
    for i in range(1, 4): a(f'v_mov_b32 v{vSen+i}, v{vSen}')
    a(f'v_mul_u32_u24 v{vT}, 147, v0')
    a(f'v_lshrrev_b32 v{vT}, 11, v{vT}')
    a(f'v_mul_u32_u24 v{vT}, 1792, v{vT}')
    a(f'v_add_u32 v{vTg}, v{vT}, v{vTa}')
    vXres = 240; vXa = 248
    a(f'v_and_b32 v{vT}, 15, v0')
    a(f'v_lshrrev_b32 v{vT+1}, 4, v0')
    a(f'v_lshlrev_b32 v{vT+2}, 3, v{vT+1}')
    a(f'v_lshl_add_u32 v{vXa}, v{vT}, 10, v{vT+2}')
    a(f's_and_b32 s88, s{S_J}, 7')
    a(f's_lshl3_add_u32 s88, s{S_XC}, s88')
    a(f's_lshl_b32 s88, s88, 15')
    a(f's_lshr_b32 s89, s{S_J}, 3')
    a(f's_lshl2_add_u32 s89, s89, s{W}')
    a(f's_lshl_b32 s89, s89, 6')
    a(f's_add_u32 s88, s88, s89')
    a(f's_add_u32 s89, s88, 16384')
    XRES = [('vm', f'buffer_load_dwordx2 {vr(vXres+m*4+t*2,2)}, v{vXa}, {SR(SRD_X)}, s{88+m} offen offset:{32*t}', 'xres') for m in range(2) for t in range(2)]
    PF = [f's_and_b32 s76, s88, 0x3c0', f's_mul_i32 s76, s76, 15', f's_add_u32 s76, s76, s88', f's_add_u32 s76, s76, {WS_H}',
          ('vm', f'buffer_store_dwordx4 {vr(vSen,4)}, v{vL16}, {SR(SRD_WS)}, s76 offen sc1', 'st'),
          f's_add_u32 s76, s76, 16384',
          ('vm', f'buffer_store_dwordx4 {vr(vSen,4)}, v{vL16}, {SR(SRD_WS)}, s76 offen sc1', 'st'),
          f's_lshr_b32 s76, s88, 15', f's_lshl_b32 s76, s76, 10', f's_and_b32 s81, s88, 0x300', f's_add_u32 s76, s76, s81',
          f's_lshl2_add_u32 s76, s76, {WS_STATS}',
          ('vm', f'buffer_store_dword v{vSen}, v{vE7}, {SR(SRD_WS)}, s76 offen sc1', 'st')]
    PFS = cfg.get('pfs', 'e')
    if PFS == 'a': g.emits(PF)
    a('s_mov_b32 s77, s79')
    g.emits(D1[10:])
    if PFS == 'b': g.emits(PF)
    g.emits(touch('d1'))
    g.stamp('A.issued')
    def dma_wo(n):
        L = [f's_add_u32 m0, s85, {16384*n}' if n < 5 else f's_add_u32 m0, s{s_m0x}, {4096*(n-5)}', f's_add_u32 s77, s84, {n*16384}']
        for i in range(4):
            L.append(('vm', f'buffer_load_dwordx4 v{vWo+i}, {SR(SRD_WO)}, s77 offen offset:{i*1024} lds', f'wo{n>>2}'))
        return L
    def rdX(c):
        return [('lg', f'ds_read_b128 {vr(vX+(c&1)*16+s*4,4)}, v{vXr+s} offset:{(c&3)*4096}', 'x') for s in range(4)]
    def rdW(c, s):
        base = vW + (c&1)*48 + s*12
        off = (c&3)*12288
        L = []
        for tile in (1, 2, 0):
            ad = (vWp if tile == 0 else vWn) + s
            for h2 in range(2):
                L.append(('lg', f'ds_read_b64_tr_b16 {vr(base+tile*4+h2*2,2)}, v{ad} offset:{off + h2*768 + tile*64}', f'w{s}'))
        return L
    def ismem(x): return cls(x) == 1 or callable(x)
    def sprinkle(L, ex, first=0):
        n = sum(1 for x in ex if ismem(x))
        tot = sum(cost(x) for x in L)
        acc = 0; k = 0
        for x in L:
            while ex and acc >= first + (tot - first)*k/max(n, 1):
                while ex:
                    y = ex.pop(0); g.emit(y)
                    if ismem(y): break
                k += 1
            g.emit(x); acc += cost(x)
        g.emits(ex); del ex[:]
    def dots(c):
        xb = vX + (c&1)*16; wb = vW + (c&1)*48
        L = []
        for i in range(4 if not cfg.get('nodw') else 1):
            for tile in range(3):
                L.append(f'v_dot2c_f32_bf16 v{vCs+tile}, v{wb+tile*4+i}, v{vOne}')
        for i in range(16 if not cfg.get('nodx') else 0):
            L.append(f'v_dot2c_f32_bf16 v{vSum}, v{xb+i}, v{vOne}')
            L.append(f'v_dot2c_f32_bf16 v{vSq}, v{xb+i}, v{xb+i}')
        return L
    def mm(c, s, t):
        xb = vr(vX + (c&1)*16 + s*4, 4); wb = vr(vW + (c&1)*48 + s*12 + 4*t, 4)
        C = '0' if (c == 0 and s == 0) else vr(vAcc+16*t, 16)
        if t: return f'v_mfma_f32_32x32x16_bf16 {vr(vAcc+16*t,16)}, {xb}, {wb}, {C}'
        return f'v_mfma_f32_32x32x16_bf16 {vr(vAcc,16)}, {wb}, {xb}, {C}'
    DO = ' offset:64' if cfg.get('dbgst') else ''
    vK, vV, vQ = vAcc+16, vAcc+32, vAcc
    vM, vR, vCq, vEx = 120, 136, 152, 168
    vPK, vPV, vD2 = 184, 192, 200
    vMean, vRstd = vSum, vSq
    sE, sL = 80, 86
    WOL = []
    for n in (0, 1, 2, 3, 5, 6, 7, 4): WOL += dma_wo(n)
    def cut(L, n):
        R = []
        while L and n:
            x = L.pop(0); R.append(x)
            if ismem(x): n -= 1
        return R
    def cutm(L):
        R = []
        while L:
            x = L.pop(0); R.append(x)
            if cls(x) == 1: break
        return R
    def paced(L, q, step):
        R = []
        while L:
            R.append((int(q), int(q)+2, cutm(L))); q += step
        return R
    def rdall(c): return rdX(c) + rdW(c, 0) + rdW(c, 1) + rdW(c, 2) + rdW(c, 3)
    if cfg.get('tour'):
        for w in range(3):
            a(f's_cmp_eq_u32 s{W}, {w}')
            a(f's_cbranch_scc1 Lpad_e{w}')
        a('s_branch Lpad_e3')
        a.label('Lpad_ret')
        g.stamp('A.tour')
    vm.wait('c0')
    a('s_barrier')
    g.stamp('A.c0')
    R0 = rdall(0); D2 = dma_xw(2)
    while R0 or D2:
        g.emits(cut(R0, 4)); g.emits(cut(D2, 1))
    a(f's_cmp_eq_u32 s83, 0')
    a('s_cbranch_scc0 LX_sig_ret')
    a(f'v_mov_b32 v{vT}, 1')
    a(f's_lshl2_add_u32 s76, s{S_J}, s{S_XC}')
    a(f's_lshl_b32 s76, s76, 2')
    a(f'buffer_store_dword v{vT}, off, {SR(SRD_DBG)}, s76{DO} sc1')
    a.label('LX_sig_ret')
    a(f's_mov_b32 s{sE}, {fbits(1e-6*LOG2E)}')
    a(f's_mov_b32 s{sL}, {fbits(LN2)}')
    WN = [int(x) for x in cfg.get('wn', '0,0,0,0,0,0,0,0,0,0,0').split(',')]
    for c in range(8): assert sum(WN[:c+1]) <= (0, 4, 8, 12, 12, 24, 32, 32)[c]
    for c in range(4): assert WN[c] % 4 == 0
    for n_ in TL.get('pre', []) + TL.get('d0', []) + TL.get('dx', []): assert n_ in 'xwG'
    DF = int(cfg.get('df', 33)); rest = []
    for c in range(8):
        g.stamp(f'I.{c}e')
        lg.wait('x', 'w0')
        if c == 3:
            for s in range(4):
                a(f'v_add_u32 v{vWn+s}, 49152, v{vWn+s}'); a(f'v_add_u32 v{vWp+s}, 49152, v{vWp+s}')
        sprinkle(dots(c), rest)
        g.stamp(f'I.{c}m')
        dm = []
        if c + 3 < 8: dm += dma_xw(c+3)
        dm += touch(f's{c}')
        if c == 4: dm += XRES
        if c == int(cfg.get('dbs', 4)):
            dm.append(('vm', f'buffer_load_dword v{vDbg}, v{vDbgA}, {SR(SRD_DBG)}, 0 offen{DO} sc1', 'dbg'))
        if str(c) == PFS: dm[len(dm) if not cfg.get('pf0') else 0:0] = PF
        dm += cut(WOL, WN[c])
        dm += touch(f'e{c}')
        rest = dm
        nd = sum(1 for x in dm if ismem(x))
        dm = cut(rest, nd - (nd*DF + 50)//100)
        nd = sum(1 for x in dm if ismem(x))
        DSEG = [(12*i//max(nd, 1), 12*i//max(nd, 1) + 2, cut(dm, 1)) for i in range(nd)]
        lg.wait_all()
        if c < 7:
            mf = [(mm(c, s, t), []) for s in range(4) for t in (1, 2, 0)]
            mf[0] = (mf[0][0], [('wvm', f'c{c+1}'), 's_barrier'] + g.st(f'A.c{c+1}'))
            rd = rdall(c+1)
            RSEG = [(i, i+1, cut(rd, 3 if (i % 3 == 1) else 2)) for i in range(11)] + [(11, 12, rd)]
            weave(g, mf, [RSEG, DSEG], 24, f'A{c}')
        else:
            mf = [(mm(7, s, t), []) for s in range(4) for t in (1, 2)] + [(mm(7, s, 0), []) for s in range(4)]
            vP = 88
            S = [f'v_mov_b32 v{vT}, v{vSum}', f'v_mov_b32 v{vT+1}, v{vSq}', f'v_mov_b32 v{vT+2}, v{vCs}',
                 f'v_permlane32_swap_b32 v{vCs+1}, v{vCs+2}',
                 f'v_permlane32_swap_b32 v{vSum}, v{vT}', f'v_permlane32_swap_b32 v{vSq}, v{vT+1}', f'v_permlane32_swap_b32 v{vCs}, v{vT+2}',
                 f'v_add_f32 v{vCs+1}, v{vCs+1}, v{vCs+2}',
                 f'v_add_f32 v{vSum}, v{vSum}, v{vT}', f'v_add_f32 v{vSq}, v{vSq}, v{vT+1}', f'v_add_f32 v{vCs}, v{vCs}, v{vT+2}',
                 f'v_mul_f32 v{vMean}, {fbits(1/512)}, v{vSum}',
                 ('lg', f'ds_write_b32 v{vE4}, v{vCs} offset:0', 'cs'),
                 ('lg', f'ds_write_b32 v{vE4}, v{vCs+1} offset:128', 'cs'),
                 f'v_mul_f32 v{vSq}, {fbits(1/512)}, v{vSq}',
                 f'v_fma_f32 v{vSq}, -v{vMean}, v{vMean}, v{vSq}', f'v_max_f32 v{vSq}, 0, v{vSq}',
                 f'v_add_f32 v{vSq}, {fbits(1e-5)}, v{vSq}', f'v_mul_f32 v{vSq}, {fbits(LN2*LN2)}, v{vSq}',
                 f'v_rsq_f32 v{vRstd}, v{vSq}',
                 ('wlg', 'cs'), 's_barrier',
                 ('lg', f'ds_write2_b32 v{vE1}, v{vMean}, v{vRstd} offset1:32', 'sw')]
            S += [('lg', f'ds_read2_b32 {v2(vP+2*w)}, v{vE2} offset0:{96*w+32} offset1:{96*w+64}', 'r0') for w in range(2)]
            S += [('lg', f'ds_read2_b32 {v2(vP+2*w)}, v{vE2b} offset0:{96*(w-2)+32} offset1:{96*(w-2)+64}', 'r0') for w in range(2, 4)]
            S += [('lg', f'ds_read_b128 {vr(vM+4*i,4)}, v{vE3} offset:{SC+i*32}', 'r1') for i in range(4)]
            S += [('lg', f'ds_read2_b32 {v2(vP+8)}, v{vE2} offset0:0 offset1:96', 'rq'), ('lg', f'ds_read2_b32 {v2(vP+10)}, v{vE2b} offset0:0 offset1:96', 'rq')]
            S += [('lg', f'ds_read_b128 {vr(vR+4*i,4)}, v{vE3} offset:{SC+128+i*32}', 'r2') for i in range(4)]
            S += [('wlg', 'r0'), f'v_add_f32 v{vP}, v{vP}, v{vP+2}', f'v_add_f32 v{vP+4}, v{vP+4}, v{vP+6}',
                  f'v_add_f32 v{vP+1}, v{vP+1}, v{vP+3}', f'v_add_f32 v{vP+5}, v{vP+5}, v{vP+7}',
                  f'v_add_f32 v{vCs+1}, v{vP}, v{vP+4}', f'v_add_f32 v{vCs+2}, v{vP+1}, v{vP+5}',
                  ('wlg', 'rq'), f'v_add_f32 v{vP+8}, v{vP+8}, v{vP+9}', f'v_add_f32 v{vP+10}, v{vP+10}, v{vP+11}', f'v_add_f32 v{vCs}, v{vP+8}, v{vP+10}',
                  ('lg', f'ds_write_b32 v{vE1}, v{vCs} offset:256', 'qw')]
            S += [('lg', f'ds_read_b128 {vr(vCq+4*i,4)}, v{vE3} offset:{SC+256+i*32}', 'r3') for i in range(4)]
            K1 = [f'v_fma_f32 v{vK+r}, -v{vM+r}, v{vCs+1}, v{vK+r}' for r in range(16)]
            K1 += [('wlg', 'r2')] + [f'v_fma_f32 v{vK+r}, v{vK+r}, v{vR+r}, s{sE}' for r in range(16)]
            weave(g, mf, [[(0, 11, S), (9, 12, K1[:8])], DSEG], 24, 'A7')
    g.stamp('A.loop')
    def phi_mid(b):
        L = []
        for r in range(16):
            L += [f'v_exp_f32_e64 v{vEx+r}, v{b+r} clamp', f'v_max_f32 v{b+r}, s{sE}, v{b+r}']
        return L
    def phi_end(b, d):
        L = [f'v_pk_fma_f32 {v2(b+2*i)}, {v2(b+2*i)}, s[{sL}:{sL+1}], {v2(vEx+2*i)} op_sel_hi:[1,0,1]' for i in range(8)]
        return L + [f'v_cvt_pk_bf16_f32 v{d+i}, v{b+2*i}, v{b+2*i+1}' for i in range(8)]
    EP = K1[8:] + phi_mid(vK)
    EP += [f'v_pk_fma_f32 {v2(vV+2*i)}, {v2(vM+2*i)}, {v2(vCs+2)}, {v2(vV+2*i)} op_sel_hi:[1,0,1] neg_lo:[1,0,0] neg_hi:[1,0,0]' for i in range(8)]
    EP += [f'v_pk_mul_f32 {v2(vV+2*i)}, {v2(vV+2*i)}, {v2(vR+2*i)}' for i in range(8)]
    EP += phi_end(vK, vPK)
    EP += [f'v_cvt_pk_bf16_f32 v{vPV+i}, v{vV+2*i}, v{vV+2*i+1}' for i in range(8)]
    EP += [f'v_permlane16_swap_b32 v{vPK+i}, v{vPK+4+i}' for i in range(4)]
    EP += [f'v_permlane16_swap_b32 v{vPV+i}, v{vPV+4+i}' for i in range(4)]
    sprinkle(EP, rest + cut(WOL, WN[8]) + (PF if PFS == 'e' else []))
    g.stamp('A.ep')
    lg.wait('r3')
    Q1 = [f'v_fma_f32 v{vQ+r}, -v{vMean}, v{vCq+r}, v{vQ+r}' for r in range(16)]
    mf = [(f'v_mfma_f32_16x16x32_bf16 {vr(vD2+8,4)}, {vr(vPK,4)}, {vr(vOnes,4)}, 0', []),
          (f'v_mfma_f32_16x16x32_bf16 {vr(vD2+12,4)}, {vr(vPK+4,4)}, {vr(vOnes,4)}, 0', []),
          (f'v_mfma_f32_16x16x32_bf16 {vr(vD2,4)}, {vr(vPK,4)}, {vr(vPV,4)}, 0', []),
          (f'v_mfma_f32_16x16x32_bf16 {vr(vD2+4,4)}, {vr(vPK+4,4)}, {vr(vPV+4,4)}, 0', [])]
    weave(g, mf, [[(0, 4, Q1[:10])]], 8, 'kv')
    a('s_mov_b32 exec_lo, 0x00010001')
    a('s_mov_b32 exec_hi, 0x00010001')
    a(f'ds_write_b128 v{vE6}, {vr(vD2+8,4)} offset:{SC+1024+256}')
    a(f'ds_write_b128 v{vE6}, {vr(vD2+12,4)} offset:{SC+1024+1088+256}')
    a('s_mov_b64 exec, -1')
    a(f'ds_write_b128 v{vE5}, {vr(vD2,4)} offset:{SC+1024}')
    a(f'ds_write_b128 v{vE5}, {vr(vD2+4,4)} offset:{SC+1024+1088}')
    sprinkle(Q1[10:] + [f'v_pk_fma_f32 {v2(vQ+2*i)}, {v2(vQ+2*i)}, {v2(vMean)}, s[{sE}:{sE+1}] op_sel:[0,1,0] op_sel_hi:[1,1,0]' for i in range(8)], cut(WOL, WN[9]))
    a('s_waitcnt lgkmcnt(0)')
    a('s_barrier')
    for i in range(3):
        for w in range(4):
            a(f'ds_read_b32 v{vD2+i*4+w}, v{vE8 if i < 2 else vE9} offset:{w*16384+i*1024}')
    a(f's_mul_i32 s78, s{s_hp}, 2176')
    a(f's_add_u32 s78, s78, {WS_KV}')
    vm.wait('dbg')
    a.label('LA_chk')
    a(f'v_cmp_ne_u32 vcc, 1, v{vDbg}')
    a('s_cbranch_vccnz LX_dbg')
    def ool_dbg():
        a.label('LX_dbg')
        a(f'buffer_load_dword v{vDbg}, v{vDbgA}, {SR(SRD_DBG)}, 0 offen{DO} sc1')
        a('s_waitcnt vmcnt(0)')
        guard(g)
        a('s_branch LA_chk')
    OOL.append(ool_dbg)
    a('s_waitcnt lgkmcnt(0)')
    for i in range(3):
        a(f'v_pk_add_f32 {v2(vD2+4*i)}, {v2(vD2+4*i)}, {v2(vD2+4*i+2)}')
    for i in range(3):
        a(f'v_add_f32 v{vD2+4*i}, v{vD2+4*i}, v{vD2+4*i+1}')
    a(f's_cmp_eq_u32 s{W}, 0')
    vm.issue(f'buffer_atomic_add_f32 v{vD2}, v{vE7}, {SR(SRD_WS)}, s78 offen', 'st')
    vm.issue(f'buffer_atomic_add_f32 v{vD2+4}, v{vE7}, {SR(SRD_WS)}, s78 offen offset:1024', 'st')
    a('s_cbranch_scc0 LA_noat')
    a('s_mov_b32 exec_hi, 0')
    a(f'buffer_atomic_add_f32 v{vD2+8}, v{vE7}, {SR(SRD_WS)}, s78 offen offset:2048')
    a('s_mov_b32 exec_hi, -1')
    a.label('LA_noat')
    g.stamp('A.atom')
    a(f's_lshl_b32 s79, s{s_hp}, 11')
    a(f's_add_u32 s78, s{s_x}, s79')
    sprinkle(phi_mid(vQ) + phi_end(vQ, vPK), cut(WOL, WN[10]) + (PF if PFS == 'q' else []), 60)
    vm.issue(f'buffer_store_dwordx4 {vr(vPK,4)}, v{vL16}, {SR(SRD_WS)}, s78 offen sc1', 'st')
    vm.issue(f'buffer_store_dwordx4 {vr(vPK+4,4)}, v{vL16}, {SR(SRD_WS)}, s78 offen offset:1024 sc1', 'st')
    g.stamp('A.pq')
    vA0 = 4
    vF1 = 39
    vGd = 16
    vG0 = 224
    OX = 131072
    vKV = 40; vPQ = 104; vD = 136; vBa = 200; vH = 216
    vSa = 28
    U = 100
    E1 = [f's_lshl4_add_u32 s79, s{s_hp}, s{s_rb}', f's_lshl_b32 s79, s79, {FSH}', f's_add_u32 s79, s79, {FA}',
          f's_mov_b64 s[{SRD_FL}:{SRD_FL+1}], s[{SRD_WS}:{SRD_WS+1}]', f's_cmp_eq_u32 s{W}, 0\ns_cselect_b32 s{SRD_FL+2}, {WS_SIZE}, 0',
          f'v_mov_b32 v{vF1}, 1',
          f'v_bfe_u32 v{U}, v0, 2, 3', f'v_bfe_u32 v{U+1}, v0, 2, 2', f'v_bfe_u32 v{U+2}, v0, 4, 1',
          f'v_lshl_add_u32 v{U+1}, v{U+2}, 3, v{U+1}', f'v_lshlrev_b32 v{U+1}, 8, v{U+1}', f'v_and_b32 v{U+2}, 3, v0',
          f'v_lshl_add_u32 v{U+1}, v{U+2}, 3, v{U+1}', f's_lshl_b32 s76, s{W}, 1', f'v_xor_b32 v{U}, s76, v{U}',
          f'v_lshrrev_b32 v{U+3}, 2, v0', f'v_lshlrev_b32 v{U+3}, 8, v{U+3}', f'v_lshl_add_u32 v{U+3}, v{U+2}, 3, v{U+3}',
          f'v_lshl_add_u32 v{vG0}, v{U}, 5, v{U+3}', f'v_xor_b32 v{vG0+1}, 32, v{vG0}', f'v_add_u32 v{vG0+2}, 65536, v{vG0}', f'v_add_u32 v{vG0+3}, 65536, v{vG0+1}',
          f'v_lshl_add_u32 v{U+1}, v{U}, 5, v{U+1}', f'v_lshrrev_b32 v{U+2}, 5, v0',
          f'v_lshl_add_u32 v{vA0}, v{U+2}, 14, v{U+1}', f'v_lshl_add_u32 v{vA0+1}, v{U+2}, 12, v{U+1}', f'v_add_u32 v{vA0+1}, {98304+4096}, v{vA0+1}']
    for wp in range(4):
        E1 += [f'v_mul_u32_u24 v{U+3}, {32768+12288*wp}, v{U+2}', f'v_add_u32 v{vA0+2+wp}, v{U+3}, v{U+1}', f'v_add_u32 v{vA0+2+wp}, {65536+4096*wp}, v{vA0+2+wp}']
    E1 += [f'v_xor_b32 v{vA0+6+i}, 32, v{vA0+i}' for i in range(6)]
    E1 += [f's_mov_b32 s86, s{s_rb}', f's_and_b32 s70, s{S_J}, 7', f's_lshl3_add_u32 s70, s{S_XC}, s70', f's_lshr_b32 s71, s{S_J}, 3',
           f's_and_b32 s76, s{S_XC}, 1', f's_mul_i32 s76, s76, 7', f's_lshr_b32 s87, s{S_J}, 2', f's_add_u32 s87, s87, s76',
           f'v_and_b32 v{U}, 15, v0', f'v_lshrrev_b32 v{U+1}, 4, v0', f'v_lshlrev_b32 v{U+2}, 1, v{U+1}', f'v_xor_b32 v{U+2}, v{U}, v{U+2}',
           f'v_lshlrev_b32 v{U+2}, 4, v{U+2}', f'v_mul_u32_u24 v{U+3}, 3584, v{U+1}', f'v_add_u32 v{vGd}, v{U+3}, v{U+2}',
           f'v_xor_b32 v{U+2}, 128, v{U+2}', f'v_add_u32 v{vGd+1}, v{U+3}, v{U+2}', f'v_add_u32 v{vGd+1}, {4*3584-1024}, v{vGd+1}',
           f'v_add_u32 v{vGd+2}, {2*(4*3584-1024)}, v{vGd}', f'v_add_u32 v{vGd+3}, {2*(4*3584-1024)}, v{vGd+1}',
           f's_and_b32 s76, s{W}, 1', f's_mul_i32 s88, s76, {64*3584}', f's_lshl_b32 s76, s87, 8', f's_add_u32 s88, s88, s76', f's_lshl_b32 s89, s{W}, 14']
    def idle_gu():
        a(f's_cmp_lt_u32 s{S_J}, 28')
        a('s_cbranch_scc1 LE_ni')
        a(f's_and_b32 s88, s{S_J}, 3')
        a(f's_lshl2_add_u32 s88, s88, s{W}')
        a(f's_lshl_b32 s88, s88, 12')
        for i in range(4): a(f'v_mov_b32 v{vGd+i}, v{vL16}')
        a.label('LE_ni')
    E2 = [f'v_and_b32 v{vT}, 31, v0', f'v_min_u32 v{vT}, 16, v{vT}', f'v_lshrrev_b32 v{vT+1}, 5, v0', f'v_mul_u32_u24 v{vT+1}, 272, v{vT+1}',
          f'v_lshl_add_u32 v{vT}, v{vT}, 4, v{vT+1}',
          f's_mul_i32 s72, s{W}, {8*1088}', f's_add_u32 s72, s72, {WS_KV}', f's_add_u32 s73, s72, {3*1088}', f's_add_u32 s76, s72, {6*1088}',
          f's_lshl_b32 s81, s70, 15', f's_lshl_b32 s78, s{W}, 13', f's_add_u32 s81, s81, s78', f's_add_u32 s75, s81, 4096',
          f's_lshl_b32 s82, s{W}, {FSH+6}', f's_add_u32 s82, s82, {FA}', f's_add_u32 s78, s78, {OX}',
          f'v_lshlrev_b32 v{vT+1}, {FSH}, v0', f'v_mov_b32 v{vT+5}, {fbits(LOG2E)}', f'v_add_u32 v{vT+2}, s78, v{vL16}',
          f'v_and_b32 v{vT+3}, 15, v0', f'v_lshrrev_b32 v{vT+4}, 4, v0',
          f'v_and_b32 v{vSa}, 1, v{vT+4}', f'v_lshl_add_u32 v{vSa}, v{vT+3}, 1, v{vSa}', f'v_and_b32 v{vT+6}, 32, v0', f'v_add_lshl_u32 v{vSa}, v{vSa}, v{vT+6}, 2',
          f'v_lshlrev_b32 v{vT+4}, 9, v{vT+4}', f'v_lshl_add_u32 v{vT+3}, v{vT+3}, 4, v{vT+4}', f'v_add_u32 v{vT+3}, {OX}, v{vT+3}']
    for i in range(8):
        E2 += [f'v_lshlrev_b32 v{vBa+2*i}, 16, v{vXres+i}', f'v_and_b32 v{vBa+2*i+1}, 0xffff0000, v{vXres+i}']
    def dma_gu(sg):
        L = []
        for blk in range(4):
            L += [f's_add_u32 m0, s89, {(sg&1)*65536+blk*4096}', f's_add_u32 s83, s88, {(sg*128+blk*16)*3584}']
            for i in range(4):
                L.append(('vm', f'buffer_load_dwordx4 v{vGd+i}, {SR(SRD_WGU)}, s83 offen offset:{i*1024} lds', f'S{sg}{"ab"[blk>>1]}'))
        return L
    def aWO(t, ks): return 128 + (t*16 + ks)*4
    def rd_wo(prs):
        L = []
        for ks in range(16):
            wp, pr = ks >> 2, ks & 3
            if pr not in prs: continue
            for t in range(2):
                if pr < 2: ad, off = vA0, 4096*(8*pr + wp)
                elif pr == 2: ad, off = vA0+2+wp, 0
                else: ad, off = vA0+1, 16384*wp
                for h2 in range(2):
                    L.append(('lg', f'ds_read_b64_tr_b16 {ar(aWO(t,ks)+2*h2,2)}, v{ad+6*t} offset:{off+h2*1024}', f'wo{min(prs)}'))
        return L
    def aGU(rt, ks): return (ks >> 3)*128 + (rt*8 + (ks & 7))*4
    def rd_gu(*X):
        L = []
        for rt in range(4):
            for x in X:
                sg = int(x[0])
                for k4 in ((0, 2) if x[1] == 'a' else (1, 3)):
                    for h2 in range(2):
                        L.append(('lg', f'ds_read_b64_tr_b16 {ar(aGU(rt, sg*4+k4)+2*h2,2)}, v{vG0+2*(sg&1)+(rt>>1)} offset:{(rt&1)*32768+k4*8192+h2*4096}', f'g{x}'))
        return L
    pend = []; freed = set(); rdone = set()
    def spec(t):
        R = []
        for it in t.split(','):
            if not it: continue
            q, S_, G_ = (it.split(':') + ['', ''])[:3]
            R.append((int(q), [S_[i:i+2] for i in range(0, len(S_), 2)], [G_[i:i+2] for i in range(0, len(G_), 2)]))
        return R
    def stage(n, sp, q0, step, maxsg, name, slack=3):
        fx = [[] for _ in range(n)]; start = {x: 0 for x in pend}; gate = {}; order = list(pend)
        for q, S_, G_ in sp:
            if S_: fx[q].append(('wvm',) + tuple('S'+x for x in S_))
            if G_: fx[q].append(('wlg',) + tuple('g'+x for x in G_))
            fx[q] += ['s_barrier'] + g.st(f'{name}.{"".join(S_)}:{"".join(G_)}')
            for x in S_: start[x] = q; order.append(x)
            for x in G_: gate[x] = q
        RSEG = []; del pend[:]
        for x in order:
            if int(x[0]) > maxsg: pend.append(x); continue
            RSEG.append((start[x], gate.get(x, n+slack)-slack, rd_gu(x))); rdone.add(x)
        for x in gate: assert x in rdone, x
        LSEG = []; q = q0
        while SS:
            t = [y for y in SS if cls(y) == 1][0][2]
            if t[0] == 'S' and int(t[1]) >= 2:
                x = str(int(t[1])-2) + t[2]
                if x not in freed:
                    if x not in gate: break
                    q = max(q, gate[x])
            if int(q) >= n: break
            LSEG.append((int(q), min(n, int(q)+2), cutm(SS))); q += step
        freed.update(gate)
        return fx, RSEG, LSEG
    nw = sum(1 for x in WOL if ismem(x))
    FK = int(cfg.get('fk', 10)); RK = int(cfg.get('rk', 8)); N0 = int(cfg.get('n0', 8)); N1 = int(cfg.get('n1', 0))
    sprinkle(E1, cut(WOL, min(FK, nw - RK)))
    if cfg.get('iw'): idle_gu()
    vm.wait('st')
    a('s_barrier')
    vm.issue(f'buffer_store_dword v{vF1}, off, {SR(SRD_FL)}, s79 sc1', 'flag')
    g.stamp('E.flag')
    if TL.get('fl'):
        a(f's_mov_b32 s82, s87')
        a(f's_lshl2_add_u32 s87, s{S_J}, s{W}')
        g.emits(touch('fl'))
        a(f's_mov_b32 s87, s82')
    nw = sum(1 for x in WOL if ismem(x))
    sprinkle(E2, cut(WOL, nw - RK))
    vm.wait('wo0')
    a('s_barrier')
    g.stamp('E.wo0')
    PL = ('vm', f'buffer_load_dword v{vD}, v{vT+1}, {SR(SRD_WS)}, s82 offen sc1', 'pl')
    NPL = int(cfg.get('np', 0))
    sprinkle(rd_wo((0, 1)), WOL + ([] if NPL else [PL]))
    SS = dma_gu(0) + dma_gu(1) + dma_gu(2) + dma_gu(3)
    lg.wait_all()
    a('s_barrier')
    if NPL: g.emits(cut(SS, NPL) + [PL])
    g.emits(cut(SS, N0 - NPL))
    vm.wait('pl')
    g.stamp('E.wo')
    def ldkv():
        L = []
        for h in range(8):
            so = (72, 73, 76)[h//3]
            for q in range(2):
                L.append(('vm', f'buffer_load_dwordx4 {vr(vKV+h*8+q*4,4)}, v{vT}, {SR(SRD_WS)}, s{so} offen offset:{(h%3)*1088+q*544} sc1', f'kv{h}'))
            L.append(('vm', f'buffer_load_dwordx4 {vr(vPQ+h*4,4)}, v{vL16}, {SR(SRD_WS)}, s{81 if h<4 else 75} offen offset:{(h&3)*1024} sc1', f'kv{h}'))
        return L
    a(f'v_cmp_gt_u32 vcc, 1, v{vD}')
    a('s_cbranch_vccnz LX_early')
    SN1 = cut(SS, N1)
    def ool_early():
        a.label('LX_early')
        vm.q = []; lg.q = []
        a('s_barrier')
        g.emits(rd_wo((2, 3)))
        poll(g, 'LB_poll', vT+1, vD, 1, 82, '1')
        g.emits(ldkv())
        g.emits(SN1)
        a('s_branch LB_join')
    OOL.append(ool_early)
    KV = ldkv()
    g.emits(cut(KV, int(cfg.get('kh', 6))))
    a('s_barrier')
    sprinkle(rd_wo((2, 3)), KV + SN1)
    a.label('LB_join')
    g.stamp('B.sync')
    a(f's_lshl2_add_u32 s72, s71, s{W}')
    a(f's_lshl_b32 s73, s70, 15')
    a(f's_lshl_b32 s74, s72, 10')
    a(f's_add_u32 s73, s73, s74')
    a(f's_add_u32 s73, s73, {WS_H}')
    a(f's_add_u32 s75, s73, 16384')
    a(f's_lshl4_add_u32 s74, s70, s72')
    a(f's_lshl_b32 s74, s74, 8')
    a(f's_add_u32 s74, s74, {WS_STATS}')
    lg.wait_all()
    R0A = N0 >= 8 and not cfg.get('nr0')
    if R0A: vm.wait('S0a')
    a('s_barrier')
    g.stamp('B.rd')
    if R0A: g.emits(rd_gu('0a')); rdone.add('0a'); freed.add('0a')
    def Dreg(h): return vD + (h % 4)*16
    def cvtkv(h):
        vm.wait(f'kv{h}')
        b = vKV + h*8
        for i in range(4): a(f'v_cvt_pk_bf16_f32 v{b+i}, v{b+2*i}, v{b+2*i+1}')
    def mmo(h): a(f'v_mfma_f32_32x32x16_bf16 {vr(Dreg(h),16)}, {vr(vKV+h*8,4)}, {vr(vPQ+h*4,4)}, 0')
    def den(h):
        d = Dreg(h)
        a(f'v_fma_f32 v{d+8}, v{d+8}, v{vT+5}, s{sE}')
        a(f'v_rcp_f32 v{d+8}, v{d+8}')
    assert N0 + N1 <= 16
    S1 = SS
    S1N = [int(x) for x in cfg.get('s1n', '2,2,2,2,2,2,2,1,1').split(',')]
    assert N0 + N1 + sum(S1N) <= 32
    g.emits(cut(S1, S1N[8]))
    cvtkv(0); cvtkv(1); mmo(0); cvtkv(2); mmo(1); den(0)
    g.stamp('B.kv')
    for h in range(8):
        d = Dreg(h)
        for i in range(4): a(f'v_pk_mul_f32 {v2(d+2*i)}, {v2(d+2*i)}, {v2(d+8)} op_sel_hi:[1,0]')
        if h + 2 < 8: mmo(h+2)
        g.emits(cut(S1, (S1N[h]+1)//2))
        for i in range(4): a(f'v_cvt_pk_bf16_f32 v{d+12+i}, v{d+2*i}, v{d+2*i+1}')
        if h + 1 < 8: den(h+1)
        lg.issue(f'ds_write_b128 v{vT+2}, {vr(d+12,4)} offset:{h*1024}', 'ow')
        g.emits(cut(S1, S1N[h]//2))
        if h + 3 < 8: cvtkv(h+3)
    lg.wait_all()
    BO = spec('0:' + cfg.get('bo', '0b').strip('-'))[0][1]
    if BO: vm.wait(*['S'+x for x in BO])
    pend += BO
    a('s_barrier')
    g.stamp('B.o')
    vO = 40
    def rdo(i): return ('lg', f'ds_read_b128 {vr(vO+i*4,4)}, v{vT+3} offset:{(i&15)*2048+(i>>4)*256}', f'o{i}')
    for i in range(12): g.emit(rdo(i))
    vS = 20
    def epiB(ch):
        m, t = ch >> 1, ch & 1
        b = vBa + 4*ch
        L = [f'v_cvt_pk_bf16_f32 v{vH+2*ch+i}, v{b+2*i}, v{b+2*i+1}' for i in range(2)]
        if t: L.append(('vm', f'buffer_store_dwordx4 {vr(vH+4*m,4)}, v{vL16}, {SR(SRD_WS)}, s{73+2*m} offen sc1', 'st'))
        for r in range(4):
            if t == 0 and r == 0:
                L += [f'v_add_f32 v{vS+2*m}, v{b}, v{b+1}', f'v_mul_f32 v{vS+2*m+1}, v{b}, v{b}']
            else:
                if not (t == 0 and r == 1): L.append(f'v_add_f32 v{vS+2*m}, v{vS+2*m}, v{b+r}')
                L.append(f'v_fmac_f32 v{vS+2*m+1}, v{b+r}, v{b+r}')
        return L
    assert N0 + N1 + sum(S1N) + int(cfg.get('nb0', 2)) <= (40 if R0A else 32)
    g.emits(cut(SS, int(cfg.get('nb0', 2))))
    lg.wait('o1')
    bfx, RSEG, LSEG = stage(64, spec(cfg.get('bb', '40:1a:0b')), float(cfg.get('bq', 2)), float(cfg.get('s1p', 4.5)), 1, 'X')
    mf = []
    for q in range(64):
        m, t, ks = q >> 5, (q >> 4) & 1, q & 15
        acc = vr(vBa + (2*m+t)*4, 4)
        fx = []
        q1 = q + 1
        if q1 < 64 and (q1 >> 4) & 1 == 0 and q1 % 2 == 0: fx.append(('wlg', f'o{(q1>>5)*16+(q1&15)+1}'))
        fx += bfx[q]
        if 12+q < 32: fx.append(rdo(12+q))
        mf.append((f'v_mfma_f32_16x16x32_bf16 {acc}, {ar(aWO(t,ks),4)}, {vr(vO+(m*16+ks)*4,4)}, {acc}', fx))
    weave(g, mf, [[(19, 34, epiB(0)), (35, 50, epiB(1)), (51, 64, epiB(2))], LSEG, RSEG], 8, 'B')
    print('S left after B', sum(1 for x in SS if cls(x) == 1), file=sys.stderr)
    g.emits(epiB(3))
    a(f'v_permlane32_swap_b32 v{vS}, v{vS+2}')
    a(f'v_permlane32_swap_b32 v{vS+1}, v{vS+3}')
    a(f'v_add_f32 v{vS}, v{vS}, v{vS+2}')
    a(f'v_add_f32 v{vS+1}, v{vS+1}, v{vS+3}')
    a(f'v_permlane16_swap_b32 v{vS}, v{vS+1}')
    a(f'v_add_f32 v{vS}, v{vS}, v{vS+1}')
    vm.issue(f'buffer_store_dword v{vS}, v{vSa}, {SR(SRD_WS)}, s74 offen sc1', 'st')
    g.stamp('B.st')
    vHf = 40; vCa = 104; vCsum = 120; vK4 = 136; vGt = 144; vOut = 156
    vDr = 4; vDd = 35; vHa = 20; vKa = 22; vPa = 23; vPl = 24; vOa = 25; vWa = 26; vRa = (27, 28, 2)
    vSt = 160
    CONST = 147456
    vCk, vCv, vH0 = 3, 29, 34
    sWD = 47
    def csum(sgs):
        mf = []
        for rt in range(4):
            for sg in sgs:
                for k4 in range(4):
                    ks = sg*4 + k4
                    acc = vr(vCsum+rt*4, 4)
                    mf.append((f'v_mfma_f32_16x16x32_bf16 {acc}, {ar(aGU(rt,ks),4)}, {vr(vOnes,4)}, {"0" if ks==0 else acc}', []))
        return mf
    SU = [f's_lshl_b32 s73, s86, 17', f's_add_u32 s73, s73, s85', f's_add_u32 s73, s73, {WS_H}',
          f's_lshl_b32 s74, s86, 14', f's_add_u32 s74, s74, s85', f's_add_u32 s74, s74, {WS_STATS}',
          f's_and_b32 s70, s{S_J}, 1', f's_lshl1_add_u32 s70, s{S_XC}, s70', f's_lshr_b32 s71, s{S_J}, 2', f's_bfe_u32 s72, s{S_J}, 0x10001',
          f's_mul_i32 s75, s86, {8*56}', f's_lshl2_add_u32 s76, s87, s{W}', f's_add_u32 s75, s75, s76', f's_lshl_b32 s75, s75, 10', f's_add_u32 s75, s75, {WS_ACT}',
          f's_lshl4_add_u32 s77, s86, s87', f's_lshl_b32 s77, s77, {FSH}', f's_add_u32 s77, s77, {FC}',
          f's_mov_b64 s[{SRD_ACT}:{SRD_ACT+1}], s[{SRD_WS}:{SRD_WS+1}]', f's_cmp_ge_u32 s{S_J}, 28\ns_cselect_b32 s{SRD_ACT+2}, 0, {WS_SIZE}']
    SU2 = [f's_lshl_b32 s79, s70, {FSH+4}', f's_add_u32 s79, s79, {FC}', f's_lshl_b32 s80, s72, 15', f's_add_u32 s80, s80, s79', f's_add_u32 s81, s80, {3*32768}', f's_add_u32 s80, s80, 32768',
           f's_and_b32 s{SRD_FL+2}, s{SRD_FL+2}, s{SRD_ACT+2}',
           f's_lshl3_add_u32 s87, s70, s72', f's_mul_i32 s82, s87, 56', f's_mul_i32 s76, s{W}, 14', f's_add_u32 s82, s82, s76',
           f's_lshl_b32 s82, s82, 10', f's_add_u32 s82, s82, {WS_ACT}',
           f's_lshl_b32 s78, s87, 14', f's_lshr_b32 s86, s{W}, 1', f's_lshl1_add_u32 s86, s71, s86', f's_lshl_b32 s86, s86, 10',
           f's_add_u32 s86, s86, s78', f's_and_b32 s87, s{W}, 1', f's_lshl3_add_u32 s86, s87, s86', f's_add_u32 s86, s86, {WS_H}',
           f's_lshl_b32 s87, s71, 7', f's_add_u32 s78, s78, s87', f's_mul_i32 s{sWD}, s{W}, {448*1024}', f's_add_u32 s{sWD}, s{sWD}, s87',
           f's_lshl_b32 s87, s{W}, 5', f's_add_u32 s78, s78, s87']
    VU = [f'v_lshrrev_b32 v{vT}, 3, v0', f'v_and_b32 v{vT+1}, 7, v0', f'v_and_b32 v{vT+2}, 6, v{vT}', f'v_xor_b32 v{vT+1}, v{vT+1}, v{vT+2}',
          f'v_lshlrev_b32 v{vT+1}, 4, v{vT+1}', f'v_lshl_add_u32 v{vDd}, v{vT}, 10, v{vT+1}']
    VU += [f'v_add_u32 v{vDd+i}, {i*(8192-1024)}, v{vDd}' for i in range(1, 4)]
    VU += [f'v_mov_b32 v{vHa}, v{vL16}', f'v_add_u32 v{vHa+1}, 65536, v{vL16}', f'v_and_b32 v{vT}, 15, v0',
           f'v_lshlrev_b32 v{vKa}, 4, v{vT}', f'v_add_u32 v{vKa}, {CONST}, v{vKa}',
           f'v_lshrrev_b32 v{vT+1}, 4, v0', f'v_lshlrev_b32 v{vT+1}, 3, v{vT+1}', f'v_lshl_add_u32 v{vOa}, v{vT}, 10, v{vT+1}',
           f'v_add_u32 v{vH0}, 131072, v{vL16}',
           f'v_and_b32 v{vT+1}, 60, v0', f'v_lshl_add_u32 v{vCk}, v0, 6, v{vT+1}', f'v_add_u32 v{vCk}, s85, v{vCk}', f'v_add_u32 v{vCk}, 131072, v{vCk}',
           f'v_add_u32 v{vWa}, s85, v{vL16}']
    VU += [f'v_xor_b32 v{vRa[tau-1]}, {4096*tau}, v{vWa}' for tau in range(1, 4)]
    VP = [f'v_min_u32 v{vT}, 13, v0', f'v_add_u32 v{vT}, s76, v{vT}', f'v_lshrrev_b32 v{vT}, 2, v{vT}', f'v_lshlrev_b32 v{vPa}, {FSH}, v{vT}']
    def haddr(s): return 16384*s if s else 131072
    def dma_h(s, so=83):
        L = [f's_add_u32 m0, s85, {haddr(s)}', f's_add_u32 s{so}, s73, {16384*s}']
        for i in range(4):
            L.append(('vm', f'buffer_load_dwordx4 v{vL16}, {SR(SRD_WS)}, s{so} offen offset:{i*1024} sc1 lds', f'h{s}'))
        return L
    STL = [('vm', f'buffer_load_dwordx4 {vr(vSt+4*i,4)}, v{vL16}, {SR(SRD_WS)}, s74 offen offset:{i*1024} sc1', 'stats') for i in range(4)]
    VD = [f'v_lshrrev_b32 v{vT}, 2, v0', f'v_bfe_u32 v{vT+1}, v0, 3, 2', f'v_xor_b32 v{vT+1}, s{W}, v{vT+1}', f'v_lshlrev_b32 v{vT}, 7, v{vT}',
          f'v_lshl_add_u32 v{vT}, v{vT+1}, 5, v{vT}', f'v_and_b32 v{vT+1}, 3, v0', f'v_lshl_add_u32 v{vT}, v{vT+1}, 3, v{vT}', f'v_add_u32 v{vT}, s85, v{vT}']
    for tau in range(4):
        VD += [f'v_xor_b32 v{vDr+3*tau}, {32*tau}, v{vT}', f'v_add_u32 v{vDr+3*tau+1}, 65536, v{vDr+3*tau}', f'v_add_u32 v{vDr+3*tau+2}, 131072, v{vDr+3*tau}']
    HP = int(cfg.get('hp', 16)); SP = int(cfg.get('sp', 8)); H1P = int(cfg.get('h1p', 0)); NL = int(cfg.get('nl', 25)); PR = 32/NL + 1e-6
    nz = sum(1 for x in SS if cls(x) == 1)
    assert HP % 4 == 0 and H1P % 4 == 0 and H1P <= SP <= HP < nz and PR >= 1
    Z1 = cut(SS, nz - HP); Z2 = cut(SS, HP - SP); Z3 = cut(SS, SP - H1P)
    SS[:0] = Z1 + g.st('P.hi') + dma_h(0) + Z2 + STL + Z3 + dma_h(1)
    assert nz - HP + 4 <= NL <= nz - H1P + 8
    PSP = spec(cfg.get('pb', '0:1b:1a,14:2a:1b,26:2b:'))
    assert PSP[0][0] <= (nz - HP)*PR
    def rdh(s, ks): return ('lg', f'ds_read_b128 {vr(vHf+ks*4,4)}, v{vHa+(s>>2) if s else vH0} offset:{(s&3)*16384+ks*1024}', f'f{ks}')
    def hchk1(s): return [('wvm', f'h{s}'), ('lg', f'ds_read_b32 v{vCv}, v{vCk} offset:{(s&3)*16384}', 'ck')]
    MF = csum((0,)) + csum((1,))
    fx, RSEG, LSEG = stage(32, PSP, 0, PR, 2, 'P', 0)
    assert not pend and len(LSEG) == NL and {'1a', '1b'} <= freed
    q = 0
    for st_, en_, R in RSEG:
        q = max(q, st_); tg = R[0][2]
        while R: fx[q] += cut(R, 4); q += 1
        assert q <= en_, (tg, q, en_)
        assert q <= 15 or tg[1] == '2', (tg, q)
    fx[15].insert(0, ('wlg', 'g1a', 'g1b'))
    for st_, en_, R in LSEG: fx[st_] += R
    fx[int(cfg.get('hc', 30))] += hchk1(0)
    lg.wait('g0a', 'g0b')
    weave(g, [(m[0], sorted(f, key=cls)) for m, f in zip(MF, fx)], [[(0, 1, SU[:6]), (0, 10, SU[6:]), (8, 28, VU + SU2 + VP + VD)]], 56, 'P1')
    SREST = list(SS)
    def slot(sg): return haddr(sg-1) if sg else 0
    def dma_wd(p, sg):
        L = [f's_add_u32 m0, s85, {slot(sg)}', f's_add_u32 s83, s{sWD}, {p*32768}']
        for i in range(4):
            L.append(('vm', f'buffer_load_dwordx4 v{vDd+i}, {SR(SRD_WD)}, s83 offen offset:{i*1024} lds', f'wd{p}'))
        return L
    AW = {6: 64, 7: 80, 8: 192, 9: 208, 10: 96, 11: 112, 12: 224, 13: 240}
    def wdreg(p, tau):
        if p < 6: return 'v', 160 + p*16 + tau*4
        return 'a', AW[p] + tau*4
    def rd_wd(p, sg):
        L = []
        ad = slot(sg)
        for tau in (1, 2, 3, 0):
            f, r = wdreg(p, tau)
            for h2 in range(2):
                L.append(('lg', f'ds_read_b64_tr_b16 {vr(r+2*h2,2,f)}, v{vDr+3*tau+(ad>>16)} offset:{(ad&65535)+h2*2048}', f'rw{p}'))
        return L
    FINAL = {6: 4, 7: 2, 8: 5, 9: 0, 10: 6, 11: 3, 12: 7, 13: 1}
    def actreg(m, i):
        if m == 2: return vr(40 + 4*i, 4)
        b = 32*(m & 1 if m < 2 else 0)
        return ar(b + 4*i if i < 8 else 128 + b + 4*(i-8), 4)
    def ld_act(m):
        L = []
        for i in range(14):
            if i % 4 == 0: L.append(f's_add_u32 s70, s82, {(2*m*56+i)*1024}')
            L.append(('vm', f'buffer_load_dwordx4 {actreg(m,i)}, v{vL16}, {SR(SRD_WS)}, s70 offen offset:{(i&3)*1024} sc1', f'a{m}_{i}'))
        return L
    NA0 = int(cfg.get('na0', 12)); NW7 = int(cfg.get('nw7', 2))
    a(f's_cmp_ge_u32 s{S_J}, 28')
    a('s_cbranch_scc1 LC_idle')
    def ool_idle():
        a.label('LC_idle')
        vm.q = []; lg.q = []
        if cfg.get('iw'):
            g.emits([x for x in SREST if isinstance(x, str) or (not callable(x) and x[2][0] == 'S')])
            a(f's_and_b32 s70, s{S_J}, 3')
            a(f's_lshl_b32 s70, s70, 13')
            a(f's_mul_i32 s83, s{W}, {448*1024}')
            a(f's_add_u32 s70, s70, s83')
            a(f'v_lshlrev_b32 v{vTa}, 7, v0')
            for t in range(7):
                a(f's_add_u32 s83, s70, {(224+32*t)*1024}')
                a(f'buffer_load_dword v{vTa+1}, v{vTa}, {SR(SRD_WD)}, s83 offen')
        vm.wait_all(); lg.wait_all()
        a('s_barrier')
        for p in range(6): g.emits(dma_wd(p, p))
        vm.wait_all()
        for p in range(6): g.emits(rd_wd(p, p))
        lg.wait_all()
        for p in range(6, 14): g.emits(dma_wd(p, FINAL[p]))
        for i in range(int(cfg.get('isl', 0))): a('s_sleep 127')
        poll(g, 'LI_poll', vPa, vPl, 1, 79, '1')
        g.emits(cut(ld_act(0), NA0))
        for p in range(6, 6+NW7): g.emits(rd_wd(p, FINAL[p]))
        vm.wait_all(); lg.wait_all()
        a('s_branch LD_start')
    OOL.append(ool_idle)
    g.stamp('P.cs')
    def hchk2(s):
        def f():
            a.label(f'LH_{s}')
            a(f'v_cmp_eq_u32 vcc, {SEN}, v{vCv}')
            a(f's_cbranch_vccnz LX_h{s}')
        def o():
            a.label(f'LX_h{s}')
            a('s_mov_b32 s44, m0')
            for x in dma_h(s, 45): a(x if isinstance(x, str) else x[1])
            a('s_mov_b32 m0, s44')
            a('s_waitcnt vmcnt(0)')
            a(hchk1(s)[1][1])
            a('s_waitcnt lgkmcnt(0)')
            guard(g, 1 if s == 0 else 3)
            a(f's_branch LH_{s}')
        OOL.append(o)
        L = [('wlg', 'ck'), f]
        if s == 0: L.append(f'v_subrev_u32 v{vCk}, 131072, v{vCk}')
        if s == 3: L.append(f'v_add_u32 v{vCk}, 65536, v{vCk}')
        return L
    def schk():
        a.label('LS_chk')
        for i in range(4):
            a(f'v_cmp_eq_u32 vcc, {SEN}, v{vSt+4*i+i}')
            a(f's_cbranch_vccnz LX_st')
    def ool_st():
        a.label('LX_st')
        for x in STL: a(x[1])
        a('s_waitcnt vmcnt(0)')
        guard(g, 2)
        a('s_branch LS_chk')
    OOL.append(ool_st)
    c0 = -2*0.7978845608028654*LOG2E
    def consts():
        L = [('wvm', 'stats'), schk] + g.st('C.st')
        for st in (8, 4):
            for i in range(st): L.append(f'v_add_f32 v{vSt+i}, v{vSt+i}, v{vSt+i+st}')
        x, y = vSt, vSt+1
        o = vSt+4
        L += [f'v_lshrrev_b32 v{vSt+8}, 5, v0', f'v_and_b32 v{vSt+9}, 15, v0',
              f'v_permlane32_swap_b32 v{vSt}, v{vSt+2}', f'v_permlane32_swap_b32 v{vSt+1}, v{vSt+3}',
              f'v_add_f32 v{x}, v{x}, v{vSt+2}', f'v_add_f32 v{y}, v{y}, v{vSt+3}',
              f'v_mov_b32 v{vSt+2}, v{x}', f'v_mov_b32 v{vSt+3}, v{y}',
              f'v_lshl_add_u32 v{vSt+8}, v{vSt+9}, 1, v{vSt+8}', f's_lshl_b32 s76, s{W}, 9', f's_add_u32 s76, s76, {CONST}',
              f'v_permlane16_swap_b32 v{x}, v{vSt+2}', f'v_permlane16_swap_b32 v{y}, v{vSt+3}',
              f'v_add_f32 v{x}, v{x}, v{vSt+2}', f'v_add_f32 v{y}, v{y}, v{vSt+3}',
              f'v_mul_f32 v{o}, {fbits(-1/512)}, v{x}',
              f'v_mul_f32 v{y}, {fbits(1/512)}, v{y}',
              f'v_fma_f32 v{y}, -v{o}, v{o}, v{y}',
              f'v_max_f32 v{y}, 0, v{y}',
              f'v_add_f32 v{o+3}, {fbits(1e-5)}, v{y}',
              f'v_rsq_f32 v{x}, v{o+3}',
              f'v_lshl_add_u32 v{vSt+8}, v{vSt+8}, 4, s76',
              f'v_mul_f32 v{y}, v{x}, v{x}',
              f'v_mul_f32 v{o+1}, {fbits(c0)}, v{x}',
              f'v_mul_f32 v{y}, {fbits(0.044715)}, v{y}',
              f'v_mul_f32 v{o+2}, v{o+1}, v{y}',
              ('lg', f'ds_write_b128 v{vSt+8}, {vr(o,4)}', 'cw')]
        return L
    def gelu(pair, s):
        K = vK4 + 4*(s & 1)
        nm, k0, k1, vv = K, K+1, K+2, K+3
        ag = vCa + pair*8; au = ag + 4; cg = vCsum + pair*8; cu = cg + 4
        t, u, e = vGt, vGt+4, vGt+8
        L = []
        if pair == 0: L.append(('wlg', f'k{s}'))
        R = range(4)
        L += [f'v_fma_f32 v{t+i}, v{nm}, v{cg+i}, v{ag+i}' for i in R]
        L += [f'v_fma_f32 v{u+i}, v{nm}, v{cu+i}, v{au+i}' for i in R]
        n1 = len(L)
        L += [f'v_mul_f32 v{e+i}, v{t+i}, v{t+i}' for i in R]
        L += [f'v_fma_f32 v{e+i}, v{e+i}, v{k1}, v{k0}' for i in R]
        L += [f'v_mul_f32 v{e+i}, v{e+i}, v{t+i}' for i in R]
        L += [f'v_exp_f32 v{e+i}, v{e+i}' for i in R]
        L += [f'v_mul_f32 v{t+i}, v{t+i}, v{u+i}' for i in R]
        L += [f'v_fma_f32 v{e+i}, v{e+i}, v{vv}, v{vv}' for i in R]
        L += [f'v_rcp_f32 v{e+i}, v{e+i}' for i in R]
        L += [f'v_mul_f32 v{t+i}, v{t+i}, v{e+i}' for i in R]
        L += [f'v_cvt_pk_bf16_f32 v{vOut+2*pair+i}, v{t+2*i}, v{t+2*i+1}' for i in range(2)]
        if pair == 1:
            L.insert(n1, f's_add_u32 s76, s75, {s*56*1024}')
            L.append(('vm', f'buffer_store_dwordx4 {vr(vOut,4)}, v{vL16}, {SR(SRD_ACT)}, s76 offen sc1', f'act{s}'))
        return L
    def flagW(): return [('vm', f'buffer_store_dword v{vF1}, off, {SR(SRD_FL)}, s77 sc1', 'flag'), 's_add_u32 s77, s77, 32768']
    def flagC(n): return g.st(f'F.{n}a') + [('wvm', f'act{n-1}'), 's_barrier'] + g.st(f'F.{n}b') + flagW()
    PS = {'p1': 79, 'p2': 80, 'p3': 81}
    def pload(tag): return [('vm', f'buffer_load_dword v{vPl}, v{vPa}, {SR(SRD_WS)}, s{PS[tag]} offen sc1', tag)]
    def pcheck(tag, need=1):
        def f():
            a.label(f'LP_{tag}')
            a(f'v_cmp_gt_u32 vcc, {need}, v{vPl}')
            a(f's_cbranch_vccnz LX_{tag}')
        def o():
            a.label(f'LX_{tag}')
            a(f'buffer_load_dword v{vPl}, v{vPa}, {SR(SRD_WS)}, s{PS[tag]} offen sc1')
            a('s_waitcnt vmcnt(0)')
            guard(g, 5 if tag == 'p3' else 4)
            a(f's_branch LP_{tag}')
        OOL.append(o)
        return g.st(f'Q.{tag}a') + [('wvm', tag)] + g.st(f'Q.{tag}b') + [f] + g.st(f'Q.{tag}c')
    lg.wait_all()
    g.emits(hchk2(0))
    a('s_barrier')
    g.stamp('C.h0')
    for ks in range(8): g.emit(rdh(0, ks))
    g.emits(cutm(SS))
    lg.wait('f3')
    mf = []; GS = []; DS = []; RS = []; XS = []
    X1, X2, X3, CQ = int(cfg.get('x1', 55)), int(cfg.get('x2', 72)), int(cfg.get('x3', 86)), int(cfg.get('cq', 30))
    BQ = [X3, int(cfg.get('bq1', 30))] + [13]*6
    LAG = [int(x) for x in cfg.get('lag', '16,10,5,0,0,0,0,0').split(',')]
    base = lambda s: 64*s + 32 if s else 0
    def cm(rt, ks): return f'v_mfma_f32_16x16x32_bf16 {vr(vCa+rt*4,4)}, {ar(aGU(rt,ks),4)}, {vr(vHf+ks*4,4)}, {"0" if ks==0 else vr(vCa+rt*4,4)}'
    def kread(s): return ('lg', f'ds_read_b128 {vr(vK4+4*(s&1),4)}, v{vKa} offset:{s*256}', f'k{s}')
    CS3 = csum((3,))
    M0 = [cm(rt, ks) for rt in range(4) for ks in range(12)] + [m[0] for m in csum((2,))]
    for hf in range(2):
        for rt in range(4): M0 += [cm(rt, 12+hf), cm(rt, 14+hf), CS3[4*rt+hf][0], CS3[4*rt+2+hf][0]]
    fx = [[] for _ in M0]
    fx[3].append(('wlg', 'f7')); fx[7].append(('wlg', 'f11'))
    fx[X1] += [('wvm', 'S3a'), ('wlg', 'f15'), 's_barrier'] + g.st('C.x1')
    fx[X2] += [('wvm', 'S3b'), ('wlg', 'cw'), 's_barrier'] + g.st('C.x2')
    for hf in range(2):
        for rt in (0, 2): fx[63+16*hf+4*rt].append(('wlg', f'r{hf}{rt+1}'))
    fx[81].append(kread(0))
    fx[X3-int(cfg.get('x3c', 6))] += hchk1(1)
    fx[X3-1] += [('wlg', 'r13')] + hchk2(1)
    fx[X3] += ['s_barrier'] + g.st('C.x3')
    fx[94] += [rdh(1, 13)]; fx[95] += [('wlg', 'f3')] + g.st('C.it0') + [rdh(1, 15)]
    assert X1 < 62 and 64 <= X2 < 78 and X2 + 6 <= X3 - 1 and X3 <= 90
    mf += [(m, sorted(f, key=cls)) for m, f in zip(M0, fx)]
    R3 = [[(x[0], x[1], f'r{hf}{i>>2}') for i, x in enumerate(rd_gu('3'+'ab'[hf]))] for hf in range(2)]
    RS += [(0, 4, [rdh(0, k_) for k_ in range(8, 16)]), (X1, min(X1+4, 62), R3[0][:8]), (X1, X1+8, R3[0][8:]), (X2, min(X2+3, 78), R3[1][:8]), (X2, X2+6, R3[1][8:]),
           (X3, X3+2, [rdh(1, k_) for k_ in range(4)]), (X3, 94, [rdh(1, k_) for k_ in (4, 5, 6, 7, 8, 9, 10, 11, 12, 14)])]
    GS.append((CQ, X2-2, consts()))
    for s in range(8):
        bq = BQ[s]; B = base(s); E = base(s+1)
        for q in range(64 if s else 0):
            rt, ks = q >> 4, q & 15
            fx = []
            if q in (3, 7, 11): fx.append(('wlg', f'f{q+4}'))
            if q == 63 and s < 7: fx.append(('wlg', 'f3'))
            if q == bq-9 and s < 7: fx += hchk1(s+1)
            if q == bq-1:
                if s >= 5: fx.append(('wvm', f'act{s-2}'))
                if s < 7: fx += hchk2(s+1)
            if q == bq: fx.append('s_barrier')
            if q == 14: fx.append(kread(s))
            if q == 63: fx += g.st(f'C.it{s}')
            if rt == 3 and s < 7: fx.append(rdh(s+1, ks))
            mf.append((cm(rt, ks), fx))
        g0 = gelu(0, s); g1 = gelu(1, s)
        if s: GS.append((B+34, E-1, g0[:9]))
        else: GS += [(86, 95, g0[:5]), (90, 100, g0[5:9])]
        GS.append((B+34, E+8+LAG[s] if s < 7 else E, g0[9:]))
        GS.append((E+2, E+31, g1[:8])); GS.append((E+2, E+40+LAG[s], g1[8:]))
        if s >= 5: XS.append((B+bq, B+bq+2, flagW()))
        if s == 6: XS.append((B+40, B+46, pload('p1')))
    PCC = float(cfg.get('pcc', 4)); LAT = int(cfg.get('lat', 56)); RWN = int(cfg.get('rwn', 14))
    SLOT = dict(FINAL); SLOT.update({0: 0, 1: 1, 2: 2, 3: 0, 4: 3, 5: 1})
    t = 2.0; occ = {}; done = {}; rl = 100
    DS += paced(SS, t, float(cfg.get('p0', 4.5))); t = DS[-1][0] + PCC
    msg = []
    for jb in cfg.get('jobs', 'h2,h3,w0,w1,h4,w2,w3,h5,w4,w5,w6,h6,w7,w8,h7,w9,w10,w11,w12,w13').split(','):
        n = int(jb[1:]); t0 = t
        if jb[0] == 'h':
            if n >= 4: t = max(t, X3)
            L = dma_h(n)
            assert t + 3*PCC + 40 <= base(n-1) + BQ[n-1] - 9, (jb, t)
        else:
            sg = SLOT[n]; L = dma_wd(n, sg)
            if sg in occ:
                p = occ[sg]; r0 = int(max(done[p] + LAT, rl, t - RWN - 2 - int(cfg.get('rwe', 16))))
                RS.append((r0, max(r0 + RWN, int(t) - 2), [('wvm', f'wd{p}')] + rd_wd(p, sg))); rl = RS[-1][1]
                t = max(t, rl + 2); L = [('wlg', f'rw{p}')] + L
            elif sg == 1: t = max(t, X1)
            elif sg: t = max(t, base(sg-1) + BQ[sg-1])
            occ[sg] = n
        DS += paced(L, t, PCC)
        msg.append(f'{jb}@{(t-32)/64:.2f}' + (f'(+{t-t0:.0f})' if t > t0 else ''))
        t += 4*PCC; done[n if jb[0] == 'w' else jb] = t - PCC
    print(' '.join(msg), file=sys.stderr)
    B = 480
    XS.append((B+14, B+17, pcheck('p1')))
    LA = ld_act(0)
    for i in range(NA0):
        q = B + 16 + 48*i//NA0
        XS.append((q, q+2, cut(LA, 1)))
    RW = []
    for p in range(6, 6+NW7): RW += rd_wd(p, FINAL[p])
    RS.append((B+48, B+64, [('wvm', f'wd{5+NW7}')] + RW))
    DA = ((104, 108, 120, 124), (112, 116, 128, 132))
    vRd = 144; vHr = 96; vU4 = 136
    def red1(m):
        return [('lg', f'ds_write_b128 v{vWa}, {vr(DA[m&1][tau],4)} offset:{16384*m+1024*tau}', 'dw') for tau in range(1, 4)]
    def red2(m):
        b = DA[m&1][0]
        L = [('wlg', 'dw'), 's_barrier']
        L += [('lg', f'ds_read_b128 {vr(vRd+4*(tau-1),4)}, v{vRa[tau-1]} offset:{16384*m+1024*tau}', 'dr') for tau in range(1, 4)]
        L += [('wvm', f'hres{m}'), f's_add_u32 s84, s78, {m*32768}']
        for i in range(2):
            L += [f'v_lshlrev_b32 v{vU4+2*i}, 16, v{vHr+2*m+i}', f'v_and_b32 v{vU4+2*i+1}, 0xffff0000, v{vHr+2*m+i}']
        L += [f'v_add_f32 v{vU4+i}, v{vU4+i}, v{b+i}' for i in range(4)]
        return L
    OB = cfg.get('ob', '')
    def red3(m):
        L = [('wlg', 'dr')]
        L += [f'v_add_f32 v{vRd+i}, v{vRd+i}, v{vRd+4+i}' for i in range(4)]
        L += [f'v_add_f32 v{vU4+i}, v{vU4+i}, v{vRd+8+i}' for i in range(4)]
        L += [f'v_add_f32 v{vU4+i}, v{vU4+i}, v{vRd+i}' for i in range(4)]
        L += [f'v_cvt_pk_bf16_f32 v{vHr+2*m+i}, v{vU4+2*i}, v{vU4+2*i+1}' for i in range(2)]
        L += [('vm', f'buffer_store_dwordx2 {vr(vHr+2*m,2)}, v{vOa}, {SR(SRD_OUT)}, s84 offen {OB}', 'out')]
        return L
    def dlabel():
        a.label('LD_start')
    tailseg = [GS.pop(), GS.pop()][::-1]
    weave(g, mf, [GS, DS, RS, XS], 8, 'C')
    dlabel()
    vm.wait('a0_0')
    mf = []; GS = []; RS = []; XS = []; ES = []
    I3 = int(cfg.get('i3', 10))
    for m in range(4):
        B = 56*m
        n1 = I3 if m == 3 else 14
        order = [(tau, i) for i in range(n1) for tau in (1, 2, 3, 0)] + [(tau, i) for tau in (1, 2, 3, 0) for i in range(n1, 14)]
        for q, (tau, i) in enumerate(order):
            acc = vr(DA[m&1][tau], 4)
            f, r = wdreg(i, tau)
            fx = []
            if q + 1 < 56:
                t1, i1 = order[q+1]
                if t1 == 1:
                    fx.append(('wvm', f'a{m}_{i1}'))
                    if m == 0 and i1 >= 6: fx.append(('wlg', f'rw{i1}'))
            elif m < 3: fx.append(('wvm', f'a{m+1}_0'))
            if q == 55: fx += g.st(f'D.m{m}')
            mf.append((f'v_mfma_f32_16x16x32_bf16 {acc}, {vr(r,4,f)}, {actreg(m,i)}, {"0" if i==0 else acc}', fx))
        if m:
            ES.append((B, B+8, red1(m-1), 2)); ES.append((B+12, B+26, red2(m-1))); ES.append((B+30, B+44, red3(m-1)))
        if m == 3:
            R = red1(3); k3 = 14 - n1
            for t in range(3): ES.append((B+4*n1+k3*(t+1)+1, B+min(4*n1+k3*(t+1)+3, 56), [R[t]]))
    GT = int(cfg.get('gt', 20))
    GS = [(2, GT, tailseg[0][2] + tailseg[1][2])]
    RS = [(0, 1, [('wvm', 'wd13')])]
    for p in range(6+NW7, 14): RS.append((0, 4*p-4, rd_wd(p, FINAL[p])))
    def hres(m): return [f's_add_u32 s83, s86, {m*32768}', ('vm', f'buffer_load_dwordx2 {vr(vHr+2*m,2)}, v{vL16}, {SR(SRD_WS)}, s83 offen sc1', f'hres{m}')]
    F7, F8, PL2, PL3 = int(cfg.get('f7', 8)), int(cfg.get('f8', 70)), int(cfg.get('pl2', 30)), int(cfg.get('pl3', 110))
    P3 = int(cfg.get('p3', 128)); PC = float(cfg.get('pc', 4))
    LS = LA + hres(0) + ld_act(1) + hres(1) + pcheck('p2') + g.st('D.p2') + ld_act(2) + hres(2) + hres(3)
    LQ = []; q = 0.0
    while LS:
        LQ.append((int(q), int(q)+2, cutm(LS))); q += PC
    q = max(q, P3); LS = pcheck('p3') + g.st('D.p3') + ld_act(3)
    PC3 = float(cfg.get('pc3', 2.5))
    while LS:
        LQ.append((int(q), int(q)+2, cutm(LS))); q += PC3
    XS = [(F7, F7+2, flagC(7)), (PL2, PL2+2, pload('p2')), (F8, F8+2, flagC(8)), (PL3, PL3+2, pload('p3'))]
    weave(g, mf, [GS, RS, XS, LQ, ES], 8, 'D')
    g.emits(red2(3) + red3(3))
    g.stamp('D.end')
    if cfg.get('dbgst'):
        a('s_waitcnt lgkmcnt(0)')
        a(f's_lshl2_add_u32 s70, s{S_WG}, s{W}')
        a(f's_cmp_lg_u32 s70, {int(cfg["dbgst"])*4}')
        a('s_cbranch_scc1 Lend')
        for i in range(1, min(g.ns, 17)):
            a(f's_sub_u32 s70, s{TSREG[i]}, s{TSREG[0]}')
            a(f'v_mov_b32 v2, s70')
            a(f'buffer_store_dword v2, off, {SR(SRD_DBG)}, 0 offset:{4*(i-1)}')
    elif cfg.get('stamps'):
        a('s_waitcnt lgkmcnt(0)')
        a(f's_lshl2_add_u32 s70, s{S_WG}, s{W}')
        a(f's_lshl_b32 s70, s70, 7')
        a(f's_add_u32 s70, s70, {WS_TS}')
        for i in range(g.ns):
            a(f'v_mov_b32 v2, s{TSREG[i]}')
            a(f'buffer_store_dword v2, off, {SR(SRD_WS)}, s70 offset:{4*i}')
        a(f'v_mov_b32 v2, s101')
        a(f'buffer_store_dword v2, off, {SR(SRD_WS)}, s70 offset:124')
    a.label('Lend')
    a('s_endpgm')
    for o in OOL[::-1]:
        a.hist = []
        o()
    a.label('Lfin')
    hdr = '; @launch grid=(256,1,1) block=(256,1,1) lds=163840\n'
    if cfg.get('stamps') and not cfg.get('dbgst'): hdr += '; stamps: ' + ','.join(g.names) + '\n'
    hdr += '.amdgcn_target "amdgcn-amd-amdhsa--gfx950"\n.text\n'
    KD = f""".section .rodata,"a"
.p2align 6
.amdhsa_kernel {k}
  .amdhsa_next_free_vgpr 512
  .amdhsa_next_free_sgpr 102
  .amdhsa_accum_offset 256
  .amdhsa_group_segment_fixed_size 0
  .amdhsa_kernarg_size 80
  .amdhsa_user_sgpr_count 2
  .amdhsa_user_sgpr_kernarg_segment_ptr 1
  .amdhsa_system_sgpr_workgroup_id_x 1
.end_amdhsa_kernel
"""
    print('nops', a.nops, 'stamps', g.ns, file=sys.stderr)
    if cfg.get('tour'): add_pads(a, hdr, KD, [int(x) for x in str(cfg['tour']).split('+')])
    return hdr + a.text() + KD

def add_pads(a, hdr, KD, offs):
    import subprocess, re
    stub = ''.join(f'Lpad_e{w}:\n' for w in range(4))
    open('_pad.s', 'w').write(hdr + a.text() + stub + KD)
    subprocess.run(['clang', '-x', 'assembler', '-target', 'amdgcn-amd-amdhsa', '-mcpu=gfx950', '-c', '_pad.s', '-o', '_pad.o'], check=True)
    dis = subprocess.run(['llvm-objdump', '-d', '_pad.o'], capture_output=True, text=True).stdout
    addr = [int(m.group(1), 16) for m in re.finditer(r'// ([0-9A-F]{12}):', dis)]
    idx = [i for i, l in enumerate(a.lines) if l.startswith('    ') and not l.strip().startswith(';')]
    assert len(addr) == len(idx), (len(addr), len(idx))
    end = addr[-1]
    pads = []; sh = 0
    for pg in range(1, end // 4096 + 2):
        for o in offs:
            t = pg*4096 + o
            c = [j for j in range(1, len(addr)) if t <= addr[j] + sh + 4 < t + 60]
            if not c: continue
            best = [j for j in c if 'v_mfma' in a.lines[idx[j-1]] and idx[j] == idx[j-1] + 1] or [j for j in c if idx[j] == idx[j-1] + 1]
            pads.append(best[0]); sh += 8
    n = len(pads); per = -(-n // 4)
    for k_ in range(n-1, -1, -1):
        nxt = f'Lpad_{k_+1}' if (k_+1) % per and k_+1 < n else 'Lpad_ret'
        ent = f'Lpad_e{k_//per}:\n' if k_ % per == 0 else ''
        a.lines.insert(idx[pads[k_]], f'    s_branch Lpad_s{k_}\n{ent}Lpad_{k_}:\n    s_branch {nxt}\nLpad_s{k_}:')
    r = a.lines.index('Lpad_ret:')
    for w in range(-(-n // per), 4): a.lines.insert(r, f'Lpad_e{w}:')
    print('pads', n, file=sys.stderr)

if __name__ == '__main__':
    out = sys.argv[1]
    cfg = {}
    for o in sys.argv[2:]:
        k_, _, v = o.partition('=')
        cfg[k_] = v.split(',') if k_ == 'sel' else (v or True)
    open(out, 'w').write(build(cfg))
```

```python
import sys, struct
from asmlib import *

NAME = 'sequential_preLN__linear_attn_block__geglu_ffn__prompt'
WS_PQ = 0x000000; WS_H = 0x200000; WS_ACT = 0x400000; WS_STATS = 0xB00000; WS_KV = 0xB40000
WS_FLAG = 0xB50000; WS_TS = 0xC00000; WS_SIZE = 0xD00000
FA = WS_FLAG; FB = WS_FLAG + 256*128; FC = WS_FLAG + 512*128
LOG2E = 1.4426950408889634; LN2 = 0.6931471805599453
def fbits(x): return '0x%08x' % struct.unpack('<I', struct.pack('<f', x))[0]

S_WG = 2; W = 3
SRD_X = 36; SRD_WQKV = 40; SRD_WO = 44; SRD_WGU = 48; SRD_WD = 52; SRD_OUT = 56; SRD_WS = 60; SRD_DBG = 64
SRD_ACT = 40
S_XC = 68; S_J = 69
def SR(b): return f's[{b}:{b+3}]'
def v2(b): return f'v[{b}:{b+1}]'

class Cnt:
    def __init__(self, a, name, cap): self.a = a; self.q = []; self.name = name; self.cap = cap; self.seen = set(); self.n = {}
    def issue(self, text, tag='x'):
        self.a(text); self.q.append(tag); self.seen.add(tag); self.n[tag] = self.n.get(tag, 0) + 1
        if self.name == 'vmcnt': assert len(self.q) <= self.cap, "vmcnt overflow"
    def wait(self, *tags):
        for t in tags:
            assert t in self.seen, ('wait on unissued', t)
            if len(t) == 3 and t[0] in 'Sg' and t[2] in 'ab': assert self.n[t] == (8 if t[0] == 'S' else 16), (t, self.n[t])
        last = -1
        for i, t in enumerate(self.q):
            if t in tags: last = i
        if last < 0: return
        n = len(self.q) - 1 - last
        n = min(n, self.cap)
        self.a(f's_waitcnt {self.name}({n})')
        self.q = self.q[len(self.q)-n:] if n else []
    def wait_all(self):
        self.a(f's_waitcnt {self.name}(0)'); self.q = []

TSREG = list(range(90, 100, 2)) + list(range(8, 16, 2)) + [30,32,34,16,18,20,22,24,26,28,4,6]

class G:
    def __init__(self, cfg):
        self.a = Asm(); self.cfg = cfg
        self.vm = Cnt(self.a, 'vmcnt', 63); self.lg = Cnt(self.a, 'lgkmcnt', 15)
        self.ns = 0; self.names = []
    def want(self, name):
        if not self.cfg.get('stamps'): return False
        sel = self.cfg.get('sel')
        return not (sel and not any(name.startswith(p) for p in sel))
    def stamp(self, name):
        if not self.want(name): return
        r = TSREG[self.ns]; self.ns += 1; self.names.append(name)
        self.a(f'{"s_memtime" if self.cfg["stamps"] == "cyc" else "s_memrealtime"} s[{r}:{r+1}]')
    def st(self, name):
        return [lambda: self.stamp(name)] if self.want(name) else []
    def emit(self, t):
        if isinstance(t, str): self.a(t)
        elif callable(t): t()
        elif t[0] == 'vm': self.vm.issue(t[1], t[2])
        elif t[0] == 'lg': self.lg.issue(t[1], t[2])
        elif t[0] == 'wvm': self.vm.wait(*t[1:])
        elif t[0] == 'wlg': self.lg.wait(*t[1:])
        else: raise ValueError(t)
    def emits(self, L):
        for x in L: self.emit(x)

def cls(t):
    if callable(t): return 0
    if isinstance(t, tuple): return 1 if t[0] in ('vm', 'lg') else 0
    op = t.split()[0]
    if op.startswith('s_'): return 0
    if op.startswith(('ds_', 'buffer_', 'global_')): return 1
    return 2
def cost(t):
    c = cls(t)
    if c == 0: return 4
    tx = t if isinstance(t, str) else t[1]
    op = tx.split()[0]
    if c == 1: return 20 if op == 'ds_write_b128' else 4
    return 8 if (op.split('_e')[0] in TRANS or op in TRANS) else 4

def weave(g, mf, streams, cap, name=''):
    n = len(mf)
    def fcost(items):
        c = sum(cost(x) for x in items)
        return c - 4 if any(cls(x) == 0 for x in items) else c
    fixed = [fcost(m[1]) for m in mf]
    segs = [[[s[0], s[1], list(s[2]), s[3] if len(s) > 3 else 0] for s in st if s[2]] for st in streams]
    lastmem = [-99]*len(segs)
    tot = 0; ov = [0]*((n+15) >> 4)
    for i in range(n):
        gap = [[], [], []]; tail = []
        for x in mf[i][1]: gap[cls(x)].append(x)
        used = fixed[i]
        lc = [-1]*len(segs)
        blocked = set()
        while True:
            best = None
            for k, st in enumerate(segs):
                if not st or k in blocked or st[0][0] > i: continue
                if best is None or st[0][1] < segs[best][0][1]: best = k
            if best is None: break
            sg = segs[best][0]; it = sg[2][0]; c = cls(it)
            must = i >= sg[1]-1
            kk = 0 if (c == 0 and not gap[0]) else cost(it)
            if not must:
                if c < lc[best] or (c == 1 and sg[3] and i - lastmem[best] < sg[3]): blocked.add(best); continue
                if used + kk > cap:
                    dem = sum(sum(cost(x) for x in s[2] if cls(x)) for st in segs for s in st if s[1] <= sg[1])
                    room = sum(max(0, cap - fixed[j]) for j in range(i+1, min(n, sg[1])))
                    if not (used < cap and dem > room): blocked.add(best); continue
            if c < lc[best] or tail and must and lc[best] == 9:
                tail.append(it); lc[best] = 9
            else:
                gap[c].append(it); lc[best] = c
            used += kk
            if c == 1: lastmem[best] = i
            sg[2].pop(0)
            if not sg[2]: segs[best].pop(0)
        g.a(mf[i][0])
        for x in gap[0] + gap[1] + gap[2] + tail: g.emit(x)
        tot += max(cap, used) + 8
        ov[i >> 4] += max(0, used - cap)
    assert not any(segs), ('unplaced', name)
    print(f'weave {name}: {n} mfma est {tot} cyc', ov if n > 100 else '', file=sys.stderr)

def srd(a, d, ptr, size):
    a(f's_mov_b32 s{d}, s{ptr}')
    a(f's_mov_b32 s{d+1}, s{ptr+1}')
    a(f's_mov_b32 s{d+2}, {size}')
    a(f's_mov_b32 s{d+3}, 0x20000')

def guard(g, n=None):
    if g.cfg.get('stamps') and n is not None: g.a(f's_add_u32 s101, s101, {1 << (5*n)}')
    if g.cfg.get('safe'):
        g.a('s_sub_u32 s100, s100, 1')
        g.a('s_cbranch_scc1 Lend')

def poll(g, label, vaddr, vdst, n, soff, need):
    a = g.a
    a.label(label)
    sfx = {1: '', 4: 'x4'}[n]
    a(f'buffer_load_dword{sfx} {vr(vdst, n)}, v{vaddr}, {SR(SRD_WS)}, s{soff} offen sc1')
    g.vm.wait_all()
    if n == 4:
        a(f'v_min_u32 v{vdst}, v{vdst}, v{vdst+1}')
        a(f'v_min3_u32 v{vdst}, v{vdst}, v{vdst+2}, v{vdst+3}')
    a(f'v_cmp_gt_u32 vcc, {need}, v{vdst}')
    guard(g, 0)
    a(f's_cbranch_vccnz {label}')

def build(cfg):
    g = G(cfg); a = g.a; vm = g.vm; lg = g.lg
    k = NAME + '_kernel'
    OOL = []
    FSH = 7
    SRD_FL = SRD_X
    a.raw(f'.globl {k}\n.p2align {12 if cfg.get("tour") or cfg.get("al") else 8}\n.type {k},@function\n{k}:')
    a(f's_cmp_ge_u32 s{S_WG}, 256')
    a('s_cbranch_scc1 Lend')
    a('s_load_dwordx16 s[16:31], s[0:1], 0')
    a('s_load_dwordx4 s[32:35], s[0:1], 64')
    g.stamp('A.start')
    if cfg.get('safe'): a('s_mov_b32 s100, 200000')
    if cfg.get('stamps'): a('s_mov_b32 s101, 0')
    a('v_lshrrev_b32 v1, 6, v0')
    a(f's_lshr_b32 s{S_J}, s{S_WG}, 3')
    a(f'v_readfirstlane_b32 s{W}, v1')
    a('v_and_b32 v0, 63, v0')
    a(f's_and_b32 s{S_XC}, s{S_WG}, 7')
    vTa, vTd = 218, 234
    a(f'v_lshlrev_b32 v{vTa}, 7, v0')
    if cfg.get('cpf'):
        a(f's_cmp_ge_u32 s{S_J}, 2')
        a('s_cbranch_scc1 LX_cpf_ret')
        a('s_getpc_b64 s[4:5]')
        a.label('LX_pc')
        a(f's_lshl2_add_u32 s76, s{S_J}, s{W}')
        a(f's_lshl_b32 s76, s76, 13')
        a(f'v_add_u32 v{vTd}, s76, v{vTa}')
        a(f'v_min_u32 v{vTd}, Lfin-LX_pc-4, v{vTd}')
        a(f'global_load_dword v{vTd}, v{vTd}, s[4:5]')
        a.label('LX_cpf_ret')
    XR = 98304
    s_rb, s_hp, s_x, s_w, s_m0x, s_m0w, s_rot = 70, 71, 72, 73, 74, 75, 82
    a(f's_lshr_b32 s76, s{S_XC}, 1')
    a(f's_and_b32 s{s_rb}, s{S_J}, 3')
    a(f's_lshl2_add_u32 s{s_rb}, s76, s{s_rb}')
    a(f's_and_b32 s76, s{S_XC}, 1')
    a(f's_lshr_b32 s{s_hp}, s{S_J}, 2')
    a(f's_lshl3_add_u32 s{s_hp}, s76, s{s_hp}')
    a(f's_lshr_b32 s76, s{S_J}, 3')
    a(f's_add_u32 s{s_rot}, s{S_J}, s76')
    a(f's_add_u32 s{s_rot}, s{s_rot}, s{S_XC}')
    if cfg.get('rot'): a(f's_lshl_b32 s{s_rot}, s{s_rot}, {cfg["rot"]}')
    RM = cfg.get('rotm')
    if RM == '1': a(f's_lshl_b32 s{s_rot}, s76, 1')
    if RM == '2': a(f's_lshl_b32 s{s_rot}, s{S_J}, 1')
    if RM == '3': a(f's_lshr_b32 s{s_rot}, s{S_J}, 2')
    if RM == '4': a(f's_lshl1_add_u32 s{s_rot}, s76, s{S_XC}')
    if RM == '5': a(f's_lshl_b32 s{s_rot}, s76, 2')
    if RM == '6': a(f's_mov_b32 s{s_rot}, s76')
    a(f's_lshl2_add_u32 s{s_x}, s{s_rb}, s{W}')
    a(f's_lshl_b32 s{s_x}, s{s_x}, 15')
    a(f's_mul_i32 s{s_w}, s{W}, {16*3072}')
    a(f's_lshl_b32 s76, s{s_hp}, 6')
    a(f's_add_u32 s{s_w}, s{s_w}, s76')
    a(f's_lshl_b32 s{s_m0x}, s{W}, 14')
    a(f's_add_u32 s{s_m0x}, s{s_m0x}, {XR}')
    a(f's_mul_i32 s{s_m0w}, s{W}, 3072')
    vXd = 4; vWd = 8; vXr = 12; vWn = 16; vWp = 20
    vSum, vSq, vCs = 24, 25, 26
    vOne = 29; vT = 30; vAcc = 40; vX = 88; vW = 120
    vWo = 220
    vDbg = 216; vDbgA = 217
    a(f'v_lshrrev_b32 v{vT}, 3, v0')
    a(f'v_and_b32 v{vT+1}, 7, v0')
    a(f'v_lshrrev_b32 v{vT+2}, 1, v{vT}')
    a(f'v_xor_b32 v{vT+1}, v{vT+1}, v{vT+2}')
    a(f'v_lshlrev_b32 v{vT+1}, 4, v{vT+1}')
    a(f'v_lshl_add_u32 v{vXd}, v{vT}, 10, v{vT+1}')
    a(f'v_xor_b32 v{vXd+1}, 64, v{vXd}')
    a(f'v_add_u32 v{vXd+1}, {8192-1024}, v{vXd+1}')
    a(f'v_add_u32 v{vXd+2}, {2*(8192-1024)}, v{vXd}')
    a(f'v_add_u32 v{vXd+3}, {2*(8192-1024)}, v{vXd+1}')
    for q in range(3):
        a(f'v_add_u32 v{vT}, {64*q}, v0')
        a(f'v_mul_u32_u24 v{vT+1}, 171, v{vT}')
        a(f'v_lshrrev_b32 v{vT+1}, 11, v{vT+1}')
        a(f'v_mul_u32_u24 v{vT+2}, 12, v{vT+1}')
        a(f'v_sub_u32 v{vT+2}, v{vT}, v{vT+2}')
        a(f'v_mul_u32_u24 v{vT+1}, 3072, v{vT+1}')
        a(f'v_lshrrev_b32 v{vT+3}, 2, v{vT+2}')
        a(f'v_lshl_add_u32 v{vT+1}, v{vT+3}, 10, v{vT+1}')
        a(f'v_and_b32 v{vT+2}, 3, v{vT+2}')
        a(f'v_lshl_add_u32 v{vWd+q}, v{vT+2}, 4, v{vT+1}')
        if q == 0: a(f'v_lshl_add_u32 v249, v{vT+2}, 7, v{vT+1}')
        if q: a(f'v_subrev_u32 v{vWd+q}, {1024*q}, v{vWd+q}')
    a(f'v_lshlrev_b32 v219, 6, v0')
    a(f's_lshl2_add_u32 s87, s{S_J}, s{W}')
    a(f's_and_b32 s83, s{S_WG}, 0xe4')
    a(f's_or_b32 s83, s83, s{W}')
    a(f's_mov_b32 s{SRD_X+2}, {2048*512*2}')
    a(f's_mov_b32 s{SRD_X+3}, 0x20000')
    a(f's_mov_b32 s{SRD_WQKV+2}, {512*1536*2}')
    a(f's_mov_b32 s{SRD_WQKV+3}, 0x20000')
    a(f's_mov_b32 s{SRD_WS+2}, {WS_SIZE}')
    a(f's_mov_b32 s{SRD_WS+3}, 0x20000')
    a('s_waitcnt lgkmcnt(0)')
    g.stamp('S.karg')
    a(f's_mov_b64 s[{SRD_X}:{SRD_X+1}], s[16:17]')
    a(f's_mov_b64 s[{SRD_WQKV}:{SRD_WQKV+1}], s[18:19]')
    a(f's_mov_b64 s[{SRD_WS}:{SRD_WS+1}], s[34:35]')
    def dma_xw(c):
        L = [f's_add_u32 s78, s{s_rot}, {c}', f's_and_b32 s78, s78, 7', f's_lshl_b32 s76, s78, 7', f's_add_u32 s76, s76, s{s_x}',
             f's_add_u32 m0, s{s_m0x}, {(c&3)*4096}', f's_mul_i32 s77, s78, {64*3072}']
        for i in range(4):
            L.append(('vm', f'buffer_load_dwordx4 v{vXd+i}, {SR(SRD_X)}, s76 offen offset:{i*1024} lds', f'c{c}'))
        L += [f's_add_u32 m0, s{s_m0w}, {c*12288}', f's_add_u32 s77, s77, s{s_w}']
        for q in range(3):
            L.append(('vm', f'buffer_load_dwordx4 v{vWd+q}, {SR(SRD_WQKV)}, s77 offen offset:{q*1024} lds', f'c{c}'))
        return L
    NX = int(cfg.get('nx', 4))
    TL = {}
    for it in (cfg.get('tl') or '').split('+'):
        if it:
            n_, p_ = it.split('@'); TL.setdefault(p_, []).append(n_)
    vT64, vTw, vTg = 219, 249, 250
    tcnt = [0]
    def touch1(n):
        tcnt[0] += 1
        lab = f'LT_{tcnt[0]}'
        def f():
            if n == 'x':
                a(f's_lshr_b32 s81, s{S_XC}, 1')
                a(f's_lshl_b32 s81, s81, 7')
                a(f's_add_u32 s81, s81, s87')
                a(f's_lshl_b32 s81, s81, 12')
                vm.issue(f'buffer_load_dword v{vTd+1}, v{vT64}, {SR(SRD_X)}, s81 offen', 'touch')
            elif n == 'w':
                a(f's_and_b32 s81, s{S_XC}, 1')
                a(f's_lshl_b32 s81, s81, 9')
                a(f's_mul_i32 s4, s87, {4*3072}')
                a(f's_add_u32 s81, s81, s4')
                a('s_mov_b32 exec_hi, 0xffff')
                vm.issue(f'buffer_load_dword v{vTd+1}, v{vTw}, {SR(SRD_WQKV)}, s81 offen', 'touch')
                a('s_mov_b32 exec_hi, -1')
            elif n == 'o':
                a(f's_lshl_b32 s81, s87, 12')
                vm.issue(f'buffer_load_dword v{vTd+1}, v{vT64}, {SR(SRD_WO)}, s81 offen', 'touch')
            elif n in ('g0', 'g1'):
                a(f's_bitcmp1_b32 s{W}, 0')
                a('s_cselect_b64 s[4:5], s[26:27], s[24:25]')
                a(f's_mov_b32 s6, {512*1792*2}')
                a('s_mov_b32 s7, 0x20000')
                a(f's_lshr_b32 s81, s87, 1')
                a(f's_lshl_b32 s81, s81, 4')
                a(f's_bitcmp1_b32 s{S_XC}, 0')
                a(f's_addc_u32 s81, s81, {8*int(n[1])}')
                a(f's_mul_i32 s81, s81, 1792')
                a('s_mov_b32 exec_hi, 0xffffff')
                vm.issue(f'buffer_load_dword v{vTd+1}, v{vTg}, s[4:7], s81 offen', 'touch')
                a('s_mov_b32 exec_hi, -1')
            elif n == 'G':
                nl = 14336 // (64*NX)
                if NX < 8:
                    a(f's_cmp_ge_u32 s{S_XC}, {NX}')
                    a(f's_cbranch_scc1 {lab}')
                a(f's_bitcmp1_b32 s{W}, 0')
                a('s_cselect_b64 s[4:5], s[26:27], s[24:25]')
                a(f's_mov_b32 s6, {512*1792*2}')
                a('s_mov_b32 s7, 0x20000')
                a(f's_lshr_b32 s81, s87, 1')
                a(f's_mul_i32 s81, s81, {NX}')
                a(f's_add_u32 s81, s81, s{S_XC}')
                a(f's_mul_i32 s81, s81, {nl*128}')
                a(f'v_min_u32 v{vTd}, {(min(nl,56)-1)*128}, v{vTa}')
                for i in range(0, nl, 56):
                    (a if NX < 8 else vm.issue)(f'buffer_load_dword v{vTd+1}, v{vTd}, s[4:7], s81 offen')
                    if i + 56 < nl: a(f's_add_u32 s81, s81, {56*128}')
                a.label(lab)
            elif n == 'D':
                nl = 14336 // (128*NX)
                if NX < 8:
                    a(f's_cmp_ge_u32 s{S_XC}, {NX}')
                    a(f's_cbranch_scc1 {lab}')
                a(f's_mul_i32 s81, s87, {NX}')
                a(f's_add_u32 s81, s81, s{S_XC}')
                a(f's_mul_i32 s81, s81, {nl*128}')
                a(f'v_min_u32 v{vTd}, {(nl-1)*128}, v{vTa}')
                (a if NX < 8 else vm.issue)(f'buffer_load_dword v{vTd+1}, v{vTd}, {SR(SRD_WD)}, s81 offen')
                a.label(lab)
            else: raise ValueError(n)
        return f
    def touch(p): return [touch1(n) for n in TL.get(p, [])]
    a(f's_cmp_eq_u32 s83, 0')
    a('s_cbranch_scc0 LX_zero_ret')
    def ool_zero():
        for i in range(4): a(f'v_mov_b32 v{vT+i}, 0')
        a(f's_lshl2_add_u32 s77, s{S_J}, s{S_XC}')
        a(f's_mul_i32 s76, s77, 2176')
        a(f's_add_u32 s76, s76, {WS_KV}')
        a(f'v_lshlrev_b32 v{vT+4}, 4, v0')
        a(f'v_min_u32 v{vT+5}, {128-16}, v{vT+4}')
        a(f'buffer_store_dwordx4 v[{vT}:{vT+3}], v{vT+4}, {SR(SRD_WS)}, s76 offen sc1')
        a(f'buffer_store_dwordx4 v[{vT}:{vT+3}], v{vT+4}, {SR(SRD_WS)}, s76 offen offset:1024 sc1')
        a(f'buffer_store_dwordx4 v[{vT}:{vT+3}], v{vT+5}, {SR(SRD_WS)}, s76 offen offset:2048 sc1')
        a(f's_mul_i32 s76, s77, {112*128}')
        a(f's_add_u32 s76, s76, {WS_FLAG}')
        a(f's_add_u32 s77, s76, {48*128}')
        a(f'buffer_store_dword v{vT}, v{vTa}, {SR(SRD_WS)}, s76 offen sc1')
        a(f'buffer_store_dword v{vT}, v{vTa}, {SR(SRD_WS)}, s77 offen sc1')
    ool_zero()
    a.label('LX_zero_ret')
    g.emits(touch('pre'))
    g.emits(dma_xw(0)); g.stamp('S.d0')
    g.emits(touch('d0'))
    D1 = dma_xw(1)
    g.emits(D1[:10]); g.stamp('S.d1')
    g.emits(touch('dx'))
    a('s_mov_b32 s79, s77')
    srd(a, SRD_DBG, 32, 256)
    srd(a, SRD_WO, 20, 512*512*2)
    a(f's_cmp_ge_u32 s{W}, 2')
    a(f's_cselect_b64 s[{SRD_WGU}:{SRD_WGU+1}], s[26:27], s[24:25]')
    a(f's_cmp_ge_u32 s{S_J}, 28')
    if cfg.get('iw'):
        a(f's_cselect_b64 s[{SRD_WGU}:{SRD_WGU+1}], s[28:29], s[{SRD_WGU}:{SRD_WGU+1}]')
        a(f's_mov_b32 s{SRD_WGU+2}, {512*1792*2}')
    else: a(f's_cselect_b32 s{SRD_WGU+2}, 0, {512*1792*2}')
    a(f's_mov_b32 s{SRD_WGU+3}, 0x20000')
    srd(a, SRD_WD, 28, 1792*512*2)
    srd(a, SRD_OUT, 30, 2048*512*2)
    a(f'v_and_b32 v{vT}, 31, v0')
    a(f'v_lshrrev_b32 v{vT+1}, 5, v0')
    a(f'v_lshrrev_b32 v{vT+2}, 1, v{vT}')
    a(f'v_and_b32 v{vT+2}, 7, v{vT+2}')
    a(f'v_xor_b32 v{vT+2}, v{vT+2}, v{vT+1}')
    a(f'v_lshlrev_b32 v{vT+2}, 4, v{vT+2}')
    a(f'v_lshl_add_u32 v{vT+2}, v{vT}, 7, v{vT+2}')
    a(f'v_add_u32 v{vT+2}, s{s_m0x}, v{vT+2}')
    for s in range(4):
        a(f's_xor_b32 s76, s{W}, {s}')
        a(f's_lshl_b32 s76, s76, 5')
        a(f'v_xor_b32 v{vXr+s}, s76, v{vT+2}')
    a(f'v_bfe_u32 v{vT+2}, v0, 2, 2')
    a(f'v_lshl_add_u32 v{vT+2}, v{vT+1}, 3, v{vT+2}')
    a(f'v_mul_u32_u24 v{vT+2}, 192, v{vT+2}')
    a(f'v_bfe_u32 v{vT+3}, v0, 4, 1')
    a(f'v_lshl_add_u32 v{vT+2}, v{vT+3}, 5, v{vT+2}')
    a(f'v_and_b32 v{vT+3}, 3, v0')
    a(f'v_lshl_add_u32 v{vT+4}, v{vT+3}, 3, v{vT+2}')
    a(f'v_and_b32 v{vT+5}, 1, v0')
    a(f'v_lshl_add_u32 v{vT+5}, v{vT+5}, 4, v{vT+2}')
    a(f'v_bfe_u32 v{vT+3}, v0, 1, 1')
    a(f'v_lshl_add_u32 v{vT+5}, v{vT+3}, 3, v{vT+5}')
    for s in range(4):
        a(f's_xor_b32 s76, s{W}, {s}')
        a(f's_mul_i32 s76, s76, 3072')
        a(f'v_add_u32 v{vWn+s}, s76, v{vT+4}')
        a(f'v_add_u32 v{vWp+s}, s76, v{vT+5}')
    for r in (vSum, vSq, vCs, vCs+1, vCs+2): a(f'v_mov_b32 v{r}, 0')
    a(f'v_mov_b32 v{vOne}, 0x3f803f80')
    a(f'v_lshrrev_b32 v{vT}, 4, v0')
    a(f'v_and_b32 v{vT+1}, 15, v0')
    a(f'v_lshlrev_b32 v{vT+2}, 1, v{vT}')
    a(f'v_xor_b32 v{vT+1}, v{vT+1}, v{vT+2}')
    a(f'v_lshlrev_b32 v{vT+1}, 4, v{vT+1}')
    a(f'v_lshl_add_u32 v{vWo}, v{vT}, 10, v{vT+1}')
    a(f'v_add_u32 v{vWo+1}, {4096-1024}, v{vWo}')
    a(f'v_xor_b32 v{vWo+2}, 128, v{vWo}')
    a(f'v_add_u32 v{vWo+2}, {2*(4096-1024)}, v{vWo+2}')
    a(f'v_add_u32 v{vWo+3}, {4096-1024}, v{vWo+2}')
    a(f'v_and_b32 v{vDbgA}, 15, v0')
    a(f'v_lshlrev_b32 v{vDbgA}, 2, v{vDbgA}')
    a(f's_lshr_b32 s84, s{S_J}, 3')
    a(f's_lshl_b32 s84, s84, 8')
    a(f's_lshl_b32 s76, s{W}, 17')
    a(f's_add_u32 s84, s84, s76')
    a(f's_lshl_b32 s85, s{W}, 12')
    SC = 12288; CSA = 81920
    vE1, vE2, vE3, vE4, vE5, vE6, vE7, vE8, vE9, vE2b = range(224, 234)
    vL16 = 1
    a(f'v_and_b32 v{vT}, 31, v0')
    a(f'v_lshl_add_u32 v{vE1}, v{vT}, 2, s{s_m0x}')
    a(f'v_add_u32 v{vE1}, {SC}, v{vE1}')
    a(f'v_lshlrev_b32 v{vE2}, 2, v{vT}')
    a(f'v_add_u32 v{vE2}, {CSA}, v{vE2}')
    a(f'v_add_u32 v{vE2b}, 768, v{vE2}')
    a(f'v_lshrrev_b32 v{vT+1}, 5, v0')
    a(f'v_lshl_add_u32 v{vE3}, v{vT+1}, 4, s{s_m0x}')
    a(f's_mul_i32 s76, s{W}, 384')
    a(f's_add_u32 s76, s76, {CSA}')
    a(f'v_lshl_add_u32 v{vE4}, v0, 2, s76')
    a(f'v_mul_u32_u24 v{vT+1}, 272, v{vT+1}')
    a(f'v_bfe_u32 v{vT+2}, v0, 4, 1')
    a(f'v_mul_u32_u24 v{vT+2}, 544, v{vT+2}')
    a(f'v_add3_u32 v{vE6}, v{vT+1}, v{vT+2}, s{s_m0x}')
    a(f'v_and_b32 v{vT+1}, 3, v0')
    a(f'v_bfe_u32 v{vT+2}, v0, 2, 1')
    a(f'v_lshl_add_u32 v{vT+1}, v{vT+2}, 3, v{vT+1}')
    a(f'v_bfe_u32 v{vT+2}, v0, 3, 1')
    a(f'v_lshl_add_u32 v{vT+1}, v{vT+2}, 2, v{vT+1}')
    a(f'v_lshl_add_u32 v{vE5}, v{vT+1}, 4, v{vE6}')
    a(f's_lshl_b32 s78, s{W}, 8')
    a(f'v_lshl_add_u32 v{vE7}, v0, 2, s78')
    a(f'v_add_u32 v{vE8}, {XR+SC+1024}, v{vE7}')
    a(f'v_min_u32 v{vE9}, {XR+SC+1024+124}, v{vE8}')
    a(f'v_lshlrev_b32 v{vL16}, 4, v0')
    vOnes = 236
    for i in range(4): a(f'v_mov_b32 v{vOnes+i}, v{vOne}')
    vSen = 252; SEN = '-1'
    a(f'v_mov_b32 v{vSen}, {SEN}')
    for i in range(1, 4): a(f'v_mov_b32 v{vSen+i}, v{vSen}')
    a(f'v_mul_u32_u24 v{vT}, 147, v0')
    a(f'v_lshrrev_b32 v{vT}, 11, v{vT}')
    a(f'v_mul_u32_u24 v{vT}, 1792, v{vT}')
    a(f'v_add_u32 v{vTg}, v{vT}, v{vTa}')
    vXres = 240; vXa = 248
    a(f'v_and_b32 v{vT}, 15, v0')
    a(f'v_lshrrev_b32 v{vT+1}, 4, v0')
    a(f'v_lshlrev_b32 v{vT+2}, 3, v{vT+1}')
    a(f'v_lshl_add_u32 v{vXa}, v{vT}, 10, v{vT+2}')
    a(f's_and_b32 s88, s{S_J}, 7')
    a(f's_lshl3_add_u32 s88, s{S_XC}, s88')
    a(f's_lshl_b32 s88, s88, 15')
    a(f's_lshr_b32 s89, s{S_J}, 3')
    a(f's_lshl2_add_u32 s89, s89, s{W}')
    a(f's_lshl_b32 s89, s89, 6')
    a(f's_add_u32 s88, s88, s89')
    a(f's_add_u32 s89, s88, 16384')
    XRES = [('vm', f'buffer_load_dwordx2 {vr(vXres+m*4+t*2,2)}, v{vXa}, {SR(SRD_X)}, s{88+m} offen offset:{32*t}', 'xres') for m in range(2) for t in range(2)]
    PF = [f's_and_b32 s76, s88, 0x3c0', f's_mul_i32 s76, s76, 15', f's_add_u32 s76, s76, s88', f's_add_u32 s76, s76, {WS_H}',
          ('vm', f'buffer_store_dwordx4 {vr(vSen,4)}, v{vL16}, {SR(SRD_WS)}, s76 offen sc1', 'st'),
          f's_add_u32 s76, s76, 16384',
          ('vm', f'buffer_store_dwordx4 {vr(vSen,4)}, v{vL16}, {SR(SRD_WS)}, s76 offen sc1', 'st'),
          f's_lshr_b32 s76, s88, 15', f's_lshl_b32 s76, s76, 10', f's_and_b32 s81, s88, 0x300', f's_add_u32 s76, s76, s81',
          f's_lshl2_add_u32 s76, s76, {WS_STATS}',
          ('vm', f'buffer_store_dword v{vSen}, v{vE7}, {SR(SRD_WS)}, s76 offen sc1', 'st')]
    PFS = cfg.get('pfs', 'e')
    if PFS == 'a': g.emits(PF)
    a('s_mov_b32 s77, s79')
    g.emits(D1[10:])
    if PFS == 'b': g.emits(PF)
    g.emits(touch('d1'))
    g.stamp('A.issued')
    def dma_wo(n):
        L = [f's_add_u32 m0, s85, {16384*n}' if n < 5 else f's_add_u32 m0, s{s_m0x}, {4096*(n-5)}', f's_add_u32 s77, s84, {n*16384}']
        for i in range(4):
            L.append(('vm', f'buffer_load_dwordx4 v{vWo+i}, {SR(SRD_WO)}, s77 offen offset:{i*1024} lds', f'wo{n>>2}'))
        return L
    def rdX(c):
        return [('lg', f'ds_read_b128 {vr(vX+(c&1)*16+s*4,4)}, v{vXr+s} offset:{(c&3)*4096}', 'x') for s in range(4)]
    def rdW(c, s):
        base = vW + (c&1)*48 + s*12
        off = (c&3)*12288
        L = []
        for tile in (1, 2, 0):
            ad = (vWp if tile == 0 else vWn) + s
            for h2 in range(2):
                L.append(('lg', f'ds_read_b64_tr_b16 {vr(base+tile*4+h2*2,2)}, v{ad} offset:{off + h2*768 + tile*64}', f'w{s}'))
        return L
    def ismem(x): return cls(x) == 1 or callable(x)
    def sprinkle(L, ex, first=0):
        n = sum(1 for x in ex if ismem(x))
        tot = sum(cost(x) for x in L)
        acc = 0; k = 0
        for x in L:
            while ex and acc >= first + (tot - first)*k/max(n, 1):
                while ex:
                    y = ex.pop(0); g.emit(y)
                    if ismem(y): break
                k += 1
            g.emit(x); acc += cost(x)
        g.emits(ex); del ex[:]
    def dots(c):
        xb = vX + (c&1)*16; wb = vW + (c&1)*48
        L = []
        for i in range(4 if not cfg.get('nodw') else 1):
            for tile in range(3):
                L.append(f'v_dot2c_f32_bf16 v{vCs+tile}, v{wb+tile*4+i}, v{vOne}')
        for i in range(16 if not cfg.get('nodx') else 0):
            L.append(f'v_dot2c_f32_bf16 v{vSum}, v{xb+i}, v{vOne}')
            L.append(f'v_dot2c_f32_bf16 v{vSq}, v{xb+i}, v{xb+i}')
        return L
    def mm(c, s, t):
        xb = vr(vX + (c&1)*16 + s*4, 4); wb = vr(vW + (c&1)*48 + s*12 + 4*t, 4)
        C = '0' if (c == 0 and s == 0) else vr(vAcc+16*t, 16)
        if t: return f'v_mfma_f32_32x32x16_bf16 {vr(vAcc+16*t,16)}, {xb}, {wb}, {C}'
        return f'v_mfma_f32_32x32x16_bf16 {vr(vAcc,16)}, {wb}, {xb}, {C}'
    DO = ' offset:64' if cfg.get('dbgst') else ''
    vK, vV, vQ = vAcc+16, vAcc+32, vAcc
    vM, vR, vCq, vEx = 120, 136, 152, 168
    vPK, vPV, vD2 = 184, 192, 200
    vMean, vRstd = vSum, vSq
    sE, sL = 80, 86
    WOL = []
    for n in (0, 1, 2, 3, 5, 6, 7, 4): WOL += dma_wo(n)
    def cut(L, n):
        R = []
        while L and n:
            x = L.pop(0); R.append(x)
            if ismem(x): n -= 1
        return R
    def cutm(L):
        R = []
        while L:
            x = L.pop(0); R.append(x)
            if cls(x) == 1: break
        return R
    def paced(L, q, step):
        R = []
        while L:
            R.append((int(q), int(q)+2, cutm(L))); q += step
        return R
    def rdall(c): return rdX(c) + rdW(c, 0) + rdW(c, 1) + rdW(c, 2) + rdW(c, 3)
    if cfg.get('tour'):
        for w in range(3):
            a(f's_cmp_eq_u32 s{W}, {w}')
            a(f's_cbranch_scc1 Lpad_e{w}')
        a('s_branch Lpad_e3')
        a.label('Lpad_ret')
        g.stamp('A.tour')
    vm.wait('c0')
    a('s_barrier')
    g.stamp('A.c0')
    R0 = rdall(0); D2 = dma_xw(2)
    while R0 or D2:
        g.emits(cut(R0, 4)); g.emits(cut(D2, 1))
    a(f's_cmp_eq_u32 s83, 0')
    a('s_cbranch_scc0 LX_sig_ret')
    a(f'v_mov_b32 v{vT}, 1')
    a(f's_lshl2_add_u32 s76, s{S_J}, s{S_XC}')
    a(f's_lshl_b32 s76, s76, 2')
    a(f'buffer_store_dword v{vT}, off, {SR(SRD_DBG)}, s76{DO} sc1')
    a.label('LX_sig_ret')
    a(f's_mov_b32 s{sE}, {fbits(1e-6*LOG2E)}')
    a(f's_mov_b32 s{sL}, {fbits(LN2)}')
    WN = [int(x) for x in cfg.get('wn', '0,0,0,0,0,0,0,0,0,0,0').split(',')]
    for c in range(8): assert sum(WN[:c+1]) <= (0, 4, 8, 12, 12, 24, 32, 32)[c]
    for c in range(4): assert WN[c] % 4 == 0
    for n_ in TL.get('pre', []) + TL.get('d0', []) + TL.get('dx', []): assert n_ in 'xwG'
    DF = int(cfg.get('df', 33)); rest = []
    for c in range(8):
        g.stamp(f'I.{c}e')
        lg.wait('x', 'w0')
        if c == 3:
            for s in range(4):
                a(f'v_add_u32 v{vWn+s}, 49152, v{vWn+s}'); a(f'v_add_u32 v{vWp+s}, 49152, v{vWp+s}')
        sprinkle(dots(c), rest)
        g.stamp(f'I.{c}m')
        dm = []
        if c + 3 < 8: dm += dma_xw(c+3)
        dm += touch(f's{c}')
        if c == 4: dm += XRES
        if c == int(cfg.get('dbs', 4)):
            dm.append(('vm', f'buffer_load_dword v{vDbg}, v{vDbgA}, {SR(SRD_DBG)}, 0 offen{DO} sc1', 'dbg'))
        if str(c) == PFS: dm[len(dm) if not cfg.get('pf0') else 0:0] = PF
        dm += cut(WOL, WN[c])
        dm += touch(f'e{c}')
        rest = dm
        nd = sum(1 for x in dm if ismem(x))
        dm = cut(rest, nd - (nd*DF + 50)//100)
        nd = sum(1 for x in dm if ismem(x))
        DSEG = [(12*i//max(nd, 1), 12*i//max(nd, 1) + 2, cut(dm, 1)) for i in range(nd)]
        lg.wait_all()
        if c < 7:
            mf = [(mm(c, s, t), []) for s in range(4) for t in (1, 2, 0)]
            mf[0] = (mf[0][0], [('wvm', f'c{c+1}'), 's_barrier'] + g.st(f'A.c{c+1}'))
            rd = rdall(c+1)
            RSEG = [(i, i+1, cut(rd, 3 if (i % 3 == 1) else 2)) for i in range(11)] + [(11, 12, rd)]
            weave(g, mf, [RSEG, DSEG], 24, f'A{c}')
        else:
            mf = [(mm(7, s, t), []) for s in range(4) for t in (1, 2)] + [(mm(7, s, 0), []) for s in range(4)]
            vP = 88
            S = [f'v_mov_b32 v{vT}, v{vSum}', f'v_mov_b32 v{vT+1}, v{vSq}', f'v_mov_b32 v{vT+2}, v{vCs}',
                 f'v_permlane32_swap_b32 v{vCs+1}, v{vCs+2}',
                 f'v_permlane32_swap_b32 v{vSum}, v{vT}', f'v_permlane32_swap_b32 v{vSq}, v{vT+1}', f'v_permlane32_swap_b32 v{vCs}, v{vT+2}',
                 f'v_add_f32 v{vCs+1}, v{vCs+1}, v{vCs+2}',
                 f'v_add_f32 v{vSum}, v{vSum}, v{vT}', f'v_add_f32 v{vSq}, v{vSq}, v{vT+1}', f'v_add_f32 v{vCs}, v{vCs}, v{vT+2}',
                 f'v_mul_f32 v{vMean}, {fbits(1/512)}, v{vSum}',
                 ('lg', f'ds_write_b32 v{vE4}, v{vCs} offset:0', 'cs'),
                 ('lg', f'ds_write_b32 v{vE4}, v{vCs+1} offset:128', 'cs'),
                 f'v_mul_f32 v{vSq}, {fbits(1/512)}, v{vSq}',
                 f'v_fma_f32 v{vSq}, -v{vMean}, v{vMean}, v{vSq}', f'v_max_f32 v{vSq}, 0, v{vSq}',
                 f'v_add_f32 v{vSq}, {fbits(1e-5)}, v{vSq}', f'v_mul_f32 v{vSq}, {fbits(LN2*LN2)}, v{vSq}',
                 f'v_rsq_f32 v{vRstd}, v{vSq}',
                 ('wlg', 'cs'), 's_barrier',
                 ('lg', f'ds_write2_b32 v{vE1}, v{vMean}, v{vRstd} offset1:32', 'sw')]
            S += [('lg', f'ds_read2_b32 {v2(vP+2*w)}, v{vE2} offset0:{96*w+32} offset1:{96*w+64}', 'r0') for w in range(2)]
            S += [('lg', f'ds_read2_b32 {v2(vP+2*w)}, v{vE2b} offset0:{96*(w-2)+32} offset1:{96*(w-2)+64}', 'r0') for w in range(2, 4)]
            S += [('lg', f'ds_read_b128 {vr(vM+4*i,4)}, v{vE3} offset:{SC+i*32}', 'r1') for i in range(4)]
            S += [('lg', f'ds_read2_b32 {v2(vP+8)}, v{vE2} offset0:0 offset1:96', 'rq'), ('lg', f'ds_read2_b32 {v2(vP+10)}, v{vE2b} offset0:0 offset1:96', 'rq')]
            S += [('lg', f'ds_read_b128 {vr(vR+4*i,4)}, v{vE3} offset:{SC+128+i*32}', 'r2') for i in range(4)]
            S += [('wlg', 'r0'), f'v_add_f32 v{vP}, v{vP}, v{vP+2}', f'v_add_f32 v{vP+4}, v{vP+4}, v{vP+6}',
                  f'v_add_f32 v{vP+1}, v{vP+1}, v{vP+3}', f'v_add_f32 v{vP+5}, v{vP+5}, v{vP+7}',
                  f'v_add_f32 v{vCs+1}, v{vP}, v{vP+4}', f'v_add_f32 v{vCs+2}, v{vP+1}, v{vP+5}',
                  ('wlg', 'rq'), f'v_add_f32 v{vP+8}, v{vP+8}, v{vP+9}', f'v_add_f32 v{vP+10}, v{vP+10}, v{vP+11}', f'v_add_f32 v{vCs}, v{vP+8}, v{vP+10}',
                  ('lg', f'ds_write_b32 v{vE1}, v{vCs} offset:256', 'qw')]
            S += [('lg', f'ds_read_b128 {vr(vCq+4*i,4)}, v{vE3} offset:{SC+256+i*32}', 'r3') for i in range(4)]
            K1 = [f'v_fma_f32 v{vK+r}, -v{vM+r}, v{vCs+1}, v{vK+r}' for r in range(16)]
            K1 += [('wlg', 'r2')] + [f'v_fma_f32 v{vK+r}, v{vK+r}, v{vR+r}, s{sE}' for r in range(16)]
            weave(g, mf, [[(0, 11, S), (9, 12, K1[:8])], DSEG], 24, 'A7')
    g.stamp('A.loop')
    def phi_mid(b):
        L = []
        for r in range(16):
            L += [f'v_exp_f32_e64 v{vEx+r}, v{b+r} clamp', f'v_max_f32 v{b+r}, s{sE}, v{b+r}']
        return L
    def phi_end(b, d):
        L = [f'v_pk_fma_f32 {v2(b+2*i)}, {v2(b+2*i)}, s[{sL}:{sL+1}], {v2(vEx+2*i)} op_sel_hi:[1,0,1]' for i in range(8)]
        return L + [f'v_cvt_pk_bf16_f32 v{d+i}, v{b+2*i}, v{b+2*i+1}' for i in range(8)]
    EP = K1[8:] + phi_mid(vK)
    EP += [f'v_pk_fma_f32 {v2(vV+2*i)}, {v2(vM+2*i)}, {v2(vCs+2)}, {v2(vV+2*i)} op_sel_hi:[1,0,1] neg_lo:[1,0,0] neg_hi:[1,0,0]' for i in range(8)]
    EP += [f'v_pk_mul_f32 {v2(vV+2*i)}, {v2(vV+2*i)}, {v2(vR+2*i)}' for i in range(8)]
    EP += phi_end(vK, vPK)
    EP += [f'v_cvt_pk_bf16_f32 v{vPV+i}, v{vV+2*i}, v{vV+2*i+1}' for i in range(8)]
    EP += [f'v_permlane16_swap_b32 v{vPK+i}, v{vPK+4+i}' for i in range(4)]
    EP += [f'v_permlane16_swap_b32 v{vPV+i}, v{vPV+4+i}' for i in range(4)]
    sprinkle(EP, rest + cut(WOL, WN[8]) + (PF if PFS == 'e' else []))
    g.stamp('A.ep')
    lg.wait('r3')
    Q1 = [f'v_fma_f32 v{vQ+r}, -v{vMean}, v{vCq+r}, v{vQ+r}' for r in range(16)]
    mf = [(f'v_mfma_f32_16x16x32_bf16 {vr(vD2+8,4)}, {vr(vPK,4)}, {vr(vOnes,4)}, 0', []),
          (f'v_mfma_f32_16x16x32_bf16 {vr(vD2+12,4)}, {vr(vPK+4,4)}, {vr(vOnes,4)}, 0', []),
          (f'v_mfma_f32_16x16x32_bf16 {vr(vD2,4)}, {vr(vPK,4)}, {vr(vPV,4)}, 0', []),
          (f'v_mfma_f32_16x16x32_bf16 {vr(vD2+4,4)}, {vr(vPK+4,4)}, {vr(vPV+4,4)}, 0', [])]
    weave(g, mf, [[(0, 4, Q1[:10])]], 8, 'kv')
    a('s_mov_b32 exec_lo, 0x00010001')
    a('s_mov_b32 exec_hi, 0x00010001')
    a(f'ds_write_b128 v{vE6}, {vr(vD2+8,4)} offset:{SC+1024+256}')
    a(f'ds_write_b128 v{vE6}, {vr(vD2+12,4)} offset:{SC+1024+1088+256}')
    a('s_mov_b64 exec, -1')
    a(f'ds_write_b128 v{vE5}, {vr(vD2,4)} offset:{SC+1024}')
    a(f'ds_write_b128 v{vE5}, {vr(vD2+4,4)} offset:{SC+1024+1088}')
    sprinkle(Q1[10:] + [f'v_pk_fma_f32 {v2(vQ+2*i)}, {v2(vQ+2*i)}, {v2(vMean)}, s[{sE}:{sE+1}] op_sel:[0,1,0] op_sel_hi:[1,1,0]' for i in range(8)], cut(WOL, WN[9]))
    a('s_waitcnt lgkmcnt(0)')
    a('s_barrier')
    for i in range(3):
        for w in range(4):
            a(f'ds_read_b32 v{vD2+i*4+w}, v{vE8 if i < 2 else vE9} offset:{w*16384+i*1024}')
    a(f's_mul_i32 s78, s{s_hp}, 2176')
    a(f's_add_u32 s78, s78, {WS_KV}')
    vm.wait('dbg')
    a.label('LA_chk')
    a(f'v_cmp_ne_u32 vcc, 1, v{vDbg}')
    a('s_cbranch_vccnz LX_dbg')
    def ool_dbg():
        a.label('LX_dbg')
        a(f'buffer_load_dword v{vDbg}, v{vDbgA}, {SR(SRD_DBG)}, 0 offen{DO} sc1')
        a('s_waitcnt vmcnt(0)')
        guard(g)
        a('s_branch LA_chk')
    OOL.append(ool_dbg)
    a('s_waitcnt lgkmcnt(0)')
    for i in range(3):
        a(f'v_pk_add_f32 {v2(vD2+4*i)}, {v2(vD2+4*i)}, {v2(vD2+4*i+2)}')
    for i in range(3):
        a(f'v_add_f32 v{vD2+4*i}, v{vD2+4*i}, v{vD2+4*i+1}')
    a(f's_cmp_eq_u32 s{W}, 0')
    vm.issue(f'buffer_atomic_add_f32 v{vD2}, v{vE7}, {SR(SRD_WS)}, s78 offen', 'st')
    vm.issue(f'buffer_atomic_add_f32 v{vD2+4}, v{vE7}, {SR(SRD_WS)}, s78 offen offset:1024', 'st')
    a('s_cbranch_scc0 LA_noat')
    a('s_mov_b32 exec_hi, 0')
    a(f'buffer_atomic_add_f32 v{vD2+8}, v{vE7}, {SR(SRD_WS)}, s78 offen offset:2048')
    a('s_mov_b32 exec_hi, -1')
    a.label('LA_noat')
    g.stamp('A.atom')
    a(f's_lshl_b32 s79, s{s_hp}, 11')
    a(f's_add_u32 s78, s{s_x}, s79')
    sprinkle(phi_mid(vQ) + phi_end(vQ, vPK), cut(WOL, WN[10]) + (PF if PFS == 'q' else []), 60)
    vm.issue(f'buffer_store_dwordx4 {vr(vPK,4)}, v{vL16}, {SR(SRD_WS)}, s78 offen sc1', 'st')
    vm.issue(f'buffer_store_dwordx4 {vr(vPK+4,4)}, v{vL16}, {SR(SRD_WS)}, s78 offen offset:1024 sc1', 'st')
    g.stamp('A.pq')
    vA0 = 4
    vF1 = 39
    vGd = 16
    vG0 = 224
    OX = 131072
    vKV = 40; vPQ = 104; vD = 136; vBa = 200; vH = 216
    vSa = 28
    U = 100
    E1 = [f's_lshl4_add_u32 s79, s{s_hp}, s{s_rb}', f's_lshl_b32 s79, s79, {FSH}', f's_add_u32 s79, s79, {FA}',
          f's_mov_b64 s[{SRD_FL}:{SRD_FL+1}], s[{SRD_WS}:{SRD_WS+1}]', f's_cmp_eq_u32 s{W}, 0\ns_cselect_b32 s{SRD_FL+2}, {WS_SIZE}, 0',
          f'v_mov_b32 v{vF1}, 1',
          f'v_bfe_u32 v{U}, v0, 2, 3', f'v_bfe_u32 v{U+1}, v0, 2, 2', f'v_bfe_u32 v{U+2}, v0, 4, 1',
          f'v_lshl_add_u32 v{U+1}, v{U+2}, 3, v{U+1}', f'v_lshlrev_b32 v{U+1}, 8, v{U+1}', f'v_and_b32 v{U+2}, 3, v0',
          f'v_lshl_add_u32 v{U+1}, v{U+2}, 3, v{U+1}', f's_lshl_b32 s76, s{W}, 1', f'v_xor_b32 v{U}, s76, v{U}',
          f'v_lshrrev_b32 v{U+3}, 2, v0', f'v_lshlrev_b32 v{U+3}, 8, v{U+3}', f'v_lshl_add_u32 v{U+3}, v{U+2}, 3, v{U+3}',
          f'v_lshl_add_u32 v{vG0}, v{U}, 5, v{U+3}', f'v_xor_b32 v{vG0+1}, 32, v{vG0}', f'v_add_u32 v{vG0+2}, 65536, v{vG0}', f'v_add_u32 v{vG0+3}, 65536, v{vG0+1}',
          f'v_lshl_add_u32 v{U+1}, v{U}, 5, v{U+1}', f'v_lshrrev_b32 v{U+2}, 5, v0',
          f'v_lshl_add_u32 v{vA0}, v{U+2}, 14, v{U+1}', f'v_lshl_add_u32 v{vA0+1}, v{U+2}, 12, v{U+1}', f'v_add_u32 v{vA0+1}, {98304+4096}, v{vA0+1}']
    for wp in range(4):
        E1 += [f'v_mul_u32_u24 v{U+3}, {32768+12288*wp}, v{U+2}', f'v_add_u32 v{vA0+2+wp}, v{U+3}, v{U+1}', f'v_add_u32 v{vA0+2+wp}, {65536+4096*wp}, v{vA0+2+wp}']
    E1 += [f'v_xor_b32 v{vA0+6+i}, 32, v{vA0+i}' for i in range(6)]
    E1 += [f's_mov_b32 s86, s{s_rb}', f's_and_b32 s70, s{S_J}, 7', f's_lshl3_add_u32 s70, s{S_XC}, s70', f's_lshr_b32 s71, s{S_J}, 3',
           f's_and_b32 s76, s{S_XC}, 1', f's_mul_i32 s76, s76, 7', f's_lshr_b32 s87, s{S_J}, 2', f's_add_u32 s87, s87, s76',
           f'v_and_b32 v{U}, 15, v0', f'v_lshrrev_b32 v{U+1}, 4, v0', f'v_lshlrev_b32 v{U+2}, 1, v{U+1}', f'v_xor_b32 v{U+2}, v{U}, v{U+2}',
           f'v_lshlrev_b32 v{U+2}, 4, v{U+2}', f'v_mul_u32_u24 v{U+3}, 3584, v{U+1}', f'v_add_u32 v{vGd}, v{U+3}, v{U+2}',
           f'v_xor_b32 v{U+2}, 128, v{U+2}', f'v_add_u32 v{vGd+1}, v{U+3}, v{U+2}', f'v_add_u32 v{vGd+1}, {4*3584-1024}, v{vGd+1}',
           f'v_add_u32 v{vGd+2}, {2*(4*3584-1024)}, v{vGd}', f'v_add_u32 v{vGd+3}, {2*(4*3584-1024)}, v{vGd+1}',
           f's_and_b32 s76, s{W}, 1', f's_mul_i32 s88, s76, {64*3584}', f's_lshl_b32 s76, s87, 8', f's_add_u32 s88, s88, s76', f's_lshl_b32 s89, s{W}, 14']
    def idle_gu():
        a(f's_cmp_lt_u32 s{S_J}, 28')
        a('s_cbranch_scc1 LE_ni')
        a(f's_and_b32 s88, s{S_J}, 3')
        a(f's_lshl2_add_u32 s88, s88, s{W}')
        a(f's_lshl_b32 s88, s88, 12')
        for i in range(4): a(f'v_mov_b32 v{vGd+i}, v{vL16}')
        a.label('LE_ni')
    E2 = [f'v_and_b32 v{vT}, 31, v0', f'v_min_u32 v{vT}, 16, v{vT}', f'v_lshrrev_b32 v{vT+1}, 5, v0', f'v_mul_u32_u24 v{vT+1}, 272, v{vT+1}',
          f'v_lshl_add_u32 v{vT}, v{vT}, 4, v{vT+1}',
          f's_mul_i32 s72, s{W}, {8*1088}', f's_add_u32 s72, s72, {WS_KV}', f's_add_u32 s73, s72, {3*1088}', f's_add_u32 s76, s72, {6*1088}',
          f's_lshl_b32 s81, s70, 15', f's_lshl_b32 s78, s{W}, 13', f's_add_u32 s81, s81, s78', f's_add_u32 s75, s81, 4096',
          f's_lshl_b32 s82, s{W}, {FSH+6}', f's_add_u32 s82, s82, {FA}', f's_add_u32 s78, s78, {OX}',
          f'v_lshlrev_b32 v{vT+1}, {FSH}, v0', f'v_mov_b32 v{vT+5}, {fbits(LOG2E)}', f'v_add_u32 v{vT+2}, s78, v{vL16}',
          f'v_and_b32 v{vT+3}, 15, v0', f'v_lshrrev_b32 v{vT+4}, 4, v0',
          f'v_and_b32 v{vSa}, 1, v{vT+4}', f'v_lshl_add_u32 v{vSa}, v{vT+3}, 1, v{vSa}', f'v_and_b32 v{vT+6}, 32, v0', f'v_add_lshl_u32 v{vSa}, v{vSa}, v{vT+6}, 2',
          f'v_lshlrev_b32 v{vT+4}, 9, v{vT+4}', f'v_lshl_add_u32 v{vT+3}, v{vT+3}, 4, v{vT+4}', f'v_add_u32 v{vT+3}, {OX}, v{vT+3}']
    for i in range(8):
        E2 += [f'v_lshlrev_b32 v{vBa+2*i}, 16, v{vXres+i}', f'v_and_b32 v{vBa+2*i+1}, 0xffff0000, v{vXres+i}']
    def dma_gu(sg):
        L = []
        for blk in range(4):
            L += [f's_add_u32 m0, s89, {(sg&1)*65536+blk*4096}', f's_add_u32 s83, s88, {(sg*128+blk*16)*3584}']
            for i in range(4):
                L.append(('vm', f'buffer_load_dwordx4 v{vGd+i}, {SR(SRD_WGU)}, s83 offen offset:{i*1024} lds', f'S{sg}{"ab"[blk>>1]}'))
        return L
    def aWO(t, ks): return 128 + (t*16 + ks)*4
    def rd_wo(prs):
        L = []
        for ks in range(16):
            wp, pr = ks >> 2, ks & 3
            if pr not in prs: continue
            for t in range(2):
                if pr < 2: ad, off = vA0, 4096*(8*pr + wp)
                elif pr == 2: ad, off = vA0+2+wp, 0
                else: ad, off = vA0+1, 16384*wp
                for h2 in range(2):
                    L.append(('lg', f'ds_read_b64_tr_b16 {ar(aWO(t,ks)+2*h2,2)}, v{ad+6*t} offset:{off+h2*1024}', f'wo{min(prs)}'))
        return L
    def aGU(rt, ks): return (ks >> 3)*128 + (rt*8 + (ks & 7))*4
    def rd_gu(*X):
        L = []
        for rt in range(4):
            for x in X:
                sg = int(x[0])
                for k4 in ((0, 2) if x[1] == 'a' else (1, 3)):
                    for h2 in range(2):
                        L.append(('lg', f'ds_read_b64_tr_b16 {ar(aGU(rt, sg*4+k4)+2*h2,2)}, v{vG0+2*(sg&1)+(rt>>1)} offset:{(rt&1)*32768+k4*8192+h2*4096}', f'g{x}'))
        return L
    pend = []; freed = set(); rdone = set()
    def spec(t):
        R = []
        for it in t.split(','):
            if not it: continue
            q, S_, G_ = (it.split(':') + ['', ''])[:3]
            R.append((int(q), [S_[i:i+2] for i in range(0, len(S_), 2)], [G_[i:i+2] for i in range(0, len(G_), 2)]))
        return R
    def stage(n, sp, q0, step, maxsg, name, slack=3):
        fx = [[] for _ in range(n)]; start = {x: 0 for x in pend}; gate = {}; order = list(pend)
        for q, S_, G_ in sp:
            if S_: fx[q].append(('wvm',) + tuple('S'+x for x in S_))
            if G_: fx[q].append(('wlg',) + tuple('g'+x for x in G_))
            fx[q] += ['s_barrier'] + g.st(f'{name}.{"".join(S_)}:{"".join(G_)}')
            for x in S_: start[x] = q; order.append(x)
            for x in G_: gate[x] = q
        RSEG = []; del pend[:]
        for x in order:
            if int(x[0]) > maxsg: pend.append(x); continue
            RSEG.append((start[x], gate.get(x, n+slack)-slack, rd_gu(x))); rdone.add(x)
        for x in gate: assert x in rdone, x
        LSEG = []; q = q0
        while SS:
            t = [y for y in SS if cls(y) == 1][0][2]
            if t[0] == 'S' and int(t[1]) >= 2:
                x = str(int(t[1])-2) + t[2]
                if x not in freed:
                    if x not in gate: break
                    q = max(q, gate[x])
            if int(q) >= n: break
            LSEG.append((int(q), min(n, int(q)+2), cutm(SS))); q += step
        freed.update(gate)
        return fx, RSEG, LSEG
    nw = sum(1 for x in WOL if ismem(x))
    FK = int(cfg.get('fk', 10)); RK = int(cfg.get('rk', 8)); N0 = int(cfg.get('n0', 8)); N1 = int(cfg.get('n1', 0))
    sprinkle(E1, cut(WOL, min(FK, nw - RK)))
    if cfg.get('iw'): idle_gu()
    vm.wait('st')
    a('s_barrier')
    vm.issue(f'buffer_store_dword v{vF1}, off, {SR(SRD_FL)}, s79 sc1', 'flag')
    g.stamp('E.flag')
    if TL.get('fl'):
        a(f's_mov_b32 s82, s87')
        a(f's_lshl2_add_u32 s87, s{S_J}, s{W}')
        g.emits(touch('fl'))
        a(f's_mov_b32 s87, s82')
    nw = sum(1 for x in WOL if ismem(x))
    sprinkle(E2, cut(WOL, nw - RK))
    vm.wait('wo0')
    a('s_barrier')
    g.stamp('E.wo0')
    PL = ('vm', f'buffer_load_dword v{vD}, v{vT+1}, {SR(SRD_WS)}, s82 offen sc1', 'pl')
    NPL = int(cfg.get('np', 0))
    sprinkle(rd_wo((0, 1)), WOL + ([] if NPL else [PL]))
    SS = dma_gu(0) + dma_gu(1) + dma_gu(2) + dma_gu(3)
    lg.wait_all()
    a('s_barrier')
    if NPL: g.emits(cut(SS, NPL) + [PL])
    g.emits(cut(SS, N0 - NPL))
    vm.wait('pl')
    g.stamp('E.wo')
    def ldkv():
        L = []
        for h in range(8):
            so = (72, 73, 76)[h//3]
            for q in range(2):
                L.append(('vm', f'buffer_load_dwordx4 {vr(vKV+h*8+q*4,4)}, v{vT}, {SR(SRD_WS)}, s{so} offen offset:{(h%3)*1088+q*544} sc1', f'kv{h}'))
            L.append(('vm', f'buffer_load_dwordx4 {vr(vPQ+h*4,4)}, v{vL16}, {SR(SRD_WS)}, s{81 if h<4 else 75} offen offset:{(h&3)*1024} sc1', f'kv{h}'))
        return L
    a(f'v_cmp_gt_u32 vcc, 1, v{vD}')
    a('s_cbranch_vccnz LX_early')
    SN1 = cut(SS, N1)
    def ool_early():
        a.label('LX_early')
        vm.q = []; lg.q = []
        a('s_barrier')
        g.emits(rd_wo((2, 3)))
        poll(g, 'LB_poll', vT+1, vD, 1, 82, '1')
        g.emits(ldkv())
        g.emits(SN1)
        a('s_branch LB_join')
    OOL.append(ool_early)
    KV = ldkv()
    g.emits(cut(KV, int(cfg.get('kh', 6))))
    a('s_barrier')
    sprinkle(rd_wo((2, 3)), KV + SN1)
    a.label('LB_join')
    g.stamp('B.sync')
    a(f's_lshl2_add_u32 s72, s71, s{W}')
    a(f's_lshl_b32 s73, s70, 15')
    a(f's_lshl_b32 s74, s72, 10')
    a(f's_add_u32 s73, s73, s74')
    a(f's_add_u32 s73, s73, {WS_H}')
    a(f's_add_u32 s75, s73, 16384')
    a(f's_lshl4_add_u32 s74, s70, s72')
    a(f's_lshl_b32 s74, s74, 8')
    a(f's_add_u32 s74, s74, {WS_STATS}')
    lg.wait_all()
    R0A = N0 >= 8 and not cfg.get('nr0')
    if R0A: vm.wait('S0a')
    a('s_barrier')
    g.stamp('B.rd')
    if R0A: g.emits(rd_gu('0a')); rdone.add('0a'); freed.add('0a')
    def Dreg(h): return vD + (h % 4)*16
    def cvtkv(h):
        vm.wait(f'kv{h}')
        b = vKV + h*8
        for i in range(4): a(f'v_cvt_pk_bf16_f32 v{b+i}, v{b+2*i}, v{b+2*i+1}')
    def mmo(h): a(f'v_mfma_f32_32x32x16_bf16 {vr(Dreg(h),16)}, {vr(vKV+h*8,4)}, {vr(vPQ+h*4,4)}, 0')
    def den(h):
        d = Dreg(h)
        a(f'v_fma_f32 v{d+8}, v{d+8}, v{vT+5}, s{sE}')
        a(f'v_rcp_f32 v{d+8}, v{d+8}')
    assert N0 + N1 <= 16
    S1 = SS
    S1N = [int(x) for x in cfg.get('s1n', '2,2,2,2,2,2,2,1,1').split(',')]
    assert N0 + N1 + sum(S1N) <= 32
    g.emits(cut(S1, S1N[8]))
    cvtkv(0); cvtkv(1); mmo(0); cvtkv(2); mmo(1); den(0)
    g.stamp('B.kv')
    for h in range(8):
        d = Dreg(h)
        for i in range(4): a(f'v_pk_mul_f32 {v2(d+2*i)}, {v2(d+2*i)}, {v2(d+8)} op_sel_hi:[1,0]')
        if h + 2 < 8: mmo(h+2)
        g.emits(cut(S1, (S1N[h]+1)//2))
        for i in range(4): a(f'v_cvt_pk_bf16_f32 v{d+12+i}, v{d+2*i}, v{d+2*i+1}')
        if h + 1 < 8: den(h+1)
        lg.issue(f'ds_write_b128 v{vT+2}, {vr(d+12,4)} offset:{h*1024}', 'ow')
        g.emits(cut(S1, S1N[h]//2))
        if h + 3 < 8: cvtkv(h+3)
    lg.wait_all()
    BO = spec('0:' + cfg.get('bo', '0b').strip('-'))[0][1]
    if BO: vm.wait(*['S'+x for x in BO])
    pend += BO
    a('s_barrier')
    g.stamp('B.o')
    vO = 40
    def rdo(i): return ('lg', f'ds_read_b128 {vr(vO+i*4,4)}, v{vT+3} offset:{(i&15)*2048+(i>>4)*256}', f'o{i}')
    for i in range(12): g.emit(rdo(i))
    vS = 20
    def epiB(ch):
        m, t = ch >> 1, ch & 1
        b = vBa + 4*ch
        L = [f'v_cvt_pk_bf16_f32 v{vH+2*ch+i}, v{b+2*i}, v{b+2*i+1}' for i in range(2)]
        if not t: L += [f'v_min_u32 v{vH+2*ch+i}, -2, v{vH+2*ch+i}' for i in range(2)]
        if t: L.append(('vm', f'buffer_store_dwordx4 {vr(vH+4*m,4)}, v{vL16}, {SR(SRD_WS)}, s{73+2*m} offen sc1', 'st'))
        for r in range(4):
            if t == 0 and r == 0:
                L += [f'v_add_f32 v{vS+2*m}, v{b}, v{b+1}', f'v_mul_f32 v{vS+2*m+1}, v{b}, v{b}']
            else:
                if not (t == 0 and r == 1): L.append(f'v_add_f32 v{vS+2*m}, v{vS+2*m}, v{b+r}')
                L.append(f'v_fmac_f32 v{vS+2*m+1}, v{b+r}, v{b+r}')
        return L
    assert N0 + N1 + sum(S1N) + int(cfg.get('nb0', 2)) <= (40 if R0A else 32)
    g.emits(cut(SS, int(cfg.get('nb0', 2))))
    lg.wait('o1')
    bfx, RSEG, LSEG = stage(64, spec(cfg.get('bb', '40:1a:0b')), float(cfg.get('bq', 2)), float(cfg.get('s1p', 4.5)), 1, 'X')
    mf = []
    for q in range(64):
        m, t, ks = q >> 5, (q >> 4) & 1, q & 15
        acc = vr(vBa + (2*m+t)*4, 4)
        fx = []
        q1 = q + 1
        if q1 < 64 and (q1 >> 4) & 1 == 0 and q1 % 2 == 0: fx.append(('wlg', f'o{(q1>>5)*16+(q1&15)+1}'))
        fx += bfx[q]
        if 12+q < 32: fx.append(rdo(12+q))
        mf.append((f'v_mfma_f32_16x16x32_bf16 {acc}, {ar(aWO(t,ks),4)}, {vr(vO+(m*16+ks)*4,4)}, {acc}', fx))
    weave(g, mf, [[(19, 34, epiB(0)), (35, 50, epiB(1)), (51, 64, epiB(2))], LSEG, RSEG], 8, 'B')
    print('S left after B', sum(1 for x in SS if cls(x) == 1), file=sys.stderr)
    g.emits(epiB(3))
    a(f'v_permlane32_swap_b32 v{vS}, v{vS+2}')
    a(f'v_permlane32_swap_b32 v{vS+1}, v{vS+3}')
    a(f'v_add_f32 v{vS}, v{vS}, v{vS+2}')
    a(f'v_add_f32 v{vS+1}, v{vS+1}, v{vS+3}')
    a(f'v_permlane16_swap_b32 v{vS}, v{vS+1}')
    a(f'v_add_f32 v{vS}, v{vS}, v{vS+1}')
    a(f'v_min_u32 v{vS}, -2, v{vS}')
    vm.issue(f'buffer_store_dword v{vS}, v{vSa}, {SR(SRD_WS)}, s74 offen sc1', 'st')
    g.stamp('B.st')
    vHf = 40; vCa = 104; vCsum = 120; vK4 = 136; vGt = 144; vOut = 156
    vDr = 4; vDd = 35; vHa = 20; vKa = 22; vPa = 23; vPl = 24; vOa = 25; vWa = 26; vRa = (27, 28, 2)
    vSt = 160
    CONST = 147456
    vCk, vCv, vH0 = 3, 30, 34
    sWD = 47
    def csum(sgs):
        mf = []
        for rt in range(4):
            for sg in sgs:
                for k4 in range(4):
                    ks = sg*4 + k4
                    acc = vr(vCsum+rt*4, 4)
                    mf.append((f'v_mfma_f32_16x16x32_bf16 {acc}, {ar(aGU(rt,ks),4)}, {vr(vOnes,4)}, {"0" if ks==0 else acc}', []))
        return mf
    SU = [f's_lshl_b32 s73, s86, 17', f's_add_u32 s73, s73, s85', f's_add_u32 s73, s73, {WS_H}',
          f's_lshl_b32 s74, s86, 14', f's_add_u32 s74, s74, s85', f's_add_u32 s74, s74, {WS_STATS}',
          f's_and_b32 s70, s{S_J}, 1', f's_lshl1_add_u32 s70, s{S_XC}, s70', f's_lshr_b32 s71, s{S_J}, 2', f's_bfe_u32 s72, s{S_J}, 0x10001',
          f's_mul_i32 s75, s86, {8*56}', f's_lshl2_add_u32 s76, s87, s{W}', f's_add_u32 s75, s75, s76', f's_lshl_b32 s75, s75, 10', f's_add_u32 s75, s75, {WS_ACT}',
          f's_lshl4_add_u32 s77, s86, s87', f's_lshl_b32 s77, s77, {FSH}', f's_add_u32 s77, s77, {FC}',
          f's_mov_b64 s[{SRD_ACT}:{SRD_ACT+1}], s[{SRD_WS}:{SRD_WS+1}]', f's_cmp_ge_u32 s{S_J}, 28\ns_cselect_b32 s{SRD_ACT+2}, 0, {WS_SIZE}']
    SU2 = [f's_lshl_b32 s79, s70, {FSH+4}', f's_add_u32 s79, s79, {FC}', f's_lshl_b32 s80, s72, 15', f's_add_u32 s80, s80, s79', f's_add_u32 s81, s80, {3*32768}', f's_add_u32 s80, s80, 32768',
           f's_and_b32 s{SRD_FL+2}, s{SRD_FL+2}, s{SRD_ACT+2}',
           f's_lshl3_add_u32 s87, s70, s72', f's_mul_i32 s82, s87, 56', f's_mul_i32 s76, s{W}, 14', f's_add_u32 s82, s82, s76',
           f's_lshl_b32 s82, s82, 10', f's_add_u32 s82, s82, {WS_ACT}',
           f's_lshl_b32 s78, s87, 14', f's_lshr_b32 s86, s{W}, 1', f's_lshl1_add_u32 s86, s71, s86', f's_lshl_b32 s86, s86, 10',
           f's_add_u32 s86, s86, s78', f's_and_b32 s87, s{W}, 1', f's_lshl3_add_u32 s86, s87, s86', f's_add_u32 s86, s86, {WS_H}',
           f's_lshl_b32 s87, s71, 7', f's_add_u32 s78, s78, s87', f's_mul_i32 s{sWD}, s{W}, {448*1024}', f's_add_u32 s{sWD}, s{sWD}, s87',
           f's_lshl_b32 s87, s{W}, 5', f's_add_u32 s78, s78, s87']
    VU = [f'v_lshrrev_b32 v{vT}, 3, v0', f'v_and_b32 v{vT+1}, 7, v0', f'v_and_b32 v{vT+2}, 6, v{vT}', f'v_xor_b32 v{vT+1}, v{vT+1}, v{vT+2}',
          f'v_lshlrev_b32 v{vT+1}, 4, v{vT+1}', f'v_lshl_add_u32 v{vDd}, v{vT}, 10, v{vT+1}']
    VU += [f'v_add_u32 v{vDd+i}, {i*(8192-1024)}, v{vDd}' for i in range(1, 4)]
    VU += [f'v_mov_b32 v{vHa}, v{vL16}', f'v_add_u32 v{vHa+1}, 65536, v{vL16}', f'v_and_b32 v{vT}, 15, v0',
           f'v_lshlrev_b32 v{vKa}, 4, v{vT}', f'v_add_u32 v{vKa}, {CONST}, v{vKa}',
           f'v_lshrrev_b32 v{vT+1}, 4, v0', f'v_lshlrev_b32 v{vT+1}, 3, v{vT+1}', f'v_lshl_add_u32 v{vOa}, v{vT}, 10, v{vT+1}',
           f'v_add_u32 v{vH0}, 131072, v{vL16}',
           f'v_bfe_u32 v{vT+1}, v0, 4, 1', f'v_lshl_add_u32 v{vCk}, v{vT+1}, 2, v{vH0}', f'v_add_u32 v{vCk}, s85, v{vCk}',
           f'v_add_u32 v{vWa}, s85, v{vL16}']
    VU += [f'v_xor_b32 v{vRa[tau-1]}, {4096*tau}, v{vWa}' for tau in range(1, 4)]
    VP = [f'v_min_u32 v{vT}, 13, v0', f'v_add_u32 v{vT}, s76, v{vT}', f'v_lshrrev_b32 v{vT}, 2, v{vT}', f'v_lshlrev_b32 v{vPa}, {FSH}, v{vT}']
    def haddr(s): return 16384*s if s else 131072
    def dma_h(s, so=83):
        L = [f's_add_u32 m0, s85, {haddr(s)}', f's_add_u32 s{so}, s73, {16384*s}']
        for i in range(4):
            L.append(('vm', f'buffer_load_dwordx4 v{vL16}, {SR(SRD_WS)}, s{so} offen offset:{i*1024} sc1 lds', f'h{s}'))
        return L
    STL = [('vm', f'buffer_load_dwordx4 {vr(vSt+4*i,4)}, v{vL16}, {SR(SRD_WS)}, s74 offen offset:{i*1024} sc1', 'stats') for i in range(4)]
    VD = [f'v_lshrrev_b32 v{vT}, 2, v0', f'v_bfe_u32 v{vT+1}, v0, 3, 2', f'v_xor_b32 v{vT+1}, s{W}, v{vT+1}', f'v_lshlrev_b32 v{vT}, 7, v{vT}',
          f'v_lshl_add_u32 v{vT}, v{vT+1}, 5, v{vT}', f'v_and_b32 v{vT+1}, 3, v0', f'v_lshl_add_u32 v{vT}, v{vT+1}, 3, v{vT}', f'v_add_u32 v{vT}, s85, v{vT}']
    for tau in range(4):
        VD += [f'v_xor_b32 v{vDr+3*tau}, {32*tau}, v{vT}', f'v_add_u32 v{vDr+3*tau+1}, 65536, v{vDr+3*tau}', f'v_add_u32 v{vDr+3*tau+2}, 131072, v{vDr+3*tau}']
    HP = int(cfg.get('hp', 16)); SP = int(cfg.get('sp', 8)); H1P = int(cfg.get('h1p', 0)); NL = int(cfg.get('nl', 25)); PR = 32/NL + 1e-6
    nz = sum(1 for x in SS if cls(x) == 1)
    assert HP % 4 == 0 and H1P % 4 == 0 and H1P <= SP <= HP < nz and PR >= 1
    Z1 = cut(SS, nz - HP); Z2 = cut(SS, HP - SP); Z3 = cut(SS, SP - H1P)
    SS[:0] = Z1 + g.st('P.hi') + dma_h(0) + Z2 + STL + Z3 + dma_h(1)
    assert nz - HP + 4 <= NL <= nz - H1P + 8
    PSP = spec(cfg.get('pb', '0:1b:1a,14:2a:1b,26:2b:'))
    assert PSP[0][0] <= (nz - HP)*PR
    def rdh(s, ks): return ('lg', f'ds_read_b128 {vr(vHf+ks*4,4)}, v{vHa+(s>>2) if s else vH0} offset:{(s&3)*16384+ks*1024}', f'f{ks}')
    def hchk1(s): return [('wvm', f'h{s}')] + [('lg', f'ds_read2st64_b32 {v2(vCv+2*i)}, v{vCk} offset0:{(s&3)*64+8*i} offset1:{(s&3)*64+8*i+4}', 'ck') for i in range(2)]
    HMX = [f'v_max3_u32 v{vCv}, v{vCv}, v{vCv+1}, v{vCv+2}', f'v_max_u32 v{vCv}, v{vCv}, v{vCv+3}']
    def hchk2a(): return [('wlg', 'ck')] + HMX
    MF = csum((0,)) + csum((1,))
    fx, RSEG, LSEG = stage(32, PSP, 0, PR, 2, 'P', 0)
    assert not pend and len(LSEG) == NL and {'1a', '1b'} <= freed
    q = 0
    for st_, en_, R in RSEG:
        q = max(q, st_); tg = R[0][2]
        while R: fx[q] += cut(R, 4); q += 1
        assert q <= en_, (tg, q, en_)
        assert q <= 15 or tg[1] == '2', (tg, q)
    fx[15].insert(0, ('wlg', 'g1a', 'g1b'))
    for st_, en_, R in LSEG: fx[st_] += R
    fx[int(cfg.get('hc', 30))] += hchk1(0)
    lg.wait('g0a', 'g0b')
    weave(g, [(m[0], sorted(f, key=cls)) for m, f in zip(MF, fx)], [[(0, 1, SU[:6]), (0, 10, SU[6:]), (8, 28, VU + SU2 + VP + VD)]], 56, 'P1')
    SREST = list(SS)
    def slot(sg): return haddr(sg-1) if sg else 0
    def dma_wd(p, sg):
        L = [f's_add_u32 m0, s85, {slot(sg)}', f's_add_u32 s83, s{sWD}, {p*32768}']
        for i in range(4):
            L.append(('vm', f'buffer_load_dwordx4 v{vDd+i}, {SR(SRD_WD)}, s83 offen offset:{i*1024} lds', f'wd{p}'))
        return L
    AW = {6: 64, 7: 80, 8: 192, 9: 208, 10: 96, 11: 112, 12: 224, 13: 240}
    def wdreg(p, tau):
        if p < 6: return 'v', 160 + p*16 + tau*4
        return 'a', AW[p] + tau*4
    def rd_wd(p, sg):
        L = []
        ad = slot(sg)
        for tau in (1, 2, 3, 0):
            f, r = wdreg(p, tau)
            for h2 in range(2):
                L.append(('lg', f'ds_read_b64_tr_b16 {vr(r+2*h2,2,f)}, v{vDr+3*tau+(ad>>16)} offset:{(ad&65535)+h2*2048}', f'rw{p}'))
        return L
    FINAL = {6: 4, 7: 2, 8: 5, 9: 0, 10: 6, 11: 3, 12: 7, 13: 1}
    def actreg(m, i):
        if m == 2: return vr(40 + 4*i, 4)
        b = 32*(m & 1 if m < 2 else 0)
        return ar(b + 4*i if i < 8 else 128 + b + 4*(i-8), 4)
    def ld_act(m):
        L = []
        for i in range(14):
            if i % 4 == 0: L.append(f's_add_u32 s70, s82, {(2*m*56+i)*1024}')
            L.append(('vm', f'buffer_load_dwordx4 {actreg(m,i)}, v{vL16}, {SR(SRD_WS)}, s70 offen offset:{(i&3)*1024} sc1', f'a{m}_{i}'))
        return L
    NA0 = int(cfg.get('na0', 12)); NW7 = int(cfg.get('nw7', 2))
    a(f's_cmp_ge_u32 s{S_J}, 28')
    a('s_cbranch_scc1 LC_idle')
    def ool_idle():
        a.label('LC_idle')
        vm.q = []; lg.q = []
        if cfg.get('iw'):
            g.emits([x for x in SREST if isinstance(x, str) or (not callable(x) and x[2][0] == 'S')])
            a(f's_and_b32 s70, s{S_J}, 3')
            a(f's_lshl_b32 s70, s70, 13')
            a(f's_mul_i32 s83, s{W}, {448*1024}')
            a(f's_add_u32 s70, s70, s83')
            a(f'v_lshlrev_b32 v{vTa}, 7, v0')
            for t in range(7):
                a(f's_add_u32 s83, s70, {(224+32*t)*1024}')
                a(f'buffer_load_dword v{vTa+1}, v{vTa}, {SR(SRD_WD)}, s83 offen')
        vm.wait_all(); lg.wait_all()
        a('s_barrier')
        for p in range(6): g.emits(dma_wd(p, p))
        vm.wait_all()
        for p in range(6): g.emits(rd_wd(p, p))
        lg.wait_all()
        for p in range(6, 14): g.emits(dma_wd(p, FINAL[p]))
        for i in range(int(cfg.get('isl', 0))): a('s_sleep 127')
        poll(g, 'LI_poll', vPa, vPl, 1, 79, '1')
        g.emits(cut(ld_act(0), NA0))
        for p in range(6, 6+NW7): g.emits(rd_wd(p, FINAL[p]))
        vm.wait_all(); lg.wait_all()
        a('s_branch LD_start')
    OOL.append(ool_idle)
    g.stamp('P.cs')
    def hchk2(s):
        def f():
            a.label(f'LH_{s}')
            a(f'v_cmp_eq_u32 vcc, {SEN}, v{vCv}')
            a(f's_cbranch_vccnz LX_h{s}')
        def o():
            a.label(f'LX_h{s}')
            a('s_mov_b32 s44, m0')
            for x in dma_h(s, 45): a(x if isinstance(x, str) else x[1])
            a('s_mov_b32 m0, s44')
            a('s_waitcnt vmcnt(0)')
            for x in hchk1(s)[1:]: a(x[1])
            a('s_waitcnt lgkmcnt(0)')
            for x in HMX: a(x)
            guard(g, 1 if s == 0 else 3)
            a(f's_branch LH_{s}')
        OOL.append(o)
        L = [f]
        if s == 0: L.append(f'v_subrev_u32 v{vCk}, 131072, v{vCk}')
        if s == 3: L.append(f'v_add_u32 v{vCk}, 65536, v{vCk}')
        return L
    vSm = 240
    SMX = [f'v_max3_u32 v{vSm+i}, v{vSt+3*i}, v{vSt+3*i+1}, v{vSt+3*i+2}' for i in range(2)]
    SMX += [f'v_max3_u32 v{vSm+(i&1)}, v{vSm+(i&1)}, v{vSt+6+2*i}, v{vSt+7+2*i}' for i in range(5)]
    SMX += [f'v_max_u32 v{vSm}, v{vSm}, v{vSm+1}']
    def schk():
        a.label('LS_chk')
        a(f'v_cmp_eq_u32 vcc, {SEN}, v{vSm}')
        a(f's_cbranch_vccnz LX_st')
    def ool_st():
        a.label('LX_st')
        for x in STL: a(x[1])
        a('s_waitcnt vmcnt(0)')
        for x in SMX: a(x)
        guard(g, 2)
        a('s_branch LS_chk')
    OOL.append(ool_st)
    c0 = -2*0.7978845608028654*LOG2E
    def consts():
        L = [('wvm', 'stats')] + SMX + [schk] + g.st('C.st')
        for st in (8, 4):
            for i in range(st): L.append(f'v_add_f32 v{vSt+i}, v{vSt+i}, v{vSt+i+st}')
        x, y = vSt, vSt+1
        o = vSt+4
        L += [f'v_lshrrev_b32 v{vSt+8}, 5, v0', f'v_and_b32 v{vSt+9}, 15, v0',
              f'v_permlane32_swap_b32 v{vSt}, v{vSt+2}', f'v_permlane32_swap_b32 v{vSt+1}, v{vSt+3}',
              f'v_add_f32 v{x}, v{x}, v{vSt+2}', f'v_add_f32 v{y}, v{y}, v{vSt+3}',
              f'v_mov_b32 v{vSt+2}, v{x}', f'v_mov_b32 v{vSt+3}, v{y}',
              f'v_lshl_add_u32 v{vSt+8}, v{vSt+9}, 1, v{vSt+8}', f's_lshl_b32 s76, s{W}, 9', f's_add_u32 s76, s76, {CONST}',
              f'v_permlane16_swap_b32 v{x}, v{vSt+2}', f'v_permlane16_swap_b32 v{y}, v{vSt+3}',
              f'v_add_f32 v{x}, v{x}, v{vSt+2}', f'v_add_f32 v{y}, v{y}, v{vSt+3}',
              f'v_mul_f32 v{o}, {fbits(-1/512)}, v{x}',
              f'v_mul_f32 v{y}, {fbits(1/512)}, v{y}',
              f'v_fma_f32 v{y}, -v{o}, v{o}, v{y}',
              f'v_max_f32 v{y}, 0, v{y}',
              f'v_add_f32 v{o+3}, {fbits(1e-5)}, v{y}',
              f'v_rsq_f32 v{x}, v{o+3}',
              f'v_lshl_add_u32 v{vSt+8}, v{vSt+8}, 4, s76',
              f'v_mul_f32 v{y}, v{x}, v{x}',
              f'v_mul_f32 v{o+1}, {fbits(c0)}, v{x}',
              f'v_mul_f32 v{y}, {fbits(0.044715)}, v{y}',
              f'v_mul_f32 v{o+2}, v{o+1}, v{y}',
              ('lg', f'ds_write_b128 v{vSt+8}, {vr(o,4)}', 'cw')]
        return L
    def gelu(pair, s):
        K = vK4 + 4*(s & 1)
        nm, k0, k1, vv = K, K+1, K+2, K+3
        ag = vCa + pair*8; au = ag + 4; cg = vCsum + pair*8; cu = cg + 4
        t, u, e = vGt, vGt+4, vGt+8
        L = []
        if pair == 0: L.append(('wlg', f'k{s}'))
        R = range(4)
        L += [f'v_fma_f32 v{t+i}, v{nm}, v{cg+i}, v{ag+i}' for i in R]
        L += [f'v_fma_f32 v{u+i}, v{nm}, v{cu+i}, v{au+i}' for i in R]
        n1 = len(L)
        L += [f'v_mul_f32 v{e+i}, v{t+i}, v{t+i}' for i in R]
        L += [f'v_fma_f32 v{e+i}, v{e+i}, v{k1}, v{k0}' for i in R]
        L += [f'v_mul_f32 v{e+i}, v{e+i}, v{t+i}' for i in R]
        L += [f'v_exp_f32 v{e+i}, v{e+i}' for i in R]
        L += [f'v_mul_f32 v{t+i}, v{t+i}, v{u+i}' for i in R]
        L += [f'v_fma_f32 v{e+i}, v{e+i}, v{vv}, v{vv}' for i in R]
        L += [f'v_rcp_f32 v{e+i}, v{e+i}' for i in R]
        L += [f'v_mul_f32 v{t+i}, v{t+i}, v{e+i}' for i in R]
        L += [f'v_cvt_pk_bf16_f32 v{vOut+2*pair+i}, v{t+2*i}, v{t+2*i+1}' for i in range(2)]
        if pair == 1:
            L.insert(n1, f's_add_u32 s76, s75, {s*56*1024}')
            L.append(('vm', f'buffer_store_dwordx4 {vr(vOut,4)}, v{vL16}, {SR(SRD_ACT)}, s76 offen sc1', f'act{s}'))
        return L
    def flagW(): return [('vm', f'buffer_store_dword v{vF1}, off, {SR(SRD_FL)}, s77 sc1', 'flag'), 's_add_u32 s77, s77, 32768']
    def flagC(n): return g.st(f'F.{n}a') + [('wvm', f'act{n-1}'), 's_barrier'] + g.st(f'F.{n}b') + flagW()
    PS = {'p1': 79, 'p2': 80, 'p3': 81}
    def pload(tag): return [('vm', f'buffer_load_dword v{vPl}, v{vPa}, {SR(SRD_WS)}, s{PS[tag]} offen sc1', tag)]
    def pcheck(tag, need=1):
        def f():
            a.label(f'LP_{tag}')
            a(f'v_cmp_gt_u32 vcc, {need}, v{vPl}')
            a(f's_cbranch_vccnz LX_{tag}')
        def o():
            a.label(f'LX_{tag}')
            a(f'buffer_load_dword v{vPl}, v{vPa}, {SR(SRD_WS)}, s{PS[tag]} offen sc1')
            a('s_waitcnt vmcnt(0)')
            guard(g, 5 if tag == 'p3' else 4)
            a(f's_branch LP_{tag}')
        OOL.append(o)
        return g.st(f'Q.{tag}a') + [('wvm', tag)] + g.st(f'Q.{tag}b') + [f] + g.st(f'Q.{tag}c')
    lg.wait_all()
    g.emits(hchk2a() + hchk2(0))
    a('s_barrier')
    g.stamp('C.h0')
    for ks in range(8): g.emit(rdh(0, ks))
    g.emits(cutm(SS))
    lg.wait('f3')
    mf = []; GS = []; DS = []; RS = []; XS = []
    X1, X2, X3, CQ = int(cfg.get('x1', 55)), int(cfg.get('x2', 72)), int(cfg.get('x3', 86)), int(cfg.get('cq', 30))
    BQ = [X3, int(cfg.get('bq1', 30))] + [13]*6
    LAG = [int(x) for x in cfg.get('lag', '16,10,5,0,0,0,0,0').split(',')]
    base = lambda s: 64*s + 32 if s else 0
    def cm(rt, ks): return f'v_mfma_f32_16x16x32_bf16 {vr(vCa+rt*4,4)}, {ar(aGU(rt,ks),4)}, {vr(vHf+ks*4,4)}, {"0" if ks==0 else vr(vCa+rt*4,4)}'
    def kread(s): return ('lg', f'ds_read_b128 {vr(vK4+4*(s&1),4)}, v{vKa} offset:{s*256}', f'k{s}')
    CS3 = csum((3,))
    M0 = [cm(rt, ks) for rt in range(4) for ks in range(12)] + [m[0] for m in csum((2,))]
    for hf in range(2):
        for rt in range(4): M0 += [cm(rt, 12+hf), cm(rt, 14+hf), CS3[4*rt+hf][0], CS3[4*rt+2+hf][0]]
    fx = [[] for _ in M0]
    fx[3].append(('wlg', 'f7')); fx[7].append(('wlg', 'f11'))
    fx[X1] += [('wvm', 'S3a'), ('wlg', 'f15'), 's_barrier'] + g.st('C.x1')
    fx[X2] += [('wvm', 'S3b'), ('wlg', 'cw'), 's_barrier'] + g.st('C.x2')
    for hf in range(2):
        for rt in (0, 2): fx[63+16*hf+4*rt].append(('wlg', f'r{hf}{rt+1}'))
    fx[81].append(kread(0))
    fx[X3-int(cfg.get('x3c', 7))] += hchk1(1)
    fx[X3-2] += hchk2a()
    fx[X3-1] += [('wlg', 'r13')] + hchk2(1)
    fx[X3] += ['s_barrier'] + g.st('C.x3')
    fx[94] += [rdh(1, 13)]; fx[95] += [('wlg', 'f3')] + g.st('C.it0') + [rdh(1, 15)]
    assert X1 < 62 and 64 <= X2 < 78 and X2 + 6 <= X3 - 1 and X3 <= 90
    mf += [(m, sorted(f, key=cls)) for m, f in zip(M0, fx)]
    R3 = [[(x[0], x[1], f'r{hf}{i>>2}') for i, x in enumerate(rd_gu('3'+'ab'[hf]))] for hf in range(2)]
    RS += [(0, 4, [rdh(0, k_) for k_ in range(8, 16)]), (X1, min(X1+4, 62), R3[0][:8]), (X1, X1+8, R3[0][8:]), (X2, min(X2+3, 78), R3[1][:8]), (X2, X2+6, R3[1][8:]),
           (X3, X3+2, [rdh(1, k_) for k_ in range(4)]), (X3, 94, [rdh(1, k_) for k_ in (4, 5, 6, 7, 8, 9, 10, 11, 12, 14)])]
    GS.append((CQ, X2-2, consts()))
    for s in range(8):
        bq = BQ[s]; B = base(s); E = base(s+1)
        for q in range(64 if s else 0):
            rt, ks = q >> 4, q & 15
            fx = []
            if q in (3, 7, 11): fx.append(('wlg', f'f{q+4}'))
            if q == 63 and s < 7: fx.append(('wlg', 'f3'))
            if q == bq-9 and s < 7: fx += hchk1(s+1)
            if q == bq-2 and s < 7: fx += hchk2a()
            if q == bq-1:
                if s >= 5: fx.append(('wvm', f'act{s-2}'))
                if s < 7: fx += hchk2(s+1)
            if q == bq: fx.append('s_barrier')
            if q == 14: fx.append(kread(s))
            if q == 63: fx += g.st(f'C.it{s}')
            if rt == 3 and s < 7: fx.append(rdh(s+1, ks))
            mf.append((cm(rt, ks), fx))
        g0 = gelu(0, s); g1 = gelu(1, s)
        if s: GS.append((B+34, E-1, g0[:9]))
        else: GS += [(86, 95, g0[:5]), (90, 100, g0[5:9])]
        GS.append((B+34, E+8+LAG[s] if s < 7 else E, g0[9:]))
        GS.append((E+2, E+31, g1[:8])); GS.append((E+2, E+40+LAG[s], g1[8:]))
        if s >= 5: XS.append((B+bq, B+bq+2, flagW()))
        if s == 6: XS.append((B+40, B+46, pload('p1')))
    PCC = float(cfg.get('pcc', 4)); LAT = int(cfg.get('lat', 56)); RWN = int(cfg.get('rwn', 14))
    SLOT = dict(FINAL); SLOT.update({0: 0, 1: 1, 2: 2, 3: 0, 4: 3, 5: 1})
    t = 2.0; occ = {}; done = {}; rl = 100
    DS += paced(SS, t, float(cfg.get('p0', 4.5))); t = DS[-1][0] + PCC
    msg = []
    for jb in cfg.get('jobs', 'h2,h3,w0,w1,h4,w2,w3,h5,w4,w5,w6,h6,w7,w8,h7,w9,w10,w11,w12,w13').split(','):
        n = int(jb[1:]); t0 = t
        if jb[0] == 'h':
            if n >= 4: t = max(t, X3)
            L = dma_h(n)
            assert t + 3*PCC + 40 <= base(n-1) + BQ[n-1] - 9, (jb, t)
        else:
            sg = SLOT[n]; L = dma_wd(n, sg)
            if sg in occ:
                p = occ[sg]; r0 = int(max(done[p] + LAT, rl, t - RWN - 2 - int(cfg.get('rwe', 16))))
                RS.append((r0, max(r0 + RWN, int(t) - 2), [('wvm', f'wd{p}')] + rd_wd(p, sg))); rl = RS[-1][1]
                t = max(t, rl + 2); L = [('wlg', f'rw{p}')] + L
            elif sg == 1: t = max(t, X1)
            elif sg: t = max(t, base(sg-1) + BQ[sg-1])
            occ[sg] = n
        DS += paced(L, t, PCC)
        msg.append(f'{jb}@{(t-32)/64:.2f}' + (f'(+{t-t0:.0f})' if t > t0 else ''))
        t += 4*PCC; done[n if jb[0] == 'w' else jb] = t - PCC
    print(' '.join(msg), file=sys.stderr)
    B = 480
    XS.append((B+14, B+17, pcheck('p1')))
    LA = ld_act(0)
    for i in range(NA0):
        q = B + 16 + 48*i//NA0
        XS.append((q, q+2, cut(LA, 1)))
    RW = []
    for p in range(6, 6+NW7): RW += rd_wd(p, FINAL[p])
    RS.append((B+48, B+64, [('wvm', f'wd{5+NW7}')] + RW))
    DA = ((104, 108, 120, 124), (112, 116, 128, 132))
    vRd = 144; vHr = 96; vU4 = 136
    def red1(m):
        return [('lg', f'ds_write_b128 v{vWa}, {vr(DA[m&1][tau],4)} offset:{16384*m+1024*tau}', 'dw') for tau in range(1, 4)]
    def red2(m):
        b = DA[m&1][0]
        L = [('wlg', 'dw'), 's_barrier']
        L += [('lg', f'ds_read_b128 {vr(vRd+4*(tau-1),4)}, v{vRa[tau-1]} offset:{16384*m+1024*tau}', 'dr') for tau in range(1, 4)]
        L += [('wvm', f'hres{m}'), f's_add_u32 s84, s78, {m*32768}']
        for i in range(2):
            L += [f'v_lshlrev_b32 v{vU4+2*i}, 16, v{vHr+2*m+i}', f'v_and_b32 v{vU4+2*i+1}, 0xffff0000, v{vHr+2*m+i}']
        L += [f'v_add_f32 v{vU4+i}, v{vU4+i}, v{b+i}' for i in range(4)]
        return L
    OB = cfg.get('ob', '')
    def red3(m):
        L = [('wlg', 'dr')]
        L += [f'v_add_f32 v{vRd+i}, v{vRd+i}, v{vRd+4+i}' for i in range(4)]
        L += [f'v_add_f32 v{vU4+i}, v{vU4+i}, v{vRd+8+i}' for i in range(4)]
        L += [f'v_add_f32 v{vU4+i}, v{vU4+i}, v{vRd+i}' for i in range(4)]
        L += [f'v_cvt_pk_bf16_f32 v{vHr+2*m+i}, v{vU4+2*i}, v{vU4+2*i+1}' for i in range(2)]
        L += [('vm', f'buffer_store_dwordx2 {vr(vHr+2*m,2)}, v{vOa}, {SR(SRD_OUT)}, s84 offen {OB}', 'out')]
        return L
    def dlabel():
        a.label('LD_start')
    tailseg = [GS.pop(), GS.pop()][::-1]
    weave(g, mf, [GS, DS, RS, XS], 8, 'C')
    dlabel()
    vm.wait('a0_0')
    mf = []; GS = []; RS = []; XS = []; ES = []
    I3 = int(cfg.get('i3', 10))
    for m in range(4):
        B = 56*m
        n1 = I3 if m == 3 else 14
        order = [(tau, i) for i in range(n1) for tau in (1, 2, 3, 0)] + [(tau, i) for tau in (1, 2, 3, 0) for i in range(n1, 14)]
        for q, (tau, i) in enumerate(order):
            acc = vr(DA[m&1][tau], 4)
            f, r = wdreg(i, tau)
            fx = []
            if q + 1 < 56:
                t1, i1 = order[q+1]
                if t1 == 1:
                    fx.append(('wvm', f'a{m}_{i1}'))
                    if m == 0 and i1 >= 6: fx.append(('wlg', f'rw{i1}'))
            elif m < 3: fx.append(('wvm', f'a{m+1}_0'))
            if q == 55: fx += g.st(f'D.m{m}')
            mf.append((f'v_mfma_f32_16x16x32_bf16 {acc}, {vr(r,4,f)}, {actreg(m,i)}, {"0" if i==0 else acc}', fx))
        if m:
            ES.append((B, B+8, red1(m-1), 2)); ES.append((B+12, B+26, red2(m-1))); ES.append((B+30, B+44, red3(m-1)))
        if m == 3:
            R = red1(3); k3 = 14 - n1
            for t in range(3): ES.append((B+4*n1+k3*(t+1)+1, B+min(4*n1+k3*(t+1)+3, 56), [R[t]]))
    GT = int(cfg.get('gt', 20))
    GS = [(2, GT, tailseg[0][2] + tailseg[1][2])]
    RS = [(0, 1, [('wvm', 'wd13')])]
    for p in range(6+NW7, 14): RS.append((0, 4*p-4, rd_wd(p, FINAL[p])))
    def hres(m): return [f's_add_u32 s83, s86, {m*32768}', ('vm', f'buffer_load_dwordx2 {vr(vHr+2*m,2)}, v{vL16}, {SR(SRD_WS)}, s83 offen sc1', f'hres{m}')]
    F7, F8, PL2, PL3 = int(cfg.get('f7', 8)), int(cfg.get('f8', 70)), int(cfg.get('pl2', 30)), int(cfg.get('pl3', 110))
    P3 = int(cfg.get('p3', 128)); PC = float(cfg.get('pc', 4))
    LS = LA + hres(0) + ld_act(1) + hres(1) + pcheck('p2') + g.st('D.p2') + ld_act(2) + hres(2) + hres(3)
    LQ = []; q = 0.0
    while LS:
        LQ.append((int(q), int(q)+2, cutm(LS))); q += PC
    q = max(q, P3); LS = pcheck('p3') + g.st('D.p3') + ld_act(3)
    PC3 = float(cfg.get('pc3', 2.5))
    while LS:
        LQ.append((int(q), int(q)+2, cutm(LS))); q += PC3
    XS = [(F7, F7+2, flagC(7)), (PL2, PL2+2, pload('p2')), (F8, F8+2, flagC(8)), (PL3, PL3+2, pload('p3'))]
    weave(g, mf, [GS, RS, XS, LQ, ES], 8, 'D')
    g.emits(red2(3) + red3(3))
    g.stamp('D.end')
    if cfg.get('dbgst'):
        a('s_waitcnt lgkmcnt(0)')
        a(f's_lshl2_add_u32 s70, s{S_WG}, s{W}')
        a(f's_cmp_lg_u32 s70, {int(cfg["dbgst"])*4}')
        a('s_cbranch_scc1 Lend')
        for i in range(1, min(g.ns, 17)):
            a(f's_sub_u32 s70, s{TSREG[i]}, s{TSREG[0]}')
            a(f'v_mov_b32 v2, s70')
            a(f'buffer_store_dword v2, off, {SR(SRD_DBG)}, 0 offset:{4*(i-1)}')
    elif cfg.get('stamps'):
        a('s_waitcnt lgkmcnt(0)')
        a(f's_lshl2_add_u32 s70, s{S_WG}, s{W}')
        a(f's_lshl_b32 s70, s70, 7')
        a(f's_add_u32 s70, s70, {WS_TS}')
        for i in range(g.ns):
            a(f'v_mov_b32 v2, s{TSREG[i]}')
            a(f'buffer_store_dword v2, off, {SR(SRD_WS)}, s70 offset:{4*i}')
        a(f'v_mov_b32 v2, s101')
        a(f'buffer_store_dword v2, off, {SR(SRD_WS)}, s70 offset:124')
    a.label('Lend')
    a('s_endpgm')
    for o in OOL[::-1]:
        a.hist = []
        o()
    a.label('Lfin')
    hdr = '; @launch grid=(256,1,1) block=(256,1,1) lds=163840\n'
    if cfg.get('stamps') and not cfg.get('dbgst'): hdr += '; stamps: ' + ','.join(g.names) + '\n'
    hdr += '.amdgcn_target "amdgcn-amd-amdhsa--gfx950"\n.text\n'
    KD = f""".section .rodata,"a"
.p2align 6
.amdhsa_kernel {k}
  .amdhsa_next_free_vgpr 512
  .amdhsa_next_free_sgpr 102
  .amdhsa_accum_offset 256
  .amdhsa_group_segment_fixed_size 0
  .amdhsa_kernarg_size 80
  .amdhsa_user_sgpr_count 2
  .amdhsa_user_sgpr_kernarg_segment_ptr 1
  .amdhsa_system_sgpr_workgroup_id_x 1
.end_amdhsa_kernel
"""
    print('nops', a.nops, 'stamps', g.ns, file=sys.stderr)
    if cfg.get('tour'): add_pads(a, hdr, KD, [int(x) for x in str(cfg['tour']).split('+')])
    return hdr + a.text() + KD

def add_pads(a, hdr, KD, offs):
    import subprocess, re
    stub = ''.join(f'Lpad_e{w}:\n' for w in range(4))
    open('_pad.s', 'w').write(hdr + a.text() + stub + KD)
    subprocess.run(['clang', '-x', 'assembler', '-target', 'amdgcn-amd-amdhsa', '-mcpu=gfx950', '-c', '_pad.s', '-o', '_pad.o'], check=True)
    dis = subprocess.run(['llvm-objdump', '-d', '_pad.o'], capture_output=True, text=True).stdout
    addr = [int(m.group(1), 16) for m in re.finditer(r'// ([0-9A-F]{12}):', dis)]
    idx = [i for i, l in enumerate(a.lines) if l.startswith('    ') and not l.strip().startswith(';')]
    assert len(addr) == len(idx), (len(addr), len(idx))
    end = addr[-1]
    pads = []; sh = 0
    for pg in range(1, end // 4096 + 2):
        for o in offs:
            t = pg*4096 + o
            c = [j for j in range(1, len(addr)) if t <= addr[j] + sh + 4 < t + 60]
            if not c: continue
            best = [j for j in c if 'v_mfma' in a.lines[idx[j-1]] and idx[j] == idx[j-1] + 1] or [j for j in c if idx[j] == idx[j-1] + 1]
            pads.append(best[0]); sh += 8
    n = len(pads); per = -(-n // 4)
    for k_ in range(n-1, -1, -1):
        nxt = f'Lpad_{k_+1}' if (k_+1) % per and k_+1 < n else 'Lpad_ret'
        ent = f'Lpad_e{k_//per}:\n' if k_ % per == 0 else ''
        a.lines.insert(idx[pads[k_]], f'    s_branch Lpad_s{k_}\n{ent}Lpad_{k_}:\n    s_branch {nxt}\nLpad_s{k_}:')
    r = a.lines.index('Lpad_ret:')
    for w in range(-(-n // per), 4): a.lines.insert(r, f'Lpad_e{w}:')
    print('pads', n, file=sys.stderr)

if __name__ == '__main__':
    out = sys.argv[1]
    cfg = {}
    for o in sys.argv[2:]:
        k_, _, v = o.partition('=')
        cfg[k_] = v.split(',') if k_ == 'sel' else (v or True)
    open(out, 'w').write(build(cfg))
```

```python
import sys, struct
from asmlib import *

NAME = 'sequential_preLN__linear_attn_block__geglu_ffn__prompt'
WS_PQ = 0x000000; WS_H = 0x200000; WS_ACT = 0x400000; WS_STATS = 0xB00000; WS_KV = 0xB40000
WS_FLAG = 0xB50000; WS_TS = 0xC00000; WS_SIZE = 0xD00000
FA = WS_FLAG; FB = WS_FLAG + 256*128; FC = WS_FLAG + 512*128
LOG2E = 1.4426950408889634; LN2 = 0.6931471805599453
def fbits(x): return '0x%08x' % struct.unpack('<I', struct.pack('<f', x))[0]

S_WG = 2; W = 3
SRD_X = 36; SRD_WQKV = 40; SRD_WO = 44; SRD_WGU = 48; SRD_WD = 52; SRD_OUT = 56; SRD_WS = 60; SRD_DBG = 64
SRD_ACT = 40
S_XC = 68; S_J = 69
def SR(b): return f's[{b}:{b+3}]'
def v2(b): return f'v[{b}:{b+1}]'

class Cnt:
    def __init__(self, a, name, cap): self.a = a; self.q = []; self.name = name; self.cap = cap; self.seen = set(); self.n = {}
    def issue(self, text, tag='x'):
        self.a(text); self.q.append(tag); self.seen.add(tag); self.n[tag] = self.n.get(tag, 0) + 1
        if self.name == 'vmcnt': assert len(self.q) <= self.cap, "vmcnt overflow"
    def wait(self, *tags):
        for t in tags:
            assert t in self.seen, ('wait on unissued', t)
            if len(t) == 3 and t[0] in 'Sg' and t[2] in 'ab': assert self.n[t] == (8 if t[0] == 'S' else 16), (t, self.n[t])
        last = -1
        for i, t in enumerate(self.q):
            if t in tags: last = i
        if last < 0: return
        n = len(self.q) - 1 - last
        n = min(n, self.cap)
        self.a(f's_waitcnt {self.name}({n})')
        self.q = self.q[len(self.q)-n:] if n else []
    def wait_all(self):
        self.a(f's_waitcnt {self.name}(0)'); self.q = []

TSREG = list(range(90, 100, 2)) + list(range(8, 16, 2)) + [30,32,34,16,18,20,22,24,26,28,4,6]

class G:
    def __init__(self, cfg):
        self.a = Asm(); self.cfg = cfg
        self.vm = Cnt(self.a, 'vmcnt', 63); self.lg = Cnt(self.a, 'lgkmcnt', 15)
        self.ns = 0; self.names = []
    def want(self, name):
        if not self.cfg.get('stamps'): return False
        sel = self.cfg.get('sel')
        return not (sel and not any(name.startswith(p) for p in sel))
    def stamp(self, name):
        if not self.want(name): return
        r = TSREG[self.ns]; self.ns += 1; self.names.append(name)
        self.a(f'{"s_memtime" if self.cfg["stamps"] == "cyc" else "s_memrealtime"} s[{r}:{r+1}]')
    def st(self, name):
        return [lambda: self.stamp(name)] if self.want(name) else []
    def emit(self, t):
        if isinstance(t, str): self.a(t)
        elif callable(t): t()
        elif t[0] == 'vm': self.vm.issue(t[1], t[2])
        elif t[0] == 'lg': self.lg.issue(t[1], t[2])
        elif t[0] == 'wvm': self.vm.wait(*t[1:])
        elif t[0] == 'wlg': self.lg.wait(*t[1:])
        else: raise ValueError(t)
    def emits(self, L):
        for x in L: self.emit(x)

def cls(t):
    if callable(t): return 0
    if isinstance(t, tuple): return 1 if t[0] in ('vm', 'lg') else 0
    op = t.split()[0]
    if op.startswith('s_'): return 0
    if op.startswith(('ds_', 'buffer_', 'global_')): return 1
    return 2
def cost(t):
    c = cls(t)
    if c == 0: return 4
    tx = t if isinstance(t, str) else t[1]
    op = tx.split()[0]
    if c == 1: return 20 if op == 'ds_write_b128' else 4
    return 8 if (op.split('_e')[0] in TRANS or op in TRANS) else 4

def free(f): f.free = True; return f
def indep(x, y):
    p, c = Ins(x), Ins(y)
    return not (p.dst & (c.src | c.dst) or p.src & c.dst)
def weave(g, mf, streams, cap, name=''):
    n = len(mf)
    caps = cap if isinstance(cap, list) else [cap]*n
    flex = isinstance(cap, list); TL4 = 4 if g.cfg.get('tl4') and flex else 0
    def fcost(items):
        items = [x for x in items if not getattr(x, 'free', 0)]
        c = sum(cost(x) for x in items)
        return c - 4 if any(cls(x) == 0 for x in items) else c
    fixed = [fcost(m[1]) for m in mf]
    segs = [[[s[0], s[1], list(s[2]), s[3] if len(s) > 3 else 0] for s in st if s[2]] for st in streams]
    lastmem = [-99]*len(segs)
    tot = 0; ov = [0]*((n+15) >> 4); un = [0]*((n+15) >> 4)
    for i in range(n):
        cap = caps[i]; g.gap = i
        gap = [[], [], []]; tail = []
        for x in mf[i][1]: gap[cls(x)].append(x)
        used = fixed[i]
        hs = any(not getattr(x, 'free', 0) for x in gap[0])
        lc = [-1]*len(segs)
        blocked = set(); here = set(x[2] for x in gap[1])
        while True:
            best = None
            for k, st in enumerate(segs):
                if not st or k in blocked or st[0][0] > i: continue
                if best is None or st[0][1] < segs[best][0][1]: best = k
            if best is None: break
            sg = segs[best][0]; j = 0; it = sg[2][0]; c = cls(it)
            noop = flex and isinstance(it, tuple) and it[0] in ('wlg', 'wvm') and all(t in cn.seen and t not in cn.q and t not in here for cn in [g.lg if it[0] == 'wlg' else g.vm] for t in it[1:])
            if getattr(it, 'free', 0) or noop:
                (tail if lc[best] == 9 else gap[max(lc[best], 0)]).append(it)
                sg[2].pop(0)
                if not sg[2]: segs[best].pop(0)
                continue
            must = i >= sg[1]-1
            late = c < lc[best]
            kk = 0 if (c == 0 and not hs and not late) else cost(it)
            if not must:
                if (late and not (flex and cap >= 24 and used + kk + 4 <= cap)) or (c == 1 and sg[3] and i - lastmem[best] < sg[3]): blocked.add(best); continue
                if used + kk - (TL4 if kk == 8 else 0) > cap:
                    if flex and c == 2 and used + 4 <= cap:
                        L = tail if lc[best] == 9 else gap[2]
                        lv = L[-1] if L and isinstance(L[-1], str) and cost(L[-1]) == 8 else None
                        for j2 in range(1, min(9, len(sg[2]))):
                            y = sg[2][j2]
                            if cls(y) != 2: break
                            if cost(y) == 4 and all(indep(z, y) for z in sg[2][:j2]) and (lv is None or indep(lv, y)):
                                j = j2; it = y; kk = 4; break
                    if not j:
                        dem = sum(sum(cost(x) for x in s[2] if cls(x)) for st in segs for s in st if s[1] <= sg[1])
                        room = sum(max(0, caps[j_] - fixed[j_]) for j_ in range(i+1, min(n, sg[1])))
                        if not (used < cap and dem > room): blocked.add(best); continue
            if late or lc[best] == 9:
                tail.append(it); lc[best] = 9
            else:
                gap[c].append(it); lc[best] = c
                if c == 0: hs = True
            used += kk
            if c == 1:
                lastmem[best] = i
                if isinstance(it, tuple): here.add(it[2])
            sg[2].pop(j)
            if not sg[2]: segs[best].pop(0)
        g.a(mf[i][0])
        for x in gap[0] + gap[1] + gap[2] + tail: g.emit(x)
        tot += max(cap, used) + 8
        ov[i >> 4] += max(0, used - cap); un[i >> 4] += max(0, cap - used)
    assert not any(segs), ('unplaced', name)
    print(f'\nweave {name}: {n} mfma est {tot} cyc', (ov, un) if n > 100 else '', file=sys.stderr)

def srd(a, d, ptr, size):
    a(f's_mov_b32 s{d}, s{ptr}')
    a(f's_mov_b32 s{d+1}, s{ptr+1}')
    a(f's_mov_b32 s{d+2}, {size}')
    a(f's_mov_b32 s{d+3}, 0x20000')

def guard(g, n=None):
    if g.cfg.get('stamps') and n is not None: g.a(f's_add_u32 s101, s101, {1 << (5*n)}')
    if g.cfg.get('safe'):
        g.a('s_sub_u32 s100, s100, 1')
        g.a('s_cbranch_scc1 Lend')

def poll(g, label, vaddr, vdst, n, soff, need):
    a = g.a
    a.label(label)
    sfx = {1: '', 4: 'x4'}[n]
    a(f'buffer_load_dword{sfx} {vr(vdst, n)}, v{vaddr}, {SR(SRD_WS)}, s{soff} offen sc1')
    g.vm.wait_all()
    if n == 4:
        a(f'v_min_u32 v{vdst}, v{vdst}, v{vdst+1}')
        a(f'v_min3_u32 v{vdst}, v{vdst}, v{vdst+2}, v{vdst+3}')
    a(f'v_cmp_gt_u32 vcc, {need}, v{vdst}')
    guard(g, 0)
    a(f's_cbranch_vccnz {label}')

def build(cfg):
    g = G(cfg); a = g.a; vm = g.vm; lg = g.lg
    k = NAME + '_kernel'
    OOL = []
    FSH = 7
    FAS = int(cfg.get('fa', 7)); FAR = int(cfg.get('far', 1)); FAZ = 0 if FAS == 7 else max((FAR*256 << FAS)//16, 128)
    FA = WS_FLAG if FAS == 7 else WS_KV + 16*2176
    assert FAZ <= 896
    SRD_FL = SRD_X
    a.raw(f'.globl {k}\n.p2align {12 if cfg.get("tour") or cfg.get("al") else 8}\n.type {k},@function\n{k}:')
    a(f's_cmp_ge_u32 s{S_WG}, 256')
    a('s_cbranch_scc1 Lend')
    a('s_load_dwordx16 s[16:31], s[0:1], 0')
    a('s_load_dwordx4 s[32:35], s[0:1], 64')
    g.stamp('A.start')
    if cfg.get('safe'): a('s_mov_b32 s100, 200000')
    if cfg.get('stamps'): a('s_mov_b32 s101, 0')
    a('v_lshrrev_b32 v1, 6, v0')
    a(f's_lshr_b32 s{S_J}, s{S_WG}, 3')
    a(f'v_readfirstlane_b32 s{W}, v1')
    a('v_and_b32 v0, 63, v0')
    a(f's_and_b32 s{S_XC}, s{S_WG}, 7')
    vTa, vTd = 218, 234
    a(f'v_lshlrev_b32 v{vTa}, 7, v0')
    if cfg.get('cpf'):
        a(f's_cmp_ge_u32 s{S_J}, 2')
        a('s_cbranch_scc1 LX_cpf_ret')
        a('s_getpc_b64 s[4:5]')
        a.label('LX_pc')
        a(f's_lshl2_add_u32 s76, s{S_J}, s{W}')
        a(f's_lshl_b32 s76, s76, 13')
        a(f'v_add_u32 v{vTd}, s76, v{vTa}')
        a(f'v_min_u32 v{vTd}, Lfin-LX_pc-4, v{vTd}')
        a(f'global_load_dword v{vTd}, v{vTd}, s[4:5]')
        a.label('LX_cpf_ret')
    XR = 98304
    s_rb, s_hp, s_x, s_w, s_m0x, s_m0w, s_rot = 70, 71, 72, 73, 74, 75, 82
    a(f's_lshr_b32 s76, s{S_XC}, 1')
    a(f's_and_b32 s{s_rb}, s{S_J}, 3')
    a(f's_lshl2_add_u32 s{s_rb}, s76, s{s_rb}')
    a(f's_and_b32 s76, s{S_XC}, 1')
    a(f's_lshr_b32 s{s_hp}, s{S_J}, 2')
    a(f's_lshl3_add_u32 s{s_hp}, s76, s{s_hp}')
    a(f's_lshr_b32 s76, s{S_J}, 3')
    a(f's_add_u32 s{s_rot}, s{S_J}, s76')
    a(f's_add_u32 s{s_rot}, s{s_rot}, s{S_XC}')
    if cfg.get('rot'): a(f's_lshl_b32 s{s_rot}, s{s_rot}, {cfg["rot"]}')
    RM = cfg.get('rotm')
    if RM == '1': a(f's_lshl_b32 s{s_rot}, s76, 1')
    if RM == '2': a(f's_lshl_b32 s{s_rot}, s{S_J}, 1')
    if RM == '3': a(f's_lshr_b32 s{s_rot}, s{S_J}, 2')
    if RM == '4': a(f's_lshl1_add_u32 s{s_rot}, s76, s{S_XC}')
    if RM == '5': a(f's_lshl_b32 s{s_rot}, s76, 2')
    if RM == '6': a(f's_mov_b32 s{s_rot}, s76')
    a(f's_lshl2_add_u32 s{s_x}, s{s_rb}, s{W}')
    a(f's_lshl_b32 s{s_x}, s{s_x}, 15')
    a(f's_mul_i32 s{s_w}, s{W}, {16*3072}')
    a(f's_lshl_b32 s76, s{s_hp}, 6')
    a(f's_add_u32 s{s_w}, s{s_w}, s76')
    a(f's_lshl_b32 s{s_m0x}, s{W}, 14')
    a(f's_add_u32 s{s_m0x}, s{s_m0x}, {XR}')
    a(f's_mul_i32 s{s_m0w}, s{W}, 3072')
    vXd = 4; vWd = 8; vXr = 12; vWn = 16; vWp = 20
    vSum, vSq, vCs = 24, 25, 26
    vOne = 29; vT = 30; vAcc = 40; vX = 88; vW = 120
    vWo = 220
    vDbg = 216; vDbgA = 217
    a(f'v_lshrrev_b32 v{vT}, 3, v0')
    a(f'v_and_b32 v{vT+1}, 7, v0')
    a(f'v_lshrrev_b32 v{vT+2}, 1, v{vT}')
    a(f'v_xor_b32 v{vT+1}, v{vT+1}, v{vT+2}')
    a(f'v_lshlrev_b32 v{vT+1}, 4, v{vT+1}')
    a(f'v_lshl_add_u32 v{vXd}, v{vT}, 10, v{vT+1}')
    a(f'v_xor_b32 v{vXd+1}, 64, v{vXd}')
    a(f'v_add_u32 v{vXd+1}, {8192-1024}, v{vXd+1}')
    a(f'v_add_u32 v{vXd+2}, {2*(8192-1024)}, v{vXd}')
    a(f'v_add_u32 v{vXd+3}, {2*(8192-1024)}, v{vXd+1}')
    for q in range(3):
        a(f'v_add_u32 v{vT}, {64*q}, v0')
        a(f'v_mul_u32_u24 v{vT+1}, 171, v{vT}')
        a(f'v_lshrrev_b32 v{vT+1}, 11, v{vT+1}')
        a(f'v_mul_u32_u24 v{vT+2}, 12, v{vT+1}')
        a(f'v_sub_u32 v{vT+2}, v{vT}, v{vT+2}')
        a(f'v_mul_u32_u24 v{vT+1}, 3072, v{vT+1}')
        a(f'v_lshrrev_b32 v{vT+3}, 2, v{vT+2}')
        a(f'v_lshl_add_u32 v{vT+1}, v{vT+3}, 10, v{vT+1}')
        a(f'v_and_b32 v{vT+2}, 3, v{vT+2}')
        a(f'v_lshl_add_u32 v{vWd+q}, v{vT+2}, 4, v{vT+1}')
        if q == 0: a(f'v_lshl_add_u32 v249, v{vT+2}, 7, v{vT+1}')
        if q: a(f'v_subrev_u32 v{vWd+q}, {1024*q}, v{vWd+q}')
    a(f'v_lshlrev_b32 v219, 6, v0')
    a(f's_lshl2_add_u32 s87, s{S_J}, s{W}')
    a(f's_and_b32 s83, s{S_WG}, 0xe4')
    a(f's_or_b32 s83, s83, s{W}')
    a(f's_mov_b32 s{SRD_X+2}, {2048*512*2}')
    a(f's_mov_b32 s{SRD_X+3}, 0x20000')
    a(f's_mov_b32 s{SRD_WQKV+2}, {512*1536*2}')
    a(f's_mov_b32 s{SRD_WQKV+3}, 0x20000')
    a(f's_mov_b32 s{SRD_WS+2}, {WS_SIZE}')
    a(f's_mov_b32 s{SRD_WS+3}, 0x20000')
    a('s_waitcnt lgkmcnt(0)')
    g.stamp('S.karg')
    a(f's_mov_b64 s[{SRD_X}:{SRD_X+1}], s[16:17]')
    a(f's_mov_b64 s[{SRD_WQKV}:{SRD_WQKV+1}], s[18:19]')
    a(f's_mov_b64 s[{SRD_WS}:{SRD_WS+1}], s[34:35]')
    def dma_xw(c):
        L = [f's_add_u32 s78, s{s_rot}, {c}', f's_and_b32 s78, s78, 7', f's_lshl_b32 s76, s78, 7', f's_add_u32 s76, s76, s{s_x}',
             f's_add_u32 m0, s{s_m0x}, {(c&3)*4096}', f's_mul_i32 s77, s78, {64*3072}']
        for i in range(4):
            L.append(('vm', f'buffer_load_dwordx4 v{vXd+i}, {SR(SRD_X)}, s76 offen offset:{i*1024} lds', f'c{c}'))
        L += [f's_add_u32 m0, s{s_m0w}, {c*12288}', f's_add_u32 s77, s77, s{s_w}']
        for q in range(3):
            L.append(('vm', f'buffer_load_dwordx4 v{vWd+q}, {SR(SRD_WQKV)}, s77 offen offset:{q*1024} lds', f'c{c}'))
        return L
    NX = int(cfg.get('nx', 4))
    TL = {}
    for it in (cfg.get('tl') or '').split('+'):
        if it:
            n_, p_ = it.split('@'); TL.setdefault(p_, []).append(n_)
    vT64, vTw, vTg = 219, 249, 250
    tcnt = [0]
    def touch1(n):
        tcnt[0] += 1
        lab = f'LT_{tcnt[0]}'
        def f():
            if n == 'x':
                a(f's_lshr_b32 s81, s{S_XC}, 1')
                a(f's_lshl_b32 s81, s81, 7')
                a(f's_add_u32 s81, s81, s87')
                a(f's_lshl_b32 s81, s81, 12')
                vm.issue(f'buffer_load_dword v{vTd+1}, v{vT64}, {SR(SRD_X)}, s81 offen', 'touch')
            elif n == 'w':
                a(f's_and_b32 s81, s{S_XC}, 1')
                a(f's_lshl_b32 s81, s81, 9')
                a(f's_mul_i32 s4, s87, {4*3072}')
                a(f's_add_u32 s81, s81, s4')
                a('s_mov_b32 exec_hi, 0xffff')
                vm.issue(f'buffer_load_dword v{vTd+1}, v{vTw}, {SR(SRD_WQKV)}, s81 offen', 'touch')
                a('s_mov_b32 exec_hi, -1')
            elif n == 'o':
                a(f's_lshl_b32 s81, s87, 12')
                vm.issue(f'buffer_load_dword v{vTd+1}, v{vT64}, {SR(SRD_WO)}, s81 offen', 'touch')
            elif n in ('g0', 'g1'):
                a(f's_bitcmp1_b32 s{W}, 0')
                a('s_cselect_b64 s[4:5], s[26:27], s[24:25]')
                a(f's_mov_b32 s6, {512*1792*2}')
                a('s_mov_b32 s7, 0x20000')
                a(f's_lshr_b32 s81, s87, 1')
                a(f's_lshl_b32 s81, s81, 4')
                a(f's_bitcmp1_b32 s{S_XC}, 0')
                a(f's_addc_u32 s81, s81, {8*int(n[1])}')
                a(f's_mul_i32 s81, s81, 1792')
                a('s_mov_b32 exec_hi, 0xffffff')
                vm.issue(f'buffer_load_dword v{vTd+1}, v{vTg}, s[4:7], s81 offen', 'touch')
                a('s_mov_b32 exec_hi, -1')
            elif n == 'G':
                nl = 14336 // (64*NX)
                if NX < 8:
                    a(f's_cmp_ge_u32 s{S_XC}, {NX}')
                    a(f's_cbranch_scc1 {lab}')
                a(f's_bitcmp1_b32 s{W}, 0')
                a('s_cselect_b64 s[4:5], s[26:27], s[24:25]')
                a(f's_mov_b32 s6, {512*1792*2}')
                a('s_mov_b32 s7, 0x20000')
                a(f's_lshr_b32 s81, s87, 1')
                a(f's_mul_i32 s81, s81, {NX}')
                a(f's_add_u32 s81, s81, s{S_XC}')
                a(f's_mul_i32 s81, s81, {nl*128}')
                a(f'v_min_u32 v{vTd}, {(min(nl,56)-1)*128}, v{vTa}')
                for i in range(0, nl, 56):
                    (a if NX < 8 else vm.issue)(f'buffer_load_dword v{vTd+1}, v{vTd}, s[4:7], s81 offen')
                    if i + 56 < nl: a(f's_add_u32 s81, s81, {56*128}')
                a.label(lab)
            elif n == 'D':
                nl = 14336 // (128*NX)
                if NX < 8:
                    a(f's_cmp_ge_u32 s{S_XC}, {NX}')
                    a(f's_cbranch_scc1 {lab}')
                a(f's_mul_i32 s81, s87, {NX}')
                a(f's_add_u32 s81, s81, s{S_XC}')
                a(f's_mul_i32 s81, s81, {nl*128}')
                a(f'v_min_u32 v{vTd}, {(nl-1)*128}, v{vTa}')
                (a if NX < 8 else vm.issue)(f'buffer_load_dword v{vTd+1}, v{vTd}, {SR(SRD_WD)}, s81 offen')
                a.label(lab)
            else: raise ValueError(n)
        return f
    def touch(p): return [touch1(n) for n in TL.get(p, [])]
    a(f's_cmp_eq_u32 s83, 0')
    a('s_cbranch_scc0 LX_zero_ret')
    def ool_zero():
        for i in range(4): a(f'v_mov_b32 v{vT+i}, 0')
        a(f's_lshl2_add_u32 s77, s{S_J}, s{S_XC}')
        a(f's_mul_i32 s76, s77, {2176+FAZ}')
        a(f's_add_u32 s76, s76, {WS_KV}')
        a(f'v_lshlrev_b32 v{vT+4}, 4, v0')
        a(f'v_min_u32 v{vT+5}, {128+FAZ-16}, v{vT+4}')
        a(f'buffer_store_dwordx4 v[{vT}:{vT+3}], v{vT+4}, {SR(SRD_WS)}, s76 offen sc1')
        a(f'buffer_store_dwordx4 v[{vT}:{vT+3}], v{vT+4}, {SR(SRD_WS)}, s76 offen offset:1024 sc1')
        a(f'buffer_store_dwordx4 v[{vT}:{vT+3}], v{vT+5}, {SR(SRD_WS)}, s76 offen offset:2048 sc1')
        a(f's_mul_i32 s76, s77, {112*128}')
        a(f's_add_u32 s76, s76, {WS_FLAG}')
        a(f's_add_u32 s77, s76, {48*128}')
        a(f'buffer_store_dword v{vT}, v{vTa}, {SR(SRD_WS)}, s76 offen sc1')
        a(f'buffer_store_dword v{vT}, v{vTa}, {SR(SRD_WS)}, s77 offen sc1')
    ool_zero()
    a.label('LX_zero_ret')
    g.emits(touch('pre'))
    g.emits(dma_xw(0)); g.stamp('S.d0')
    g.emits(touch('d0'))
    D1 = dma_xw(1)
    g.emits(D1[:10]); g.stamp('S.d1')
    g.emits(touch('dx'))
    a('s_mov_b32 s79, s77')
    srd(a, SRD_DBG, 32, 256)
    srd(a, SRD_WO, 20, 512*512*2)
    a(f's_cmp_ge_u32 s{W}, 2')
    a(f's_cselect_b64 s[{SRD_WGU}:{SRD_WGU+1}], s[26:27], s[24:25]')
    a(f's_cmp_ge_u32 s{S_J}, 28')
    if cfg.get('iw'):
        a(f's_cselect_b64 s[{SRD_WGU}:{SRD_WGU+1}], s[28:29], s[{SRD_WGU}:{SRD_WGU+1}]')
        a(f's_mov_b32 s{SRD_WGU+2}, {512*1792*2}')
    else: a(f's_cselect_b32 s{SRD_WGU+2}, 0, {512*1792*2}')
    a(f's_mov_b32 s{SRD_WGU+3}, 0x20000')
    srd(a, SRD_WD, 28, 1792*512*2)
    srd(a, SRD_OUT, 30, 2048*512*2)
    a(f'v_and_b32 v{vT}, 31, v0')
    a(f'v_lshrrev_b32 v{vT+1}, 5, v0')
    a(f'v_lshrrev_b32 v{vT+2}, 1, v{vT}')
    a(f'v_and_b32 v{vT+2}, 7, v{vT+2}')
    a(f'v_xor_b32 v{vT+2}, v{vT+2}, v{vT+1}')
    a(f'v_lshlrev_b32 v{vT+2}, 4, v{vT+2}')
    a(f'v_lshl_add_u32 v{vT+2}, v{vT}, 7, v{vT+2}')
    a(f'v_add_u32 v{vT+2}, s{s_m0x}, v{vT+2}')
    for s in range(4):
        a(f's_xor_b32 s76, s{W}, {s}')
        a(f's_lshl_b32 s76, s76, 5')
        a(f'v_xor_b32 v{vXr+s}, s76, v{vT+2}')
    a(f'v_bfe_u32 v{vT+2}, v0, 2, 2')
    a(f'v_lshl_add_u32 v{vT+2}, v{vT+1}, 3, v{vT+2}')
    a(f'v_mul_u32_u24 v{vT+2}, 192, v{vT+2}')
    a(f'v_bfe_u32 v{vT+3}, v0, 4, 1')
    a(f'v_lshl_add_u32 v{vT+2}, v{vT+3}, 5, v{vT+2}')
    a(f'v_and_b32 v{vT+3}, 3, v0')
    a(f'v_lshl_add_u32 v{vT+4}, v{vT+3}, 3, v{vT+2}')
    a(f'v_and_b32 v{vT+5}, 1, v0')
    a(f'v_lshl_add_u32 v{vT+5}, v{vT+5}, 4, v{vT+2}')
    a(f'v_bfe_u32 v{vT+3}, v0, 1, 1')
    a(f'v_lshl_add_u32 v{vT+5}, v{vT+3}, 3, v{vT+5}')
    for s in range(4):
        a(f's_xor_b32 s76, s{W}, {s}')
        a(f's_mul_i32 s76, s76, 3072')
        a(f'v_add_u32 v{vWn+s}, s76, v{vT+4}')
        a(f'v_add_u32 v{vWp+s}, s76, v{vT+5}')
    for r in (vSum, vSq, vCs, vCs+1, vCs+2): a(f'v_mov_b32 v{r}, 0')
    a(f'v_mov_b32 v{vOne}, 0x3f803f80')
    a(f'v_lshrrev_b32 v{vT}, 4, v0')
    a(f'v_and_b32 v{vT+1}, 15, v0')
    a(f'v_lshlrev_b32 v{vT+2}, 1, v{vT}')
    a(f'v_xor_b32 v{vT+1}, v{vT+1}, v{vT+2}')
    a(f'v_lshlrev_b32 v{vT+1}, 4, v{vT+1}')
    a(f'v_lshl_add_u32 v{vWo}, v{vT}, 10, v{vT+1}')
    a(f'v_add_u32 v{vWo+1}, {4096-1024}, v{vWo}')
    a(f'v_xor_b32 v{vWo+2}, 128, v{vWo}')
    a(f'v_add_u32 v{vWo+2}, {2*(4096-1024)}, v{vWo+2}')
    a(f'v_add_u32 v{vWo+3}, {4096-1024}, v{vWo+2}')
    a(f'v_and_b32 v{vDbgA}, 15, v0')
    a(f'v_lshlrev_b32 v{vDbgA}, 2, v{vDbgA}')
    a(f's_lshr_b32 s84, s{S_J}, 3')
    a(f's_lshl_b32 s84, s84, 8')
    a(f's_lshl_b32 s76, s{W}, 17')
    a(f's_add_u32 s84, s84, s76')
    a(f's_lshl_b32 s85, s{W}, 12')
    SC = 12288; CSA = 81920
    vE1, vE2, vE3, vE4, vE5, vE6, vE7, vE8, vE9, vE2b = range(224, 234)
    vL16 = 1
    a(f'v_and_b32 v{vT}, 31, v0')
    a(f'v_lshl_add_u32 v{vE1}, v{vT}, 2, s{s_m0x}')
    a(f'v_add_u32 v{vE1}, {SC}, v{vE1}')
    a(f'v_lshlrev_b32 v{vE2}, 2, v{vT}')
    a(f'v_add_u32 v{vE2}, {CSA}, v{vE2}')
    a(f'v_add_u32 v{vE2b}, 768, v{vE2}')
    a(f'v_lshrrev_b32 v{vT+1}, 5, v0')
    a(f'v_lshl_add_u32 v{vE3}, v{vT+1}, 4, s{s_m0x}')
    a(f's_mul_i32 s76, s{W}, 384')
    a(f's_add_u32 s76, s76, {CSA}')
    a(f'v_lshl_add_u32 v{vE4}, v0, 2, s76')
    a(f'v_mul_u32_u24 v{vT+1}, 272, v{vT+1}')
    a(f'v_bfe_u32 v{vT+2}, v0, 4, 1')
    a(f'v_mul_u32_u24 v{vT+2}, 544, v{vT+2}')
    a(f'v_add3_u32 v{vE6}, v{vT+1}, v{vT+2}, s{s_m0x}')
    a(f'v_and_b32 v{vT+1}, 3, v0')
    a(f'v_bfe_u32 v{vT+2}, v0, 2, 1')
    a(f'v_lshl_add_u32 v{vT+1}, v{vT+2}, 3, v{vT+1}')
    a(f'v_bfe_u32 v{vT+2}, v0, 3, 1')
    a(f'v_lshl_add_u32 v{vT+1}, v{vT+2}, 2, v{vT+1}')
    a(f'v_lshl_add_u32 v{vE5}, v{vT+1}, 4, v{vE6}')
    a(f's_lshl_b32 s78, s{W}, 8')
    a(f'v_lshl_add_u32 v{vE7}, v0, 2, s78')
    a(f'v_add_u32 v{vE8}, {XR+SC+1024}, v{vE7}')
    a(f'v_min_u32 v{vE9}, {XR+SC+1024+124}, v{vE8}')
    a(f'v_lshlrev_b32 v{vL16}, 4, v0')
    vOnes = 236
    for i in range(4): a(f'v_mov_b32 v{vOnes+i}, v{vOne}')
    vSen = 252; SEN = '-1'
    a(f'v_mov_b32 v{vSen}, {SEN}')
    for i in range(1, 4): a(f'v_mov_b32 v{vSen+i}, v{vSen}')
    a(f'v_mul_u32_u24 v{vT}, 147, v0')
    a(f'v_lshrrev_b32 v{vT}, 11, v{vT}')
    a(f'v_mul_u32_u24 v{vT}, 1792, v{vT}')
    a(f'v_add_u32 v{vTg}, v{vT}, v{vTa}')
    vXres = 240; vXa = 248
    a(f'v_and_b32 v{vT}, 15, v0')
    a(f'v_lshrrev_b32 v{vT+1}, 4, v0')
    a(f'v_lshlrev_b32 v{vT+2}, 3, v{vT+1}')
    a(f'v_lshl_add_u32 v{vXa}, v{vT}, 10, v{vT+2}')
    a(f's_and_b32 s88, s{S_J}, 7')
    a(f's_lshl3_add_u32 s88, s{S_XC}, s88')
    a(f's_lshl_b32 s88, s88, 15')
    a(f's_lshr_b32 s89, s{S_J}, 3')
    a(f's_lshl2_add_u32 s89, s89, s{W}')
    a(f's_lshl_b32 s89, s89, 6')
    a(f's_add_u32 s88, s88, s89')
    a(f's_add_u32 s89, s88, 16384')
    XRES = [('vm', f'buffer_load_dwordx2 {vr(vXres+m*4+t*2,2)}, v{vXa}, {SR(SRD_X)}, s{88+m} offen offset:{32*t}', 'xres') for m in range(2) for t in range(2)]
    PF = [f's_and_b32 s76, s88, 0x3c0', f's_mul_i32 s76, s76, 15', f's_add_u32 s76, s76, s88', f's_add_u32 s76, s76, {WS_H}',
          ('vm', f'buffer_store_dwordx4 {vr(vSen,4)}, v{vL16}, {SR(SRD_WS)}, s76 offen sc1', 'st'),
          f's_add_u32 s76, s76, 16384',
          ('vm', f'buffer_store_dwordx4 {vr(vSen,4)}, v{vL16}, {SR(SRD_WS)}, s76 offen sc1', 'st'),
          f's_lshr_b32 s76, s88, 15', f's_lshl_b32 s76, s76, 10', f's_and_b32 s81, s88, 0x300', f's_add_u32 s76, s76, s81',
          f's_lshl2_add_u32 s76, s76, {WS_STATS}',
          ('vm', f'buffer_store_dword v{vSen}, v{vE7}, {SR(SRD_WS)}, s76 offen sc1', 'st')]
    PFS = cfg.get('pfs', 'e')
    if PFS == 'a': g.emits(PF)
    a('s_mov_b32 s77, s79')
    g.emits(D1[10:])
    if PFS == 'b': g.emits(PF)
    g.emits(touch('d1'))
    g.stamp('A.issued')
    def dma_wo(n):
        L = [f's_add_u32 m0, s85, {16384*n}' if n < 5 else f's_add_u32 m0, s{s_m0x}, {4096*(n-5)}', f's_add_u32 s77, s84, {n*16384}']
        for i in range(4):
            L.append(('vm', f'buffer_load_dwordx4 v{vWo+i}, {SR(SRD_WO)}, s77 offen offset:{i*1024} lds', f'wo{n>>2}'))
        return L
    def rdX(c):
        return [('lg', f'ds_read_b128 {vr(vX+(c&1)*16+s*4,4)}, v{vXr+s} offset:{(c&3)*4096}', 'x') for s in range(4)]
    def rdW(c, s):
        base = vW + (c&1)*48 + s*12
        off = (c&3)*12288
        L = []
        for tile in (1, 2, 0):
            ad = (vWp if tile == 0 else vWn) + s
            for h2 in range(2):
                L.append(('lg', f'ds_read_b64_tr_b16 {vr(base+tile*4+h2*2,2)}, v{ad} offset:{off + h2*768 + tile*64}', f'w{s}'))
        return L
    def ismem(x): return cls(x) == 1 or callable(x)
    def sprinkle(L, ex, first=0):
        n = sum(1 for x in ex if ismem(x))
        tot = sum(cost(x) for x in L)
        acc = 0; k = 0
        for x in L:
            while ex and acc >= first + (tot - first)*k/max(n, 1):
                while ex:
                    y = ex.pop(0); g.emit(y)
                    if ismem(y): break
                k += 1
            g.emit(x); acc += cost(x)
        g.emits(ex); del ex[:]
    def dots(c):
        xb = vX + (c&1)*16; wb = vW + (c&1)*48
        L = []
        for i in range(4 if not cfg.get('nodw') else 1):
            for tile in range(3):
                L.append(f'v_dot2c_f32_bf16 v{vCs+tile}, v{wb+tile*4+i}, v{vOne}')
        for i in range(16 if not cfg.get('nodx') else 0):
            L.append(f'v_dot2c_f32_bf16 v{vSum}, v{xb+i}, v{vOne}')
            L.append(f'v_dot2c_f32_bf16 v{vSq}, v{xb+i}, v{xb+i}')
        return L
    def mm(c, s, t):
        xb = vr(vX + (c&1)*16 + s*4, 4); wb = vr(vW + (c&1)*48 + s*12 + 4*t, 4)
        C = '0' if (c == 0 and s == 0) else vr(vAcc+16*t, 16)
        if t: return f'v_mfma_f32_32x32x16_bf16 {vr(vAcc+16*t,16)}, {xb}, {wb}, {C}'
        return f'v_mfma_f32_32x32x16_bf16 {vr(vAcc,16)}, {wb}, {xb}, {C}'
    DO = ' offset:64' if cfg.get('dbgst') else ''
    vK, vV, vQ = vAcc+16, vAcc+32, vAcc
    vM, vR, vCq, vEx = 120, 136, 152, 168
    vPK, vPV, vD2 = 184, 192, 200
    vMean, vRstd = vSum, vSq
    sE, sL = 80, 86
    WOL = []
    for n in (0, 1, 2, 3, 5, 6, 7, 4): WOL += dma_wo(n)
    def cut(L, n):
        R = []
        while L and n:
            x = L.pop(0); R.append(x)
            if ismem(x): n -= 1
        return R
    def cutm(L):
        R = []
        while L:
            x = L.pop(0); R.append(x)
            if cls(x) == 1: break
        return R
    def paced(L, q, step):
        R = []
        while L:
            R.append((int(q), int(q)+2, cutm(L))); q += step
        return R
    def rdall(c): return rdX(c) + rdW(c, 0) + rdW(c, 1) + rdW(c, 2) + rdW(c, 3)
    if cfg.get('tour'):
        for w in range(3):
            a(f's_cmp_eq_u32 s{W}, {w}')
            a(f's_cbranch_scc1 Lpad_e{w}')
        a('s_branch Lpad_e3')
        a.label('Lpad_ret')
        g.stamp('A.tour')
    vm.wait('c0')
    a('s_barrier')
    g.stamp('A.c0')
    R0 = rdall(0); D2 = dma_xw(2)
    while R0 or D2:
        g.emits(cut(R0, 4)); g.emits(cut(D2, 1))
    a(f's_cmp_eq_u32 s83, 0')
    a('s_cbranch_scc0 LX_sig_ret')
    a(f'v_mov_b32 v{vT}, 1')
    a(f's_lshl2_add_u32 s76, s{S_J}, s{S_XC}')
    a(f's_lshl_b32 s76, s76, 2')
    a(f'buffer_store_dword v{vT}, off, {SR(SRD_DBG)}, s76{DO} sc1')
    a.label('LX_sig_ret')
    a(f's_mov_b32 s{sE}, {fbits(1e-6*LOG2E)}')
    a(f's_mov_b32 s{sL}, {fbits(LN2)}')
    WN = [int(x) for x in cfg.get('wn', '0,0,0,0,0,0,0,0,0,0,0').split(',')]
    for c in range(8): assert sum(WN[:c+1]) <= (0, 4, 8, 12, 12, 24, 32, 32)[c]
    for c in range(4): assert WN[c] % 4 == 0
    for n_ in TL.get('pre', []) + TL.get('d0', []) + TL.get('dx', []): assert n_ in 'xwG'
    DF = int(cfg.get('df', 33)); rest = []
    for c in range(8):
        g.stamp(f'I.{c}e')
        lg.wait('x', 'w0')
        if c == 3:
            for s in range(4):
                a(f'v_add_u32 v{vWn+s}, 49152, v{vWn+s}'); a(f'v_add_u32 v{vWp+s}, 49152, v{vWp+s}')
        sprinkle(dots(c), rest)
        g.stamp(f'I.{c}m')
        dm = []
        if c + 3 < 8: dm += dma_xw(c+3)
        dm += touch(f's{c}')
        if c == 4: dm += XRES
        if c == int(cfg.get('dbs', 4)):
            dm.append(('vm', f'buffer_load_dword v{vDbg}, v{vDbgA}, {SR(SRD_DBG)}, 0 offen{DO} sc1', 'dbg'))
        if str(c) == PFS: dm[len(dm) if not cfg.get('pf0') else 0:0] = PF
        dm += cut(WOL, WN[c])
        dm += touch(f'e{c}')
        rest = dm
        nd = sum(1 for x in dm if ismem(x))
        dm = cut(rest, nd - (nd*DF + 50)//100)
        nd = sum(1 for x in dm if ismem(x))
        DSEG = [(12*i//max(nd, 1), 12*i//max(nd, 1) + 2, cut(dm, 1)) for i in range(nd)]
        lg.wait_all()
        if c < 7:
            mf = [(mm(c, s, t), []) for s in range(4) for t in (1, 2, 0)]
            mf[0] = (mf[0][0], [('wvm', f'c{c+1}'), 's_barrier'] + g.st(f'A.c{c+1}'))
            rd = rdall(c+1)
            RSEG = [(i, i+1, cut(rd, 3 if (i % 3 == 1) else 2)) for i in range(11)] + [(11, 12, rd)]
            weave(g, mf, [RSEG, DSEG], 24, f'A{c}')
        else:
            mf = [(mm(7, s, t), []) for s in range(4) for t in (1, 2)] + [(mm(7, s, 0), []) for s in range(4)]
            vP = 88
            S = [f'v_mov_b32 v{vT}, v{vSum}', f'v_mov_b32 v{vT+1}, v{vSq}', f'v_mov_b32 v{vT+2}, v{vCs}',
                 f'v_permlane32_swap_b32 v{vCs+1}, v{vCs+2}',
                 f'v_permlane32_swap_b32 v{vSum}, v{vT}', f'v_permlane32_swap_b32 v{vSq}, v{vT+1}', f'v_permlane32_swap_b32 v{vCs}, v{vT+2}',
                 f'v_add_f32 v{vCs+1}, v{vCs+1}, v{vCs+2}',
                 f'v_add_f32 v{vSum}, v{vSum}, v{vT}', f'v_add_f32 v{vSq}, v{vSq}, v{vT+1}', f'v_add_f32 v{vCs}, v{vCs}, v{vT+2}',
                 f'v_mul_f32 v{vMean}, {fbits(1/512)}, v{vSum}',
                 ('lg', f'ds_write_b32 v{vE4}, v{vCs} offset:0', 'cs'),
                 ('lg', f'ds_write_b32 v{vE4}, v{vCs+1} offset:128', 'cs'),
                 f'v_mul_f32 v{vSq}, {fbits(1/512)}, v{vSq}',
                 f'v_fma_f32 v{vSq}, -v{vMean}, v{vMean}, v{vSq}', f'v_max_f32 v{vSq}, 0, v{vSq}',
                 f'v_add_f32 v{vSq}, {fbits(1e-5)}, v{vSq}', f'v_mul_f32 v{vSq}, {fbits(LN2*LN2)}, v{vSq}',
                 f'v_rsq_f32 v{vRstd}, v{vSq}',
                 ('wlg', 'cs'), 's_barrier',
                 ('lg', f'ds_write2_b32 v{vE1}, v{vMean}, v{vRstd} offset1:32', 'sw')]
            S += [('lg', f'ds_read2_b32 {v2(vP+2*w)}, v{vE2} offset0:{96*w+32} offset1:{96*w+64}', 'r0') for w in range(2)]
            S += [('lg', f'ds_read2_b32 {v2(vP+2*w)}, v{vE2b} offset0:{96*(w-2)+32} offset1:{96*(w-2)+64}', 'r0') for w in range(2, 4)]
            S += [('lg', f'ds_read_b128 {vr(vM+4*i,4)}, v{vE3} offset:{SC+i*32}', 'r1') for i in range(4)]
            S += [('lg', f'ds_read2_b32 {v2(vP+8)}, v{vE2} offset0:0 offset1:96', 'rq'), ('lg', f'ds_read2_b32 {v2(vP+10)}, v{vE2b} offset0:0 offset1:96', 'rq')]
            S += [('lg', f'ds_read_b128 {vr(vR+4*i,4)}, v{vE3} offset:{SC+128+i*32}', 'r2') for i in range(4)]
            S += [('wlg', 'r0'), f'v_add_f32 v{vP}, v{vP}, v{vP+2}', f'v_add_f32 v{vP+4}, v{vP+4}, v{vP+6}',
                  f'v_add_f32 v{vP+1}, v{vP+1}, v{vP+3}', f'v_add_f32 v{vP+5}, v{vP+5}, v{vP+7}',
                  f'v_add_f32 v{vCs+1}, v{vP}, v{vP+4}', f'v_add_f32 v{vCs+2}, v{vP+1}, v{vP+5}',
                  ('wlg', 'rq'), f'v_add_f32 v{vP+8}, v{vP+8}, v{vP+9}', f'v_add_f32 v{vP+10}, v{vP+10}, v{vP+11}', f'v_add_f32 v{vCs}, v{vP+8}, v{vP+10}',
                  ('lg', f'ds_write_b32 v{vE1}, v{vCs} offset:256', 'qw')]
            S += [('lg', f'ds_read_b128 {vr(vCq+4*i,4)}, v{vE3} offset:{SC+256+i*32}', 'r3') for i in range(4)]
            K1 = [f'v_fma_f32 v{vK+r}, -v{vM+r}, v{vCs+1}, v{vK+r}' for r in range(16)]
            K1 += [('wlg', 'r2')] + [f'v_fma_f32 v{vK+r}, v{vK+r}, v{vR+r}, s{sE}' for r in range(16)]
            weave(g, mf, [[(0, 11, S), (9, 12, K1[:8])], DSEG], 24, 'A7')
    g.stamp('A.loop')
    def phi_mid(b):
        L = []
        for r in range(16):
            L += [f'v_exp_f32_e64 v{vEx+r}, v{b+r} clamp', f'v_max_f32 v{b+r}, s{sE}, v{b+r}']
        return L
    def phi_end(b, d):
        L = [f'v_pk_fma_f32 {v2(b+2*i)}, {v2(b+2*i)}, s[{sL}:{sL+1}], {v2(vEx+2*i)} op_sel_hi:[1,0,1]' for i in range(8)]
        return L + [f'v_cvt_pk_bf16_f32 v{d+i}, v{b+2*i}, v{b+2*i+1}' for i in range(8)]
    EP = K1[8:] + phi_mid(vK)
    EP += [f'v_pk_fma_f32 {v2(vV+2*i)}, {v2(vM+2*i)}, {v2(vCs+2)}, {v2(vV+2*i)} op_sel_hi:[1,0,1] neg_lo:[1,0,0] neg_hi:[1,0,0]' for i in range(8)]
    EP += [f'v_pk_mul_f32 {v2(vV+2*i)}, {v2(vV+2*i)}, {v2(vR+2*i)}' for i in range(8)]
    EP += phi_end(vK, vPK)
    EP += [f'v_cvt_pk_bf16_f32 v{vPV+i}, v{vV+2*i}, v{vV+2*i+1}' for i in range(8)]
    EP += [f'v_permlane16_swap_b32 v{vPK+i}, v{vPK+4+i}' for i in range(4)]
    EP += [f'v_permlane16_swap_b32 v{vPV+i}, v{vPV+4+i}' for i in range(4)]
    sprinkle(EP, rest + cut(WOL, WN[8]) + (PF if PFS == 'e' else []))
    g.stamp('A.ep')
    lg.wait('r3')
    Q1 = [f'v_fma_f32 v{vQ+r}, -v{vMean}, v{vCq+r}, v{vQ+r}' for r in range(16)]
    mf = [(f'v_mfma_f32_16x16x32_bf16 {vr(vD2+8,4)}, {vr(vPK,4)}, {vr(vOnes,4)}, 0', []),
          (f'v_mfma_f32_16x16x32_bf16 {vr(vD2+12,4)}, {vr(vPK+4,4)}, {vr(vOnes,4)}, 0', []),
          (f'v_mfma_f32_16x16x32_bf16 {vr(vD2,4)}, {vr(vPK,4)}, {vr(vPV,4)}, 0', []),
          (f'v_mfma_f32_16x16x32_bf16 {vr(vD2+4,4)}, {vr(vPK+4,4)}, {vr(vPV+4,4)}, 0', [])]
    weave(g, mf, [[(0, 4, Q1[:10])]], 8, 'kv')
    a('s_mov_b32 exec_lo, 0x00010001')
    a('s_mov_b32 exec_hi, 0x00010001')
    a(f'ds_write_b128 v{vE6}, {vr(vD2+8,4)} offset:{SC+1024+256}')
    a(f'ds_write_b128 v{vE6}, {vr(vD2+12,4)} offset:{SC+1024+1088+256}')
    a('s_mov_b64 exec, -1')
    a(f'ds_write_b128 v{vE5}, {vr(vD2,4)} offset:{SC+1024}')
    a(f'ds_write_b128 v{vE5}, {vr(vD2+4,4)} offset:{SC+1024+1088}')
    sprinkle(Q1[10:] + [f'v_pk_fma_f32 {v2(vQ+2*i)}, {v2(vQ+2*i)}, {v2(vMean)}, s[{sE}:{sE+1}] op_sel:[0,1,0] op_sel_hi:[1,1,0]' for i in range(8)], cut(WOL, WN[9]))
    a('s_waitcnt lgkmcnt(0)')
    a('s_barrier')
    for i in range(3):
        for w in range(4):
            a(f'ds_read_b32 v{vD2+i*4+w}, v{vE8 if i < 2 else vE9} offset:{w*16384+i*1024}')
    a(f's_mul_i32 s78, s{s_hp}, 2176')
    a(f's_add_u32 s78, s78, {WS_KV}')
    vm.wait('dbg')
    a.label('LA_chk')
    a(f'v_cmp_ne_u32 vcc, 1, v{vDbg}')
    a('s_cbranch_vccnz LX_dbg')
    def ool_dbg():
        a.label('LX_dbg')
        a(f'buffer_load_dword v{vDbg}, v{vDbgA}, {SR(SRD_DBG)}, 0 offen{DO} sc1')
        a('s_waitcnt vmcnt(0)')
        guard(g)
        a('s_branch LA_chk')
    OOL.append(ool_dbg)
    a('s_waitcnt lgkmcnt(0)')
    for i in range(3):
        a(f'v_pk_add_f32 {v2(vD2+4*i)}, {v2(vD2+4*i)}, {v2(vD2+4*i+2)}')
    for i in range(3):
        a(f'v_add_f32 v{vD2+4*i}, v{vD2+4*i}, v{vD2+4*i+1}')
    a(f's_cmp_eq_u32 s{W}, 0')
    vm.issue(f'buffer_atomic_add_f32 v{vD2}, v{vE7}, {SR(SRD_WS)}, s78 offen', 'st')
    vm.issue(f'buffer_atomic_add_f32 v{vD2+4}, v{vE7}, {SR(SRD_WS)}, s78 offen offset:1024', 'st')
    a('s_cbranch_scc0 LA_noat')
    a('s_mov_b32 exec_hi, 0')
    a(f'buffer_atomic_add_f32 v{vD2+8}, v{vE7}, {SR(SRD_WS)}, s78 offen offset:2048')
    a('s_mov_b32 exec_hi, -1')
    a.label('LA_noat')
    g.stamp('A.atom')
    a(f's_lshl_b32 s79, s{s_hp}, 11')
    a(f's_add_u32 s78, s{s_x}, s79')
    sprinkle(phi_mid(vQ) + phi_end(vQ, vPK), cut(WOL, WN[10]) + (PF if PFS == 'q' else []), 60)
    vm.issue(f'buffer_store_dwordx4 {vr(vPK,4)}, v{vL16}, {SR(SRD_WS)}, s78 offen sc1', 'st')
    vm.issue(f'buffer_store_dwordx4 {vr(vPK+4,4)}, v{vL16}, {SR(SRD_WS)}, s78 offen offset:1024 sc1', 'st')
    g.stamp('A.pq')
    vA0 = 4
    vF1 = 39
    vGd = 16
    vG0 = 224
    OX = 131072
    vKV = 40; vPQ = 104; vD = 136; vBa = 200; vH = 216
    vSa = 28
    U = 100
    E1 = [f's_lshl4_add_u32 s79, s{s_hp}, s{s_rb}', f's_lshl_b32 s79, s79, {FAS}', f's_add_u32 s79, s79, {FA}',
          f's_mov_b64 s[{SRD_FL}:{SRD_FL+1}], s[{SRD_WS}:{SRD_WS+1}]', f's_cmp_eq_u32 s{W}, 0\ns_cselect_b32 s{SRD_FL+2}, {WS_SIZE}, 0',
          f'v_mov_b32 v{vF1}, 1',
          f'v_bfe_u32 v{U}, v0, 2, 3', f'v_bfe_u32 v{U+1}, v0, 2, 2', f'v_bfe_u32 v{U+2}, v0, 4, 1',
          f'v_lshl_add_u32 v{U+1}, v{U+2}, 3, v{U+1}', f'v_lshlrev_b32 v{U+1}, 8, v{U+1}', f'v_and_b32 v{U+2}, 3, v0',
          f'v_lshl_add_u32 v{U+1}, v{U+2}, 3, v{U+1}', f's_lshl_b32 s76, s{W}, 1', f'v_xor_b32 v{U}, s76, v{U}',
          f'v_lshrrev_b32 v{U+3}, 2, v0', f'v_lshlrev_b32 v{U+3}, 8, v{U+3}', f'v_lshl_add_u32 v{U+3}, v{U+2}, 3, v{U+3}',
          f'v_lshl_add_u32 v{vG0}, v{U}, 5, v{U+3}', f'v_xor_b32 v{vG0+1}, 32, v{vG0}', f'v_add_u32 v{vG0+2}, 65536, v{vG0}', f'v_add_u32 v{vG0+3}, 65536, v{vG0+1}',
          f'v_lshl_add_u32 v{U+1}, v{U}, 5, v{U+1}', f'v_lshrrev_b32 v{U+2}, 5, v0',
          f'v_lshl_add_u32 v{vA0}, v{U+2}, 14, v{U+1}', f'v_lshl_add_u32 v{vA0+1}, v{U+2}, 12, v{U+1}', f'v_add_u32 v{vA0+1}, {98304+4096}, v{vA0+1}']
    for wp in range(4):
        E1 += [f'v_mul_u32_u24 v{U+3}, {32768+12288*wp}, v{U+2}', f'v_add_u32 v{vA0+2+wp}, v{U+3}, v{U+1}', f'v_add_u32 v{vA0+2+wp}, {65536+4096*wp}, v{vA0+2+wp}']
    E1 += [f'v_xor_b32 v{vA0+6+i}, 32, v{vA0+i}' for i in range(6)]
    E1 += [f's_mov_b32 s86, s{s_rb}', f's_and_b32 s70, s{S_J}, 7', f's_lshl3_add_u32 s70, s{S_XC}, s70', f's_lshr_b32 s71, s{S_J}, 3',
           f's_and_b32 s76, s{S_XC}, 1', f's_mul_i32 s76, s76, 7', f's_lshr_b32 s87, s{S_J}, 2', f's_add_u32 s87, s87, s76',
           f'v_and_b32 v{U}, 15, v0', f'v_lshrrev_b32 v{U+1}, 4, v0', f'v_lshlrev_b32 v{U+2}, 1, v{U+1}', f'v_xor_b32 v{U+2}, v{U}, v{U+2}',
           f'v_lshlrev_b32 v{U+2}, 4, v{U+2}', f'v_mul_u32_u24 v{U+3}, 3584, v{U+1}', f'v_add_u32 v{vGd}, v{U+3}, v{U+2}',
           f'v_xor_b32 v{U+2}, 128, v{U+2}', f'v_add_u32 v{vGd+1}, v{U+3}, v{U+2}', f'v_add_u32 v{vGd+1}, {4*3584-1024}, v{vGd+1}',
           f'v_add_u32 v{vGd+2}, {2*(4*3584-1024)}, v{vGd}', f'v_add_u32 v{vGd+3}, {2*(4*3584-1024)}, v{vGd+1}',
           f's_and_b32 s76, s{W}, 1', f's_mul_i32 s88, s76, {64*3584}', f's_lshl_b32 s76, s87, 8', f's_add_u32 s88, s88, s76', f's_lshl_b32 s89, s{W}, 14']
    if FAR > 1: E1 += [f'v_min_u32 v{U+5}, {FAR-1}, v0', f'v_lshlrev_b32 v{U+5}, {8+FAS}, v{U+5}']
    def idle_gu():
        a(f's_cmp_lt_u32 s{S_J}, 28')
        a('s_cbranch_scc1 LE_ni')
        a(f's_and_b32 s88, s{S_J}, 3')
        a(f's_lshl2_add_u32 s88, s88, s{W}')
        a(f's_lshl_b32 s88, s88, 12')
        for i in range(4): a(f'v_mov_b32 v{vGd+i}, v{vL16}')
        a.label('LE_ni')
    E2 = [f'v_and_b32 v{vT}, 31, v0', f'v_min_u32 v{vT}, 16, v{vT}', f'v_lshrrev_b32 v{vT+1}, 5, v0', f'v_mul_u32_u24 v{vT+1}, 272, v{vT+1}',
          f'v_lshl_add_u32 v{vT}, v{vT}, 4, v{vT+1}',
          f's_mul_i32 s72, s{W}, {8*1088}', f's_add_u32 s72, s72, {WS_KV}', f's_add_u32 s73, s72, {3*1088}', f's_add_u32 s76, s72, {6*1088}',
          f's_lshl_b32 s81, s70, 15', f's_lshl_b32 s78, s{W}, 13', f's_add_u32 s81, s81, s78', f's_add_u32 s75, s81, 4096',
          f's_and_b32 s82, s{S_WG}, {FAR-1}', f's_lshl2_add_u32 s82, s82, s{W}', f's_lshl_b32 s82, s82, {FAS+6}', f's_add_u32 s82, s82, {FA}', f's_add_u32 s78, s78, {OX}',
          f'v_lshlrev_b32 v{vT+1}, {FAS}, v0', f'v_mov_b32 v{vT+5}, {fbits(LOG2E)}', f'v_add_u32 v{vT+2}, s78, v{vL16}',
          f'v_and_b32 v{vT+3}, 15, v0', f'v_lshrrev_b32 v{vT+4}, 4, v0',
          f'v_and_b32 v{vSa}, 1, v{vT+4}', f'v_lshl_add_u32 v{vSa}, v{vT+3}, 1, v{vSa}', f'v_and_b32 v{vT+6}, 32, v0', f'v_add_lshl_u32 v{vSa}, v{vSa}, v{vT+6}, 2',
          f'v_lshlrev_b32 v{vT+4}, 9, v{vT+4}', f'v_lshl_add_u32 v{vT+3}, v{vT+3}, 4, v{vT+4}', f'v_add_u32 v{vT+3}, {OX}, v{vT+3}']
    for i in range(8):
        E2 += [f'v_lshlrev_b32 v{vBa+2*i}, 16, v{vXres+i}', f'v_and_b32 v{vBa+2*i+1}, 0xffff0000, v{vXres+i}']
    def dma_gu(sg):
        L = []
        for blk in range(4):
            L += [f's_add_u32 m0, s89, {(sg&1)*65536+blk*4096}', f's_add_u32 s83, s88, {(sg*128+blk*16)*3584}']
            for i in range(4):
                L.append(('vm', f'buffer_load_dwordx4 v{vGd+i}, {SR(SRD_WGU)}, s83 offen offset:{i*1024} lds', f'S{sg}{"ab"[blk>>1]}'))
        return L
    def aWO(t, ks): return 128 + (t*16 + ks)*4
    def rd_wo(prs):
        L = []
        for ks in range(16):
            wp, pr = ks >> 2, ks & 3
            if pr not in prs: continue
            for t in range(2):
                if pr < 2: ad, off = vA0, 4096*(8*pr + wp)
                elif pr == 2: ad, off = vA0+2+wp, 0
                else: ad, off = vA0+1, 16384*wp
                for h2 in range(2):
                    L.append(('lg', f'ds_read_b64_tr_b16 {ar(aWO(t,ks)+2*h2,2)}, v{ad+6*t} offset:{off+h2*1024}', f'wo{min(prs)}'))
        return L
    def aGU(rt, ks): return (ks >> 3)*128 + (rt*8 + (ks & 7))*4
    def rd_gu(*X):
        L = []
        for rt in range(4):
            for x in X:
                sg = int(x[0])
                for k4 in ((0, 2) if x[1] == 'a' else (1, 3)):
                    for h2 in range(2):
                        L.append(('lg', f'ds_read_b64_tr_b16 {ar(aGU(rt, sg*4+k4)+2*h2,2)}, v{vG0+2*(sg&1)+(rt>>1)} offset:{(rt&1)*32768+k4*8192+h2*4096}', f'g{x}'))
        return L
    pend = []; freed = set(); rdone = set()
    def spec(t):
        R = []
        for it in t.split(','):
            if not it: continue
            q, S_, G_ = (it.split(':') + ['', ''])[:3]
            R.append((int(q), [S_[i:i+2] for i in range(0, len(S_), 2)], [G_[i:i+2] for i in range(0, len(G_), 2)]))
        return R
    def stage(n, sp, q0, step, maxsg, name, slack=3):
        fx = [[] for _ in range(n)]; start = {x: 0 for x in pend}; gate = {}; order = list(pend)
        for q, S_, G_ in sp:
            if S_: fx[q].append(('wvm',) + tuple('S'+x for x in S_))
            if G_: fx[q].append(('wlg',) + tuple('g'+x for x in G_))
            fx[q] += ['s_barrier'] + g.st(f'{name}.{"".join(S_)}:{"".join(G_)}')
            for x in S_: start[x] = q; order.append(x)
            for x in G_: gate[x] = q
        RSEG = []; del pend[:]
        for x in order:
            if int(x[0]) > maxsg: pend.append(x); continue
            RSEG.append((start[x], gate.get(x, n+slack)-slack, rd_gu(x))); rdone.add(x)
        for x in gate: assert x in rdone, x
        LSEG = []; q = q0
        while SS:
            t = [y for y in SS if cls(y) == 1][0][2]
            if t[0] == 'S' and int(t[1]) >= 2:
                x = str(int(t[1])-2) + t[2]
                if x not in freed:
                    if x not in gate: break
                    q = max(q, gate[x])
            if int(q) >= n: break
            LSEG.append((int(q), min(n, int(q)+2), cutm(SS))); q += step
        freed.update(gate)
        return fx, RSEG, LSEG
    nw = sum(1 for x in WOL if ismem(x))
    FK = int(cfg.get('fk', 10)); RK = int(cfg.get('rk', 8)); N0 = int(cfg.get('n0', 8)); N1 = int(cfg.get('n1', 0))
    sprinkle(E1, cut(WOL, min(FK, nw - RK)))
    if cfg.get('iw'): idle_gu()
    vm.wait('st')
    a('s_barrier')
    vm.issue(f'buffer_store_dword v{vF1}, off, {SR(SRD_FL)}, s79 sc1' if FAR == 1 else f'buffer_store_dword v{vF1}, v{U+5}, {SR(SRD_FL)}, s79 offen sc1', 'flag')
    g.stamp('E.flag')
    if TL.get('fl'):
        a(f's_mov_b32 s82, s87')
        a(f's_lshl2_add_u32 s87, s{S_J}, s{W}')
        g.emits(touch('fl'))
        a(f's_mov_b32 s87, s82')
    nw = sum(1 for x in WOL if ismem(x))
    sprinkle(E2, cut(WOL, nw - RK))
    vm.wait('wo0')
    a('s_barrier')
    g.stamp('E.wo0')
    PL = ('vm', f'buffer_load_dword v{vD}, v{vT+1}, {SR(SRD_WS)}, s82 offen sc1', 'pl')
    NPL = int(cfg.get('np', 0))
    sprinkle(rd_wo((0, 1)), WOL + ([] if NPL else [PL]))
    SS = dma_gu(0) + dma_gu(1) + dma_gu(2) + dma_gu(3)
    lg.wait_all()
    a('s_barrier')
    if NPL: g.emits(cut(SS, NPL) + [PL])
    g.emits(cut(SS, N0 - NPL))
    vm.wait('pl')
    g.stamp('E.wo')
    def ldkv():
        L = []
        for h in range(8):
            so = (72, 73, 76)[h//3]
            for q in range(2):
                L.append(('vm', f'buffer_load_dwordx4 {vr(vKV+h*8+q*4,4)}, v{vT}, {SR(SRD_WS)}, s{so} offen offset:{(h%3)*1088+q*544} sc1', f'kv{h}'))
            L.append(('vm', f'buffer_load_dwordx4 {vr(vPQ+h*4,4)}, v{vL16}, {SR(SRD_WS)}, s{81 if h<4 else 75} offen offset:{(h&3)*1024} sc1', f'kv{h}'))
        return L
    a(f'v_cmp_gt_u32 vcc, 1, v{vD}')
    a('s_cbranch_vccnz LX_early')
    SN1 = cut(SS, N1)
    def ool_early():
        a.label('LX_early')
        vm.q = []; lg.q = []
        a('s_barrier')
        g.emits(rd_wo((2, 3)))
        poll(g, 'LB_poll', vT+1, vD, 1, 82, '1')
        g.emits(ldkv())
        g.emits(SN1)
        a('s_branch LB_join')
    OOL.append(ool_early)
    KV = ldkv()
    g.emits(cut(KV, int(cfg.get('kh', 6))))
    a('s_barrier')
    sprinkle(rd_wo((2, 3)), KV + SN1)
    a.label('LB_join')
    g.stamp('B.sync')
    a(f's_lshl2_add_u32 s72, s71, s{W}')
    a(f's_lshl_b32 s73, s70, 15')
    a(f's_lshl_b32 s74, s72, 10')
    a(f's_add_u32 s73, s73, s74')
    a(f's_add_u32 s73, s73, {WS_H}')
    a(f's_add_u32 s75, s73, 16384')
    a(f's_lshl4_add_u32 s74, s70, s72')
    a(f's_lshl_b32 s74, s74, 8')
    a(f's_add_u32 s74, s74, {WS_STATS}')
    lg.wait_all()
    R0A = N0 >= 8 and not cfg.get('nr0')
    if R0A: vm.wait('S0a')
    a('s_barrier')
    g.stamp('B.rd')
    if R0A: g.emits(rd_gu('0a')); rdone.add('0a'); freed.add('0a')
    def Dreg(h): return vD + (h % 4)*16
    def cvtkv(h):
        vm.wait(f'kv{h}')
        b = vKV + h*8
        for i in range(4): a(f'v_cvt_pk_bf16_f32 v{b+i}, v{b+2*i}, v{b+2*i+1}')
    def mmo(h): a(f'v_mfma_f32_32x32x16_bf16 {vr(Dreg(h),16)}, {vr(vKV+h*8,4)}, {vr(vPQ+h*4,4)}, 0')
    def den(h):
        d = Dreg(h)
        a(f'v_fma_f32 v{d+8}, v{d+8}, v{vT+5}, s{sE}')
        a(f'v_rcp_f32 v{d+8}, v{d+8}')
    assert N0 + N1 <= 16
    S1 = SS
    S1N = [int(x) for x in cfg.get('s1n', '2,2,2,2,2,2,2,1,1').split(',')]
    assert N0 + N1 + sum(S1N) <= 32
    g.emits(cut(S1, S1N[8]))
    cvtkv(0); cvtkv(1); mmo(0); cvtkv(2); mmo(1); den(0)
    g.stamp('B.kv')
    for h in range(8):
        d = Dreg(h)
        for i in range(4): a(f'v_pk_mul_f32 {v2(d+2*i)}, {v2(d+2*i)}, {v2(d+8)} op_sel_hi:[1,0]')
        if h + 2 < 8: mmo(h+2)
        g.emits(cut(S1, (S1N[h]+1)//2))
        for i in range(4): a(f'v_cvt_pk_bf16_f32 v{d+12+i}, v{d+2*i}, v{d+2*i+1}')
        if h + 1 < 8: den(h+1)
        lg.issue(f'ds_write_b128 v{vT+2}, {vr(d+12,4)} offset:{h*1024}', 'ow')
        g.emits(cut(S1, S1N[h]//2))
        if h + 3 < 8: cvtkv(h+3)
    lg.wait_all()
    BO = spec('0:' + cfg.get('bo', '0b').strip('-'))[0][1]
    if BO: vm.wait(*['S'+x for x in BO])
    pend += BO
    a('s_barrier')
    g.stamp('B.o')
    vO = 40
    def rdo(i): return ('lg', f'ds_read_b128 {vr(vO+i*4,4)}, v{vT+3} offset:{(i&15)*2048+(i>>4)*256}', f'o{i}')
    for i in range(12): g.emit(rdo(i))
    vS = 20
    def epiB(ch):
        m, t = ch >> 1, ch & 1
        b = vBa + 4*ch
        L = [f'v_cvt_pk_bf16_f32 v{vH+2*ch+i}, v{b+2*i}, v{b+2*i+1}' for i in range(2)]
        L.append(f'v_min_u32 v{vH+2*ch}, -2, v{vH+2*ch}')
        if t: L.append(('vm', f'buffer_store_dwordx4 {vr(vH+4*m,4)}, v{vL16}, {SR(SRD_WS)}, s{73+2*m} offen sc1', 'st'))
        for r in range(4):
            if t == 0 and r == 0:
                L += [f'v_add_f32 v{vS+2*m}, v{b}, v{b+1}', f'v_mul_f32 v{vS+2*m+1}, v{b}, v{b}']
            else:
                if not (t == 0 and r == 1): L.append(f'v_add_f32 v{vS+2*m}, v{vS+2*m}, v{b+r}')
                L.append(f'v_fmac_f32 v{vS+2*m+1}, v{b+r}, v{b+r}')
        return L
    assert N0 + N1 + sum(S1N) + int(cfg.get('nb0', 2)) <= (40 if R0A else 32)
    g.emits(cut(SS, int(cfg.get('nb0', 2))))
    lg.wait('o1')
    bfx, RSEG, LSEG = stage(64, spec(cfg.get('bb', '40:1a:0b')), float(cfg.get('bq', 2)), float(cfg.get('s1p', 4.5)), 1, 'X')
    mf = []
    for q in range(64):
        m, t, ks = q >> 5, (q >> 4) & 1, q & 15
        acc = vr(vBa + (2*m+t)*4, 4)
        fx = []
        q1 = q + 1
        if q1 < 64 and (q1 >> 4) & 1 == 0 and q1 % 2 == 0: fx.append(('wlg', f'o{(q1>>5)*16+(q1&15)+1}'))
        fx += bfx[q]
        if 12+q < 32: fx.append(rdo(12+q))
        mf.append((f'v_mfma_f32_16x16x32_bf16 {acc}, {ar(aWO(t,ks),4)}, {vr(vO+(m*16+ks)*4,4)}, {acc}', fx))
    weave(g, mf, [[(19, 34, epiB(0)), (35, 50, epiB(1)), (51, 64, epiB(2))], LSEG, RSEG], 8, 'B')
    print('S left after B', sum(1 for x in SS if cls(x) == 1), file=sys.stderr)
    g.emits(epiB(3))
    a(f'v_permlane32_swap_b32 v{vS}, v{vS+2}')
    a(f'v_permlane32_swap_b32 v{vS+1}, v{vS+3}')
    a(f'v_add_f32 v{vS}, v{vS}, v{vS+2}')
    a(f'v_add_f32 v{vS+1}, v{vS+1}, v{vS+3}')
    a(f'v_permlane16_swap_b32 v{vS}, v{vS+1}')
    a(f'v_add_f32 v{vS}, v{vS}, v{vS+1}')
    a(f'v_min_u32 v{vS}, -2, v{vS}')
    vm.issue(f'buffer_store_dword v{vS}, v{vSa}, {SR(SRD_WS)}, s74 offen sc1', 'st')
    g.stamp('B.st')
    vHf = 40; vCa = 104; vCsum = 120; vK4 = 136; vGt = 144; vOut = 156
    vDr = 4; vDd = 35; vHa = 20; vKa = 22; vPa = 23; vPl = 24; vHrA = 25; HR = (16, 18, 26, 28); vWa = (2, 96, 97, 98); vRa = 99; vOa = 100
    vSt = 160
    CONST = 147456
    vCk, vCv, vH0 = 3, 30, 34
    sWD = 47
    def csum(sgs):
        mf = []
        for rt in range(4):
            for sg in sgs:
                for k4 in range(4):
                    ks = sg*4 + k4
                    acc = vr(vCsum+rt*4, 4)
                    mf.append((f'v_mfma_f32_16x16x32_bf16 {acc}, {ar(aGU(rt,ks),4)}, {vr(vOnes,4)}, {"0" if ks==0 else acc}', []))
        return mf
    SU = [f's_lshl_b32 s73, s86, 17', f's_add_u32 s73, s73, s85', f's_add_u32 s73, s73, {WS_H}',
          f's_lshl_b32 s74, s86, 14', f's_add_u32 s74, s74, s85', f's_add_u32 s74, s74, {WS_STATS}',
          f's_and_b32 s70, s{S_J}, 1', f's_lshl1_add_u32 s70, s{S_XC}, s70', f's_lshr_b32 s71, s{S_J}, 2', f's_bfe_u32 s72, s{S_J}, 0x10001',
          f's_mul_i32 s75, s86, {8*56}', f's_lshl2_add_u32 s76, s87, s{W}', f's_add_u32 s75, s75, s76', f's_lshl_b32 s75, s75, 10', f's_add_u32 s75, s75, {WS_ACT}',
          f's_lshl4_add_u32 s77, s86, s87', f's_lshl_b32 s77, s77, {FSH}', f's_add_u32 s77, s77, {FC}',
          f's_mov_b64 s[{SRD_ACT}:{SRD_ACT+1}], s[{SRD_WS}:{SRD_WS+1}]', f's_cmp_ge_u32 s{S_J}, 28\ns_cselect_b32 s{SRD_ACT+2}, 0, {WS_SIZE}']
    SU2 = [f's_lshl_b32 s79, s70, {FSH+4}', f's_add_u32 s79, s79, {FC}', f's_lshl_b32 s80, s72, 15', f's_add_u32 s80, s80, s79', f's_add_u32 s81, s80, {3*32768}', f's_add_u32 s80, s80, 32768',
           f's_and_b32 s{SRD_FL+2}, s{SRD_FL+2}, s{SRD_ACT+2}',
           f's_lshl3_add_u32 s87, s70, s72', f's_mul_i32 s82, s87, 56', f's_mul_i32 s76, s{W}, 14', f's_add_u32 s82, s82, s76',
           f's_lshl_b32 s82, s82, 10', f's_add_u32 s82, s82, {WS_ACT}',
           f's_lshl_b32 s78, s87, 14', f's_lshl_b32 s86, s71, 11', f's_add_u32 s86, s86, s78',
           f's_lshl_b32 s72, s{W}, 2', f's_lshl4_add_u32 s86, s72, s86', f's_add_u32 s86, s86, {WS_H}',
           f's_lshl_b32 s87, s71, 7', f's_add_u32 s78, s78, s87', f's_mul_i32 s{sWD}, s{W}, {448*1024}', f's_add_u32 s{sWD}, s{sWD}, s87',
           f's_add_u32 s78, s78, s85', f's_mul_i32 s87, s{W}, {4096+1024+64}']
    VU = [f'v_lshrrev_b32 v{vT}, 3, v0', f'v_and_b32 v{vT+1}, 7, v0', f'v_and_b32 v{vT+2}, 6, v{vT}', f'v_xor_b32 v{vT+1}, v{vT+1}, v{vT+2}',
          f'v_lshlrev_b32 v{vT+1}, 4, v{vT+1}', f'v_lshl_add_u32 v{vDd}, v{vT}, 10, v{vT+1}']
    VU += [f'v_add_u32 v{vDd+i}, {i*(8192-1024)}, v{vDd}' for i in range(1, 4)]
    VU += [f'v_mov_b32 v{vHa}, v{vL16}', f'v_add_u32 v{vHa+1}, 65536, v{vL16}', f'v_and_b32 v{vT}, 15, v0',
           f'v_lshlrev_b32 v{vKa}, 4, v{vT}', f'v_add_u32 v{vKa}, {CONST}, v{vKa}',
           f'v_and_b32 v{vT+1}, 48, v0', f'v_xor_b32 v{vWa[0]}, v{vT+1}, v{vL16}',
           f'v_and_b32 v{vT+2}, 3, v0', f'v_lshl_add_u32 v{vHrA}, v{vT+2}, 8, v{vT+1}', f'v_and_b32 v{vT+2}, 4, v0', f'v_lshl_add_u32 v{vHrA}, v{vT+2}, 1, v{vHrA}',
           f'v_and_b32 v{vT+2}, 8, v0', f'v_lshl_add_u32 v{vHrA}, v{vT+2}, 7, v{vHrA}',
           f'v_add_u32 v{vH0}, 131072, v{vL16}',
           f'v_bfe_u32 v{vT+1}, v0, 4, 1', f'v_lshl_add_u32 v{vCk}, v{vT+1}, 3, v{vH0}', f'v_add_u32 v{vCk}, s85, v{vCk}']
    VP = [f'v_min_u32 v{vT}, 13, v0', f'v_add_u32 v{vT}, s76, v{vT}', f'v_lshrrev_b32 v{vT}, 2, v{vT}', f'v_lshlrev_b32 v{vPa}, {FSH}, v{vT}',
          f'v_xor_b32 v{vWa[0]}, s87, v{vWa[0]}']
    VO = [f'v_xor_b32 v{vWa[tau]}, {1088*tau}, v{vWa[0]}' for tau in range(1, 4)]
    VO += [f'v_and_b32 v{vOa+1}, 15, v0', f'v_lshrrev_b32 v{vOa+2}, 4, v0', f'v_lshlrev_b32 v{vOa}, 3, v{vOa+1}', f'v_lshl_add_u32 v{vOa}, v{vOa+2}, 10, v{vOa}',
           f'v_add_u32 v{vOa+2}, s72, v{vOa+2}', f'v_xor_b32 v{vOa+2}, v{vOa+2}, v{vOa+1}', f'v_lshl_add_u32 v{vOa+2}, v{vOa+1}, 4, v{vOa+2}', f'v_lshlrev_b32 v{vRa}, 4, v{vOa+2}']
    def hres(so=83):
        L = []
        for m in range(4): L += [f's_add_u32 s{so}, s86, {m*32768}', ('vm', f'buffer_load_dwordx2 {v2(HR[m])}, v{vHrA}, {SR(SRD_WS)}, s{so} offen sc1', 'hres')]
        return L
    RMX = [f'v_max3_u32 v{vH0}, v{HR[0]}, v{HR[1]}, v{HR[2]}', f'v_max_u32 v{vH0}, v{vH0}, v{HR[3]}']
    def haddr(s): return 16384*s if s else 131072
    def dma_h(s, so=83):
        L = [f's_add_u32 m0, s85, {haddr(s)}', f's_add_u32 s{so}, s73, {16384*s}']
        for i in range(4):
            L.append(('vm', f'buffer_load_dwordx4 v{vL16}, {SR(SRD_WS)}, s{so} offen offset:{i*1024} sc1 lds', f'h{s}'))
        return L
    STL = [('vm', f'buffer_load_dwordx4 {vr(vSt+4*i,4)}, v{vL16}, {SR(SRD_WS)}, s74 offen offset:{i*1024} sc1', 'stats') for i in range(4)]
    VD = [f'v_lshrrev_b32 v{vT}, 2, v0', f'v_bfe_u32 v{vT+1}, v0, 3, 2', f'v_xor_b32 v{vT+1}, s{W}, v{vT+1}', f'v_lshlrev_b32 v{vT}, 7, v{vT}',
          f'v_lshl_add_u32 v{vT}, v{vT+1}, 5, v{vT}', f'v_and_b32 v{vT+1}, 3, v0', f'v_lshl_add_u32 v{vT}, v{vT+1}, 3, v{vT}', f'v_add_u32 v{vT}, s85, v{vT}']
    for tau in range(4):
        VD += [f'v_xor_b32 v{vDr+3*tau}, {32*tau}, v{vT}', f'v_add_u32 v{vDr+3*tau+1}, 65536, v{vDr+3*tau}', f'v_add_u32 v{vDr+3*tau+2}, 131072, v{vDr+3*tau}']
    HP = int(cfg.get('hp', 16)); SP = int(cfg.get('sp', 8)); H1P = int(cfg.get('h1p', 0)); NL = int(cfg.get('nl', 25)); PR = 32/NL + 1e-6
    nz = sum(1 for x in SS if cls(x) == 1)
    assert HP % 4 == 0 and H1P % 4 == 0 and H1P <= SP <= HP < nz and PR >= 1
    Z1 = cut(SS, nz - HP); Z2 = cut(SS, HP - SP); Z3 = cut(SS, SP - H1P)
    SS[:0] = Z1 + g.st('P.hi') + dma_h(0) + Z2 + STL + Z3 + dma_h(1)
    assert nz - HP + 4 <= NL <= nz - H1P + 8
    PSP = spec(cfg.get('pb', '0:1b:1a,14:2a:1b,26:2b:'))
    assert PSP[0][0] <= (nz - HP)*PR
    def rdh(s, ks): return ('lg', f'ds_read_b128 {vr(vHf+ks*4,4)}, v{vHa+(s>>2) if s else vH0} offset:{(s&3)*16384+ks*1024}', f'f{ks}')
    def hchk1(s): return [('wvm', f'h{s}')] + [('lg', f'ds_read2st64_b32 {v2(vCv+2*i)}, v{vCk} offset0:{(s&3)*64+8*i} offset1:{(s&3)*64+8*i+4}', 'ck') for i in range(2)]
    HMX = [f'v_max3_u32 v{vCv}, v{vCv}, v{vCv+1}, v{vCv+2}', f'v_max_u32 v{vCv}, v{vCv}, v{vCv+3}']
    def hchk2a(): return [('wlg', 'ck')] + HMX
    MF = csum((0,)) + csum((1,))
    fx, RSEG, LSEG = stage(32, PSP, 0, PR, 2, 'P', 0)
    assert not pend and len(LSEG) == NL and {'1a', '1b'} <= freed
    q = 0
    for st_, en_, R in RSEG:
        q = max(q, st_); tg = R[0][2]
        while R: fx[q] += cut(R, 4); q += 1
        assert q <= en_, (tg, q, en_)
        assert q <= 15 or tg[1] == '2', (tg, q)
    fx[15].insert(0, ('wlg', 'g1a', 'g1b'))
    for st_, en_, R in LSEG: fx[st_] += R
    fx[int(cfg.get('hc', 30))] += hchk1(0)
    lg.wait('g0a', 'g0b')
    weave(g, [(m[0], sorted(f, key=cls)) for m, f in zip(MF, fx)], [[(0, 1, SU[:6]), (0, 10, SU[6:]), (8, 28, VU + SU2 + VP + VD)]], 56, 'P1')
    SREST = list(SS)
    def slot(sg): return haddr(sg-1) if sg else 0
    def dma_wd(p, sg):
        L = [f's_add_u32 m0, s85, {slot(sg)}', f's_add_u32 s83, s{sWD}, {p*32768}']
        for i in range(4):
            L.append(('vm', f'buffer_load_dwordx4 v{vDd+i}, {SR(SRD_WD)}, s83 offen offset:{i*1024} lds', f'wd{p}'))
        return L
    AW = {6: 64, 7: 80, 8: 192, 9: 208, 10: 96, 11: 112, 12: 224, 13: 240}
    def wdreg(p, tau):
        if p < 6: return 'v', 160 + p*16 + tau*4
        return 'a', AW[p] + tau*4
    def rd_wd(p, sg):
        L = []
        ad = slot(sg)
        for tau in (1, 2, 3, 0):
            f, r = wdreg(p, tau)
            for h2 in range(2):
                L.append(('lg', f'ds_read_b64_tr_b16 {vr(r+2*h2,2,f)}, v{vDr+3*tau+(ad>>16)} offset:{(ad&65535)+h2*2048}', f'rw{p}'))
        return L
    FINAL = {6: 4, 7: 2, 8: 5, 9: 0, 10: 6, 11: 3, 12: 7, 13: 1}
    def actreg(m, i):
        if m == 3: return vr(40 + 4*i, 4)
        b = 32*(m & 1)
        return ar(b + 4*i if i < 8 else 128 + b + 4*(i-8), 4)
    def ld_act(m, i0=0, so=70):
        L = []
        for i in range(i0, 14):
            if i % 4 == 0 or i == i0: L.append(f's_add_u32 s{so}, s82, {(2*m*56+(i&~3))*1024}')
            L.append(('vm', f'buffer_load_dwordx4 {actreg(m,i)}, v{vL16}, {SR(SRD_WS)}, s{so} offen offset:{(i&3)*1024} sc1', f'a{m}_{i}'))
        return L
    NA0 = int(cfg.get('na0', 12)); NW7 = int(cfg.get('nw7', 2))
    a(f's_cmp_ge_u32 s{S_J}, 28')
    a('s_cbranch_scc1 LC_idle')
    def ool_idle():
        a.label('LC_idle')
        vm.q = []; lg.q = []
        if cfg.get('iw'):
            g.emits([x for x in SREST if isinstance(x, str) or (not callable(x) and x[2][0] == 'S')])
            a(f's_and_b32 s70, s{S_J}, 3')
            a(f's_lshl_b32 s70, s70, 13')
            a(f's_mul_i32 s83, s{W}, {448*1024}')
            a(f's_add_u32 s70, s70, s83')
            a(f'v_lshlrev_b32 v{vTa}, 7, v0')
            for t in range(7):
                a(f's_add_u32 s83, s70, {(224+32*t)*1024}')
                a(f'buffer_load_dword v{vTa+1}, v{vTa}, {SR(SRD_WD)}, s83 offen')
        vm.wait_all(); lg.wait_all()
        a('s_barrier')
        for p in range(6): g.emits(dma_wd(p, p))
        vm.wait_all()
        for p in range(6): g.emits(rd_wd(p, p))
        lg.wait_all()
        for p in range(6, 14): g.emits(dma_wd(p, FINAL[p]))
        for i in range(int(cfg.get('isl', 0))): a('s_sleep 127')
        poll(g, 'LI_poll', vPa, vPl, 1, 79, '1')
        a.label('LI_hr')
        g.emits(hres())
        vm.wait_all()
        g.emits(RMX)
        a(f'v_cmp_eq_u32 vcc, {SEN}, v{vH0}')
        guard(g, 3)
        a('s_cbranch_vccnz LI_hr')
        g.emits(cut(ld_act(0), NA0))
        for p in range(6, 6+NW7): g.emits(rd_wd(p, FINAL[p]))
        vm.wait_all(); lg.wait_all()
        a('s_branch LD_start')
    OOL.append(ool_idle)
    g.stamp('P.cs')
    def hchk2(s):
        def f():
            a.label(f'LH_{s}')
            a(f'v_cmp_eq_u32 vcc, {SEN}, v{vCv}')
            a(f's_cbranch_vccnz LX_h{s}')
        def o():
            a.label(f'LX_h{s}')
            a('s_mov_b32 s44, m0')
            for x in dma_h(s, 45): a(x if isinstance(x, str) else x[1])
            a('s_mov_b32 m0, s44')
            a('s_waitcnt vmcnt(0)')
            for x in hchk1(s)[1:]: a(x[1])
            a('s_waitcnt lgkmcnt(0)')
            for x in HMX: a(x)
            guard(g, 1 if s == 0 else 3)
            a(f's_branch LH_{s}')
        OOL.append(o)
        L = [f]
        if s == 0: L.append(f'v_subrev_u32 v{vCk}, 131072, v{vCk}')
        if s == 3: L.append(f'v_add_u32 v{vCk}, 65536, v{vCk}')
        return L
    vSm = 240
    SMX = [f'v_max3_u32 v{vSm+i}, v{vSt+3*i}, v{vSt+3*i+1}, v{vSt+3*i+2}' for i in range(2)]
    SMX += [f'v_max3_u32 v{vSm+(i&1)}, v{vSm+(i&1)}, v{vSt+6+2*i}, v{vSt+7+2*i}' for i in range(5)]
    SMX += [f'v_max_u32 v{vSm}, v{vSm}, v{vSm+1}']
    def schk():
        a.label('LS_chk')
        a(f'v_cmp_eq_u32 vcc, {SEN}, v{vSm}')
        a(f's_cbranch_vccnz LX_st')
    def ool_st():
        a.label('LX_st')
        for x in STL: a(x[1])
        a('s_waitcnt vmcnt(0)')
        for x in SMX: a(x)
        guard(g, 2)
        a('s_branch LS_chk')
    OOL.append(ool_st)
    c0 = -2*0.7978845608028654*LOG2E
    def consts():
        L = [('wvm', 'stats')] + SMX + [schk] + g.st('C.st')
        for st in (8, 4):
            for i in range(st): L.append(f'v_add_f32 v{vSt+i}, v{vSt+i}, v{vSt+i+st}')
        x, y = vSt, vSt+1
        o = vSt+4
        L += [f'v_lshrrev_b32 v{vSt+8}, 5, v0', f'v_and_b32 v{vSt+9}, 15, v0',
              f'v_permlane32_swap_b32 v{vSt}, v{vSt+2}', f'v_permlane32_swap_b32 v{vSt+1}, v{vSt+3}',
              f'v_add_f32 v{x}, v{x}, v{vSt+2}', f'v_add_f32 v{y}, v{y}, v{vSt+3}',
              f'v_mov_b32 v{vSt+2}, v{x}', f'v_mov_b32 v{vSt+3}, v{y}',
              f'v_lshl_add_u32 v{vSt+8}, v{vSt+9}, 1, v{vSt+8}', f's_lshl_b32 s76, s{W}, 9', f's_add_u32 s76, s76, {CONST}',
              f'v_permlane16_swap_b32 v{x}, v{vSt+2}', f'v_permlane16_swap_b32 v{y}, v{vSt+3}',
              f'v_add_f32 v{x}, v{x}, v{vSt+2}', f'v_add_f32 v{y}, v{y}, v{vSt+3}',
              f'v_mul_f32 v{o}, {fbits(-1/512)}, v{x}',
              f'v_mul_f32 v{y}, {fbits(1/512)}, v{y}',
              f'v_fma_f32 v{y}, -v{o}, v{o}, v{y}',
              f'v_max_f32 v{y}, 0, v{y}',
              f'v_add_f32 v{o+3}, {fbits(1e-5)}, v{y}',
              f'v_rsq_f32 v{x}, v{o+3}',
              f'v_lshl_add_u32 v{vSt+8}, v{vSt+8}, 4, s76',
              f'v_mul_f32 v{y}, v{x}, v{x}',
              f'v_mul_f32 v{o+1}, {fbits(c0)}, v{x}',
              f'v_mul_f32 v{y}, {fbits(0.044715)}, v{y}',
              f'v_mul_f32 v{o+2}, v{o+1}, v{y}',
              ('lg', f'ds_write_b128 v{vSt+8}, {vr(o,4)}', 'cw')]
        return L
    def gelu(pair, s):
        K = vK4 + 4*(s & 1)
        nm, k0, k1, vv = K, K+1, K+2, K+3
        ag = vCa + pair*8; au = ag + 4; cg = vCsum + pair*8; cu = cg + 4
        t, u, e = vGt, vGt+4, vGt+8
        L = []
        if pair == 0: L.append(('wlg', f'k{s}'))
        R = range(4)
        L += [f'v_fma_f32 v{t+i}, v{nm}, v{cg+i}, v{ag+i}' for i in R]
        L += [f'v_fma_f32 v{u+i}, v{nm}, v{cu+i}, v{au+i}' for i in R]
        n1 = len(L)
        L += [f'v_mul_f32 v{e+i}, v{t+i}, v{t+i}' for i in R]
        L += [f'v_fma_f32 v{e+i}, v{e+i}, v{k1}, v{k0}' for i in R]
        L += [f'v_mul_f32 v{e+i}, v{e+i}, v{t+i}' for i in R]
        L += [f'v_exp_f32 v{e+i}, v{e+i}' for i in R]
        L += [f'v_mul_f32 v{t+i}, v{t+i}, v{u+i}' for i in R]
        L += [f'v_fma_f32 v{e+i}, v{e+i}, v{vv}, v{vv}' for i in R]
        L += [f'v_rcp_f32 v{e+i}, v{e+i}' for i in R]
        L += [f'v_mul_f32 v{t+i}, v{t+i}, v{e+i}' for i in R]
        L += [f'v_cvt_pk_bf16_f32 v{vOut+2*pair+i}, v{t+2*i}, v{t+2*i+1}' for i in range(2)]
        if pair == 0 and s >= 6: L.append(f'v_min_u32 v{vOut}, -2, v{vOut}')
        if pair == 1:
            L.insert(n1, f's_add_u32 s76, s75, {s*56*1024}')
            L.append(('vm', f'buffer_store_dwordx4 {vr(vOut,4)}, v{vL16}, {SR(SRD_ACT)}, s76 offen sc1', f'act{s}'))
        return L
    def flagW(): return [('vm', f'buffer_store_dword v{vF1}, off, {SR(SRD_FL)}, s77 sc1', 'flag'), 's_add_u32 s77, s77, 32768']
    def flagC(n): return g.st(f'F.{n}a') + [('wvm', f'act{n-1}'), 's_barrier'] + g.st(f'F.{n}b') + flagW()
    PS = {'p1': 79, 'p2': 80, 'p3': 81}
    def pload(tag): return [('vm', f'buffer_load_dword v{vPl}, v{vPa}, {SR(SRD_WS)}, s{PS[tag]} offen sc1', tag)]
    def pcheck(tag, need=1):
        def f():
            a.label(f'LP_{tag}')
            a(f'v_cmp_gt_u32 vcc, {need}, v{vPl}')
            a(f's_cbranch_vccnz LX_{tag}')
        def o():
            a.label(f'LX_{tag}')
            a(f'buffer_load_dword v{vPl}, v{vPa}, {SR(SRD_WS)}, s{PS[tag]} offen sc1')
            a('s_waitcnt vmcnt(0)')
            guard(g, 5 if tag == 'p3' else 4)
            a(f's_branch LP_{tag}')
        OOL.append(o)
        return g.st(f'Q.{tag}a') + [('wvm', tag)] + g.st(f'Q.{tag}b') + [f] + g.st(f'Q.{tag}c')
    lg.wait_all()
    g.emits(hchk2a() + hchk2(0))
    a('s_barrier')
    g.stamp('C.h0')
    for ks in range(8): g.emit(rdh(0, ks))
    g.emits(cutm(SS))
    lg.wait('f3')
    mf = []; GS = []; DS = []; RS = []; XS = []
    X1, X2, X3, CQ = int(cfg.get('x1', 55)), int(cfg.get('x2', 72)), int(cfg.get('x3', 86)), int(cfg.get('cq', 30))
    BQ = [X3, int(cfg.get('bq1', 30))] + [13]*6
    LAG = [int(x) for x in cfg.get('lag', '16,10,5,0,0,0,0,0').split(',')]
    base = lambda s: 64*s + 32 if s else 0
    def cm(rt, ks): return f'v_mfma_f32_16x16x32_bf16 {vr(vCa+rt*4,4)}, {ar(aGU(rt,ks),4)}, {vr(vHf+ks*4,4)}, {"0" if ks==0 else vr(vCa+rt*4,4)}'
    def kread(s): return ('lg', f'ds_read_b128 {vr(vK4+4*(s&1),4)}, v{vKa} offset:{s*256}', f'k{s}')
    CS3 = csum((3,))
    M0 = [cm(rt, ks) for rt in range(4) for ks in range(12)] + [m[0] for m in csum((2,))]
    for hf in range(2):
        for rt in range(4): M0 += [cm(rt, 12+hf), cm(rt, 14+hf), CS3[4*rt+hf][0], CS3[4*rt+2+hf][0]]
    fx = [[] for _ in M0]
    fx[3].append(('wlg', 'f7')); fx[7].append(('wlg', 'f11'))
    fx[X1] += [('wvm', 'S3a'), ('wlg', 'f15'), 's_barrier'] + g.st('C.x1')
    fx[X2] += [('wvm', 'S3b'), ('wlg', 'cw'), 's_barrier'] + g.st('C.x2')
    for hf in range(2):
        for rt in (0, 2): fx[63+16*hf+4*rt].append(('wlg', f'r{hf}{rt+1}'))
    fx[81].append(kread(0))
    fx[X3-int(cfg.get('x3c', 7))] += hchk1(1)
    fx[X3-2] += hchk2a()
    fx[X3-1] += [('wlg', 'r13')] + hchk2(1)
    fx[X3] += ['s_barrier'] + g.st('C.x3')
    fx[94] += [rdh(1, 13)]; fx[95] += [('wlg', 'f3')] + g.st('C.it0') + [rdh(1, 15)]
    assert X1 < 62 and 64 <= X2 < 78 and X2 + 6 <= X3 - 1 and X3 <= 90
    mf += [(m, sorted(f, key=cls)) for m, f in zip(M0, fx)]
    R3 = [[(x[0], x[1], f'r{hf}{i>>2}') for i, x in enumerate(rd_gu('3'+'ab'[hf]))] for hf in range(2)]
    RS += [(0, 4, [rdh(0, k_) for k_ in range(8, 16)]), (X1, min(X1+4, 62), R3[0][:8]), (X1, X1+8, R3[0][8:]), (X2, min(X2+3, 78), R3[1][:8]), (X2, X2+6, R3[1][8:]),
           (X3, X3+2, [rdh(1, k_) for k_ in range(4)]), (X3, 94, [rdh(1, k_) for k_ in (4, 5, 6, 7, 8, 9, 10, 11, 12, 14)])]
    GS.append((CQ, X2-2, consts()))
    for s in range(8):
        bq = BQ[s]; B = base(s); E = base(s+1)
        for q in range(64 if s else 0):
            rt, ks = q >> 4, q & 15
            fx = []
            if q in (3, 7, 11): fx.append(('wlg', f'f{q+4}'))
            if q == 63 and s < 7: fx.append(('wlg', 'f3'))
            if q == bq-9 and s < 7: fx += hchk1(s+1)
            if q == bq-2 and s < 7: fx += hchk2a()
            if q == bq-1:
                if s >= 5: fx.append(('wvm', f'act{s-2}'))
                if s < 7: fx += hchk2(s+1)
            if q == bq: fx.append('s_barrier')
            if q == 14: fx.append(kread(s))
            if q == 63: fx += g.st(f'C.it{s}')
            if rt == 3 and s < 7: fx.append(rdh(s+1, ks))
            mf.append((cm(rt, ks), fx))
        g0 = gelu(0, s); g1 = gelu(1, s)
        if s: GS.append((B+34, E-1, g0[:9]))
        else: GS += [(86, 95, g0[:5]), (90, 100, g0[5:9])]
        GS.append((B+34, E+8+LAG[s] if s < 7 else E, g0[9:]))
        GS.append((E+2, E+31, g1[:8])); GS.append((E+2, E+40+LAG[s], g1[8:]))
        if s >= 5: XS.append((B+bq, B+bq+2, flagW()))
        if s == 6: XS.append((B+40, B+46, pload('p1')))
    PCC = float(cfg.get('pcc', 4)); LAT = int(cfg.get('lat', 56)); RWN = int(cfg.get('rwn', 14))
    SLOT = dict(FINAL); SLOT.update({0: 0, 1: 1, 2: 2, 3: 0, 4: 3, 5: 1})
    t = 2.0; occ = {}; done = {}; rl = 100
    DS += paced(SS, t, float(cfg.get('p0', 4.5))); t = DS[-1][0] + PCC
    msg = []; RCD = []
    for jb in cfg.get('jobs', 'h2,h3,w0,w1,h4,w2,z6,w3,h5,w4,w5,w6,h6,w7,r0,w8,h7,w9,w10,w11,w12,w13').split(','):
        n = int(jb[1:]); t0 = t
        if jb[0] == 'r':
            def rchk():
                a.label('LR_chk')
                a(f'v_cmp_eq_u32 vcc, {SEN}, v{vH0}')
                a(f's_cbranch_vccnz LX_hr')
            def ool_hr():
                a.label('LX_hr')
                for x in hres(45): a(x if isinstance(x, str) else x[1])
                a('s_waitcnt vmcnt(0)')
                for x in RMX: a(x)
                guard(g, 3)
                a('s_branch LR_chk')
            OOL.append(ool_hr)
            assert t > 100
            DS += paced(hres(), t, PCC); t += 4*PCC
            RCK = cfg.get('rck', '80')
            if RCK[0] == 'D': RCD = [(int(RCK[1:]), int(RCK[1:])+10, [('wvm', 'hres')] + RMX + [rchk])]
            else: XS.append((int(t)+int(RCK), int(t)+int(RCK)+10, [('wvm', 'hres')] + RMX + [rchk])); XS.sort(key=lambda x: x[0])
            msg.append(f'{jb}@{(t0-32)/64:.2f}')
            continue
        if jb[0] == 'z':
            assert 5 not in done
            L = []
            for i in range(2): L += [f's_add_u32 s83, s75, {(n+i)*56*1024}', ('vm', f'buffer_store_dwordx4 {vr(vSen,4)}, v{vL16}, {SR(SRD_ACT)}, s83 offen sc1', 'zf')]
            DS += paced(L, t, PCC); t += 2*PCC
            assert t < base(3)
            continue
        if jb[0] == 'h':
            if n >= 4: t = max(t, X3)
            L = dma_h(n)
            assert t + 3*PCC + 40 <= base(n-1) + BQ[n-1] - 9, (jb, t)
        else:
            sg = SLOT[n]; L = dma_wd(n, sg)
            if sg in occ:
                p = occ[sg]; r0 = int(max(done[p] + LAT, rl, t - RWN - 2 - int(cfg.get('rwe', 16))))
                RS.append((r0, max(r0 + RWN, int(t) - 2), [('wvm', f'wd{p}')] + rd_wd(p, sg))); rl = RS[-1][1]
                t = max(t, rl + 2); L = [('wlg', f'rw{p}')] + L
            elif sg == 1: t = max(t, X1)
            elif sg: t = max(t, base(sg-1) + BQ[sg-1])
            occ[sg] = n
        DS += paced(L, t, PCC)
        msg.append(f'{jb}@{(t-32)/64:.2f}' + (f'(+{t-t0:.0f})' if t > t0 else ''))
        t += 4*PCC; done[n if jb[0] == 'w' else jb] = t - PCC
    print(' '.join(msg), file=sys.stderr)
    B = 480
    XS.append((B+14, B+17, pcheck('p1')))
    LA = ld_act(0)
    for i in range(NA0):
        q = B + 16 + 48*i//NA0
        XS.append((q, q+2, cut(LA, 1)))
    RW = []
    for p in range(6, 6+NW7): RW += rd_wd(p, FINAL[p])
    RS.append((B+48, B+64, [('wvm', f'wd{5+NW7}')] + RW))
    DA = ((104, 108, 120, 124), (112, 116, 128, 132))
    vRd = 144; vU4 = 136
    def red1(m):
        return [('lg', f'ds_write_b128 v{vWa[tau]}, {vr(DA[m&1][tau],4)} offset:{16384*m}', 'dw') for tau in (1, 2, 3, 0)]
    def unp(m):
        L = [f's_add_u32 s84, s78, {m*32768}']
        for i in range(2):
            L += [f'v_lshlrev_b32 v{vU4+2*i}, 16, v{HR[m]+i}', f'v_and_b32 v{vU4+2*i+1}, 0xffff0000, v{HR[m]+i}']
        return L
    def red2(m):
        L = [('wlg', 'dw'), 's_barrier']
        L += [('lg', f'ds_read_b128 {vr(vRd+4*w_,4)}, v{vRa} offset:{16384*m+4096*w_}', f'dr{w_>>1}') for w_ in range(4)]
        return L + (unp(m) if m < 3 else [])
    OB = cfg.get('ob', '')
    def red3(m):
        if m == 3:
            P = lambda d, x, y: [f'v_pk_add_f32 {v2(d+2*i)}, {v2(x+2*i)}, {v2(y+2*i)}' for i in range(2)]
        else:
            P = lambda d, x, y: [f'v_add_f32 v{d+i}, v{x+i}, v{y+i}' for i in range(4)]
        L = [('wlg', 'dr0' if m == 3 else 'dr1')] + P(vU4, vU4, vRd) + P(vU4, vU4, vRd+4) + [('wlg', 'dr1')] + P(vRd+8, vRd+8, vRd+12) + P(vU4, vU4, vRd+8)
        L += [f'v_cvt_pk_bf16_f32 v{HR[m]+i}, v{vU4+2*i}, v{vU4+2*i+1}' for i in range(2)]
        L += [('vm', f'buffer_store_dwordx2 {v2(HR[m])}, v{vOa}, {SR(SRD_OUT)}, s84 offen {OB}', 'out')]
        return L
    def dlabel():
        a.label('LD_start')
    tailseg = [GS.pop(), GS.pop()][::-1]
    weave(g, mf, [GS, DS, RS, XS], [8]*len(mf) if cfg.get('flex') else 8, 'C')
    dlabel()
    vm.wait('a0_0')
    mf = []; GS = []; RS = []; XS = []; ES = []
    I3 = int(cfg.get('i3', 10))
    AG = [int(x) for x in cfg.get('ag', '3,3,3,3,2').split(',')]; assert sum(AG) == 14 and max(AG) <= 3
    AG0 = {sum(AG[:i]): AG[i] for i in range(len(AG))}
    def achk(i0):
        n = AG0[i0]; r = [f'v{40+4*i}' for i in range(i0, i0+n)]
        mx = [f'v_max3_u32 v{vPl}, {r[0]}, {r[1]}, {r[2]}'] if n == 3 else [f'v_max_u32 v{vPl}, {r[0]}, {r[1]}'] if n == 2 else []
        def f():
            a.label(f'LA_{i0}')
            for x in mx: a(x)
            a(f'v_cmp_eq_u32 vcc, {SEN}, {r[0] if n == 1 else f"v{vPl}"}')
            a(f's_cbranch_vccnz LX_a{i0}')
        def o():
            a.label(f'LX_a{i0}')
            for x in ld_act(3, i0, 45): a(x if isinstance(x, str) else x[1])
            a('s_waitcnt vmcnt(0)')
            guard(g, 5)
            a(f's_branch LA_{i0}')
        OOL.append(o)
        return [('wvm', f'a3_{i0+n-1}'), f]
    for m in range(4):
        B = 56*m
        n1 = I3 if m == 3 else 14
        order = [(tau, i) for i in range(n1) for tau in (1, 2, 3, 0)] + [(tau, i) for tau in (1, 2, 3, 0) for i in range(n1, 14)]
        for q, (tau, i) in enumerate(order):
            acc = vr(DA[m&1][tau], 4)
            f, r = wdreg(i, tau)
            fx = []
            if q + 1 < 56:
                t1, i1 = order[q+1]
                if t1 == 1 and m == 3:
                    if i1 in AG0: fx += achk(i1)
                elif t1 == 1:
                    fx.append(('wvm', f'a{m}_{i1}'))
                    if m == 0 and i1 >= 6: fx.append(('wlg', f'rw{i1}'))
            elif m < 3: fx += [('wvm', f'a{m+1}_0')] if m < 2 else achk(0)
            if q == 55: fx += g.st(f'D.m{m}')
            mf.append((f'v_mfma_f32_16x16x32_bf16 {acc}, {vr(r,4,f)}, {actreg(m,i)}, {"0" if i==0 else acc}', fx))
        if m:
            ES.append((B, B+9, red1(m-1), 2)); ES.append((B+14, B+24, red2(m-1))); ES.append((B+26, B+40, red3(m-1)))
        else: ES.append((40, 55, VO))
        if m == 3:
            R = red1(3); k3 = 14 - n1
            WL = [int(x) for x in cfg.get('wl', '4,6,6').split(',')]; RL = list(R)
            ES.append((B+4*n1+k3-1, B+4*n1+k3+WL[0]-1, unp(3)))
            for t in range(3):
                q = 4*n1+k3*(t+1)+WL[t]-1
                if q < 55: ES.append((B+q, B+q+1, [RL.pop(0)]))
    GT = int(cfg.get('gt', 20))
    GS = [(2, GT, tailseg[0][2] + tailseg[1][2])]
    RS = [(0, 1, [('wvm', 'wd13')])]
    for p in range(6+NW7, 14): RS.append((0, 4*p-4, rd_wd(p, FINAL[p])))
    F7, F8, PL2, PL3 = int(cfg.get('f7', 8)), int(cfg.get('f8', 70)), int(cfg.get('pl2', 30)), int(cfg.get('pl3', 110))
    P3 = int(cfg.get('p3', 0)); PC = float(cfg.get('pc', 4))
    LS = LA + ld_act(1) + pcheck('p2') + g.st('D.p2') + ld_act(2)
    LQ = []; q = 0.0
    while LS:
        LQ.append((int(q), int(q)+2, cutm(LS))); q += PC
        tg = LQ[-1][2][-1][2]
        assert tg[:2] != 'a2' or LQ[-1][0] >= 4*int(tg[3:]) + 3
    q = max(q, P3); LS = g.st('D.p3') + ld_act(3)
    print('a3 from', q, file=sys.stderr)
    PC3 = float(cfg.get('pc3', PC))
    while LS:
        LQ.append((int(q), int(q)+2, cutm(LS))); q += PC3
    XS = sorted([(PL2, PL2+2, pload('p2'))] + RCD, key=lambda x: x[0])
    weave(g, mf, [GS, RS, XS, LQ, ES], [8]*len(mf) if cfg.get('flex') else 8, 'D')
    g.emits(RL + red2(3) + red3(3))
    g.stamp('D.end')
    if cfg.get('dbgst'):
        a('s_waitcnt lgkmcnt(0)')
        a(f's_lshl2_add_u32 s70, s{S_WG}, s{W}')
        a(f's_cmp_lg_u32 s70, {int(cfg["dbgst"])*4}')
        a('s_cbranch_scc1 Lend')
        for i in range(1, min(g.ns, 17)):
            a(f's_sub_u32 s70, s{TSREG[i]}, s{TSREG[0]}')
            a(f'v_mov_b32 v2, s70')
            a(f'buffer_store_dword v2, off, {SR(SRD_DBG)}, 0 offset:{4*(i-1)}')
    elif cfg.get('stamps'):
        a('s_waitcnt lgkmcnt(0)')
        a(f's_lshl2_add_u32 s70, s{S_WG}, s{W}')
        a(f's_lshl_b32 s70, s70, 7')
        a(f's_add_u32 s70, s70, {WS_TS}')
        for i in range(g.ns):
            a(f'v_mov_b32 v2, s{TSREG[i]}')
            a(f'buffer_store_dword v2, off, {SR(SRD_WS)}, s70 offset:{4*i}')
        a(f'v_mov_b32 v2, s101')
        a(f'buffer_store_dword v2, off, {SR(SRD_WS)}, s70 offset:124')
    a.label('Lend')
    a('s_endpgm')
    for o in OOL[::-1]:
        a.hist = []
        o()
    a.label('Lfin')
    hdr = '; @launch grid=(256,1,1) block=(256,1,1) lds=163840\n'
    if cfg.get('stamps') and not cfg.get('dbgst'): hdr += '; stamps: ' + ','.join(g.names) + '\n'
    hdr += '.amdgcn_target "amdgcn-amd-amdhsa--gfx950"\n.text\n'
    KD = f""".section .rodata,"a"
.p2align 6
.amdhsa_kernel {k}
  .amdhsa_next_free_vgpr 512
  .amdhsa_next_free_sgpr 102
  .amdhsa_accum_offset 256
  .amdhsa_group_segment_fixed_size 0
  .amdhsa_kernarg_size 80
  .amdhsa_user_sgpr_count 2
  .amdhsa_user_sgpr_kernarg_segment_ptr 1
  .amdhsa_system_sgpr_workgroup_id_x 1
.end_amdhsa_kernel
"""
    print('nops', a.nops, 'stamps', g.ns, file=sys.stderr)
    if cfg.get('tour'): add_pads(a, hdr, KD, [int(x) for x in str(cfg['tour']).split('+')])
    return hdr + a.text() + KD

def add_pads(a, hdr, KD, offs):
    import subprocess, re
    stub = ''.join(f'Lpad_e{w}:\n' for w in range(4))
    open('_pad.s', 'w').write(hdr + a.text() + stub + KD)
    subprocess.run(['clang', '-x', 'assembler', '-target', 'amdgcn-amd-amdhsa', '-mcpu=gfx950', '-c', '_pad.s', '-o', '_pad.o'], check=True)
    dis = subprocess.run(['llvm-objdump', '-d', '_pad.o'], capture_output=True, text=True).stdout
    addr = [int(m.group(1), 16) for m in re.finditer(r'// ([0-9A-F]{12}):', dis)]
    idx = [i for i, l in enumerate(a.lines) if l.startswith('    ') and not l.strip().startswith(';')]
    assert len(addr) == len(idx), (len(addr), len(idx))
    end = addr[-1]
    pads = []; sh = 0
    for pg in range(1, end // 4096 + 2):
        for o in offs:
            t = pg*4096 + o
            c = [j for j in range(1, len(addr)) if t <= addr[j] + sh + 4 < t + 60]
            if not c: continue
            best = [j for j in c if 'v_mfma' in a.lines[idx[j-1]] and idx[j] == idx[j-1] + 1] or [j for j in c if idx[j] == idx[j-1] + 1]
            pads.append(best[0]); sh += 8
    n = len(pads); per = -(-n // 4)
    for k_ in range(n-1, -1, -1):
        nxt = f'Lpad_{k_+1}' if (k_+1) % per and k_+1 < n else 'Lpad_ret'
        ent = f'Lpad_e{k_//per}:\n' if k_ % per == 0 else ''
        a.lines.insert(idx[pads[k_]], f'    s_branch Lpad_s{k_}\n{ent}Lpad_{k_}:\n    s_branch {nxt}\nLpad_s{k_}:')
    r = a.lines.index('Lpad_ret:')
    for w in range(-(-n // per), 4): a.lines.insert(r, f'Lpad_e{w}:')
    print('pads', n, file=sys.stderr)

if __name__ == '__main__':
    out = sys.argv[1]
    cfg = {}
    for o in sys.argv[2:]:
        k_, _, v = o.partition('=')
        cfg[k_] = v.split(',') if k_ == 'sel' else (v or True)
    open(out, 'w').write(build(cfg))
```
